```python
import torch

def _softmax(x, axis=-1):
    return torch.softmax(x, dim=axis)
def _gelu(x):
    return torch.nn.functional.gelu(x, approximate="tanh")
def _silu(x):
    return torch.nn.functional.silu(x)
def _sigmoid(x):
    return torch.sigmoid(x)
def _layernorm(x, axis=-1, eps=1e-5):
    m = x.mean(dim=axis, keepdim=True)
    v = x.var(dim=axis, keepdim=True, unbiased=False)
    return (x - m) / torch.sqrt(v + eps)
def _scatter_add(tgt, idx, src, axis=0):
    return tgt.clone().index_add_(axis, idx, src)
def _segment_sum(src, seg, n):
    out = torch.zeros((n,) + src.shape[1:], dtype=src.dtype)
    return out.index_add_(0, seg, src)
def _pad(x, pw):
    flat = tuple(v for pair in reversed(pw) for v in pair)
    return torch.nn.functional.pad(x, flat)

kernel_name = 'parallel_sum__ssm_conv_s4__geglu_ffn__prompt'

def setup_inputs():

    _w = (lambda a: (lambda t: t.to(torch.bfloat16) if t.is_floating_point() else t)(torch.as_tensor(a)))
    def _A_setup():
        B, L, D, N = 1, 2048, 512, 128
        A_re = -(lambda _x: torch.exp(torch.as_tensor(_x)))((lambda *s: torch.randn(*s, dtype=torch.bfloat16) * 3.2)(D, N))
        A_im = torch.pi * (lambda *s: torch.randn(*s, dtype=torch.bfloat16) * 0.1)(D, N)
        B_re = (lambda *s: torch.randn(*s, dtype=torch.bfloat16) * 0.4)(D, N)
        B_im = (lambda *s: torch.randn(*s, dtype=torch.bfloat16) * 0.4)(D, N)
        C_re = (lambda *s: torch.randn(*s, dtype=torch.bfloat16) * 0.4)(D, N)
        C_im = (lambda *s: torch.randn(*s, dtype=torch.bfloat16) * 0.4)(D, N)
        log_dt = (lambda *s: torch.randn(*s, dtype=torch.bfloat16) * 0.1)(D) * 0.5 - 4.0
        Dskip = (lambda *s: torch.randn(*s, dtype=torch.bfloat16) * 0.2)(D)
        return {
            "u": _w((lambda *s: torch.randn(*s, dtype=torch.bfloat16) * 0.05)(B, L, D)),
            "A_re": _w(A_re),
            "A_im": _w(A_im),
            "B_re": _w(B_re),
            "B_im": _w(B_im),
            "C_re": _w(C_re),
            "C_im": _w(C_im),
            "log_dt": _w(log_dt),
            "Dskip": _w(Dskip),
        }
    _A_in = _A_setup()

    def _B_setup():
        B, S, D, F = 1, 2048, 512, 1376
        return {
            "x": _w((lambda *s: torch.randn(*s, dtype=torch.bfloat16) * 0.05)(B, S, D)),
            "w_gate": _w((lambda *s: torch.randn(*s, dtype=torch.bfloat16) * 0.05)(D, F)),
            "w_up": _w((lambda *s: torch.randn(*s, dtype=torch.bfloat16) * 0.05)(D, F)),
            "w_down": _w((lambda *s: torch.randn(*s, dtype=torch.bfloat16) * 0.05)(F, D)),
        }
    _B_in = _B_setup()

    return {
        "A_u": _A_in["u"],
        "A_A_re": _A_in["A_re"],
        "A_A_im": _A_in["A_im"],
        "A_B_re": _A_in["B_re"],
        "A_B_im": _A_in["B_im"],
        "A_C_re": _A_in["C_re"],
        "A_C_im": _A_in["C_im"],
        "A_log_dt": _A_in["log_dt"],
        "A_Dskip": _A_in["Dskip"],
        "B_x": _B_in["x"],
        "B_w_gate": _B_in["w_gate"],
        "B_w_up": _B_in["w_up"],
        "B_w_down": _B_in["w_down"],
    }

def reference(A_u, A_A_re, A_A_im, A_B_re, A_B_im, A_C_re, A_C_im, A_log_dt, A_Dskip, B_x, B_w_gate, B_w_up, B_w_down):
    def _A_ref(u, A_re, A_im, B_re, B_im, C_re, C_im, log_dt, Dskip):
        Bsz, L, D = u.shape
        dt = torch.exp(log_dt)[:, None]
        A = A_re + 1j * A_im
        Bc = B_re + 1j * B_im
        Cc = C_re + 1j * C_im
        logdA = dt * A
        dB = dt * Bc
        l = (lambda x, dt: x.to(dt))(torch.arange(L), A_re.dtype)
        P = torch.exp(logdA[:, :, None] * l[None, None, :])
        K = torch.einsum("dn,dnl,dn->dl", Cc, P, dB).real
        L2 = 2 * L
        Kp = _pad(K, ((0, 0), (0, L)))
        up = (lambda x, *d: x.permute(*d))(u, 0, 2, 1)
        up = _pad(up, ((0, 0), (0, 0), (0, L)))
        Kf = (lambda x, axes=(-2,-1): torch.fft.rfft2(x.float(), dim=axes))(Kp[:, None, :], axes=(-2, -1))
        Uf = (lambda x, axes=(-2,-1): torch.fft.rfft2(x.float(), dim=axes))(up[:, :, None, :], axes=(-2, -1))
        Yf = Uf * Kf[None, :, :, :]
        y = (lambda x, s, axes=(-2,-1): torch.fft.irfft2(x, s=s, dim=axes).to(torch.bfloat16))(Yf, (1, L2), axes=(-2, -1))[:, :, 0, :L]
        y = (lambda x, *d: x.permute(*d))(y, 0, 2, 1) + u * Dskip[None, None, :]
        return y

    def _B_ref(x, w_gate, w_up, w_down):
        return (_gelu(x @ w_gate) * (x @ w_up)) @ w_down

    x = A_u
    xn = _layernorm(x, axis=-1)
    return x + _A_ref(xn, A_A_re, A_A_im, A_B_re, A_B_im, A_C_re, A_C_im, A_log_dt, A_Dskip) + _B_ref(xn, B_w_gate, B_w_up, B_w_down)
```

```python
class Asm:
    def __init__(self):
        self.lines = []
        self.uid = 0
    def __call__(self, s=''):
        for l in s.split('\n'):
            l = l.strip()
            if not l: continue
            if l.endswith(':') or l.startswith('.') or l.startswith(';'):
                self.lines.append(l)
            else:
                self.lines.append('    ' + l)
    def label(self, base):
        self.uid += 1
        return f"L_{base}_{self.uid}"
    def text(self):
        return '\n'.join(self.lines) + '\n'
def v(a, n=1):
    return f"v{a}" if n == 1 else f"v[{a}:{a+n-1}]"
def s(a, n=1):
    return f"s{a}" if n == 1 else f"s[{a}:{a+n-1}]"

KA = dict(x=0, are=8, aim=16, bre=24, bim=32, cre=40, cim=48, logdt=56, dskip=64, bx=72, wg=80, wu=88, wd=96, out=104, dbg=112, ws=120)
SP = {k: 36 + o//4 for k, o in KA.items()}

MB = 1024*1024
WS_H    = 0
WS_H_SZ = 64*86*1024
WS_WD   = 6*MB
WS_WD_SZ= 16*86*1024
WS_XT   = 8*MB
WS_XT_SZ= 512*4096
WS_K    = 10*MB
K_STRIDE= 4160
WS_K_SZ = 512*K_STRIDE
WS_Y    = 13*MB
WS_Y_SZ = 512*8192
WS_STAT = 18*MB
WS_CSP  = 18*MB + 65536
WS_NONCE= 18*MB + 524288
WS_TS   = 20*MB

def srd(a, dst, ptr, size, off=0):
    if off:
        a(f"s_add_u32 s{dst}, s{ptr}, {off}")
        a(f"s_addc_u32 s{dst+1}, s{ptr+1}, 0")
    else:
        a(f"s_mov_b32 s{dst}, s{ptr}")
        a(f"s_mov_b32 s{dst+1}, s{ptr+1}")
    a(f"s_mov_b32 s{dst+2}, {size}")
    a(f"s_mov_b32 s{dst+3}, 0x20000")

def kernel_desc(name, vgpr, sgpr=102):
    acc = (vgpr + 3)//4*4
    return f""".section .rodata,"a"
.p2align 6
.amdhsa_kernel {name}
  .amdhsa_next_free_vgpr {vgpr}
  .amdhsa_next_free_sgpr {sgpr}
  .amdhsa_accum_offset {acc}
  .amdhsa_group_segment_fixed_size 0
  .amdhsa_kernarg_size 128
  .amdhsa_user_sgpr_count 2
  .amdhsa_user_sgpr_kernarg_segment_ptr 1
  .amdhsa_system_sgpr_workgroup_id_x 1
.end_amdhsa_kernel
.text
"""
def kernel_head(name):
    return f""".text
.globl {name}
.p2align 8
.type {name},@function
{name}:
"""

V_TS = 167
def stamp_init(a, opts):
    if not opts.get('ts'): return
    a(f"v_mov_b32 v{V_TS}, 0")
def set_vts(n):
    global V_TS
    V_TS = n
def stamp(a, opts, idx, real=False, vts=None):
    if not opts.get('ts'): return
    if opts.get('lite') and not real and idx not in (0, 8, 3, 4): return
    vts = V_TS if vts is None else vts
    a("s_memrealtime s[92:93]" if real else "s_memtime s[92:93]")
    a("s_waitcnt lgkmcnt(0)")
    if isinstance(idx, int):
        a(f"v_writelane_b32 v{vts}, s92, {idx}")
    else:
        a(f"s_mov_b32 s89, m0")
        a(f"s_mov_b32 m0, {idx}")
        a(f"v_writelane_b32 v{vts}, s92, m0")
        a(f"s_mov_b32 m0, s89")
def stamp_flush(a, opts, kslot, wave_sgpr=3, vts=None):
    if not opts.get('ts'): return
    vts = V_TS if vts is None else vts
    srd(a, 96, SP['ws'], 1<<20, WS_TS + kslot*(1<<20))
    a(f"s_lshl_b32 s91, s2, 4")
    a(f"s_add_u32 s91, s91, s{wave_sgpr}")
    a(f"s_lshl_b32 s91, s91, 8")
    a("v_mbcnt_lo_u32_b32 v1, -1, 0")
    a("v_mbcnt_hi_u32_b32 v1, -1, v1")
    a("v_lshlrev_b32 v1, 2, v1")
    a(f"buffer_store_dword v{vts}, v1, s[96:99], s91 offen")
    a("s_waitcnt vmcnt(0)")

def bar(a, opts, n):
    if opts.get('tsb'): stamp(a, opts, 32+n)
    a("s_barrier")
```

```python
from core import *
import struct
def f2u(x): return struct.unpack('<I', struct.pack('<f', x))[0]
def hx(x): return hex(f2u(x))

STAGE = 40960
A_KT   = 3*STAGE
A_STATS = A_KT + 32768
A_CS   = A_STATS + 1024
A_LDS  = A_CS + 768

S_WAVE, S_RB, S_CT, S_ROT = 3, 4, 5, 6
SRD_X, SRD_WG, SRD_WU, SRD_T0, SRD_T1, SRD_T2 = 8, 12, 16, 20, 24, 28

def prologue_A(a, lend, opts):
    a(f"""
    s_cmp_ge_u32 s2, 256
    s_cbranch_scc1 {lend}
    """)
    stamp_init(a, opts)
    stamp(a, opts, 10, real=True)
    stamp(a, opts, 0)
    a(f"""
    s_load_dwordx16 s[36:51], s[0:1], 0
    s_load_dwordx16 s[52:67], s[0:1], 64
    """)
    a(f"""
    v_lshrrev_b32 v1, 6, v0
    v_and_b32 v0, 63, v0
    s_and_b32 s7, s2, 7
    v_readfirstlane_b32 s{S_WAVE}, v1
    s_lshr_b32 s24, s2, 3
    s_and_b32 s25, s7, 1
    s_lshl_b32 s25, s25, 3
    s_and_b32 s26, s24, 7
    s_add_u32 s{S_RB}, s25, s26
    s_lshr_b32 s25, s7, 1
    s_lshl_b32 s25, s25, 2
    s_lshr_b32 s26, s24, 3
    s_add_u32 s{S_CT}, s25, s26
    s_lshl_b32 s25, s{S_CT}, 1
    s_add_u32 s25, s25, s{S_RB}
    s_and_b32 s{S_ROT}, s25, 7
    """)

def loader_A(a, opts):
    SJ, SXB, SWB, SLX, SLW, ST, SXO, SWO, SCC, SSTG = 68, 25, 26, 27, 28, 29, 30, 31, 32, 33
    a(f"""
    s_sub_u32 s{SJ}, s{S_WAVE}, 4
    v_lshrrev_b32 v6, 3, v0
    v_lshlrev_b32 v2, 10, v6
    v_and_b32 v6, 7, v0
    v_lshrrev_b32 v7, 4, v0
    v_xor_b32 v6, v6, v7
    v_lshlrev_b32 v6, 4, v6
    v_add_u32 v2, v2, v6
    v_xor_b32 v3, 64, v2
    v_lshrrev_b32 v6, 2, v0
    s_movk_i32 s{ST}, 2752
    v_mul_lo_u32 v4, v6, s{ST}
    v_and_b32 v6, 3, v0
    v_lshlrev_b32 v7, 4, v6
    v_xor_b32 v6, 2, v6
    v_lshlrev_b32 v6, 4, v6
    v_add_u32 v5, v4, v6
    v_add_u32 v4, v4, v7
    s_lshl_b32 s{SXB}, s{S_RB}, 17
    s_lshl_b32 s{ST}, s{SJ}, 15
    s_add_u32 s{SXB}, s{SXB}, s{ST}
    s_mul_i32 s{SWB}, s{SJ}, {16*2752}
    s_mul_i32 s{ST}, s{S_CT}, 192
    s_add_u32 s{SWB}, s{SWB}, s{ST}
    s_lshl_b32 s{SLX}, s{SJ}, 12
    s_lshl_b32 s{SLW}, s{SJ}, 10
    s_add_u32 s{SLW}, s{SLW}, 16384
    s_mov_b32 s{SCC}, s{S_ROT}
    s_waitcnt lgkmcnt(0)
    """)
    srd(a, SRD_X, SP['x'], 2097152)
    srd(a, SRD_WG, SP['wg'], 1409024)
    srd(a, SRD_WU, SP['wu'], 1409024)
    def setup(stage_off):
        a(f"""
        s_lshl_b32 s{SXO}, s{SCC}, 7
        s_add_u32 s{SXO}, s{SXO}, s{SXB}
        s_mul_i32 s{SWO}, s{SCC}, {64*2752}
        s_add_u32 s{SWO}, s{SWO}, s{SWB}
        s_add_u32 s34, s{SLX}, {stage_off}
        s_add_u32 s35, s{SLW}, {stage_off}
        s_add_u32 s{SCC}, s{SCC}, 1
        s_and_b32 s{SCC}, s{SCC}, 7
        """)
    def dma(k):
        if opts.get('nodma') and dma.n >= 13:
            return
        dma.n += 1
        order = [('x',0),('g',0),('u',0),('x',1),('g',1),('u',1),('x',2),('g',2),('u',2),('x',3)]
        t, i = order[k]
        if t == 'x':
            a(f"s_add_u32 m0, s34, {i*1024}")
            a(f"s_add_u32 s{ST}, s{SXO}, {i*8192}")
            a(f"buffer_load_dwordx4 v{2+(i&1)}, s[{SRD_X}:{SRD_X+3}], s{ST} offen lds")
        elif t == 'g':
            a(f"s_add_u32 m0, s35, {i*4096}")
            a(f"s_add_u32 s{ST}, s{SWO}, {i*64}")
            a(f"buffer_load_dwordx4 v4, s[{SRD_WG}:{SRD_WG+3}], s{ST} offen lds")
        else:
            a(f"s_add_u32 m0, s35, {i*4096+12288}")
            a(f"s_add_u32 s{ST}, s{SWO}, {i*64}")
            a(f"buffer_load_dwordx4 v5, s[{SRD_WU}:{SRD_WU+3}], s{ST} offen lds")
    dma.n = 0
    H = opts.get('half', 3)
    for _ in range(opts.get('ldelay', 0)): a("s_sleep 2")
    stamp(a, opts, 1)
    setup(0)
    for k in range(10): dma(k)
    setup(STAGE)
    for k in range(H): dma(k)
    stamp(a, opts, 2)
    a(f"s_waitcnt vmcnt({H})")
    stamp(a, opts, 3)
    a("s_barrier")
    lp = a.label('ldloop')
    a(f"s_mov_b32 s{SSTG}, {2*STAGE}")
    a(f"s_mov_b32 s7, 0")
    a(f"{lp}:")
    for k in range(H, 10): dma(k)
    setup(f"s{SSTG}")
    for k in range(H): dma(k)
    if opts.get('tsl'):
        a("s_add_u32 s90, s7, 16"); stamp(a, opts, "s90")
    a(f"s_waitcnt vmcnt({H})")
    if opts.get('tsl'):
        a("s_add_u32 s90, s7, 24"); stamp(a, opts, "s90")
    if opts.get('tsb'):
        a("s_add_u32 s90, s7, 33"); stamp(a, opts, "s90")
    a("s_barrier")
    a(f"""
    s_add_u32 s{SSTG}, s{SSTG}, {STAGE}
    s_cmp_eq_u32 s{SSTG}, {3*STAGE}
    s_cselect_b32 s{SSTG}, 0, s{SSTG}
    s_add_u32 s7, s7, 1
    s_cmp_lt_u32 s7, 6
    s_cbranch_scc1 {lp}
    """)
    for k in range(H, 10): dma(k)
    stamp(a, opts, 4)
    from kerA_help import loader_tail_A
    loader_tail_A(a, opts, SJ, 10-H)

def stats_produce(a, opts):
    X = 8
    a(f"""
    s_setprio 3
    v_lshrrev_b32 v1, 5, v0
    v_lshlrev_b32 v1, 10, v1
    v_and_b32 v2, 31, v0
    v_lshlrev_b32 v2, 4, v2
    v_add_u32 v1, v1, v2
    s_lshl_b32 s7, s{S_RB}, 4
    s_add_u32 s7, s7, s{S_CT}
    s_lshl_b32 s7, s7, 3
    s_lshl_b32 s33, s{S_WAVE}, 1
    s_add_u32 s7, s7, s33           ; row0
    s_lshl_b32 s33, s7, 10
    v_add_u32 v1, s33, v1
    s_waitcnt lgkmcnt(0)
    global_load_dwordx4 {v(X,4)}, v1, s[{SP['x']}:{SP['x']+1}]
    global_load_dwordx4 {v(X+4,4)}, v1, s[{SP['x']}:{SP['x']+1}] offset:512
    s_setprio 0
    """)
    stamp(a, opts, 1)

def stats_finish(a, opts):
    from kerA_help import A_PUB as A_PUB_
    X = 8; U = 16
    a("s_waitcnt vmcnt(0)")
    for j in range(8):
        a(f"v_lshlrev_b32 v{U+2*j}, 16, v{X+j}")
        a(f"v_and_b32 v{U+2*j+1}, 0xffff0000, v{X+j}")
    a(f"v_add_f32 v2, v{U}, v{U+1}")
    a(f"v_add_f32 v3, v{U+2}, v{U+3}")
    for j in range(2, 8):
        a(f"v_add_f32 v{2+(j&1)}, v{2+(j&1)}, v{U+2*j}")
        a(f"v_add_f32 v{2+(j&1)}, v{2+(j&1)}, v{U+2*j+1}")
    def red32(r):
        a("s_nop 1")
        a(f"v_add_f32_dpp v{r}, v{r}, v{r} quad_perm:[1,0,3,2] row_mask:0xf bank_mask:0xf")
        a("s_nop 1")
        a(f"v_add_f32_dpp v{r}, v{r}, v{r} quad_perm:[2,3,0,1] row_mask:0xf bank_mask:0xf")
        a("s_nop 1")
        a(f"v_add_f32_dpp v{r}, v{r}, v{r} row_half_mirror row_mask:0xf bank_mask:0xf")
        a("s_nop 1")
        a(f"v_add_f32_dpp v{r}, v{r}, v{r} row_mirror row_mask:0xf bank_mask:0xf")
        a(f"v_mov_b32 v5, v{r}")
        a("s_nop 1")
        a(f"v_permlane16_swap_b32 v{r}, v5")
        a("s_nop 1")
        a(f"v_add_f32 v{r}, v{r}, v5")
    a("v_add_f32 v2, v2, v3")
    red32(2)
    a("v_mul_f32 v2, 0x3b000000, v2        ; mean")
    a("v_mov_b32 v3, 0")
    a("v_mov_b32 v4, 0")
    for i in range(16):
        a(f"v_sub_f32 v{U+i}, v{U+i}, v2")
    for i in range(16):
        a(f"v_fmac_f32 v{3+(i&1)}, v{U+i}, v{U+i}")
    a("v_add_f32 v4, v4, v3")
    red32(4)
    a(f"""
    v_mul_f32 v4, 0x3b000000, v4          ; var
    v_cvt_pk_bf16_f32 v2, v2, v4
    v_and_b32 v4, 0xffff0000, v2
    v_add_f32 v4, {hx(1e-5)}, v4
    v_cvt_pk_bf16_f32 v4, v4, v4
    v_and_b32 v4, 0xffff0000, v4
    v_sqrt_f32 v4, v4
    v_and_b32 v2, 0xffff, v2
    v_cvt_pk_bf16_f32 v4, v4, v4
    v_and_b32 v4, 0xffff0000, v4
    v_or_b32 v2, v2, v4
    v_lshrrev_b32 v1, 5, v0
    s_lshl_b32 s33, s{S_WAVE}, 1
    v_add_u32 v1, s33, v1
    v_lshlrev_b32 v1, 2, v1
    v_add_u32 v1, {A_PUB_}, v1
    ds_write_b32 v1, v2
    s_waitcnt lgkmcnt(0)
    """)

V_WF = 8
V_XF = 32
V_XA = 48
V_WA = 52
V_ACC = 64
def wf(st, mi): return V_WF + st*12 + mi*4
def xf(st, n): return V_XF + st*8 + n*4
def acc(mi, n): return V_ACC + (mi*2+n)*16

def gemm_A(a, opts):
    S_DELTA, S_STG, S_CNT, S_TW, S_FW = 25, 26, 27, 68, 69
    stats_produce(a, opts)
    a("s_mov_b32 s88, s7")
    srd(a, SRD_T0, SP['ws'], WS_H_SZ, WS_H)
    a(f"""
    s_and_b32 s{S_TW}, s{S_WAVE}, 1
    s_lshr_b32 s{S_FW}, s{S_WAVE}, 1
    s_mov_b32 s30, {-2*STAGE & 0xffffffff}
    s_mov_b32 s31, {STAGE}
    v_and_b32 v1, 31, v0
    v_lshrrev_b32 v2, 5, v0
    v_lshrrev_b32 v3, 1, v1
    v_and_b32 v3, 7, v3
    s_lshl_b32 s7, s{S_TW}, 6
    v_add_u32 v4, s7, v1
    v_lshlrev_b32 v4, 7, v4
    """)
    for s_ in range(4):
        a(f"v_add_u32 v5, {2*s_}, v2")
        a(f"v_xor_b32 v5, v5, v3")
        a(f"v_lshlrev_b32 v5, 4, v5")
        a(f"v_add_u32 v{V_XA+s_}, v4, v5")
    a(f"""
    v_lshrrev_b32 v3, 4, v0
    v_and_b32 v3, 1, v3                    ; gu
    v_mul_u32_u24 v4, 12288, v3
    v_lshlrev_b32 v5, 9, v2
    v_add_u32 v4, v4, v5
    v_and_b32 v5, 15, v0
    v_lshrrev_b32 v6, 2, v5
    v_lshlrev_b32 v6, 6, v6
    v_add_u32 v4, v4, v6
    v_and_b32 v5, 3, v5
    v_lshlrev_b32 v5, 3, v5
    v_add_u32 v4, v4, v5
    v_add_u32 v4, 16384, v4
    s_mul_i32 s7, s{S_FW}, 3
    """)
    for mi in range(3):
        a(f"""
        s_add_u32 s32, s7, {mi}
        s_lshr_b32 s33, s32, 1
        s_lshl_b32 s33, s33, 12            ; P*4096
        s_and_b32 s32, s32, 1              ; b
        v_xor_b32 v5, s32, v3
        v_lshlrev_b32 v5, 5, v5
        v_add_u32 v5, s33, v5
        v_add_u32 v{V_WA+mi}, v4, v5
        """)
    for i in range(96): a(f"v_mov_b32 v{V_ACC+i}, 0")
    a("s_mov_b32 s7, s88")
    stats_finish(a, opts)
    stamp(a, opts, 5)
    def reads(st, s_):
        r = []
        r.append(f"ds_read_b128 {v(xf(st,0),4)}, v{V_XA+s_}")
        for mi in range(3):
            off = s_*1024
            r.append(f"ds_read_b64_tr_b16 {v(wf(st,mi),2)}, v{V_WA+mi} offset:{off}")
            r.append(f"ds_read_b64_tr_b16 {v(wf(st,mi)+2,2)}, v{V_WA+mi} offset:{off+256}")
            if mi == 0:
                r.append(f"ds_read_b128 {v(xf(st,1),4)}, v{V_XA+s_} offset:4096")
        return r
    def step(st, rd, extra=()):
        mf = []
        for mi in range(3):
            for n in range(2):
                mf.append(f"v_mfma_f32_32x32x16_bf16 {v(acc(mi,n),16)}, {v(wf(st,mi),4)}, {v(xf(st,n),4)}, {v(acc(mi,n),16)}")
        rd = list(extra) + list(rd)
        cnts = opts.get('rdsched', (2,2,2,2,0,0))
        if extra: cnts = (4,4,3,3,0,0)
        slots = [[] for _ in range(6)]
        ri = 0
        for k, cnt in enumerate(cnts):
            slots[k] += rd[ri:ri+cnt]; ri += cnt
        slots[5] += rd[ri:]
        for k in range(6):
            if not opts.get('nomfma'): a(mf[k])
            elif opts.get('nomfma') == 2 and k % 2 == 0: a(mf[k])
            for l in slots[k]: a(l)
    stamp(a, opts, 2)
    a("s_barrier")
    stamp(a, opts, 3)
    stamp(a, opts, 12, real=True)
    for l in reads(0, 0): a(l)
    lp = a.label('gloop'); lend = a.label('gend')
    a(f"s_mov_b32 s{S_CNT}, 0")
    a(f"s_mov_b32 s{S_STG}, 0")
    a(f"{lp}:")
    for s_ in range(3):
        a("s_waitcnt lgkmcnt(0)")
        step(s_ & 1, reads((s_+1) & 1, s_+1))
    a("s_waitcnt lgkmcnt(0)")
    a(f"s_cmp_eq_u32 s{S_CNT}, 7")
    a(f"s_cbranch_scc1 {lend}")
    if opts.get('tsg'):
        a(f"s_add_u32 s90, s{S_CNT}, 16"); stamp(a, opts, "s90")
    a("s_barrier")
    if opts.get('tsg'):
        a(f"s_add_u32 s90, s{S_CNT}, 24"); stamp(a, opts, "s90")
    a(f"""
    s_add_u32 s{S_STG}, s{S_STG}, {STAGE}
    s_cmp_eq_u32 s{S_STG}, {3*STAGE}
    s_cselect_b32 s{S_DELTA}, s30, s31
    s_cselect_b32 s{S_STG}, 0, s{S_STG}
    s_add_u32 s{S_CNT}, s{S_CNT}, 1
    """)
    adv = [f"v_add_u32 v{V_XA+k}, s{S_DELTA}, v{V_XA+k}" for k in range(4)] + [f"v_add_u32 v{V_WA+k}, s{S_DELTA}, v{V_WA+k}" for k in range(3)]
    adv = [adv[0], adv[4], adv[5], adv[6], adv[1], adv[2], adv[3]]
    for l in adv[:4]: a(l)
    step(1, reads(0, 0) + adv[4:])
    a(f"s_branch {lp}")
    a(f"{lend}:")
    step(1, [])
    stamp(a, opts, 4)
    stamp(a, opts, 13, real=True)
    a("s_barrier")
    stamp(a, opts, 9)
    a(f"""
    v_and_b32 v1, 31, v0
    s_lshl_b32 s7, s{S_TW}, 6
    v_add_u32 v1, s7, v1
    v_lshlrev_b32 v2, 3, v1
    v_add_u32 v2, {A_STATS}, v2
    ds_read_b64 v[8:9], v2
    ds_read_b64 v[10:11], v2 offset:256
    v_lshrrev_b32 v3, 5, v0
    v_lshlrev_b32 v3, 4, v3
    s_mul_i32 s7, s{S_FW}, 384
    s_add_u32 s7, s7, {A_CS}
    v_add_u32 v3, s7, v3
    v_lshlrev_b32 v4, 4, v0
    """)
    CSR = 32
    def cs_read(mi):
        for g in range(4):
            a(f"ds_read_b128 {v(CSR+4*g,4)}, v3 offset:{mi*128+g*32}")
    cs_read(0)
    K1 = -2*0.7978845608028654*1.4426950408889634
    a("s_waitcnt lgkmcnt(4)")
    for n in range(2):
        b = 12 + 8*n
        m_, s_ = 8+2*n, 9+2*n
        a(f"""
        v_mov_b32 v{b}, v{m_}
        v_rcp_f32 v1, v{s_}
        v_mul_f32 v{b+6}, v{s_}, v{s_}
        v_mul_f32 v{b+2}, {hx(K1)}, v1
        v_mul_f32 v2, v1, v1
        v_mul_f32 v2, {hx(0.044715)}, v2
        v_mul_f32 v{b+4}, v{b+2}, v2
        """)
    S_T0, S_T1, S_TT = 28, 29, 32
    a(f"""
    s_lshl_b32 s{S_TT}, s{S_RB}, 2
    s_lshl_b32 s7, s{S_TW}, 1
    s_add_u32 s{S_TT}, s{S_TT}, s7
    s_mul_i32 s{S_TT}, s{S_TT}, 86          ; (4rb+2tw)*86
    s_mul_i32 s{S_T0}, s{S_CT}, 6
    s_mul_i32 s7, s{S_FW}, 3
    s_add_u32 s{S_T0}, s{S_T0}, s7
    """)
    T = 48
    OUTS = (28, 160)
    for mi in range(3):
        skip = a.label('skip')
        a("s_waitcnt lgkmcnt(0)")
        for n in range(2):
            b = 12 + 8*n
            A = acc(mi, n)
            for p in range(8):
                a(f"v_pk_fma_f32 {v(A+2*p,2)}, {v(CSR+2*p,2)}, {v(b,2)}, {v(A+2*p,2)} op_sel_hi:[1,0,1] neg_lo:[0,1,0] neg_hi:[0,1,0]")
        if mi < 2: cs_read(mi+1)
        for p in range(4):
            regs = []
            for n in range(2):
                A = acc(mi, n); b = 12 + 8*n
                regs.append((A+2*p, A+8+2*p, b, T+8*n))
            for (g_, u_, b, t) in regs: a(f"v_pk_mul_f32 {v(t,2)}, {v(g_,2)}, {v(g_,2)}")
            for (g_, u_, b, t) in regs: a(f"v_pk_fma_f32 {v(t,2)}, {v(t,2)}, {v(b+4,2)}, {v(b+2,2)} op_sel_hi:[1,0,0]")
            for (g_, u_, b, t) in regs: a(f"v_pk_mul_f32 {v(t,2)}, {v(t,2)}, {v(g_,2)}")
            for (g_, u_, b, t) in regs: a(f"v_pk_mul_f32 {v(t+2,2)}, {v(g_,2)}, {v(u_,2)}")
            for (g_, u_, b, t) in regs:
                a(f"v_exp_f32 v{t}, v{t}")
                a(f"v_exp_f32 v{t+1}, v{t+1}")
            for (g_, u_, b, t) in regs: a(f"v_pk_fma_f32 {v(t,2)}, {v(t,2)}, {v(b+6,2)}, {v(b+6,2)} op_sel_hi:[1,0,0]")
            for (g_, u_, b, t) in regs:
                a(f"v_rcp_f32 v{t}, v{t}")
                a(f"v_rcp_f32 v{t+1}, v{t+1}")
            for (g_, u_, b, t) in regs: a(f"v_pk_mul_f32 {v(t+2,2)}, {v(t+2,2)}, {v(t,2)}")
            for n, (g_, u_, b, t) in enumerate(regs): a(f"v_cvt_pk_bf16_f32 v{OUTS[n]+p}, v{t+2}, v{t+3}")
        a(f"s_add_u32 s7, s{S_T0}, {mi}")
        a(f"s_cmp_ge_u32 s7, 86")
        a(f"s_cbranch_scc1 {skip}")
        a(f"s_add_u32 s7, s7, s{S_TT}")
        a(f"s_lshl_b32 s7, s7, 10")
        a(f"buffer_store_dwordx4 {v(OUTS[0],4)}, v4, s[{SRD_T0}:{SRD_T0+3}], s7 offen")
        a(f"s_add_u32 s7, s7, {86*1024}")
        a(f"buffer_store_dwordx4 {v(OUTS[1],4)}, v4, s[{SRD_T0}:{SRD_T0+3}], s7 offen")
        a(f"{skip}:")
        a("s_nop 1")
    stamp(a, opts, 6)
    if opts.get('ts'): a("s_waitcnt vmcnt(0)")
    stamp(a, opts, 8)
    stamp(a, opts, 7, real=True)
    stamp_flush(a, opts, 0)
    a("s_endpgm")

from kerA_help import helper_A, loader_tail_A, A_M, A_R, A_PUB, A_LDS as A_LDS2

def gen_A(a, name, opts):
    a(kernel_head(name))
    lend = a.label('endA')
    prologue_A(a, lend, opts)
    lab = {k: a.label(k) for k in ('g','ld','h')}
    a(f"""
    s_cmp_lt_u32 s{S_WAVE}, 4
    s_cbranch_scc1 {lab['g']}
    s_cmp_ge_u32 s{S_WAVE}, 8
    s_cbranch_scc1 {lab['h']}
    """)
    loader_A(a, opts)
    a(f"{lab['h']}:"); helper_A(a, opts)
    a(f"{lab['g']}:"); gemm_A(a, opts)
    a(f"{lend}:")
    a("s_endpgm")
    a(kernel_desc(name, 168))
```

```python
from core import *
import struct
def f2u(x): return struct.unpack('<I', struct.pack('<f', x))[0]
def hx(x): return hex(f2u(x))
STAGE = 40960
A_KT = 3*STAGE; A_STATS = A_KT + 32768; A_CS = A_STATS + 1024
A_M = A_CS + 768; A_R = A_M + 512; A_PUB = A_R + 512; A_LDS = A_PUB + 64
S_WAVE, S_RB, S_CT, S_ROT = 3, 4, 5, 6
SRD_X, SRD_WG, SRD_WU, SRD_T0, SRD_T1, SRD_T2 = 8, 12, 16, 20, 24, 28
LOG2E = 1.4426950408889634
INV2PI = 0.15915494309189535

def cmul(a, dst, p, q, tmp):
    a(f"v_pk_mul_f32 {v(tmp,2)}, {v(p,2)}, {v(q,2)} op_sel:[0,0] op_sel_hi:[0,1]")
    a(f"v_pk_fma_f32 {v(dst,2)}, {v(p,2)}, {v(q,2)}, {v(tmp,2)} op_sel:[1,1,0] op_sel_hi:[1,0,1] neg_lo:[1,0,0]")

def kgen(a, opts):
    S_W, S_TB = 68, 69
    A2, B2, W, Z1, Z2, Z4, Z8, Z16, Z256 = 16, 17, 18, 20, 22, 24, 26, 28, 30
    C0, C1, T0, T1, BH = 32, 34, 36, 38, 40
    WA, RA, VF, UF, ACC = 44, 48, 56, 72, 80
    WB = 144
    PK = 112
    a(f"""
    s_setprio 3
    s_sub_u32 s{S_W}, s{S_WAVE}, 8
    s_lshr_b32 s7, s{S_W}, 1
    s_lshl_b32 s32, s2, 1
    s_add_u32 s32, s32, s7              ; channel d
    s_and_b32 s7, s{S_W}, 1
    s_lshl_b32 s7, s7, 7
    s_lshl_b32 s33, s32, 8              ; d*128*2
    s_add_u32 s33, s33, s7
    v_lshlrev_b32 v1, 1, v0
    v_add_u32 v1, s33, v1
    s_lshl_b32 s34, s32, 1              ; d*2
    v_mov_b32 v2, s34
    s_lshl_b32 s{S_TB}, s{S_W}, 13
    s_add_u32 s{S_TB}, s{S_TB}, {A_KT}
    s_waitcnt lgkmcnt(0)
    """)
    names = ['are','aim','bre','bim','cre','cim']
    for i, nme in enumerate(names):
        a(f"global_load_ushort v{8+i}, v1, s[{SP[nme]}:{SP[nme]+1}]")
    a(f"global_load_ushort v14, v2, s[{SP['logdt']}:{SP['logdt']+1}]")
    stamp(a, opts, 1)
    nn = a.label('nononce')
    a(f"""
    s_or_b32 s7, s2, s{S_W}
    s_cmp_lg_u32 s7, 0
    s_cbranch_scc1 {nn}
    s_memrealtime s[70:71]
    v_mov_b32 v2, 0
    s_waitcnt lgkmcnt(0)
    s_or_b32 s70, s70, 1
    v_mov_b32 v4, s70
    v_mov_b32 v5, s71
    s_mov_b64 exec, 1
    global_store_dwordx2 v2, v[4:5], s[{SP['dbg']}:{SP['dbg']+1}] sc1
    v_mov_b32 v2, {WS_NONCE}
    global_store_dwordx2 v2, v[4:5], s[{SP['ws']}:{SP['ws']+1}]
    s_mov_b64 exec, -1
    {nn}:
    s_setprio 0
    """)
    stamp(a, opts, 9)
    a(f"""
    v_lshrrev_b32 v3, 4, v0
    v_lshrrev_b32 v4, 2, v0
    v_and_b32 v4, 3, v4                  ; q (write)
    v_and_b32 v5, 3, v0                  ; e
    v_lshlrev_b32 v6, 10, v3
    v_lshlrev_b32 v5, 2, v5
    v_add_u32 v6, v6, v5
    v_add_u32 v6, s{S_TB}, v6
    """)
    for g in range(4):
        a(f"v_xor_b32 v5, {(4-g)&3}, v4")
        a(f"v_lshlrev_b32 v5, 4, v5")
        a(f"v_add_u32 v{WA+g}, v6, v5")
        a(f"v_add_u32 v{WB+g}, 4096, v{WA+g}")
    a("v_and_b32 v4, 15, v0               ; c")
    def raddr(dst, shift, base):
        if shift == 0:
            a(f"v_mov_b32 v5, v4")
        else:
            a(f"v_lshrrev_b32 v5, {shift}, v4")
            a(f"v_and_b32 v5, 1, v5")
            a(f"v_add_u32 v5, v5, v4")
            if shift > 1: a(f"v_add_u32 v5, {(1<<(shift-1))-1}, v5")
            a(f"v_lshrrev_b32 v5, {shift}, v5")
        if base: a(f"v_add_u32 v5, {base}, v5")
        a(f"v_lshrrev_b32 v6, 2, v5")
        a(f"v_sub_u32 v6, 4, v6")
        a(f"v_and_b32 v6, 3, v6")
        a(f"v_xor_b32 v6, v6, v3")
        a(f"v_lshlrev_b32 v6, 4, v6")
        a(f"v_lshlrev_b32 v5, 6, v5")
        a(f"v_add_u32 v5, v5, v6")
        a(f"v_add_u32 v{dst}, s{S_TB}, v5")
    cfg = [(0,0),(1,0),(2,9),(2,0),(3,5),(3,8),(3,11),(3,0)]
    for T,(sh,b) in enumerate(cfg): raddr(RA+T, sh, b)
    for i in range(32): a(f"v_mov_b32 v{ACC+i}, 0")
    stamp(a, opts, 11)
    a("s_waitcnt vmcnt(0)")
    stamp(a, opts, 2)
    for i in range(7): a(f"v_lshlrev_b32 v{8+i}, 16, v{8+i}")
    a(f"""
    v_mul_f32 v14, {hx(LOG2E)}, v14
    v_exp_f32 v14, v14
    s_nop 0
    v_cvt_pk_bf16_f32 v14, v14, v14
    v_and_b32 v14, 0xffff0000, v14
    v_mul_f32 v8, v14, v8
    v_mul_f32 v9, v14, v9
    v_mul_f32 v10, v14, v10               ; dB_re
    v_mul_f32 v11, v14, v11               ; dB_im
    v_mul_f32 v{A2}, {hx(LOG2E)}, v8
    v_mul_f32 v{B2}, {hx(INV2PI)}, v9
    v_mul_f32 v{W}, v12, v10
    v_mul_f32 v{W+1}, v12, v11
    v_fma_f32 v{W}, -v13, v11, v{W}
    v_fma_f32 v{W+1}, v13, v10, v{W+1}
    """)
    def zpow(dst, c):
        cf = hx(float(c))
        a(f"""
        v_mul_f32 v1, {cf}, v{A2}
        v_mul_f32 v2, {cf}, v{B2}
        v_exp_f32 v1, v1
        v_fract_f32 v2, v2
        v_cos_f32 v5, v2
        v_sin_f32 v6, v2
        s_nop 0
        v_mul_f32 v{dst}, v1, v5
        v_mul_f32 v{dst+1}, v1, v6
        """)
    zpow(Z1, 1); zpow(Z16, 16); zpow(Z256, 256)
    cmul(a, Z2, Z1, Z1, T0); cmul(a, Z4, Z2, Z2, T0); cmul(a, Z8, Z4, Z4, T0)
    if opts.get('tsk'): stamp(a, opts, 11)
    pkc = [0]
    pend = {}
    def put(row, buf, reg, conj=False, last=False):
        r = PK + (pkc[0] & 7); pkc[0] += 1
        if conj: a(f"v_cvt_pk_bf16_f32 v{r}, v{reg}, -v{reg+1}")
        else:    a(f"v_cvt_pk_bf16_f32 v{r}, v{reg}, v{reg+1}")
        wa = (WA if buf == 0 else WB) + (row >> 2)
        if (row & 1) and (buf, row-1) in pend:
            r0 = pend.pop((buf, row-1))
            a(f"ds_write2_b32 v{wa}, v{r0}, v{r} offset0:{(row-1)*16} offset1:{row*16}")
        elif (row & 1) or last:
            a(f"ds_write_b32 v{wa}, v{r} offset:{row*64}")
        else:
            pend[(buf, row)] = r
    def flush():
        assert not pend
    def rd(dst, T, buf, kap):
        a(f"ds_read_b128 {v(dst,4)}, v{RA+T} offset:{buf*4096 + kap*1024}")
    a(f"v_mov_b32 v{C0}, 1.0")
    a(f"v_mov_b32 v{C0+1}, 0")
    a(f"v_mov_b32 v{C1}, v{W}")
    a(f"v_mov_b32 v{C1+1}, v{W+1}")
    for j in range(16):
        put(j, 0, C0, conj=True)
        put(j, 1, C1)
        if j < 15:
            a(f"v_pk_mul_f32 {v(T0,2)}, {v(C0,2)}, {v(Z16,2)} op_sel:[0,0] op_sel_hi:[0,1]")
            a(f"v_pk_mul_f32 {v(T1,2)}, {v(C1,2)}, {v(Z1,2)} op_sel:[0,0] op_sel_hi:[0,1]")
            a(f"v_pk_fma_f32 {v(C0,2)}, {v(C0,2)}, {v(Z16,2)}, {v(T0,2)} op_sel:[1,1,0] op_sel_hi:[1,0,1] neg_lo:[1,0,0]")
            a(f"v_pk_fma_f32 {v(C1,2)}, {v(C1,2)}, {v(Z1,2)}, {v(T1,2)} op_sel:[1,1,0] op_sel_hi:[1,0,1] neg_lo:[1,0,0]")
    if opts.get('tsk'): stamp(a, opts, 12)
    for kap in range(4): rd(VF+4*kap, 0, 0, kap)
    def chain(rows, buf, start, mult, n):
        a(f"v_mov_b32 v{C0}, v{start}")
        a(f"v_mov_b32 v{C0+1}, v{start+1}")
        for i in range(n):
            put(rows+i, buf, C0, last=(i == n-1))
            if i < n-1: cmul(a, C0, C0, mult, T0)
    def two_chains(specs):
        regs = [(C0,T0),(C1,T1)]
        for (r0,b,st,m,n),(c,t) in zip(specs, regs):
            a(f"v_mov_b32 v{c}, v{st}")
            a(f"v_mov_b32 v{c+1}, v{st+1}")
        nmax = max(sp[4] for sp in specs)
        for i in range(nmax):
            for (r0,b,st,m,n),(c,t) in zip(specs, regs):
                if i < n: put(r0+i, b, c, last=(i == n-1))
            for (r0,b,st,m,n),(c,t) in zip(specs, regs):
                if i < n-1: a(f"v_pk_mul_f32 {v(t,2)}, {v(c,2)}, {v(m,2)} op_sel:[0,0] op_sel_hi:[0,1]")
            for (r0,b,st,m,n),(c,t) in zip(specs, regs):
                if i < n-1: a(f"v_pk_fma_f32 {v(c,2)}, {v(c,2)}, {v(m,2)}, {v(t,2)} op_sel:[1,1,0] op_sel_hi:[1,0,1] neg_lo:[1,0,0]")
    def mm(T, buf):
        for kap in range(4): rd(UF + 0, T, buf, kap) if False else None
    BH2 = 42
    cmul(a, BH, W, Z256, T0)
    cmul(a, BH2, BH, Z256, T0)
    two_chains([(0,0,BH,Z2,9),(9,0,BH2,Z4,5)])
    flush()
    UFS = [[72, 76, 120, 124], [128, 132, 136, 140]]
    def rdtile(T, buf, st):
        for kap in range(4): rd(UFS[st][kap], T, buf, kap)
    def mmt(T, st, later):
        a(f"s_waitcnt lgkmcnt({min(later,15)})")
        for kap in range(4):
            a(f"v_mfma_f32_16x16x32_bf16 {v(ACC+4*T,4)}, {v(UFS[st][kap],4)}, {v(VF+4*kap,4)}, {v(ACC+4*T,4)}")
    if opts.get('tsk'): stamp(a, opts, 13)
    rdtile(0, 1, 0)
    rdtile(1, 0, 1)
    mmt(0, 0, 4)
    rdtile(2, 0, 0)
    cmul(a, BH, BH2, Z256, T0)
    cmul(a, BH2, BH, Z256, T0)
    two_chains([(0,1,BH,Z4,5),(5,1,BH2,Z8,3)])
    cmul(a, BH, BH2, Z256, T0)
    cmul(a, BH2, BH, Z256, T0)
    two_chains([(8,1,BH,Z8,3),(11,1,BH2,Z8,3)])
    flush()
    if opts.get('tsk'): stamp(a, opts, 14)
    a("s_waitcnt lgkmcnt(9)")
    for T, st in ((1,1),(2,0)):
        for kap in range(4):
            a(f"v_mfma_f32_16x16x32_bf16 {v(ACC+4*T,4)}, {v(UFS[st][kap],4)}, {v(VF+4*kap,4)}, {v(ACC+4*T,4)}")
    cmul(a, BH, BH2, Z256, T0)
    chain(0, 0, BH, Z8, 3)
    flush()
    return lambda: kgen_tail(rdtile, mmt)

def kgen_tail(rdtile, mmt):
    rdtile(3, 1, 0)
    rdtile(4, 1, 1)
    mmt(3, 0, 4)
    rdtile(5, 1, 0)
    mmt(4, 1, 4)
    rdtile(6, 1, 1)
    mmt(5, 0, 4)
    rdtile(7, 0, 0)
    mmt(6, 1, 4)
    mmt(7, 0, 0)


V_SL = 154
def grab(a, opts, c):
    skip = a.label('ng')
    a(f"s_cmp_lg_u32 s77, {c}")
    a(f"s_cbranch_scc1 {skip}")
    stg = (c % 3)*STAGE
    for r in range(2):
        for e in range(2):
            a(f"ds_read_b64_tr_b16 {v(V_SL+4*r+2*e,2)}, v{162+e} offset:{r*2048 + e*512 + (stg if stg < 49152 else 0)}") if stg < 49152 else None
    if stg >= 49152:
        a(f"v_add_u32 v162, {stg}, v162")
        a(f"v_add_u32 v163, {stg}, v163")
        for r in range(2):
            for e in range(2):
                a(f"ds_read_b64_tr_b16 {v(V_SL+4*r+2*e,2)}, v{162+e} offset:{r*2048 + e*512}")
    a("s_waitcnt lgkmcnt(0)")
    a(f"{skip}:")

def grab_setup(a, opts):
    S_W = 68
    a(f"""
    s_lshr_b32 s7, s{S_CT}, 1
    s_sub_u32 s77, s7, s{S_ROT}
    s_and_b32 s77, s77, 7
    v_and_b32 v1, 15, v0
    v_lshrrev_b32 v2, 2, v1              ; r'
    v_and_b32 v1, 3, v1                  ; c'
    v_lshrrev_b32 v3, 4, v0
    v_and_b32 v4, 1, v3                  ; ch16
    v_lshrrev_b32 v3, 1, v3              ; tg
    s_and_b32 s7, s{S_CT}, 1
    s_lshl_b32 s7, s7, 2
    v_lshlrev_b32 v5, 1, v4
    v_add_u32 v5, s7, v5
    v_lshrrev_b32 v6, 1, v1
    v_add_u32 v5, v5, v6
    v_lshlrev_b32 v6, 2, v3              ; 4 tg
    v_lshrrev_b32 v7, 1, v2
    v_add_u32 v6, v6, v7                 ; 4tg + (r'>>1)   (e=0)
    v_lshlrev_b32 v7, 3, v3              ; 8 tg
    v_add_u32 v7, v7, v2                 ; + r'
    s_lshl_b32 s7, s{S_W}, 5             ; 16*R0 = 32 w
    v_add_u32 v7, s7, v7
    v_lshlrev_b32 v7, 7, v7              ; row*128
    v_and_b32 v1, 1, v1
    v_lshlrev_b32 v1, 3, v1              ; (c'&1)*8
    v_add_u32 v7, v7, v1
    v_xor_b32 v1, v5, v6
    v_lshlrev_b32 v1, 4, v1
    v_add_u32 v162, v7, v1
    v_add_u32 v6, 2, v6                  ; e=1 : +2
    v_and_b32 v6, 7, v6
    v_xor_b32 v1, v5, v6
    v_lshlrev_b32 v1, 4, v1
    v_add_u32 v163, v7, v1
    """)

def helper_A(a, opts):
    S_W, S_TB = 68, 69
    ACC = 80
    tail = kgen(a, opts)
    stamp(a, opts, 3)
    lab = {k: a.label('h'+k) for k in ('0','1','2','3','odd','even','nf','rest')}
    a(f"""
    v_mov_b32 v150, 0
    s_cmp_lg_u32 s{S_W}, 1
    s_cbranch_scc1 {lab['0']}
    global_load_dwordx2 v[152:153], v150, s[{SP['dbg']}:{SP['dbg']+1}] sc1
    {lab['0']}:
    """)
    grab_setup(a, opts)
    bar(a, opts, 0)
    stamp(a, opts, 4)
    grab(a, opts, 0)
    tail()
    a(f"""
    s_and_b32 s7, s{S_W}, 1
    s_cmp_eq_u32 s7, 0
    s_cbranch_scc1 {lab['even']}
    """)
    a(f"v_lshlrev_b32 v1, 4, v0")
    a(f"v_add_u32 v1, s{S_TB}, v1")
    a("s_nop 7")
    for T in range(8):
        a(f"ds_write_b128 v1, {v(ACC+4*T,4)} offset:{T*1024}")
    a(f"""
    s_cmp_lg_u32 s{S_W}, 1
    s_cbranch_scc1 {lab['nf']}
    v_lshlrev_b32 v1, 2, v0
    v_add_u32 v1, {A_PUB}, v1
    ds_read_b32 v4, v1
    s_waitcnt vmcnt(0)
    """)
    nonce_check(a, 152)
    srd(a, SRD_T1, SP['ws'], 2048*8, WS_STAT)
    a(f"""
    s_lshl_b32 s32, s{S_RB}, 4
    s_add_u32 s32, s32, s{S_CT}
    s_lshl_b32 s32, s32, 6
    v_lshlrev_b32 v1, 3, v0
    v_mov_b32 v5, s70
    s_waitcnt lgkmcnt(0)
    s_mov_b64 exec, 0xff
    buffer_store_dwordx2 v[4:5], v1, s[{SRD_T1}:{SRD_T1+3}], s32 offen sc1
    s_mov_b64 exec, -1
    {lab['nf']}:
    s_waitcnt lgkmcnt(0)
    {lab['even']}:
    """)
    bar(a, opts, 1)
    grab(a, opts, 1)
    a(f"""
    s_cmp_eq_u32 s{S_W}, 1
    s_cbranch_scc1 {lab['1']}
    s_cmp_eq_u32 s{S_W}, 3
    s_cbranch_scc1 {lab['rest']}
    """)
    srd(a, SRD_T0, SP['ws'], WS_K_SZ, WS_K)
    a(f"""
    v_lshlrev_b32 v1, 4, v0
    v_add_u32 v1, s{S_TB}, v1
    """)
    for T in range(8):
        a(f"ds_read_b128 {v(16+4*T,4)}, v1 offset:{8192 + T*1024}")
    a(f"""
    v_and_b32 v2, 15, v0
    v_lshlrev_b32 v2, 5, v2               ; 32*j
    v_lshrrev_b32 v3, 4, v0
    v_lshlrev_b32 v3, 3, v3               ; 8*q
    v_add_u32 v2, v2, v3
    v_sub_u32 v2, 4088, v2
    s_lshr_b32 s7, s{S_W}, 1
    s_lshl_b32 s32, s2, 1
    s_add_u32 s32, s32, s7
    s_mul_i32 s32, s32, {K_STRIDE}
    v_mov_b32 v4, 0
    v_mov_b32 v5, 0
    v_lshlrev_b32 v6, 3, v0
    v_add_u32 v6, 4096, v6
    s_mov_b64 exec, 0xff
    buffer_store_dwordx2 v[4:5], v6, s[{SRD_T0}:{SRD_T0+3}], s32 offen
    s_mov_b64 exec, -1
    """)
    for T in range(8):
        a(f"s_waitcnt lgkmcnt({7-T})")
        for i in range(4):
            a(f"v_add_f32 v{ACC+4*T+i}, v{ACC+4*T+i}, v{16+4*T+i}")
        a(f"v_cvt_pk_bf16_f32 v{48+2*T}, v{ACC+4*T+3}, v{ACC+4*T+2}")
        a(f"v_cvt_pk_bf16_f32 v{49+2*T}, v{ACC+4*T+1}, v{ACC+4*T}")
    sc = " sc1" if opts.get('ksc1', 1) else ""
    for T in range(8):
        if T: a(f"v_subrev_u32 v2, 512, v2")
        a(f"buffer_store_dwordx2 {v(48+2*T,2)}, v2, s[{SRD_T0}:{SRD_T0+3}], s32 offen{sc}")
    stamp(a, opts, 5)
    a(f"s_branch {lab['rest']}")
    a(f"{lab['1']}:")
    colsum_A(a, opts)
    a(f"{lab['rest']}:")
    for c in range(2, 8):
        bar(a, opts, c)
        grab(a, opts, c)
    xnt_A(a, opts)

def nonce_check(a, vreg):
    lp = a.label('npoll'); ok = a.label('nok')
    a(f"""
    s_mov_b32 s7, 0
    {lp}:
    v_readfirstlane_b32 s70, v{vreg}
    v_readfirstlane_b32 s71, v{vreg+1}
    s_add_u32 s7, s7, 1
    s_cmp_lg_u32 s70, 0
    s_cbranch_scc1 {ok}
    s_cmp_gt_u32 s7, 200000
    s_cbranch_scc1 {ok}
    global_load_dwordx2 v[{vreg}:{vreg+1}], v150, s[{SP['dbg']}:{SP['dbg']+1}] sc1
    s_waitcnt vmcnt(0)
    s_branch {lp}
    {ok}:
    """)

def colsum_A(a, opts):
    WA0, SEL, FR, AC, G = 8, 12, 16, 64, 96
    a(f"""
    v_lshrrev_b32 v2, 5, v0                ; h
    v_lshrrev_b32 v3, 4, v0
    v_and_b32 v3, 1, v3                    ; gu
    v_mul_u32_u24 v4, 12288, v3
    v_lshlrev_b32 v5, 9, v2
    v_add_u32 v4, v4, v5
    v_and_b32 v5, 15, v0
    v_lshrrev_b32 v6, 2, v5
    v_lshlrev_b32 v6, 6, v6
    v_add_u32 v4, v4, v6
    v_and_b32 v5, 3, v5
    v_lshlrev_b32 v5, 3, v5
    v_add_u32 v4, v4, v5
    s_lshr_b32 s7, s{S_RB}, 3
    s_lshl_b32 s7, s7, 11
    s_add_u32 s7, s7, {16384 + STAGE}
    v_add_u32 v4, s7, v4
    v_lshlrev_b32 v5, 5, v3
    v_add_u32 v{WA0}, v4, v5               ; b=0
    v_xor_b32 v5, 32, v5
    v_add_u32 v{WA0+1}, v4, v5             ; b=1
    """)
    for m in range(6):
        P, b = m >> 1, m & 1
        for s_ in range(2):
            f = FR + (m*2+s_)*4
            a(f"ds_read_b64_tr_b16 {v(f,2)}, v{WA0+b} offset:{P*4096 + s_*1024}")
            a(f"ds_read_b64_tr_b16 {v(f+2,2)}, v{WA0+b} offset:{P*4096 + s_*1024 + 256}")
    a(f"""
    v_and_b32 v5, 15, v0
    v_cmp_eq_u32 vcc, v5, v3
    v_mov_b32 v6, 0x3f803f80
    v_mov_b32 v7, 0
    v_cndmask_b32 v{SEL}, v7, v6, vcc
    v_mov_b32 v{SEL+1}, v{SEL}
    v_mov_b32 v{SEL+2}, v{SEL}
    v_mov_b32 v{SEL+3}, v{SEL}
    """)
    for i in range(24): a(f"v_mov_b32 v{AC+i}, 0")
    for g in range(8): a(f"v_mov_b32 v{G+4*g+3}, s70")
    srd(a, SRD_T0, SP['ws'], 16*16*1024, WS_CSP)
    a("s_waitcnt lgkmcnt(0)")
    for s_ in range(2):
        for m in range(6):
            f = FR + (m*2+s_)*4
            a(f"v_mfma_f32_16x16x32_bf16 {v(AC+4*m,4)}, {v(f,4)}, {v(SEL,4)}, {v(AC+4*m,4)}")
    a(f"""
    v_and_b32 v5, 15, v0
    v_lshlrev_b32 v1, 6, v5                ; col*64
    v_lshrrev_b32 v2, 4, v0
    v_lshlrev_b32 v2, 4, v2                ; q*16
    v_add_u32 v1, v1, v2
    s_lshl_b32 s7, s{S_CT}, 4
    s_add_u32 s7, s7, s{S_RB}
    s_lshl_b32 s33, s7, 10
    v_cmp_gt_u32 vcc, 2, v5
    s_nop 3
    """)
    for e in range(24): a(f"v_mov_b32 v{G+4*(e//3)+(e%3)}, v{AC+e}")
    a("s_and_saveexec_b64 s[34:35], vcc")
    for g in range(8):
        a(f"buffer_store_dwordx4 {v(G+4*g,4)}, v1, s[{SRD_T0}:{SRD_T0+3}], s33 offen offset:{g*128} sc1")
    a("s_mov_b64 exec, s[34:35]")
    stamp(a, opts, 6)

def xnt_A(a, opts):
    S_W = 68
    srd(a, SRD_T0, SP['ws'], WS_XT_SZ, WS_XT)
    a(f"""
    v_lshrrev_b32 v3, 4, v0
    v_and_b32 v4, 1, v3                  ; ch16
    v_lshrrev_b32 v3, 1, v3              ; tg
    v_and_b32 v1, 15, v0
    v_lshlrev_b32 v5, 4, v4
    v_add_u32 v1, v1, v5
    v_lshlrev_b32 v1, 12, v1
    v_lshlrev_b32 v5, 4, v3
    v_add_u32 v8, v1, v5
    s_lshl_b32 s32, s{S_CT}, 17
    s_lshl_b32 s33, s{S_RB}, 8
    s_add_u32 s32, s32, s33
    s_lshl_b32 s33, s{S_W}, 6            ; R0*32 bytes = 2w*32
    s_add_u32 s32, s32, s33
    v_lshlrev_b32 v9, 5, v3              ; 8 tg * 4B
    s_lshl_b32 s33, s{S_W}, 7            ; 16*R0*4B = 32 w * 4
    s_add_u32 s33, s33, {A_M}
    v_add_u32 v9, s33, v9
    """)
    bar(a, opts, 8)
    for r in range(2):
        M, R_ = 16 + 16*r, 24 + 16*r
        a(f"ds_read_b128 {v(M,4)}, v9 offset:{r*64}")
        a(f"ds_read_b128 {v(M+4,4)}, v9 offset:{r*64+16}")
        a(f"ds_read_b128 {v(R_,4)}, v9 offset:{512 + r*64}")
        a(f"ds_read_b128 {v(R_+4,4)}, v9 offset:{512 + r*64+16}")
    for r in range(2):
        M, R_ = 16 + 16*r, 24 + 16*r
        U = 48 + 16*r
        X = V_SL + 4*r
        for j in range(4):
            a(f"v_lshlrev_b32 v{U+2*j}, 16, v{X+j}")
            a(f"v_and_b32 v{U+2*j+1}, 0xffff0000, v{X+j}")
        a(f"s_waitcnt lgkmcnt({4*(1-r)})")
        for j in range(4): a(f"v_pk_add_f32 {v(U+2*j,2)}, {v(U+2*j,2)}, {v(M+2*j,2)} neg_lo:[0,1] neg_hi:[0,1]")
        for j in range(4): a(f"v_cvt_pk_bf16_f32 v{U+8+j}, v{U+2*j}, v{U+2*j+1}")
        for j in range(4):
            a(f"v_lshlrev_b32 v{U+2*j}, 16, v{U+8+j}")
            a(f"v_and_b32 v{U+2*j+1}, 0xffff0000, v{U+8+j}")
        for j in range(4): a(f"v_pk_mul_f32 {v(U+2*j,2)}, {v(U+2*j,2)}, {v(R_+2*j,2)}")
        for j in range(4): a(f"v_cvt_pk_bf16_f32 v{U+8+j}, v{U+2*j}, v{U+2*j+1}")
        a(f"buffer_store_dwordx4 {v(U+8,4)}, v8, s[{SRD_T0}:{SRD_T0+3}], s32 offen offset:{r*32}")
    stamp(a, opts, 8)
    stamp(a, opts, 7, real=True)
    if opts.get('ts'): a("s_waitcnt vmcnt(0)")
    stamp_flush(a, opts, 0)
    a("s_endpgm")

def loader_tail_A(a, opts, SJ, nrem):
    l0 = a.label('l0');
    a(f"s_cmp_eq_u32 s{SJ}, 0")
    a(f"s_cbranch_scc1 {l0}")
    srd(a, SRD_T0, SP['wd'], 1409024)
    srd(a, SRD_T1, SP['ws'], WS_WD_SZ, WS_WD)
    a(f"""
    v_and_b32 v8, 31, v0
    v_lshlrev_b32 v8, 1, v8              ; d*2
    v_lshrrev_b32 v9, 5, v0
    v_lshlrev_b32 v9, 12, v9             ; h*4 rows*1024
    v_add_u32 v8, v8, v9
    v_lshlrev_b32 v9, 4, v0
    s_mul_i32 s72, s2, 6
    s_lshl_b32 s73, s{SJ}, 1
    s_add_u32 s72, s72, s73
    s_sub_u32 s72, s72, 2                ; F0
    """)
    for fi in range(2):
        R = 16 + 12*fi
        a(f"""
        s_add_u32 s73, s72, {fi}
        s_min_u32 s73, s73, 1375
        s_mul_i32 s74, s73, 12193
        s_lshr_b32 s74, s74, 20           ; dt
        s_mul_i32 s75, s74, 86
        s_sub_u32 s75, s73, s75           ; s16
        s_lshl_b32 s75, s75, 14
        s_lshl_b32 s74, s74, 6
        s_add_u32 s75, s75, s74
        """)
        for j in range(8):
            row = 8*(j>>2) + (j&3)
            if row*1024 < 4096:
                a(f"buffer_load_ushort v{R+j}, v8, s[{SRD_T0}:{SRD_T0+3}], s75 offen offset:{row*1024}")
            else:
                a(f"s_add_u32 s76, s75, {row*1024}")
                a(f"buffer_load_ushort v{R+j}, v8, s[{SRD_T0}:{SRD_T0+3}], s76 offen")
    a("s_waitcnt vmcnt(16)")
    bar(a, opts, 7)
    a("s_waitcnt vmcnt(0)")
    for fi in range(2):
        R = 16 + 12*fi
        skip = a.label('wds')
        for p in range(4):
            a(f"v_lshl_or_b32 v{R+8+p}, v{R+2*p+1}, 16, v{R+2*p}")
        a(f"""
        s_add_u32 s73, s72, {fi}
        s_cmp_gt_u32 s73, 1375
        s_cbranch_scc1 {skip}
        s_lshl_b32 s73, s73, 10
        buffer_store_dwordx4 {v(R+8,4)}, v9, s[{SRD_T1}:{SRD_T1+3}], s73 offen
        {skip}:
        """)
    stamp(a, opts, 7, real=True)
    if opts.get('ts'): a("s_waitcnt vmcnt(0)")
    stamp_flush(a, opts, 0)
    a("s_endpgm")
    a(f"{l0}:")
    srd(a, SRD_T0, SP['ws'], 2048*8, WS_STAT)
    srd(a, SRD_T1, SP['ws'], 16*16*1024, WS_CSP)
    a(f"""
    v_mov_b32 v150, 0
    v_lshlrev_b32 v8, 4, v0
    s_lshl_b32 s72, s{S_RB}, 10            ; 128 rows * 8 B
    s_lshl_b32 s73, s{S_CT}, 14            ; 16 parts * 1024
    """)
    def issue():
        a(f"global_load_dwordx2 v[152:153], v150, s[{SP['dbg']}:{SP['dbg']+1}] sc1")
        a(f"buffer_load_dwordx4 v[12:15], v8, s[{SRD_T0}:{SRD_T0+3}], s72 offen sc1")
        for p in range(16):
            if p*1024 < 4096:
                a(f"buffer_load_dwordx4 {v(16+4*p,4)}, v8, s[{SRD_T1}:{SRD_T1+3}], s73 offen offset:{p*1024} sc1")
            else:
                a(f"s_add_u32 s74, s73, {p*1024}")
                a(f"buffer_load_dwordx4 {v(16+4*p,4)}, v8, s[{SRD_T1}:{SRD_T1+3}], s74 offen sc1")
    issue()
    a("s_waitcnt vmcnt(18)")
    bar(a, opts, 7)
    lp = a.label('gchk'); ok = a.label('gok')
    a(f"""
    s_mov_b32 s75, 0
    {lp}:
    s_waitcnt vmcnt(0)
    v_cmp_ne_u32 vcc, v152, v13
    v_cmp_ne_u32 s[32:33], v152, v15
    s_or_b64 vcc, vcc, s[32:33]
    v_cmp_eq_u32 s[32:33], 0, v152
    s_or_b64 vcc, vcc, s[32:33]
    """)
    for p in range(16):
        a(f"v_cmp_ne_u32 s[32:33], v152, v{16+4*p+3}")
        a(f"s_or_b64 vcc, vcc, s[32:33]")
    a(f"""
    s_add_u32 s75, s75, 1
    s_cmp_eq_u64 vcc, 0
    s_cbranch_scc1 {ok}
    s_cmp_gt_u32 s75, 100000
    s_cbranch_scc1 {ok}
    """)
    issue()
    a(f"s_branch {lp}")
    a(f"{ok}:")
    stamp(a, opts, 5)
    a(f"""
    v_lshlrev_b32 v4, 16, v12
    v_and_b32 v5, 0xffff0000, v12
    v_lshlrev_b32 v6, 16, v14
    v_and_b32 v7, 0xffff0000, v14
    v_lshlrev_b32 v1, 4, v0
    v_add_u32 v1, {A_STATS}, v1
    ds_write_b128 v1, v[4:7]
    v_rcp_f32 v10, v5
    v_rcp_f32 v11, v7
    v_mov_b32 v5, v6
    v_lshlrev_b32 v1, 3, v0
    v_add_u32 v1, {A_M}, v1
    ds_write_b64 v1, v[4:5]
    ds_write_b64 v1, v[10:11] offset:512
    """)
    for st in (8, 4, 2, 1):
        for p in range(st):
            for i in range(3):
                a(f"v_add_f32 v{16+4*p+i}, v{16+4*p+i}, v{16+4*(p+st)+i}")
    a(f"""
    v_lshrrev_b32 v1, 3, v0              ; g
    v_mul_u32_u24 v1, 3, v1              ; 3g
    v_bfe_u32 v2, v0, 2, 1               ; col
    v_lshlrev_b32 v2, 4, v2
    v_and_b32 v3, 3, v0                  ; q
    v_lshlrev_b32 v3, 2, v3
    v_add_u32 v2, v2, v3                 ; col*16 + 4q
    """)
    for k in range(3):
        a(f"""
        v_add_u32 v4, {k}, v1
        v_lshrrev_b32 v5, 2, v4
        v_lshlrev_b32 v5, 5, v5
        v_and_b32 v4, 3, v4
        v_add_u32 v4, v4, v5
        v_add_u32 v4, v4, v2
        v_lshlrev_b32 v4, 2, v4
        v_add_u32 v4, {A_CS}, v4
        ds_write_b32 v4, v{16+k}
        """)
    a("s_waitcnt lgkmcnt(0)")
    stamp(a, opts, 6)
    bar(a, opts, 8)
    stamp(a, opts, 7, real=True)
    stamp_flush(a, opts, 0)
    a("s_endpgm")
```

```python
from core import *
import struct
def f2u(x): return struct.unpack('<I', struct.pack('<f', x))[0]
def hx(x): return hex(f2u(x))

B_P    = 0
PROW   = 272
B_YT   = 69632
B_CT   = B_YT + 10240
CT_U, CT_V0, CT_V1, CT_SZ = 0, 4608, 4608+4160, 4608+4160+4160
B_FLG  = B_CT + 4*CT_SZ
B_LDS  = B_FLG + 64

S_WAVE, S_RT, S_CT = 3, 4, 5
SRD_WS, SRD_X, SRD_O = 8, 12, 16

def prologue_B(a, lend, opts):
    a(f"""
    s_cmp_ge_u32 s2, 256
    s_cbranch_scc1 {lend}
    """)
    stamp_init(a, opts)
    stamp(a, opts, 10, real=True)
    stamp(a, opts, 0)
    a(f"""
    s_load_dwordx16 s[36:51], s[0:1], 0
    s_load_dwordx16 s[52:67], s[0:1], 64
    v_lshrrev_b32 v1, 6, v0
    v_and_b32 v0, 63, v0
    s_and_b32 s7, s2, 7
    v_readfirstlane_b32 s{S_WAVE}, v1
    s_lshr_b32 s24, s2, 3
    s_lshr_b32 s25, s7, 1
    s_lshl_b32 s25, s25, 3
    s_and_b32 s26, s24, 7
    s_add_u32 s{S_RT}, s25, s26
    s_and_b32 s25, s7, 1
    s_lshl_b32 s25, s25, 2
    s_lshr_b32 s26, s24, 3
    s_add_u32 s{S_CT}, s25, s26
    """)

V_XT = 232
V_NON = 236
def common_loads(a, opts):
    a(f"""
    s_and_b32 s32, s{S_WAVE}, 3
    s_lshl_b32 s32, s32, 4
    s_lshl_b32 s33, s{S_RT}, 6
    s_add_u32 s32, s32, s33                 ; 64 rt + 16 (w&3)
    v_and_b32 v2, 15, v0
    v_add_u32 v2, s32, v2
    v_lshlrev_b32 v2, 10, v2              ; row*1024
    s_lshr_b32 s32, s{S_WAVE}, 2
    s_lshl_b32 s32, s32, 6                  ; 4*(w>>2)*16 B
    s_lshl_b32 s33, s{S_CT}, 7            ; 64 ct * 2 B
    s_add_u32 s32, s32, s33
    v_lshrrev_b32 v3, 4, v0
    v_lshlrev_b32 v3, 4, v3
    v_add_u32 v2, v2, v3
    v_add_u32 v238, s32, v2
    v_mov_b32 v239, {WS_NONCE}
    """)

def gemm_B(a, opts):
    D = opts.get('depth', 6)
    ACC = 0 + 16
    FR = 80
    VH0, VH1, VW0, VW1 = 8, 9, 10, 11
    S_S0, S_N, S_CUR, S_OFF = 24, 25, 26, 27
    def acc(m, n): return ACC + (m*2+n)*16
    def fr(st, k): return FR + st*16 + k*4
    a(f"""
    s_mul_i32 s{S_S0}, s{S_WAVE}, 22
    s_mov_b32 s{S_N}, 22
    s_cmp_ge_u32 s{S_WAVE}, 2
    s_cselect_b32 s{S_N}, 21, s{S_N}
    s_cmp_eq_u32 s{S_WAVE}, 3
    s_cselect_b32 s7, 1, 0
    s_sub_u32 s{S_S0}, s{S_S0}, s7          ; 0, 22, 44, 65
    s_and_b32 s7, s{S_RT}, 7
    s_and_b32 s28, s{S_CT}, 3
    s_lshl_b32 s28, s28, 1
    s_add_u32 s7, s7, s28
    s_and_b32 s7, s7, 7
    s_mul_i32 s7, s7, 5
    s_lshr_b32 s{S_CUR}, s7, 1              ; rotation 0..17
    v_lshlrev_b32 v1, 4, v0
    s_mul_i32 s7, s{S_RT}, {2*86*1024}
    s_add_u32 s7, s7, {WS_H}
    v_add_u32 v{VH0}, s7, v1
    v_add_u32 v{VH1}, {86*1024}, v{VH0}
    s_mul_i32 s7, s{S_CT}, {2*86*1024}
    s_add_u32 s7, s7, {WS_WD}
    v_add_u32 v{VW0}, s7, v1
    v_add_u32 v{VW1}, {86*1024}, v{VW0}
    """)
    common_loads(a, opts)
    a("s_waitcnt lgkmcnt(0)")
    srd(a, SRD_WS, SP['ws'], 18*MB)
    stamp(a, opts, 1)
    def issue(st):
        a(f"""
        s_add_u32 s{S_OFF}, s{S_S0}, s{S_CUR}
        s_lshl_b32 s{S_OFF}, s{S_OFF}, 10
        s_add_u32 s{S_CUR}, s{S_CUR}, 1
        s_cmp_eq_u32 s{S_CUR}, s{S_N}
        s_cselect_b32 s{S_CUR}, 0, s{S_CUR}
        """)
        for k, vr in enumerate((VW0, VH0, VW1, VH1)):
            kk = (0, 2, 1, 3)[k]
            a(f"buffer_load_dwordx4 {v(fr(st,kk),4)}, v{vr}, s[{SRD_WS}:{SRD_WS+3}], s{S_OFF} offen")
    for st in range(D): issue(st)
    a(f"global_load_dwordx4 {v(V_XT,4)}, v238, s[{SP['x']}:{SP['x']+1}]")
    a(f"global_load_dwordx2 v[{V_NON}:{V_NON+1}], v239, s[{SP['ws']}:{SP['ws']+1}]")
    for i in range(64): a(f"v_mov_b32 v{ACC+i}, 0")
    a("s_barrier")
    NS = 22
    a(f"""
    v_lshrrev_b32 v2, 4, v0
    s_lshl_b32 s7, s{S_WAVE}, 4
    s_lshl_b32 s28, s{S_CT}, 6
    s_add_u32 s7, s7, s28                  ; 64 ct + 16 w
    v_add_u32 v2, s7, v2
    v_lshlrev_b32 v2, 13, v2               ; ch*8192
    v_and_b32 v3, 15, v0
    v_lshlrev_b32 v3, 4, v3
    v_add_u32 v2, v2, v3
    s_lshl_b32 s7, s{S_RT}, 8              ; 16 quads * 16 B
    s_add_u32 s7, s7, {WS_Y}
    v_add_u32 v12, s7, v2                  ; y address
    """)
    YG = 176
    def yissue():
        for i in range(4):
            if i == 0: a(f"buffer_load_dwordx4 {v(YG,4)}, v12, s[{SRD_WS}:{SRD_WS+3}], 0 offen sc1")
            else:
                a(f"s_mov_b32 s{S_OFF}, {i*4*8192}")
                a(f"buffer_load_dwordx4 {v(YG+4*i,4)}, v12, s[{SRD_WS}:{SRD_WS+3}], s{S_OFF} offen sc1")
    extra0 = 2
    lskip = a.label('gskip')
    for i in range(NS):
        st = i % D
        younger = min(i + D - 1, NS - 1) - i
        cnt = 4*younger
        if i < D: cnt += extra0
        if i + D - 1 >= NS - 1 and i > NS - D: cnt += 4
        if i == NS - 1:
            a(f"s_cmp_eq_u32 s{S_N}, 21")
            a(f"s_cbranch_scc1 {lskip}")
        a(f"s_waitcnt vmcnt({cnt})")
        for m in range(2):
            for n in range(2):
                a(f"v_mfma_f32_32x32x16_bf16 {v(acc(m,n),16)}, {v(fr(st,m),4)}, {v(fr(st,2+n),4)}, {v(acc(m,n),16)}")
        if i + D < NS: issue(st)
        if i + D == NS: yissue()
    a(f"{lskip}:")
    stamp(a, opts, 2)
    a(f"""
    v_and_b32 v1, 31, v0
    v_mul_u32_u24 v1, {PROW}, v1
    v_lshrrev_b32 v2, 5, v0
    v_lshlrev_b32 v2, 4, v2
    v_add_u32 v1, v1, v2
    s_mul_i32 s7, s{S_WAVE}, {64*PROW}
    s_add_u32 s7, s7, {B_P}
    v_add_u32 v1, s7, v1
    s_nop 4
    """)
    for m in range(2):
        for n in range(2):
            for g in range(4):
                a(f"ds_write_b128 v1, {v(acc(m,n)+4*g,4)} offset:{n*32*PROW + m*128 + g*32}")
    lp = a.label('ychk'); ok = a.label('yok')
    a(f"""
    s_mov_b32 s28, 0
    {lp}:
    s_waitcnt vmcnt(0)
    v_cmp_ne_u32 vcc, v{V_NON}, v{YG+2}
    """)
    for i in range(4):
        if i: a(f"v_cmp_ne_u32 s[30:31], v{V_NON}, v{YG+4*i+2}"); a("s_or_b64 vcc, vcc, s[30:31]") if i else None
    for i in range(4):
        a(f"v_cmp_ne_u32 s[30:31], v{V_NON+1}, v{YG+4*i+3}"); a("s_or_b64 vcc, vcc, s[30:31]")
    a(f"""
    s_add_u32 s28, s28, 1
    s_cmp_eq_u64 vcc, 0
    s_cbranch_scc1 {ok}
    s_cmp_gt_u32 s28, 100000
    s_cbranch_scc1 {ok}
    """)
    yissue()
    a(f"s_branch {lp}")
    a(f"{ok}:")
    stamp(a, opts, 3)
    a(f"""
    v_lshrrev_b32 v2, 4, v0
    s_lshl_b32 s7, s{S_WAVE}, 4
    v_add_u32 v2, s7, v2
    v_mul_u32_u24 v2, 160, v2
    v_and_b32 v3, 15, v0
    v_lshlrev_b32 v3, 3, v3
    v_add_u32 v2, v2, v3
    v_add_u32 v2, {B_YT}, v2
    """)
    for i in range(4):
        a(f"ds_write_b64 v2, {v(YG+4*i,2)} offset:{i*4*160}")

def final_B(a, opts):
    a("s_waitcnt lgkmcnt(0)")
    stamp(a, opts, 4)
    a("s_barrier")
    stamp(a, opts, 5)
    srd(a, SRD_O, SP['out'], 2097152)
    a(f"""
    s_and_b32 s7, s{S_WAVE}, 3
    s_lshl_b32 s7, s7, 4
    v_and_b32 v1, 15, v0
    v_add_u32 v2, s7, v1                  ; t
    v_mul_u32_u24 v2, {PROW}, v2
    s_lshr_b32 s24, s{S_WAVE}, 2
    s_lshl_b32 s24, s24, 2
    v_lshrrev_b32 v3, 4, v0
    v_add_u32 v3, s24, v3                 ; octet
    v_lshlrev_b32 v4, 5, v3
    v_add_u32 v2, v2, v4
    v_lshlrev_b32 v4, 3, v3
    v_lshrrev_b32 v5, 2, v1
    v_add_u32 v4, v4, v5
    v_mul_u32_u24 v4, 160, v4
    v_and_b32 v5, 3, v1
    v_lshlrev_b32 v5, 3, v5
    v_add_u32 v4, v4, v5
    s_lshl_b32 s7, s7, 1
    s_add_u32 s7, s7, {B_YT}
    v_add_u32 v4, s7, v4
    """)
    P = 16
    for pw in range(4):
        a(f"ds_read_b128 {v(P+8*pw,4)}, v2 offset:{pw*64*PROW}")
        a(f"ds_read_b128 {v(P+8*pw+4,4)}, v2 offset:{pw*64*PROW+16}")
    a(f"ds_read_b64_tr_b16 v[8:9], v4")
    a(f"ds_read_b64_tr_b16 v[10:11], v4 offset:{4*160}")
    a("s_waitcnt lgkmcnt(6)")
    for i in range(8): a(f"v_add_f32 v{P+i}, v{P+i}, v{P+8+i}")
    a("s_waitcnt lgkmcnt(2)")
    for i in range(8): a(f"v_add_f32 v{P+16+i}, v{P+16+i}, v{P+24+i}")
    for i in range(8): a(f"v_add_f32 v{P+i}, v{P+i}, v{P+16+i}")
    for j in range(4): a(f"v_cvt_pk_bf16_f32 v{48+j}, v{P+2*j}, v{P+2*j+1}")
    a("s_waitcnt vmcnt(0) lgkmcnt(0)")
    U = 56
    for j in range(4):
        a(f"v_lshlrev_b32 v{U+2*j}, 16, v{V_XT+j}")
        a(f"v_and_b32 v{U+2*j+1}, 0xffff0000, v{V_XT+j}")
        a(f"v_lshlrev_b32 v{U+8+2*j}, 16, v{8+j}")
        a(f"v_and_b32 v{U+8+2*j+1}, 0xffff0000, v{8+j}")
    for i in range(8): a(f"v_add_f32 v{U+i}, v{U+i}, v{U+8+i}")
    for j in range(4): a(f"v_cvt_pk_bf16_f32 v{72+j}, v{U+2*j}, v{U+2*j+1}")
    for j in range(4):
        a(f"v_lshlrev_b32 v{U+2*j}, 16, v{72+j}")
        a(f"v_and_b32 v{U+2*j+1}, 0xffff0000, v{72+j}")
        a(f"v_lshlrev_b32 v{U+8+2*j}, 16, v{48+j}")
        a(f"v_and_b32 v{U+8+2*j+1}, 0xffff0000, v{48+j}")
    for i in range(8): a(f"v_add_f32 v{U+i}, v{U+i}, v{U+8+i}")
    for j in range(4): a(f"v_cvt_pk_bf16_f32 v{76+j}, v{U+2*j}, v{U+2*j+1}")
    a(f"buffer_store_dwordx4 v[76:79], v238, s[{SRD_O}:{SRD_O+3}], 0 offen")
    stamp(a, opts, 6)
    if opts.get('ts'): a("s_waitcnt vmcnt(0)")
    stamp(a, opts, 8)
    stamp(a, opts, 7, real=True)
    stamp_flush(a, opts, 1)
    a("s_endpgm")

def conv_B(a, opts):
    S_CW, S_TB, S_CH, S_RH = 68, 69, 70, 71
    ACC, AF, BF = 16, 48, 112
    VA, VB = 8, 12
    a(f"""
    s_sub_u32 s{S_CW}, s{S_WAVE}, 4
    s_mul_i32 s{S_TB}, s{S_CW}, {CT_SZ}
    s_add_u32 s{S_TB}, s{S_TB}, {B_CT}
    s_lshr_b32 s7, s{S_CW}, 1
    s_lshl_b32 s{S_CH}, s2, 1
    s_add_u32 s{S_CH}, s{S_CH}, s7          ; channel
    s_and_b32 s{S_RH}, s{S_CW}, 1
    v_lshlrev_b32 v1, 4, v0
    s_lshl_b32 s26, s{S_CH}, 12
    s_add_u32 s26, s26, {WS_XT}             ; u row
    s_mul_i32 s27, s{S_CH}, {K_STRIDE}
    s_add_u32 s27, s27, {WS_K}              ; K row
    s_lshl_b32 s28, s{S_CH}, 1
    v_mov_b32 v4, s28
    """)
    common_loads(a, opts)
    a("v_add_u32 v2, 2, v1")
    a("s_waitcnt lgkmcnt(0)")
    srd(a, SRD_WS, SP['ws'], 19*MB)
    stamp(a, opts, 1)
    def dma(ldsoff, voff, sbase, goff):
        a(f"s_add_u32 m0, s{S_TB}, {ldsoff}")
        a(f"s_add_u32 s29, s{sbase}, {goff}")
        a(f"buffer_load_dwordx4 v{voff}, s[{SRD_WS}:{SRD_WS+3}], s29 offen lds")
    for i in range(4): dma(CT_V0 + i*1024, 1, 27, i*1024)
    for i in range(4): dma(CT_V1 + i*1024, 2, 27, i*1024)
    for i in range(4): dma(CT_U + 480 + i*1024, 1, 26, i*1024)
    a("s_mov_b64 exec, 0xf")
    dma(CT_V0 + 4096, 1, 27, 4096)
    dma(CT_V1 + 4096, 2, 27, 4096)
    a("s_mov_b64 exec, -1")
    a(f"global_load_ushort v5, v4, s[{SP['dskip']}:{SP['dskip']+1}]")
    a(f"global_load_dwordx4 {v(V_XT,4)}, v238, s[{SP['x']}:{SP['x']+1}]")
    a(f"global_load_dwordx2 v[{V_NON}:{V_NON+1}], v239, s[{SP['ws']}:{SP['ws']+1}]")
    a(f"""
    v_mov_b32 v16, 0
    v_mov_b32 v17, 0
    v_mov_b32 v18, 0
    v_mov_b32 v19, 0
    v_add_u32 v3, s{S_TB}, v1
    s_mov_b64 exec, 0x3fffffff
    ds_write_b128 v3, v[16:19] offset:{CT_U}
    s_mov_b64 exec, -1
    s_lshl_b32 s7, s{S_CW}, 2
    s_add_u32 s7, s7, {B_FLG}
    v_mov_b32 v3, s7
    ds_write_b32 v3, v16
    s_waitcnt lgkmcnt(0)
    s_barrier
    """)
    a(f"""
    v_and_b32 v1, 15, v0                   ; b / a
    v_lshrrev_b32 v2, 4, v0                ; q
    v_lshrrev_b32 v3, 1, v1                ; beta
    v_lshlrev_b32 v6, 2, v2
    v_sub_u32 v6, v6, v3                   ; 4q - beta
    s_lshl_b32 s7, s{S_RH}, 6
    s_sub_u32 s7, {1015-128-48}, s7        ; 1015 - 64 rh - 176
    v_add_u32 v6, s7, v6
    v_lshlrev_b32 v6, 2, v6                ; *4 bytes
    v_and_b32 v3, 1, v1
    v_xor_b32 v3, 1, v3
    v_mul_u32_u24 v3, {CT_V1-CT_V0}, v3
    v_add_u32 v6, v6, v3
    s_add_u32 s7, s{S_TB}, {CT_V0}
    v_add_u32 v{VA}, s7, v6                ; D = 0
    v_subrev_u32 v{VA+1}, 1024, v{VA}
    v_subrev_u32 v{VA+2}, 2048, v{VA}
    v_subrev_u32 v{VA+3}, 3072, v{VA}
    v_lshlrev_b32 v3, 5, v1
    v_lshlrev_b32 v6, 4, v2
    v_add_u32 v3, v3, v6                   ; 32 a + 16 q
    s_lshl_b32 s7, s{S_RH}, 8
    s_sub_u32 s7, {448-192}, s7
    s_add_u32 s7, s7, s{S_TB}
    v_add_u32 v{VB}, s7, v3
    """)
    for i in range(32): a(f"v_mov_b32 v{ACC+i}, 0")
    def rdA(st, dl, rp):
        Dd, e = dl >> 1, dl & 1
        o = (1-e)*128 + (3-rp)*16
        r = AF + st*32 + dl*4
        return [f"ds_read2_b32 {v(r,2)}, v{VA+Dd} offset0:{o} offset1:{o+1}",
                f"ds_read2_b32 {v(r+2,2)}, v{VA+Dd} offset0:{o+2} offset1:{o+3}"]
    def rdB(st, p, rp):
        r = BF + st*32 + p*4
        return [f"ds_read_b128 {v(r,4)}, v{VB} offset:{CT_U + 512*p + (3-rp)*64}"]
    def reads(st, rp):
        r = []
        for k in range(8):
            r += rdB(st, k, rp) + rdA(st, k, rp)
        return r
    a("s_waitcnt vmcnt(0)")
    stamp(a, opts, 2)
    a(f"v_lshlrev_b32 v5, 16, v5             ; Dskip")
    if opts.get('cprio', 1): a("s_setprio 1")
    for l in reads(0, 0): a(l)
    for rp in range(4):
        st = rp & 1
        nxt = reads(1-st, rp+1) if rp < 3 else []
        a("s_waitcnt lgkmcnt(0)")
        mf = []
        for ssum in range(8):
            for dl in range(ssum+1):
                p = ssum - dl
                mf.append(f"v_mfma_f32_16x16x32_bf16 {v(ACC+4*ssum,4)}, {v(AF+st*32+dl*4,4)}, {v(BF+st*32+p*4,4)}, {v(ACC+4*ssum,4)}")
        order = sorted(range(len(mf)), key=lambda i: i)
        ni = 0
        for k, idx in enumerate(order):
            a(mf[idx])
            if ni < len(nxt):
                a(nxt[ni]); ni += 1
        while ni < len(nxt): a(nxt[ni]); ni += 1
    a("s_setprio 0")
    stamp(a, opts, 3)
    ex0 = a.label('ex0'); exd = a.label('exd')
    a(f"""
    v_lshlrev_b32 v1, 4, v0
    v_add_u32 v3, s{S_TB}, v1
    s_cmp_eq_u32 s{S_RH}, 0
    s_nop 4
    s_cbranch_scc1 {ex0}
    """)
    for T in range(4): a(f"ds_write_b128 v3, {v(ACC+4*T,4)} offset:{CT_V0 + T*1024}")
    for i in range(16): a(f"v_mov_b32 v{ACC+i}, v{ACC+16+i}")
    a(f"s_branch {exd}")
    a(f"{ex0}:")
    for T in range(4): a(f"ds_write_b128 v3, {v(ACC+16+4*T,4)} offset:{CT_V0 + T*1024}")
    a(f"{exd}:")
    lp = a.label('xspin')
    a(f"""
    s_waitcnt lgkmcnt(0)
    s_lshl_b32 s7, s{S_CW}, 2
    s_add_u32 s7, s7, {B_FLG}
    v_mov_b32 v6, s7
    v_mov_b32 v7, 1
    ds_write_b32 v6, v7
    s_xor_b32 s7, s{S_CW}, 1
    s_lshl_b32 s24, s7, 2
    s_add_u32 s24, s24, {B_FLG}
    v_mov_b32 v6, s24
    s_mul_i32 s24, s7, {CT_SZ}
    s_add_u32 s24, s24, {B_CT}
    v_add_u32 v3, s24, v1
    s_mov_b32 s25, 0
    {lp}:
    ds_read_b32 v7, v6
    s_add_u32 s25, s25, 1
    s_waitcnt lgkmcnt(0)
    v_readfirstlane_b32 s24, v7
    s_cmp_gt_u32 s25, 1000000
    s_cselect_b32 s24, 1, s24
    s_cmp_eq_u32 s24, 0
    s_cbranch_scc1 {lp}
    """)
    for T in range(4): a(f"ds_read_b128 {v(32+4*T,4)}, v3 offset:{CT_V0 + T*1024}")
    a(f"""
    v_and_b32 v1, 15, v0
    v_lshlrev_b32 v1, 5, v1
    v_lshrrev_b32 v2, 4, v0
    v_lshlrev_b32 v2, 3, v2
    v_add_u32 v1, v1, v2                   ; 2*(16a + 4q)
    s_lshl_b32 s7, s{S_RH}, 11             ; 4 rh * 512
    s_add_u32 s24, s7, s{S_TB}
    v_add_u32 v2, s24, v1
    """)
    for k in range(4): a(f"ds_read_b64 {v(48+2*k,2)}, v2 offset:{CT_U + 480 + k*512}")
    a(f"""
    v_and_b32 v1, 15, v0
    v_lshlrev_b32 v1, 6, v1
    v_lshrrev_b32 v2, 4, v0
    v_lshlrev_b32 v2, 4, v2
    v_add_u32 v1, v1, v2
    s_lshl_b32 s24, s{S_CH}, 13
    s_add_u32 s24, s24, {WS_Y}
    s_lshl_b32 s7, s{S_RH}, 12             ; 4 rh * 1024
    s_add_u32 s24, s24, s7
    s_waitcnt lgkmcnt(0)
    """)
    for k in range(4):
        A = ACC + 4*k
        for i in range(4): a(f"v_add_f32 v{A+i}, v{A+i}, v{32+4*k+i}")
        U = 64
        a(f"v_cvt_pk_bf16_f32 v{U}, v{A}, v{A+1}")
        a(f"v_cvt_pk_bf16_f32 v{U+1}, v{A+2}, v{A+3}")
        for j in range(2):
            a(f"v_lshlrev_b32 v{U+2+2*j}, 16, v{48+2*k+j}")
            a(f"v_and_b32 v{U+3+2*j}, 0xffff0000, v{48+2*k+j}")
        for i in range(4): a(f"v_mul_f32 v{U+2+i}, v{U+2+i}, v5")
        a(f"v_cvt_pk_bf16_f32 v{U+6}, v{U+2}, v{U+3}")
        a(f"v_cvt_pk_bf16_f32 v{U+7}, v{U+4}, v{U+5}")
        for j in range(2):
            a(f"v_lshlrev_b32 v{U+2+2*j}, 16, v{U+6+j}")
            a(f"v_and_b32 v{U+3+2*j}, 0xffff0000, v{U+6+j}")
            a(f"v_lshlrev_b32 v{U+8+2*j}, 16, v{U+j}")
            a(f"v_and_b32 v{U+9+2*j}, 0xffff0000, v{U+j}")
        for i in range(4): a(f"v_add_f32 v{U+2+i}, v{U+2+i}, v{U+8+i}")
        O = 80 + 4*k
        a(f"v_cvt_pk_bf16_f32 v{O}, v{U+2}, v{U+3}")
        a(f"v_cvt_pk_bf16_f32 v{O+1}, v{U+4}, v{U+5}")
        a(f"v_mov_b32 v{O+2}, v{V_NON}")
        a(f"v_mov_b32 v{O+3}, v{V_NON+1}")
        a(f"buffer_store_dwordx4 {v(O,4)}, v1, s[{SRD_WS}:{SRD_WS+3}], s24 offen offset:{k*1024} sc1")
    stamp(a, opts, 9)

def gen_B(a, name, opts):
    import core
    core.set_vts(239+0 if False else 231)
    a(kernel_head(name))
    lend = a.label('endB'); lc = a.label('conv'); lf = a.label('final')
    prologue_B(a, lend, opts)
    a(f"s_cmp_ge_u32 s{S_WAVE}, 4")
    a(f"s_cbranch_scc1 {lc}")
    gemm_B(a, opts)
    a(f"s_branch {lf}")
    a(f"{lc}:")
    conv_B(a, opts)
    a(f"{lf}:")
    final_B(a, opts)
    a(f"{lend}:")
    a("s_endpgm")
    a(kernel_desc(name, 240))
```

```python
import sys, os
sys.path.insert(0, os.path.dirname(__file__))
from core import *
import core, kerA, kerB, kerA_help
NAME_A = 'parallel_sum__ssm_conv_s4__geglu_ffn__prompt_kernel'
NAME_B = 'ssm_ffn_stage2_kernel'
def make(opts):
    ref = open('parallel_sum__ssm_conv_s4__geglu_ffn__prompt.s.ref').read()
    hdr = ref[:ref.index('; Override launch geometry')]
    hdr += f"; @launch kernel={NAME_A} grid=(256,1,1) block=(768,1,1) lds={kerA_help.A_LDS}\n"
    hdr += f"; @launch kernel={NAME_B} grid=(256,1,1) block=(512,1,1) lds={kerB.B_LDS}\n"
    a = Asm()
    a('.amdgcn_target "amdgcn-amd-amdhsa--gfx950"')
    core.set_vts(167)
    kerA.gen_A(a, NAME_A, opts)
    kerB.gen_B(a, NAME_B, opts)
    return hdr + a.text()
if __name__ == '__main__':
    out = sys.argv[1]
    opts = {}
    for x in sys.argv[2:]:
        k,_,val = x.partition('=')
        opts[k] = int(val) if val else 1
    s = make(opts)
    open(out,'w').write(s)
    print('wrote', out, len(s))
```

```python
from core import *
import struct
def f2u(x): return struct.unpack('<I', struct.pack('<f', x))[0]
def hx(x): return hex(f2u(x))

B_P    = 0
PROW   = 272
B_YT   = 69632
B_CT   = B_YT + 10240
CT_U, CT_V0, CT_V1, CT_SZ = 0, 4608, 4608+4160, 4608+4160+4160
B_FLG  = B_CT + 4*CT_SZ
B_LDS  = B_FLG + 64

S_WAVE, S_RT, S_CT = 3, 4, 5
SRD_WS, SRD_X, SRD_O = 8, 12, 16

def prologue_B(a, lend, opts):
    a(f"""
    s_cmp_ge_u32 s2, 256
    s_cbranch_scc1 {lend}
    """)
    if opts.get('dbgt'):
        a("s_memrealtime s[86:87]")
    stamp_init(a, opts)
    stamp(a, opts, 10, real=True)
    stamp(a, opts, 0)
    a(f"""
    s_load_dwordx16 s[36:51], s[0:1], 0
    s_load_dwordx16 s[52:67], s[0:1], 64
    v_lshrrev_b32 v1, 6, v0
    v_and_b32 v0, 63, v0
    s_and_b32 s7, s2, 7
    v_readfirstlane_b32 s{S_WAVE}, v1
    s_lshr_b32 s24, s2, 3
    s_lshr_b32 s25, s7, 1
    s_lshl_b32 s25, s25, 3
    s_and_b32 s26, s24, 7
    s_add_u32 s{S_RT}, s25, s26
    s_and_b32 s25, s7, 1
    s_lshl_b32 s25, s25, 2
    s_lshr_b32 s26, s24, 3
    s_add_u32 s{S_CT}, s25, s26
    """)

V_XT = 232
V_NON = 236
def common_loads(a, opts):
    a(f"""
    s_and_b32 s32, s{S_WAVE}, 3
    s_lshl_b32 s32, s32, 4
    s_lshl_b32 s33, s{S_RT}, 6
    s_add_u32 s32, s32, s33                 ; 64 rt + 16 (w&3)
    v_and_b32 v2, 15, v0
    v_add_u32 v2, s32, v2
    v_lshlrev_b32 v2, 10, v2              ; row*1024
    s_lshr_b32 s32, s{S_WAVE}, 2
    s_lshl_b32 s32, s32, 6                  ; 4*(w>>2)*16 B
    s_lshl_b32 s33, s{S_CT}, 7            ; 64 ct * 2 B
    s_add_u32 s32, s32, s33
    v_lshrrev_b32 v3, 4, v0
    v_lshlrev_b32 v3, 4, v3
    v_add_u32 v2, v2, v3
    v_add_u32 v238, s32, v2
    v_mov_b32 v239, {WS_NONCE}
    """)

def gemm_B(a, opts):
    D = opts.get('depth', 6)
    ACC = 0 + 16
    FR = 80
    VH0, VH1, VW0, VW1 = 8, 9, 10, 11
    S_S0, S_N, S_CUR, S_OFF = 24, 25, 26, 27
    def acc(m, n): return ACC + (m*2+n)*16
    def fr(st, k): return FR + st*16 + k*4
    a(f"""
    s_mul_i32 s{S_S0}, s{S_WAVE}, 22
    s_mov_b32 s{S_N}, 22
    s_cmp_ge_u32 s{S_WAVE}, 2
    s_cselect_b32 s{S_N}, 21, s{S_N}
    s_cmp_eq_u32 s{S_WAVE}, 3
    s_cselect_b32 s7, 1, 0
    s_sub_u32 s{S_S0}, s{S_S0}, s7          ; 0, 22, 44, 65
    s_and_b32 s7, s{S_RT}, 7
    s_and_b32 s28, s{S_CT}, 3
    s_lshl_b32 s28, s28, 1
    s_add_u32 s7, s7, s28
    s_and_b32 s7, s7, 7
    s_mul_i32 s7, s7, 5
    s_lshr_b32 s{S_CUR}, s7, 1              ; rotation 0..17
    v_lshlrev_b32 v1, 4, v0
    s_mul_i32 s7, s{S_RT}, {2*86*1024}
    s_add_u32 s7, s7, {WS_H}
    v_add_u32 v{VH0}, s7, v1
    v_add_u32 v{VH1}, {86*1024}, v{VH0}
    s_mul_i32 s7, s{S_CT}, {2*86*1024}
    s_add_u32 s7, s7, {WS_WD}
    v_add_u32 v{VW0}, s7, v1
    v_add_u32 v{VW1}, {86*1024}, v{VW0}
    """)
    common_loads(a, opts)
    a("s_waitcnt lgkmcnt(0)")
    srd(a, SRD_WS, SP['ws'], 18*MB)
    stamp(a, opts, 1)
    def issue(st):
        a(f"""
        s_add_u32 s{S_OFF}, s{S_S0}, s{S_CUR}
        s_lshl_b32 s{S_OFF}, s{S_OFF}, 10
        s_add_u32 s{S_CUR}, s{S_CUR}, 1
        s_cmp_eq_u32 s{S_CUR}, s{S_N}
        s_cselect_b32 s{S_CUR}, 0, s{S_CUR}
        """)
        for k, vr in enumerate((VW0, VH0, VW1, VH1)):
            kk = (0, 2, 1, 3)[k]
            a(f"buffer_load_dwordx4 {v(fr(st,kk),4)}, v{vr}, s[{SRD_WS}:{SRD_WS+3}], s{S_OFF} offen")
    for st in range(D): issue(st)
    a(f"global_load_dwordx4 {v(V_XT,4)}, v238, s[{SP['x']}:{SP['x']+1}]")
    a(f"global_load_dwordx2 v[{V_NON}:{V_NON+1}], v239, s[{SP['ws']}:{SP['ws']+1}]")
    for i in range(64): a(f"v_mov_b32 v{ACC+i}, 0")
    a("s_barrier")
    NS = 22
    a(f"""
    v_lshrrev_b32 v2, 4, v0
    s_lshl_b32 s7, s{S_WAVE}, 4
    s_lshl_b32 s28, s{S_CT}, 6
    s_add_u32 s7, s7, s28                  ; 64 ct + 16 w
    v_add_u32 v2, s7, v2
    v_lshlrev_b32 v2, 13, v2               ; ch*8192
    v_and_b32 v3, 15, v0
    v_lshlrev_b32 v3, 4, v3
    v_add_u32 v2, v2, v3
    s_lshl_b32 s7, s{S_RT}, 8              ; 16 quads * 16 B
    s_add_u32 s7, s7, {WS_Y}
    v_add_u32 v12, s7, v2                  ; y address
    """)
    YG = 176
    def yissue():
        for i in range(4):
            if i == 0: a(f"buffer_load_dwordx4 {v(YG,4)}, v12, s[{SRD_WS}:{SRD_WS+3}], 0 offen sc1")
            else:
                a(f"s_mov_b32 s{S_OFF}, {i*4*8192}")
                a(f"buffer_load_dwordx4 {v(YG+4*i,4)}, v12, s[{SRD_WS}:{SRD_WS+3}], s{S_OFF} offen sc1")
    extra0 = 2
    lskip = a.label('gskip')
    for i in range(NS):
        st = i % D
        younger = min(i + D - 1, NS - 1) - i
        cnt = 4*younger
        if i < D: cnt += extra0
        if i + D - 1 >= NS - 1 and i > NS - D: cnt += 4
        if i == NS - 1:
            a(f"s_cmp_eq_u32 s{S_N}, 21")
            a(f"s_cbranch_scc1 {lskip}")
        a(f"s_waitcnt vmcnt({cnt})")
        for m in range(2):
            for n in range(2):
                a(f"v_mfma_f32_32x32x16_bf16 {v(acc(m,n),16)}, {v(fr(st,m),4)}, {v(fr(st,2+n),4)}, {v(acc(m,n),16)}")
        if i + D < NS: issue(st)
        if i + D == NS: yissue()
    a(f"{lskip}:")
    stamp(a, opts, 2)
    a(f"""
    v_and_b32 v1, 31, v0
    v_mul_u32_u24 v1, {PROW}, v1
    v_lshrrev_b32 v2, 5, v0
    v_lshlrev_b32 v2, 4, v2
    v_add_u32 v1, v1, v2
    s_mul_i32 s7, s{S_WAVE}, {64*PROW}
    s_add_u32 s7, s7, {B_P}
    v_add_u32 v1, s7, v1
    s_nop 4
    """)
    for m in range(2):
        for n in range(2):
            for g in range(4):
                a(f"ds_write_b128 v1, {v(acc(m,n)+4*g,4)} offset:{n*32*PROW + m*128 + g*32}")
    lp = a.label('ychk'); ok = a.label('yok')
    a(f"""
    s_mov_b32 s28, 0
    {lp}:
    s_waitcnt vmcnt(0)
    v_cmp_ne_u32 vcc, v{V_NON}, v{YG+2}
    """)
    for i in range(4):
        if i: a(f"v_cmp_ne_u32 s[30:31], v{V_NON}, v{YG+4*i+2}"); a("s_or_b64 vcc, vcc, s[30:31]") if i else None
    for i in range(4):
        a(f"v_cmp_ne_u32 s[30:31], v{V_NON+1}, v{YG+4*i+3}"); a("s_or_b64 vcc, vcc, s[30:31]")
    a(f"""
    s_add_u32 s28, s28, 1
    s_cmp_eq_u64 vcc, 0
    s_cbranch_scc1 {ok}
    s_cmp_gt_u32 s28, 100000
    s_cbranch_scc1 {ok}
    """)
    yissue()
    a(f"s_branch {lp}")
    a(f"{ok}:")
    stamp(a, opts, 3)
    a(f"""
    v_lshrrev_b32 v2, 4, v0
    s_lshl_b32 s7, s{S_WAVE}, 4
    v_add_u32 v2, s7, v2
    v_mul_u32_u24 v2, 160, v2
    v_and_b32 v3, 15, v0
    v_lshlrev_b32 v3, 3, v3
    v_add_u32 v2, v2, v3
    v_add_u32 v2, {B_YT}, v2
    """)
    for i in range(4):
        a(f"ds_write_b64 v2, {v(YG+4*i,2)} offset:{i*4*160}")

def final_B(a, opts):
    a("s_waitcnt lgkmcnt(0)")
    stamp(a, opts, 4)
    a("s_barrier")
    stamp(a, opts, 5)
    srd(a, SRD_O, SP['out'], 2097152)
    a(f"""
    s_and_b32 s7, s{S_WAVE}, 3
    s_lshl_b32 s7, s7, 4
    v_and_b32 v1, 15, v0
    v_add_u32 v2, s7, v1                  ; t
    v_mul_u32_u24 v2, {PROW}, v2
    s_lshr_b32 s24, s{S_WAVE}, 2
    s_lshl_b32 s24, s24, 2
    v_lshrrev_b32 v3, 4, v0
    v_add_u32 v3, s24, v3                 ; octet
    v_lshlrev_b32 v4, 5, v3
    v_add_u32 v2, v2, v4
    v_lshlrev_b32 v4, 3, v3
    v_lshrrev_b32 v5, 2, v1
    v_add_u32 v4, v4, v5
    v_mul_u32_u24 v4, 160, v4
    v_and_b32 v5, 3, v1
    v_lshlrev_b32 v5, 3, v5
    v_add_u32 v4, v4, v5
    s_lshl_b32 s7, s7, 1
    s_add_u32 s7, s7, {B_YT}
    v_add_u32 v4, s7, v4
    """)
    P = 16
    for pw in range(4):
        a(f"ds_read_b128 {v(P+8*pw,4)}, v2 offset:{pw*64*PROW}")
        a(f"ds_read_b128 {v(P+8*pw+4,4)}, v2 offset:{pw*64*PROW+16}")
    a(f"ds_read_b64_tr_b16 v[8:9], v4")
    a(f"ds_read_b64_tr_b16 v[10:11], v4 offset:{4*160}")
    a("s_waitcnt lgkmcnt(6)")
    for i in range(8): a(f"v_add_f32 v{P+i}, v{P+i}, v{P+8+i}")
    a("s_waitcnt lgkmcnt(2)")
    for i in range(8): a(f"v_add_f32 v{P+16+i}, v{P+16+i}, v{P+24+i}")
    for i in range(8): a(f"v_add_f32 v{P+i}, v{P+i}, v{P+16+i}")
    for j in range(4): a(f"v_cvt_pk_bf16_f32 v{48+j}, v{P+2*j}, v{P+2*j+1}")
    a("s_waitcnt vmcnt(0) lgkmcnt(0)")
    U = 56
    for j in range(4):
        a(f"v_lshlrev_b32 v{U+2*j}, 16, v{V_XT+j}")
        a(f"v_and_b32 v{U+2*j+1}, 0xffff0000, v{V_XT+j}")
        a(f"v_lshlrev_b32 v{U+8+2*j}, 16, v{8+j}")
        a(f"v_and_b32 v{U+8+2*j+1}, 0xffff0000, v{8+j}")
    for i in range(8): a(f"v_add_f32 v{U+i}, v{U+i}, v{U+8+i}")
    for j in range(4): a(f"v_cvt_pk_bf16_f32 v{72+j}, v{U+2*j}, v{U+2*j+1}")
    for j in range(4):
        a(f"v_lshlrev_b32 v{U+2*j}, 16, v{72+j}")
        a(f"v_and_b32 v{U+2*j+1}, 0xffff0000, v{72+j}")
        a(f"v_lshlrev_b32 v{U+8+2*j}, 16, v{48+j}")
        a(f"v_and_b32 v{U+8+2*j+1}, 0xffff0000, v{48+j}")
    for i in range(8): a(f"v_add_f32 v{U+i}, v{U+i}, v{U+8+i}")
    for j in range(4): a(f"v_cvt_pk_bf16_f32 v{76+j}, v{U+2*j}, v{U+2*j+1}")
    a(f"buffer_store_dwordx4 v[76:79], v238, s[{SRD_O}:{SRD_O+3}], 0 offen")
    if opts.get('dbgt'):
        sk = a.label('nodbg')
        a(f"""
        s_waitcnt vmcnt(0)
        s_and_b32 s7, s2, 31
        s_or_b32 s7, s7, s{S_WAVE}
        s_cmp_lg_u32 s7, 0
        s_cbranch_scc1 {sk}
        s_memrealtime s[30:31]
        v_readfirstlane_b32 s28, v{V_NON}
        s_waitcnt lgkmcnt(0)
        s_sub_u32 s30, s30, s28
        s_sub_u32 s29, s86, s28
        s_lshr_b32 s7, s2, 5
        s_lshl_b32 s7, s7, 3
        v_mov_b32 v1, s7
        v_mov_b32 v2, s29
        v_mov_b32 v3, s30
        s_mov_b64 exec, 1
        global_store_dwordx2 v1, v[2:3], s[{SP['dbg']}:{SP['dbg']+1}]
        s_mov_b64 exec, -1
        {sk}:
        """)
    stamp(a, opts, 6)
    if opts.get('ts'): a("s_waitcnt vmcnt(0)")
    stamp(a, opts, 8)
    stamp(a, opts, 7, real=True)
    stamp_flush(a, opts, 1)
    a("s_endpgm")

def conv_B(a, opts):
    S_CW, S_TB, S_CH, S_RH = 68, 69, 70, 71
    ACC, AF, BF = 16, 48, 112
    VA, VB = 8, 12
    a(f"""
    s_sub_u32 s{S_CW}, s{S_WAVE}, 4
    s_mul_i32 s{S_TB}, s{S_CW}, {CT_SZ}
    s_add_u32 s{S_TB}, s{S_TB}, {B_CT}
    s_lshr_b32 s7, s{S_CW}, 1
    s_lshl_b32 s{S_CH}, s2, 1
    s_add_u32 s{S_CH}, s{S_CH}, s7          ; channel
    s_and_b32 s{S_RH}, s{S_CW}, 1
    v_lshlrev_b32 v1, 4, v0
    s_lshl_b32 s26, s{S_CH}, 12
    s_add_u32 s26, s26, {WS_XT}             ; u row
    s_mul_i32 s27, s{S_CH}, {K_STRIDE}
    s_add_u32 s27, s27, {WS_K}              ; K row
    s_lshl_b32 s28, s{S_CH}, 1
    v_mov_b32 v4, s28
    """)
    common_loads(a, opts)
    a("v_add_u32 v2, 2, v1")
    a("s_waitcnt lgkmcnt(0)")
    srd(a, SRD_WS, SP['ws'], 19*MB)
    stamp(a, opts, 1)
    def dma(ldsoff, voff, sbase, goff):
        a(f"s_add_u32 m0, s{S_TB}, {ldsoff}")
        a(f"s_add_u32 s29, s{sbase}, {goff}")
        a(f"buffer_load_dwordx4 v{voff}, s[{SRD_WS}:{SRD_WS+3}], s29 offen lds")
    for i in range(4): dma(CT_V0 + i*1024, 1, 27, i*1024)
    for i in range(4): dma(CT_V1 + i*1024, 2, 27, i*1024)
    for i in range(4): dma(CT_U + 480 + i*1024, 1, 26, i*1024)
    a("s_mov_b64 exec, 0xf")
    dma(CT_V0 + 4096, 1, 27, 4096)
    dma(CT_V1 + 4096, 2, 27, 4096)
    a("s_mov_b64 exec, -1")
    a(f"global_load_ushort v5, v4, s[{SP['dskip']}:{SP['dskip']+1}]")
    a(f"global_load_dwordx4 {v(V_XT,4)}, v238, s[{SP['x']}:{SP['x']+1}]")
    a(f"global_load_dwordx2 v[{V_NON}:{V_NON+1}], v239, s[{SP['ws']}:{SP['ws']+1}]")
    a(f"""
    v_mov_b32 v16, 0
    v_mov_b32 v17, 0
    v_mov_b32 v18, 0
    v_mov_b32 v19, 0
    v_add_u32 v3, s{S_TB}, v1
    s_mov_b64 exec, 0x3fffffff
    ds_write_b128 v3, v[16:19] offset:{CT_U}
    s_mov_b64 exec, -1
    s_lshl_b32 s7, s{S_CW}, 2
    s_add_u32 s7, s7, {B_FLG}
    v_mov_b32 v3, s7
    ds_write_b32 v3, v16
    s_waitcnt lgkmcnt(0)
    s_barrier
    """)
    a(f"""
    v_and_b32 v1, 15, v0                   ; b / a
    v_lshrrev_b32 v2, 4, v0                ; q
    v_lshrrev_b32 v3, 1, v1                ; beta
    v_lshlrev_b32 v6, 2, v2
    v_sub_u32 v6, v6, v3                   ; 4q - beta
    s_lshl_b32 s7, s{S_RH}, 6
    s_sub_u32 s7, {1015-128-48}, s7        ; 1015 - 64 rh - 176
    v_add_u32 v6, s7, v6
    v_lshlrev_b32 v6, 2, v6                ; *4 bytes
    v_and_b32 v3, 1, v1
    v_xor_b32 v3, 1, v3
    v_mul_u32_u24 v3, {CT_V1-CT_V0}, v3
    v_add_u32 v6, v6, v3
    s_add_u32 s7, s{S_TB}, {CT_V0}
    v_add_u32 v{VA}, s7, v6                ; D = 0
    v_subrev_u32 v{VA+1}, 1024, v{VA}
    v_subrev_u32 v{VA+2}, 2048, v{VA}
    v_subrev_u32 v{VA+3}, 3072, v{VA}
    v_lshlrev_b32 v3, 5, v1
    v_lshlrev_b32 v6, 4, v2
    v_add_u32 v3, v3, v6                   ; 32 a + 16 q
    s_lshl_b32 s7, s{S_RH}, 8
    s_sub_u32 s7, {448-192}, s7
    s_add_u32 s7, s7, s{S_TB}
    v_add_u32 v{VB}, s7, v3
    """)
    for i in range(32): a(f"v_mov_b32 v{ACC+i}, 0")
    def rdA(st, dl, rp):
        Dd, e = dl >> 1, dl & 1
        o = (1-e)*128 + (3-rp)*16
        r = AF + st*32 + dl*4
        return [f"ds_read2_b32 {v(r,2)}, v{VA+Dd} offset0:{o} offset1:{o+1}",
                f"ds_read2_b32 {v(r+2,2)}, v{VA+Dd} offset0:{o+2} offset1:{o+3}"]
    def rdB(st, p, rp):
        r = BF + st*32 + p*4
        return [f"ds_read_b128 {v(r,4)}, v{VB} offset:{CT_U + 512*p + (3-rp)*64}"]
    def reads(st, rp):
        r = []
        for k in range(8):
            r += rdB(st, k, rp) + rdA(st, k, rp)
        return r
    a("s_waitcnt vmcnt(0)")
    stamp(a, opts, 2)
    a(f"v_lshlrev_b32 v5, 16, v5             ; Dskip")
    if opts.get('cprio', 1): a("s_setprio 1")
    for l in reads(0, 0): a(l)
    for rp in range(4):
        st = rp & 1
        nxt = reads(1-st, rp+1) if rp < 3 else []
        a("s_waitcnt lgkmcnt(0)")
        mf = []
        for ssum in range(8):
            for dl in range(ssum+1):
                p = ssum - dl
                mf.append(f"v_mfma_f32_16x16x32_bf16 {v(ACC+4*ssum,4)}, {v(AF+st*32+dl*4,4)}, {v(BF+st*32+p*4,4)}, {v(ACC+4*ssum,4)}")
        order = sorted(range(len(mf)), key=lambda i: i)
        ni = 0
        for k, idx in enumerate(order):
            a(mf[idx])
            if ni < len(nxt):
                a(nxt[ni]); ni += 1
        while ni < len(nxt): a(nxt[ni]); ni += 1
    a("s_setprio 0")
    stamp(a, opts, 3)
    ex0 = a.label('ex0'); exd = a.label('exd')
    a(f"""
    v_lshlrev_b32 v1, 4, v0
    v_add_u32 v3, s{S_TB}, v1
    s_cmp_eq_u32 s{S_RH}, 0
    s_nop 4
    s_cbranch_scc1 {ex0}
    """)
    for T in range(4): a(f"ds_write_b128 v3, {v(ACC+4*T,4)} offset:{CT_V0 + T*1024}")
    for i in range(16): a(f"v_mov_b32 v{ACC+i}, v{ACC+16+i}")
    a(f"s_branch {exd}")
    a(f"{ex0}:")
    for T in range(4): a(f"ds_write_b128 v3, {v(ACC+16+4*T,4)} offset:{CT_V0 + T*1024}")
    a(f"{exd}:")
    lp = a.label('xspin')
    a(f"""
    s_waitcnt lgkmcnt(0)
    s_lshl_b32 s7, s{S_CW}, 2
    s_add_u32 s7, s7, {B_FLG}
    v_mov_b32 v6, s7
    v_mov_b32 v7, 1
    ds_write_b32 v6, v7
    s_xor_b32 s7, s{S_CW}, 1
    s_lshl_b32 s24, s7, 2
    s_add_u32 s24, s24, {B_FLG}
    v_mov_b32 v6, s24
    s_mul_i32 s24, s7, {CT_SZ}
    s_add_u32 s24, s24, {B_CT}
    v_add_u32 v3, s24, v1
    s_mov_b32 s25, 0
    {lp}:
    ds_read_b32 v7, v6
    s_add_u32 s25, s25, 1
    s_waitcnt lgkmcnt(0)
    v_readfirstlane_b32 s24, v7
    s_cmp_gt_u32 s25, 1000000
    s_cselect_b32 s24, 1, s24
    s_cmp_eq_u32 s24, 0
    s_cbranch_scc1 {lp}
    """)
    for T in range(4): a(f"ds_read_b128 {v(32+4*T,4)}, v3 offset:{CT_V0 + T*1024}")
    a(f"""
    v_and_b32 v1, 15, v0
    v_lshlrev_b32 v1, 5, v1
    v_lshrrev_b32 v2, 4, v0
    v_lshlrev_b32 v2, 3, v2
    v_add_u32 v1, v1, v2                   ; 2*(16a + 4q)
    s_lshl_b32 s7, s{S_RH}, 11             ; 4 rh * 512
    s_add_u32 s24, s7, s{S_TB}
    v_add_u32 v2, s24, v1
    """)
    for k in range(4): a(f"ds_read_b64 {v(48+2*k,2)}, v2 offset:{CT_U + 480 + k*512}")
    a(f"""
    v_and_b32 v1, 15, v0
    v_lshlrev_b32 v1, 6, v1
    v_lshrrev_b32 v2, 4, v0
    v_lshlrev_b32 v2, 4, v2
    v_add_u32 v1, v1, v2
    s_lshl_b32 s24, s{S_CH}, 13
    s_add_u32 s24, s24, {WS_Y}
    s_lshl_b32 s7, s{S_RH}, 12             ; 4 rh * 1024
    s_add_u32 s24, s24, s7
    s_waitcnt lgkmcnt(0)
    """)
    for k in range(4):
        A = ACC + 4*k
        for i in range(4): a(f"v_add_f32 v{A+i}, v{A+i}, v{32+4*k+i}")
        U = 64
        a(f"v_cvt_pk_bf16_f32 v{U}, v{A}, v{A+1}")
        a(f"v_cvt_pk_bf16_f32 v{U+1}, v{A+2}, v{A+3}")
        for j in range(2):
            a(f"v_lshlrev_b32 v{U+2+2*j}, 16, v{48+2*k+j}")
            a(f"v_and_b32 v{U+3+2*j}, 0xffff0000, v{48+2*k+j}")
        for i in range(4): a(f"v_mul_f32 v{U+2+i}, v{U+2+i}, v5")
        a(f"v_cvt_pk_bf16_f32 v{U+6}, v{U+2}, v{U+3}")
        a(f"v_cvt_pk_bf16_f32 v{U+7}, v{U+4}, v{U+5}")
        for j in range(2):
            a(f"v_lshlrev_b32 v{U+2+2*j}, 16, v{U+6+j}")
            a(f"v_and_b32 v{U+3+2*j}, 0xffff0000, v{U+6+j}")
            a(f"v_lshlrev_b32 v{U+8+2*j}, 16, v{U+j}")
            a(f"v_and_b32 v{U+9+2*j}, 0xffff0000, v{U+j}")
        for i in range(4): a(f"v_add_f32 v{U+2+i}, v{U+2+i}, v{U+8+i}")
        O = 80 + 4*k
        a(f"v_cvt_pk_bf16_f32 v{O}, v{U+2}, v{U+3}")
        a(f"v_cvt_pk_bf16_f32 v{O+1}, v{U+4}, v{U+5}")
        a(f"v_mov_b32 v{O+2}, v{V_NON}")
        a(f"v_mov_b32 v{O+3}, v{V_NON+1}")
        a(f"buffer_store_dwordx4 {v(O,4)}, v1, s[{SRD_WS}:{SRD_WS+3}], s24 offen offset:{k*1024} sc1")
    stamp(a, opts, 9)

def gen_B(a, name, opts):
    import core
    core.set_vts(239+0 if False else 231)
    a(kernel_head(name))
    lend = a.label('endB'); lc = a.label('conv'); lf = a.label('final')
    prologue_B(a, lend, opts)
    a(f"s_cmp_ge_u32 s{S_WAVE}, 4")
    a(f"s_cbranch_scc1 {lc}")
    gemm_B(a, opts)
    a(f"s_branch {lf}")
    a(f"{lc}:")
    conv_B(a, opts)
    a(f"{lf}:")
    final_B(a, opts)
    a(f"{lend}:")
    a("s_endpgm")
    a(kernel_desc(name, 240))
```

```python
from core import *
import struct
def f2u(x): return struct.unpack('<I', struct.pack('<f', x))[0]
def hx(x): return hex(f2u(x))

B_P    = 0
PROW   = 272
B_YT   = 69632
B_CT   = B_YT + 10240
CT_U, CT_V0, CT_V1, CT_SZ = 0, 4608, 4608+4160, 4608+4160+4160
B_FLG  = B_CT + 4*CT_SZ
B_LDS  = B_FLG + 64

S_WAVE, S_RT, S_CT = 3, 4, 5
SRD_WS, SRD_X, SRD_O = 8, 12, 16

def prologue_B(a, lend, opts):
    a(f"""
    s_cmp_ge_u32 s2, 256
    s_cbranch_scc1 {lend}
    """)
    if opts.get('dbgt'):
        a("s_memrealtime s[86:87]")
    stamp_init(a, opts)
    stamp(a, opts, 10, real=True)
    stamp(a, opts, 0)
    a(f"""
    s_load_dwordx16 s[36:51], s[0:1], 0
    s_load_dwordx16 s[52:67], s[0:1], 64
    v_lshrrev_b32 v1, 6, v0
    v_and_b32 v0, 63, v0
    s_and_b32 s7, s2, 7
    v_readfirstlane_b32 s{S_WAVE}, v1
    s_lshr_b32 s24, s2, 3
    s_lshr_b32 s25, s7, 1
    s_lshl_b32 s25, s25, 3
    s_and_b32 s26, s24, 7
    s_add_u32 s{S_RT}, s25, s26
    s_and_b32 s25, s7, 1
    s_lshl_b32 s25, s25, 2
    s_lshr_b32 s26, s24, 3
    s_add_u32 s{S_CT}, s25, s26
    """)

V_XT = 232
V_NON = 236
def common_loads(a, opts):
    a(f"""
    s_and_b32 s32, s{S_WAVE}, 3
    s_lshl_b32 s32, s32, 4
    s_lshl_b32 s33, s{S_RT}, 6
    s_add_u32 s32, s32, s33                 ; 64 rt + 16 (w&3)
    v_and_b32 v2, 15, v0
    v_add_u32 v2, s32, v2
    v_lshlrev_b32 v2, 10, v2              ; row*1024
    s_lshr_b32 s32, s{S_WAVE}, 2
    s_lshl_b32 s32, s32, 6                  ; 4*(w>>2)*16 B
    s_lshl_b32 s33, s{S_CT}, 7            ; 64 ct * 2 B
    s_add_u32 s32, s32, s33
    v_lshrrev_b32 v3, 4, v0
    v_lshlrev_b32 v3, 4, v3
    v_add_u32 v2, v2, v3
    v_add_u32 v238, s32, v2
    v_mov_b32 v239, {WS_NONCE}
    """)

def gemm_B(a, opts):
    D = opts.get('depth', 6)
    ACC = 0 + 16
    FR = 80
    VH0, VH1, VW0, VW1 = 8, 9, 10, 11
    S_S0, S_N, S_CUR, S_OFF = 24, 25, 26, 27
    def acc(m, n): return ACC + (m*2+n)*16
    def fr(st, k): return FR + st*16 + k*4
    a(f"""
    s_mul_i32 s{S_S0}, s{S_WAVE}, 22
    s_mov_b32 s{S_N}, 22
    s_cmp_ge_u32 s{S_WAVE}, 2
    s_cselect_b32 s{S_N}, 21, s{S_N}
    s_cmp_eq_u32 s{S_WAVE}, 3
    s_cselect_b32 s7, 1, 0
    s_sub_u32 s{S_S0}, s{S_S0}, s7          ; 0, 22, 44, 65
    s_and_b32 s7, s{S_RT}, 7
    s_and_b32 s28, s{S_CT}, 3
    s_lshl_b32 s28, s28, 1
    s_add_u32 s7, s7, s28
    s_and_b32 s7, s7, 7
    s_mul_i32 s7, s7, 5
    s_lshr_b32 s{S_CUR}, s7, 1              ; rotation 0..17
    v_lshlrev_b32 v1, 4, v0
    s_mul_i32 s7, s{S_RT}, {2*86*1024}
    s_add_u32 s7, s7, {WS_H}
    v_add_u32 v{VH0}, s7, v1
    v_add_u32 v{VH1}, {86*1024}, v{VH0}
    s_mul_i32 s7, s{S_CT}, {2*86*1024}
    s_add_u32 s7, s7, {WS_WD}
    v_add_u32 v{VW0}, s7, v1
    v_add_u32 v{VW1}, {86*1024}, v{VW0}
    """)
    common_loads(a, opts)
    a("s_waitcnt lgkmcnt(0)")
    srd(a, SRD_WS, SP['ws'], 18*MB)
    stamp(a, opts, 1)
    def issue(st):
        a(f"""
        s_add_u32 s{S_OFF}, s{S_S0}, s{S_CUR}
        s_lshl_b32 s{S_OFF}, s{S_OFF}, 10
        s_add_u32 s{S_CUR}, s{S_CUR}, 1
        s_cmp_eq_u32 s{S_CUR}, s{S_N}
        s_cselect_b32 s{S_CUR}, 0, s{S_CUR}
        """)
        for k, vr in enumerate((VW0, VH0, VW1, VH1)):
            kk = (0, 2, 1, 3)[k]
            a(f"buffer_load_dwordx4 {v(fr(st,kk),4)}, v{vr}, s[{SRD_WS}:{SRD_WS+3}], s{S_OFF} offen")
    for st in range(D): issue(st)
    a(f"global_load_dwordx4 {v(V_XT,4)}, v238, s[{SP['x']}:{SP['x']+1}]")
    a(f"global_load_dwordx2 v[{V_NON}:{V_NON+1}], v239, s[{SP['ws']}:{SP['ws']+1}]")
    for i in range(64): a(f"v_mov_b32 v{ACC+i}, 0")
    a("s_barrier")
    NS = 22
    a(f"""
    v_lshrrev_b32 v2, 4, v0
    s_lshl_b32 s7, s{S_WAVE}, 4
    s_lshl_b32 s28, s{S_CT}, 6
    s_add_u32 s7, s7, s28                  ; 64 ct + 16 w
    v_add_u32 v2, s7, v2
    v_lshlrev_b32 v2, 13, v2               ; ch*8192
    v_and_b32 v3, 15, v0
    v_lshlrev_b32 v3, 4, v3
    v_add_u32 v2, v2, v3
    s_lshl_b32 s7, s{S_RT}, 8              ; 16 quads * 16 B
    s_add_u32 s7, s7, {WS_Y}
    v_add_u32 v12, s7, v2                  ; y address
    """)
    YG = 176
    def yissue():
        for i in range(4):
            if i == 0: a(f"buffer_load_dwordx4 {v(YG,4)}, v12, s[{SRD_WS}:{SRD_WS+3}], 0 offen sc1")
            else:
                a(f"s_mov_b32 s{S_OFF}, {i*4*8192}")
                a(f"buffer_load_dwordx4 {v(YG+4*i,4)}, v12, s[{SRD_WS}:{SRD_WS+3}], s{S_OFF} offen sc1")
    extra0 = 2
    lskip = a.label('gskip')
    for i in range(NS):
        st = i % D
        younger = min(i + D - 1, NS - 1) - i
        cnt = 4*younger
        if i < D: cnt += extra0
        if i + D - 1 >= NS - 1 and i > NS - D: cnt += 4
        if i == NS - 1:
            a(f"s_cmp_eq_u32 s{S_N}, 21")
            a(f"s_cbranch_scc1 {lskip}")
        a(f"s_waitcnt vmcnt({cnt})")
        for m in range(2):
            for n in range(2):
                a(f"v_mfma_f32_32x32x16_bf16 {v(acc(m,n),16)}, {v(fr(st,m),4)}, {v(fr(st,2+n),4)}, {v(acc(m,n),16)}")
        if i + D < NS: issue(st)
        if i + D == NS: yissue()
    a(f"{lskip}:")
    stamp(a, opts, 2)
    a(f"""
    v_and_b32 v1, 31, v0
    v_mul_u32_u24 v1, {PROW}, v1
    v_lshrrev_b32 v2, 5, v0
    v_lshlrev_b32 v2, 4, v2
    v_add_u32 v1, v1, v2
    s_mul_i32 s7, s{S_WAVE}, {64*PROW}
    s_add_u32 s7, s7, {B_P}
    v_add_u32 v1, s7, v1
    s_nop 4
    """)
    for m in range(2):
        for n in range(2):
            for g in range(4):
                a(f"ds_write_b128 v1, {v(acc(m,n)+4*g,4)} offset:{n*32*PROW + m*128 + g*32}")
    lp = a.label('ychk'); ok = a.label('yok')
    a(f"""
    s_mov_b32 s28, 0
    {lp}:
    s_waitcnt vmcnt(0)
    v_cmp_ne_u32 vcc, v{V_NON}, v{YG+2}
    """)
    for i in range(4):
        if i: a(f"v_cmp_ne_u32 s[30:31], v{V_NON}, v{YG+4*i+2}"); a("s_or_b64 vcc, vcc, s[30:31]") if i else None
    for i in range(4):
        a(f"v_cmp_ne_u32 s[30:31], v{V_NON+1}, v{YG+4*i+3}"); a("s_or_b64 vcc, vcc, s[30:31]")
    a(f"""
    s_add_u32 s28, s28, 1
    s_cmp_eq_u64 vcc, 0
    s_cbranch_scc1 {ok}
    s_cmp_gt_u32 s28, 100000
    s_cbranch_scc1 {ok}
    """)
    yissue()
    a(f"s_branch {lp}")
    a(f"{ok}:")
    stamp(a, opts, 3)
    a(f"""
    v_lshrrev_b32 v2, 4, v0
    s_lshl_b32 s7, s{S_WAVE}, 4
    v_add_u32 v2, s7, v2
    v_mul_u32_u24 v2, 160, v2
    v_and_b32 v3, 15, v0
    v_lshlrev_b32 v3, 3, v3
    v_add_u32 v2, v2, v3
    v_add_u32 v2, {B_YT}, v2
    """)
    for i in range(4):
        a(f"ds_write_b64 v2, {v(YG+4*i,2)} offset:{i*4*160}")

def final_B(a, opts):
    a("s_waitcnt lgkmcnt(0)")
    stamp(a, opts, 4)
    a("s_barrier")
    stamp(a, opts, 5)
    srd(a, SRD_O, SP['out'], 2097152)
    a(f"""
    s_and_b32 s7, s{S_WAVE}, 3
    s_lshl_b32 s7, s7, 4
    v_and_b32 v1, 15, v0
    v_add_u32 v2, s7, v1                  ; t
    v_mul_u32_u24 v2, {PROW}, v2
    s_lshr_b32 s24, s{S_WAVE}, 2
    s_lshl_b32 s24, s24, 2
    v_lshrrev_b32 v3, 4, v0
    v_add_u32 v3, s24, v3                 ; octet
    v_lshlrev_b32 v4, 5, v3
    v_add_u32 v2, v2, v4
    v_lshlrev_b32 v4, 3, v3
    v_lshrrev_b32 v5, 2, v1
    v_add_u32 v4, v4, v5
    v_mul_u32_u24 v4, 160, v4
    v_and_b32 v5, 3, v1
    v_lshlrev_b32 v5, 3, v5
    v_add_u32 v4, v4, v5
    s_lshl_b32 s7, s7, 1
    s_add_u32 s7, s7, {B_YT}
    v_add_u32 v4, s7, v4
    """)
    P = 16
    for pw in range(4):
        a(f"ds_read_b128 {v(P+8*pw,4)}, v2 offset:{pw*64*PROW}")
        a(f"ds_read_b128 {v(P+8*pw+4,4)}, v2 offset:{pw*64*PROW+16}")
    a(f"ds_read_b64_tr_b16 v[8:9], v4")
    a(f"ds_read_b64_tr_b16 v[10:11], v4 offset:{4*160}")
    a("s_waitcnt lgkmcnt(6)")
    for i in range(8): a(f"v_add_f32 v{P+i}, v{P+i}, v{P+8+i}")
    a("s_waitcnt lgkmcnt(2)")
    for i in range(8): a(f"v_add_f32 v{P+16+i}, v{P+16+i}, v{P+24+i}")
    for i in range(8): a(f"v_add_f32 v{P+i}, v{P+i}, v{P+16+i}")
    for j in range(4): a(f"v_cvt_pk_bf16_f32 v{48+j}, v{P+2*j}, v{P+2*j+1}")
    a("s_waitcnt vmcnt(0) lgkmcnt(0)")
    U = 56
    for j in range(4):
        a(f"v_lshlrev_b32 v{U+2*j}, 16, v{V_XT+j}")
        a(f"v_and_b32 v{U+2*j+1}, 0xffff0000, v{V_XT+j}")
        a(f"v_lshlrev_b32 v{U+8+2*j}, 16, v{8+j}")
        a(f"v_and_b32 v{U+8+2*j+1}, 0xffff0000, v{8+j}")
    for i in range(8): a(f"v_add_f32 v{U+i}, v{U+i}, v{U+8+i}")
    for j in range(4): a(f"v_cvt_pk_bf16_f32 v{72+j}, v{U+2*j}, v{U+2*j+1}")
    for j in range(4):
        a(f"v_lshlrev_b32 v{U+2*j}, 16, v{72+j}")
        a(f"v_and_b32 v{U+2*j+1}, 0xffff0000, v{72+j}")
        a(f"v_lshlrev_b32 v{U+8+2*j}, 16, v{48+j}")
        a(f"v_and_b32 v{U+8+2*j+1}, 0xffff0000, v{48+j}")
    for i in range(8): a(f"v_add_f32 v{U+i}, v{U+i}, v{U+8+i}")
    for j in range(4): a(f"v_cvt_pk_bf16_f32 v{76+j}, v{U+2*j}, v{U+2*j+1}")
    a(f"buffer_store_dwordx4 v[76:79], v238, s[{SRD_O}:{SRD_O+3}], 0 offen")
    if opts.get('padto'):
        lp = a.label('pad')
        a(f"""
        s_waitcnt vmcnt(0)
        v_readfirstlane_b32 s28, v{V_NON}
        {lp}:
        s_memrealtime s[30:31]
        s_waitcnt lgkmcnt(0)
        s_sub_u32 s30, s30, s28
        s_cmp_lt_u32 s30, {opts['padto']}
        s_cbranch_scc1 {lp}
        """)
    if opts.get('dbgt'):
        sk = a.label('nodbg')
        a(f"""
        s_waitcnt vmcnt(0)
        s_and_b32 s7, s2, 31
        s_or_b32 s7, s7, s{S_WAVE}
        s_cmp_lg_u32 s7, 0
        s_cbranch_scc1 {sk}
        s_memrealtime s[30:31]
        v_readfirstlane_b32 s28, v{V_NON}
        s_waitcnt lgkmcnt(0)
        s_sub_u32 s30, s30, s28
        s_sub_u32 s29, s86, s28
        s_lshr_b32 s7, s2, 5
        s_lshl_b32 s7, s7, 3
        v_mov_b32 v1, s7
        v_mov_b32 v2, s29
        v_mov_b32 v3, s30
        s_mov_b64 exec, 1
        global_store_dwordx2 v1, v[2:3], s[{SP['dbg']}:{SP['dbg']+1}]
        s_mov_b64 exec, -1
        {sk}:
        """)
    stamp(a, opts, 6)
    if opts.get('ts'): a("s_waitcnt vmcnt(0)")
    stamp(a, opts, 8)
    stamp(a, opts, 7, real=True)
    stamp_flush(a, opts, 1)
    a("s_endpgm")

def conv_B(a, opts):
    S_CW, S_TB, S_CH, S_RH = 68, 69, 70, 71
    ACC, AF, BF = 16, 48, 112
    VA, VB = 8, 12
    a(f"""
    s_sub_u32 s{S_CW}, s{S_WAVE}, 4
    s_mul_i32 s{S_TB}, s{S_CW}, {CT_SZ}
    s_add_u32 s{S_TB}, s{S_TB}, {B_CT}
    s_lshr_b32 s7, s{S_CW}, 1
    s_lshl_b32 s{S_CH}, s2, 1
    s_add_u32 s{S_CH}, s{S_CH}, s7          ; channel
    s_and_b32 s{S_RH}, s{S_CW}, 1
    v_lshlrev_b32 v1, 4, v0
    s_lshl_b32 s26, s{S_CH}, 12
    s_add_u32 s26, s26, {WS_XT}             ; u row
    s_mul_i32 s27, s{S_CH}, {K_STRIDE}
    s_add_u32 s27, s27, {WS_K}              ; K row
    s_lshl_b32 s28, s{S_CH}, 1
    v_mov_b32 v4, s28
    """)
    common_loads(a, opts)
    a("v_add_u32 v2, 2, v1")
    a("s_waitcnt lgkmcnt(0)")
    srd(a, SRD_WS, SP['ws'], 19*MB)
    stamp(a, opts, 1)
    def dma(ldsoff, voff, sbase, goff):
        a(f"s_add_u32 m0, s{S_TB}, {ldsoff}")
        a(f"s_add_u32 s29, s{sbase}, {goff}")
        a(f"buffer_load_dwordx4 v{voff}, s[{SRD_WS}:{SRD_WS+3}], s29 offen lds")
    for i in range(4): dma(CT_V0 + i*1024, 1, 27, i*1024)
    for i in range(4): dma(CT_V1 + i*1024, 2, 27, i*1024)
    for i in range(4): dma(CT_U + 480 + i*1024, 1, 26, i*1024)
    a("s_mov_b64 exec, 0xf")
    dma(CT_V0 + 4096, 1, 27, 4096)
    dma(CT_V1 + 4096, 2, 27, 4096)
    a("s_mov_b64 exec, -1")
    a(f"global_load_ushort v5, v4, s[{SP['dskip']}:{SP['dskip']+1}]")
    a(f"global_load_dwordx4 {v(V_XT,4)}, v238, s[{SP['x']}:{SP['x']+1}]")
    a(f"global_load_dwordx2 v[{V_NON}:{V_NON+1}], v239, s[{SP['ws']}:{SP['ws']+1}]")
    a(f"""
    v_mov_b32 v16, 0
    v_mov_b32 v17, 0
    v_mov_b32 v18, 0
    v_mov_b32 v19, 0
    v_add_u32 v3, s{S_TB}, v1
    s_mov_b64 exec, 0x3fffffff
    ds_write_b128 v3, v[16:19] offset:{CT_U}
    s_mov_b64 exec, -1
    s_lshl_b32 s7, s{S_CW}, 2
    s_add_u32 s7, s7, {B_FLG}
    v_mov_b32 v3, s7
    ds_write_b32 v3, v16
    s_waitcnt lgkmcnt(0)
    s_barrier
    """)
    a(f"""
    v_and_b32 v1, 15, v0                   ; b / a
    v_lshrrev_b32 v2, 4, v0                ; q
    v_lshrrev_b32 v3, 1, v1                ; beta
    v_lshlrev_b32 v6, 2, v2
    v_sub_u32 v6, v6, v3                   ; 4q - beta
    s_lshl_b32 s7, s{S_RH}, 6
    s_sub_u32 s7, {1015-128-48}, s7        ; 1015 - 64 rh - 176
    v_add_u32 v6, s7, v6
    v_lshlrev_b32 v6, 2, v6                ; *4 bytes
    v_and_b32 v3, 1, v1
    v_xor_b32 v3, 1, v3
    v_mul_u32_u24 v3, {CT_V1-CT_V0}, v3
    v_add_u32 v6, v6, v3
    s_add_u32 s7, s{S_TB}, {CT_V0}
    v_add_u32 v{VA}, s7, v6                ; D = 0
    v_subrev_u32 v{VA+1}, 1024, v{VA}
    v_subrev_u32 v{VA+2}, 2048, v{VA}
    v_subrev_u32 v{VA+3}, 3072, v{VA}
    v_lshlrev_b32 v3, 5, v1
    v_lshlrev_b32 v6, 4, v2
    v_add_u32 v3, v3, v6                   ; 32 a + 16 q
    s_lshl_b32 s7, s{S_RH}, 8
    s_sub_u32 s7, {448-192}, s7
    s_add_u32 s7, s7, s{S_TB}
    v_add_u32 v{VB}, s7, v3
    """)
    for i in range(32): a(f"v_mov_b32 v{ACC+i}, 0")
    def rdA(st, dl, rp):
        Dd, e = dl >> 1, dl & 1
        o = (1-e)*128 + (3-rp)*16
        r = AF + st*32 + dl*4
        return [f"ds_read2_b32 {v(r,2)}, v{VA+Dd} offset0:{o} offset1:{o+1}",
                f"ds_read2_b32 {v(r+2,2)}, v{VA+Dd} offset0:{o+2} offset1:{o+3}"]
    def rdB(st, p, rp):
        r = BF + st*32 + p*4
        return [f"ds_read_b128 {v(r,4)}, v{VB} offset:{CT_U + 512*p + (3-rp)*64}"]
    def reads(st, rp):
        r = []
        for k in range(8):
            r += rdB(st, k, rp) + rdA(st, k, rp)
        return r
    a("s_waitcnt vmcnt(0)")
    stamp(a, opts, 2)
    a(f"v_lshlrev_b32 v5, 16, v5             ; Dskip")
    if opts.get('cprio', 1): a("s_setprio 1")
    for l in reads(0, 0): a(l)
    for rp in range(4):
        st = rp & 1
        nxt = reads(1-st, rp+1) if rp < 3 else []
        a("s_waitcnt lgkmcnt(0)")
        mf = []
        for ssum in range(8):
            for dl in range(ssum+1):
                p = ssum - dl
                mf.append(f"v_mfma_f32_16x16x32_bf16 {v(ACC+4*ssum,4)}, {v(AF+st*32+dl*4,4)}, {v(BF+st*32+p*4,4)}, {v(ACC+4*ssum,4)}")
        order = sorted(range(len(mf)), key=lambda i: i)
        ni = 0
        for k, idx in enumerate(order):
            a(mf[idx])
            if ni < len(nxt):
                a(nxt[ni]); ni += 1
        while ni < len(nxt): a(nxt[ni]); ni += 1
    a("s_setprio 0")
    stamp(a, opts, 3)
    ex0 = a.label('ex0'); exd = a.label('exd')
    a(f"""
    v_lshlrev_b32 v1, 4, v0
    v_add_u32 v3, s{S_TB}, v1
    s_cmp_eq_u32 s{S_RH}, 0
    s_nop 4
    s_cbranch_scc1 {ex0}
    """)
    for T in range(4): a(f"ds_write_b128 v3, {v(ACC+4*T,4)} offset:{CT_V0 + T*1024}")
    for i in range(16): a(f"v_mov_b32 v{ACC+i}, v{ACC+16+i}")
    a(f"s_branch {exd}")
    a(f"{ex0}:")
    for T in range(4): a(f"ds_write_b128 v3, {v(ACC+16+4*T,4)} offset:{CT_V0 + T*1024}")
    a(f"{exd}:")
    lp = a.label('xspin')
    a(f"""
    s_waitcnt lgkmcnt(0)
    s_lshl_b32 s7, s{S_CW}, 2
    s_add_u32 s7, s7, {B_FLG}
    v_mov_b32 v6, s7
    v_mov_b32 v7, 1
    ds_write_b32 v6, v7
    s_xor_b32 s7, s{S_CW}, 1
    s_lshl_b32 s24, s7, 2
    s_add_u32 s24, s24, {B_FLG}
    v_mov_b32 v6, s24
    s_mul_i32 s24, s7, {CT_SZ}
    s_add_u32 s24, s24, {B_CT}
    v_add_u32 v3, s24, v1
    s_mov_b32 s25, 0
    {lp}:
    ds_read_b32 v7, v6
    s_add_u32 s25, s25, 1
    s_waitcnt lgkmcnt(0)
    v_readfirstlane_b32 s24, v7
    s_cmp_gt_u32 s25, 1000000
    s_cselect_b32 s24, 1, s24
    s_cmp_eq_u32 s24, 0
    s_cbranch_scc1 {lp}
    """)
    for T in range(4): a(f"ds_read_b128 {v(32+4*T,4)}, v3 offset:{CT_V0 + T*1024}")
    a(f"""
    v_and_b32 v1, 15, v0
    v_lshlrev_b32 v1, 5, v1
    v_lshrrev_b32 v2, 4, v0
    v_lshlrev_b32 v2, 3, v2
    v_add_u32 v1, v1, v2                   ; 2*(16a + 4q)
    s_lshl_b32 s7, s{S_RH}, 11             ; 4 rh * 512
    s_add_u32 s24, s7, s{S_TB}
    v_add_u32 v2, s24, v1
    """)
    for k in range(4): a(f"ds_read_b64 {v(48+2*k,2)}, v2 offset:{CT_U + 480 + k*512}")
    a(f"""
    v_and_b32 v1, 15, v0
    v_lshlrev_b32 v1, 6, v1
    v_lshrrev_b32 v2, 4, v0
    v_lshlrev_b32 v2, 4, v2
    v_add_u32 v1, v1, v2
    s_lshl_b32 s24, s{S_CH}, 13
    s_add_u32 s24, s24, {WS_Y}
    s_lshl_b32 s7, s{S_RH}, 12             ; 4 rh * 1024
    s_add_u32 s24, s24, s7
    s_waitcnt lgkmcnt(0)
    """)
    for k in range(4):
        A = ACC + 4*k
        for i in range(4): a(f"v_add_f32 v{A+i}, v{A+i}, v{32+4*k+i}")
        U = 64
        a(f"v_cvt_pk_bf16_f32 v{U}, v{A}, v{A+1}")
        a(f"v_cvt_pk_bf16_f32 v{U+1}, v{A+2}, v{A+3}")
        for j in range(2):
            a(f"v_lshlrev_b32 v{U+2+2*j}, 16, v{48+2*k+j}")
            a(f"v_and_b32 v{U+3+2*j}, 0xffff0000, v{48+2*k+j}")
        for i in range(4): a(f"v_mul_f32 v{U+2+i}, v{U+2+i}, v5")
        a(f"v_cvt_pk_bf16_f32 v{U+6}, v{U+2}, v{U+3}")
        a(f"v_cvt_pk_bf16_f32 v{U+7}, v{U+4}, v{U+5}")
        for j in range(2):
            a(f"v_lshlrev_b32 v{U+2+2*j}, 16, v{U+6+j}")
            a(f"v_and_b32 v{U+3+2*j}, 0xffff0000, v{U+6+j}")
            a(f"v_lshlrev_b32 v{U+8+2*j}, 16, v{U+j}")
            a(f"v_and_b32 v{U+9+2*j}, 0xffff0000, v{U+j}")
        for i in range(4): a(f"v_add_f32 v{U+2+i}, v{U+2+i}, v{U+8+i}")
        O = 80 + 4*k
        a(f"v_cvt_pk_bf16_f32 v{O}, v{U+2}, v{U+3}")
        a(f"v_cvt_pk_bf16_f32 v{O+1}, v{U+4}, v{U+5}")
        a(f"v_mov_b32 v{O+2}, v{V_NON}")
        a(f"v_mov_b32 v{O+3}, v{V_NON+1}")
        a(f"buffer_store_dwordx4 {v(O,4)}, v1, s[{SRD_WS}:{SRD_WS+3}], s24 offen offset:{k*1024} sc1")
    stamp(a, opts, 9)

def gen_B(a, name, opts):
    import core
    core.set_vts(239+0 if False else 231)
    a(kernel_head(name))
    lend = a.label('endB'); lc = a.label('conv'); lf = a.label('final')
    prologue_B(a, lend, opts)
    a(f"s_cmp_ge_u32 s{S_WAVE}, 4")
    a(f"s_cbranch_scc1 {lc}")
    gemm_B(a, opts)
    a(f"s_branch {lf}")
    a(f"{lc}:")
    conv_B(a, opts)
    a(f"{lf}:")
    final_B(a, opts)
    a(f"{lend}:")
    a("s_endpgm")
    a(kernel_desc(name, 240))
```

```python
class Asm:
    def __init__(self):
        self.lines = []
        self.uid = 0
    def __call__(self, s=''):
        for l in s.split('\n'):
            l = l.strip()
            if not l: continue
            if l.endswith(':') or l.startswith('.') or l.startswith(';'):
                self.lines.append(l)
            else:
                self.lines.append('    ' + l)
    def label(self, base):
        self.uid += 1
        return f"L_{base}_{self.uid}"
    def text(self):
        return '\n'.join(self.lines) + '\n'
def v(a, n=1):
    return f"v{a}" if n == 1 else f"v[{a}:{a+n-1}]"
def s(a, n=1):
    return f"s{a}" if n == 1 else f"s[{a}:{a+n-1}]"

KA = dict(x=0, are=8, aim=16, bre=24, bim=32, cre=40, cim=48, logdt=56, dskip=64, bx=72, wg=80, wu=88, wd=96, out=104, dbg=112, ws=120)
SP = {k: 36 + o//4 for k, o in KA.items()}

MB = 1024*1024
WS_H    = 0
WS_H_SZ = 64*86*1024
WS_WD   = 6*MB
WS_WD_SZ= 16*86*1024
WS_XT   = 8*MB
WS_XT_SZ= 512*4096
WS_K    = 10*MB
K_STRIDE= 4160
WS_K_SZ = 512*K_STRIDE
WS_Y    = 13*MB
WS_Y_SZ = 512*8192
WS_STAT = 18*MB
WS_CSP  = 18*MB + 65536
WS_NONCE= 18*MB + 524288
WS_FLAGX= 18*MB + 655360
WS_FLAGH= WS_FLAGX + 32768
WS_FLAGY= WS_FLAGH + 32768
WS_TS   = 20*MB

def srd(a, dst, ptr, size, off=0):
    if off:
        a(f"s_add_u32 s{dst}, s{ptr}, {off}")
        a(f"s_addc_u32 s{dst+1}, s{ptr+1}, 0")
    else:
        a(f"s_mov_b32 s{dst}, s{ptr}")
        a(f"s_mov_b32 s{dst+1}, s{ptr+1}")
    a(f"s_mov_b32 s{dst+2}, {size}")
    a(f"s_mov_b32 s{dst+3}, 0x20000")

def kernel_desc(name, vgpr, sgpr=102):
    acc = (vgpr + 3)//4*4
    return f""".section .rodata,"a"
.p2align 6
.amdhsa_kernel {name}
  .amdhsa_next_free_vgpr {vgpr}
  .amdhsa_next_free_sgpr {sgpr}
  .amdhsa_accum_offset {acc}
  .amdhsa_group_segment_fixed_size 0
  .amdhsa_kernarg_size 128
  .amdhsa_user_sgpr_count 2
  .amdhsa_user_sgpr_kernarg_segment_ptr 1
  .amdhsa_system_sgpr_workgroup_id_x 1
.end_amdhsa_kernel
.text
"""
def kernel_head(name):
    return f""".text
.globl {name}
.p2align 8
.type {name},@function
{name}:
"""

V_TS = 167
def stamp_init(a, opts):
    if not opts.get('ts'): return
    a(f"v_mov_b32 v{V_TS}, 0")
def set_vts(n):
    global V_TS
    V_TS = n
def stamp(a, opts, idx, real=False, vts=None):
    if not opts.get('ts'): return
    if opts.get('lite') and not real and idx not in (0, 8, 3, 4): return
    vts = V_TS if vts is None else vts
    a("s_memrealtime s[92:93]" if real else "s_memtime s[92:93]")
    a("s_waitcnt lgkmcnt(0)")
    if isinstance(idx, int):
        a(f"v_writelane_b32 v{vts}, s92, {idx}")
    else:
        a(f"s_mov_b32 s89, m0")
        a(f"s_mov_b32 m0, {idx}")
        a(f"v_writelane_b32 v{vts}, s92, m0")
        a(f"s_mov_b32 m0, s89")
def stamp_flush(a, opts, kslot, wave_sgpr=3, vts=None):
    if not opts.get('ts'): return
    vts = V_TS if vts is None else vts
    srd(a, 96, SP['ws'], 1<<20, WS_TS + kslot*(1<<20))
    a(f"s_lshl_b32 s91, s2, 4")
    a(f"s_add_u32 s91, s91, s{wave_sgpr}")
    a(f"s_lshl_b32 s91, s91, 8")
    a("v_mbcnt_lo_u32_b32 v1, -1, 0")
    a("v_mbcnt_hi_u32_b32 v1, -1, v1")
    a("v_lshlrev_b32 v1, 2, v1")
    a(f"buffer_store_dword v{vts}, v1, s[96:99], s91 offen")
    a("s_waitcnt vmcnt(0)")

def bar(a, opts, n):
    if opts.get('tsb'): stamp(a, opts, 32+n)
    a("s_barrier")

class VmTrack:
    def __init__(self, a): self.a = a; self.ops = []
    def op(self, tag): self.ops.append(tag)
    def count_after(self, tag):
        idx = max(i for i, t in enumerate(self.ops) if t == tag)
        return len(self.ops) - 1 - idx
    def wait(self, tag, extra=''):
        n = self.count_after(tag)
        assert n <= 63
        self.a(f"s_waitcnt vmcnt({n}){extra}")
class LgTrack:
    def __init__(self, a): self.a = a; self.n = 0; self.last = {}; self.done = -1
    def op(self, tag): self.last[tag] = self.n; self.n += 1
    def wait(self, tags):
        need = max(self.last[t] for t in tags)
        if need <= self.done: return
        cnt = min(self.n - 1 - need, 15)
        self.a(f"s_waitcnt lgkmcnt({cnt})")
        self.done = self.n - 1 - cnt
```

```python
from core import *
import struct
def f2u(x): return struct.unpack('<I', struct.pack('<f', x))[0]
def hx(x): return hex(f2u(x))

STAGE = 40960
A_KT   = 3*STAGE
A_STATS = A_KT + 32768
A_CS   = A_STATS + 1024
A_LDS  = A_CS + 768

S_WAVE, S_RB, S_CT, S_ROT = 3, 4, 5, 6
SRD_X, SRD_WG, SRD_WU, SRD_T0, SRD_T1, SRD_T2 = 8, 12, 16, 20, 24, 28

def prologue_A(a, lend, opts):
    a(f"""
    s_cmp_ge_u32 s2, 256
    s_cbranch_scc1 {lend}
    """)
    stamp_init(a, opts)
    stamp(a, opts, 10, real=True)
    stamp(a, opts, 0)
    a(f"""
    s_load_dwordx16 s[36:51], s[0:1], 0
    s_load_dwordx16 s[52:67], s[0:1], 64
    """)
    a(f"""
    v_lshrrev_b32 v1, 6, v0
    v_and_b32 v0, 63, v0
    s_and_b32 s7, s2, 7
    v_readfirstlane_b32 s{S_WAVE}, v1
    s_lshr_b32 s24, s2, 3
    s_and_b32 s25, s7, 1
    s_lshl_b32 s25, s25, 3
    s_and_b32 s26, s24, 7
    s_add_u32 s{S_RB}, s25, s26
    s_lshr_b32 s25, s7, 1
    s_lshl_b32 s25, s25, 2
    s_lshr_b32 s26, s24, 3
    s_add_u32 s{S_CT}, s25, s26
    s_lshl_b32 s25, s{S_CT}, 1
    s_add_u32 s25, s25, s{S_RB}
    s_and_b32 s{S_ROT}, s25, 7
    """)

def loader_A(a, opts):
    SJ, SXB, SWB, SLX, SLW, ST, SXO, SWO, SCC, SSTG = 68, 25, 26, 27, 28, 29, 30, 31, 32, 33
    a(f"""
    s_sub_u32 s{SJ}, s{S_WAVE}, 4
    v_lshrrev_b32 v6, 3, v0
    v_lshlrev_b32 v2, 10, v6
    v_and_b32 v6, 7, v0
    v_lshrrev_b32 v7, 4, v0
    v_xor_b32 v6, v6, v7
    v_lshlrev_b32 v6, 4, v6
    v_add_u32 v2, v2, v6
    v_xor_b32 v3, 64, v2
    v_lshrrev_b32 v6, 2, v0
    s_movk_i32 s{ST}, 2752
    v_mul_lo_u32 v4, v6, s{ST}
    v_and_b32 v6, 3, v0
    v_lshlrev_b32 v7, 4, v6
    v_xor_b32 v6, 2, v6
    v_lshlrev_b32 v6, 4, v6
    v_add_u32 v5, v4, v6
    v_add_u32 v4, v4, v7
    s_lshl_b32 s{SXB}, s{S_RB}, 17
    s_lshl_b32 s{ST}, s{SJ}, 15
    s_add_u32 s{SXB}, s{SXB}, s{ST}
    s_mul_i32 s{SWB}, s{SJ}, {16*2752}
    s_mul_i32 s{ST}, s{S_CT}, 192
    s_add_u32 s{SWB}, s{SWB}, s{ST}
    s_lshl_b32 s{SLX}, s{SJ}, 12
    s_lshl_b32 s{SLW}, s{SJ}, 10
    s_add_u32 s{SLW}, s{SLW}, 16384
    s_mov_b32 s{SCC}, s{S_ROT}
    s_waitcnt lgkmcnt(0)
    """)
    srd(a, SRD_X, SP['x'], 2097152)
    srd(a, SRD_WG, SP['wg'], 1409024)
    srd(a, SRD_WU, SP['wu'], 1409024)
    def setup(stage_off):
        a(f"""
        s_lshl_b32 s{SXO}, s{SCC}, 7
        s_add_u32 s{SXO}, s{SXO}, s{SXB}
        s_mul_i32 s{SWO}, s{SCC}, {64*2752}
        s_add_u32 s{SWO}, s{SWO}, s{SWB}
        s_add_u32 s34, s{SLX}, {stage_off}
        s_add_u32 s35, s{SLW}, {stage_off}
        s_add_u32 s{SCC}, s{SCC}, 1
        s_and_b32 s{SCC}, s{SCC}, 7
        """)
    def dma(k):
        if opts.get('nodma') and dma.n >= 13:
            return
        dma.n += 1
        order = [('x',0),('g',0),('u',0),('x',1),('g',1),('u',1),('x',2),('g',2),('u',2),('x',3)]
        t, i = order[k]
        if t == 'x':
            a(f"s_add_u32 m0, s34, {i*1024}")
            a(f"s_add_u32 s{ST}, s{SXO}, {i*8192}")
            a(f"buffer_load_dwordx4 v{2+(i&1)}, s[{SRD_X}:{SRD_X+3}], s{ST} offen lds")
        elif t == 'g':
            a(f"s_add_u32 m0, s35, {i*4096}")
            a(f"s_add_u32 s{ST}, s{SWO}, {i*64}")
            a(f"buffer_load_dwordx4 v4, s[{SRD_WG}:{SRD_WG+3}], s{ST} offen lds")
        else:
            a(f"s_add_u32 m0, s35, {i*4096+12288}")
            a(f"s_add_u32 s{ST}, s{SWO}, {i*64}")
            a(f"buffer_load_dwordx4 v5, s[{SRD_WU}:{SRD_WU+3}], s{ST} offen lds")
    dma.n = 0
    H = opts.get('half', 3)
    for _ in range(opts.get('ldelay', 0)): a("s_sleep 2")
    stamp(a, opts, 1)
    setup(0)
    for k in range(10): dma(k)
    setup(STAGE)
    for k in range(H): dma(k)
    stamp(a, opts, 2)
    a(f"s_waitcnt vmcnt({H})")
    stamp(a, opts, 3)
    a("s_barrier")
    lp = a.label('ldloop')
    a(f"s_mov_b32 s{SSTG}, {2*STAGE}")
    a(f"s_mov_b32 s7, 0")
    a(f"{lp}:")
    for k in range(H, 10): dma(k)
    setup(f"s{SSTG}")
    for k in range(H): dma(k)
    if opts.get('tsl'):
        a("s_add_u32 s90, s7, 16"); stamp(a, opts, "s90")
    a(f"s_waitcnt vmcnt({H})")
    if opts.get('tsl'):
        a("s_add_u32 s90, s7, 24"); stamp(a, opts, "s90")
    if opts.get('tsb'):
        a("s_add_u32 s90, s7, 33"); stamp(a, opts, "s90")
    a("s_barrier")
    a(f"""
    s_add_u32 s{SSTG}, s{SSTG}, {STAGE}
    s_cmp_eq_u32 s{SSTG}, {3*STAGE}
    s_cselect_b32 s{SSTG}, 0, s{SSTG}
    s_add_u32 s7, s7, 1
    s_cmp_lt_u32 s7, 6
    s_cbranch_scc1 {lp}
    """)
    for k in range(H, 10): dma(k)
    stamp(a, opts, 4)
    from kerA_help import loader_tail_A
    loader_tail_A(a, opts, SJ, 10-H)

def stats_produce(a, opts):
    X = 8
    a(f"""
    s_setprio 3
    v_lshrrev_b32 v1, 5, v0
    v_lshlrev_b32 v1, 10, v1
    v_and_b32 v2, 31, v0
    v_lshlrev_b32 v2, 4, v2
    v_add_u32 v1, v1, v2
    s_lshl_b32 s7, s{S_RB}, 4
    s_add_u32 s7, s7, s{S_CT}
    s_lshl_b32 s7, s7, 3
    s_lshl_b32 s33, s{S_WAVE}, 1
    s_add_u32 s7, s7, s33           ; row0
    s_lshl_b32 s33, s7, 10
    v_add_u32 v1, s33, v1
    s_waitcnt lgkmcnt(0)
    global_load_dwordx4 {v(X,4)}, v1, s[{SP['x']}:{SP['x']+1}]
    global_load_dwordx4 {v(X+4,4)}, v1, s[{SP['x']}:{SP['x']+1}] offset:512
    s_setprio 0
    """)
    stamp(a, opts, 1)

def stats_finish(a, opts):
    from kerA_help import A_PUB as A_PUB_
    X = 8; U = 16
    a("s_waitcnt vmcnt(0)")
    for j in range(8):
        a(f"v_lshlrev_b32 v{U+2*j}, 16, v{X+j}")
        a(f"v_and_b32 v{U+2*j+1}, 0xffff0000, v{X+j}")
    a(f"v_add_f32 v2, v{U}, v{U+1}")
    a(f"v_add_f32 v3, v{U+2}, v{U+3}")
    for j in range(2, 8):
        a(f"v_add_f32 v{2+(j&1)}, v{2+(j&1)}, v{U+2*j}")
        a(f"v_add_f32 v{2+(j&1)}, v{2+(j&1)}, v{U+2*j+1}")
    def red32(r):
        a("s_nop 1")
        a(f"v_add_f32_dpp v{r}, v{r}, v{r} quad_perm:[1,0,3,2] row_mask:0xf bank_mask:0xf")
        a("s_nop 1")
        a(f"v_add_f32_dpp v{r}, v{r}, v{r} quad_perm:[2,3,0,1] row_mask:0xf bank_mask:0xf")
        a("s_nop 1")
        a(f"v_add_f32_dpp v{r}, v{r}, v{r} row_half_mirror row_mask:0xf bank_mask:0xf")
        a("s_nop 1")
        a(f"v_add_f32_dpp v{r}, v{r}, v{r} row_mirror row_mask:0xf bank_mask:0xf")
        a(f"v_mov_b32 v5, v{r}")
        a("s_nop 1")
        a(f"v_permlane16_swap_b32 v{r}, v5")
        a("s_nop 1")
        a(f"v_add_f32 v{r}, v{r}, v5")
    a("v_add_f32 v2, v2, v3")
    red32(2)
    a("v_mul_f32 v2, 0x3b000000, v2        ; mean")
    a("v_mov_b32 v3, 0")
    a("v_mov_b32 v4, 0")
    for i in range(16):
        a(f"v_sub_f32 v{U+i}, v{U+i}, v2")
    for i in range(16):
        a(f"v_fmac_f32 v{3+(i&1)}, v{U+i}, v{U+i}")
    a("v_add_f32 v4, v4, v3")
    red32(4)
    a(f"""
    v_mul_f32 v4, 0x3b000000, v4          ; var
    v_cvt_pk_bf16_f32 v2, v2, v4
    v_and_b32 v4, 0xffff0000, v2
    v_add_f32 v4, {hx(1e-5)}, v4
    v_cvt_pk_bf16_f32 v4, v4, v4
    v_and_b32 v4, 0xffff0000, v4
    v_sqrt_f32 v4, v4
    v_and_b32 v2, 0xffff, v2
    v_cvt_pk_bf16_f32 v4, v4, v4
    v_and_b32 v4, 0xffff0000, v4
    v_or_b32 v2, v2, v4
    v_lshrrev_b32 v1, 5, v0
    s_lshl_b32 s33, s{S_WAVE}, 1
    v_add_u32 v1, s33, v1
    v_lshlrev_b32 v1, 2, v1
    v_add_u32 v1, {A_PUB_}, v1
    ds_write_b32 v1, v2
    s_waitcnt lgkmcnt(0)
    """)

V_WF = 8
V_XF = 32
V_XA = 48
V_WA = 52
V_ACC = 64
def wf(st, mi): return V_WF + st*12 + mi*4
def xf(st, n): return V_XF + st*8 + n*4
def acc(mi, n): return V_ACC + (mi*2+n)*16

def gemm_A(a, opts):
    S_DELTA, S_STG, S_CNT, S_TW, S_FW = 25, 26, 27, 68, 69
    stats_produce(a, opts)
    a("s_mov_b32 s88, s7")
    if opts.get('aend'):
        pc = a.label('pc')
        a(f"""
        s_getpc_b64 s[74:75]
        {pc}:
        s_add_u32 s74, s74, {opts['abeg']}-{pc}
        s_addc_u32 s75, s75, -1
        s_lshr_b32 s76, s2, 3
        s_and_b32 s76, s76, 1
        s_lshl_b32 s76, s76, 2
        s_add_u32 s76, s76, s{S_WAVE}
        s_min_u32 s76, s76, {6 if opts.get('fused') else 5}
        s_lshl_b32 s76, s76, 12
        v_lshlrev_b32 v6, 6, v0
        v_add_u32 v6, s76, v6
        global_load_dword v7, v6, s[74:75]
        """)
    srd(a, SRD_T0, SP['ws'], WS_H_SZ, WS_H)
    a(f"""
    s_and_b32 s{S_TW}, s{S_WAVE}, 1
    s_lshr_b32 s{S_FW}, s{S_WAVE}, 1
    s_mov_b32 s30, {-2*STAGE & 0xffffffff}
    s_mov_b32 s31, {STAGE}
    v_and_b32 v1, 31, v0
    v_lshrrev_b32 v2, 5, v0
    v_lshrrev_b32 v3, 1, v1
    v_and_b32 v3, 7, v3
    s_lshl_b32 s7, s{S_TW}, 6
    v_add_u32 v4, s7, v1
    v_lshlrev_b32 v4, 7, v4
    """)
    for s_ in range(4):
        a(f"v_add_u32 v5, {2*s_}, v2")
        a(f"v_xor_b32 v5, v5, v3")
        a(f"v_lshlrev_b32 v5, 4, v5")
        a(f"v_add_u32 v{V_XA+s_}, v4, v5")
    a(f"""
    v_lshrrev_b32 v3, 4, v0
    v_and_b32 v3, 1, v3                    ; gu
    v_mul_u32_u24 v4, 12288, v3
    v_lshlrev_b32 v5, 9, v2
    v_add_u32 v4, v4, v5
    v_and_b32 v5, 15, v0
    v_lshrrev_b32 v6, 2, v5
    v_lshlrev_b32 v6, 6, v6
    v_add_u32 v4, v4, v6
    v_and_b32 v5, 3, v5
    v_lshlrev_b32 v5, 3, v5
    v_add_u32 v4, v4, v5
    v_add_u32 v4, 16384, v4
    s_mul_i32 s7, s{S_FW}, 3
    """)
    for mi in range(3):
        a(f"""
        s_add_u32 s32, s7, {mi}
        s_lshr_b32 s33, s32, 1
        s_lshl_b32 s33, s33, 12            ; P*4096
        s_and_b32 s32, s32, 1              ; b
        v_xor_b32 v5, s32, v3
        v_lshlrev_b32 v5, 5, v5
        v_add_u32 v5, s33, v5
        v_add_u32 v{V_WA+mi}, v4, v5
        """)
    for i in range(96): a(f"v_mov_b32 v{V_ACC+i}, 0")
    if opts.get('fused'):
        from kerF import F_SY
        a(f"""
        v_lshlrev_b32 v5, 2, v0
        v_add_u32 v5, {F_SY}, v5
        v_mov_b32 v6, 0
        s_mov_b64 exec, 0xffff
        ds_write_b32 v5, v6
        s_mov_b64 exec, -1
        """)
    a("s_mov_b32 s7, s88")
    stats_finish(a, opts)
    stamp(a, opts, 5)
    def reads(st, s_):
        r = []
        r.append(f"ds_read_b128 {v(xf(st,0),4)}, v{V_XA+s_}")
        for mi in range(3):
            off = s_*1024
            r.append(f"ds_read_b64_tr_b16 {v(wf(st,mi),2)}, v{V_WA+mi} offset:{off}")
            r.append(f"ds_read_b64_tr_b16 {v(wf(st,mi)+2,2)}, v{V_WA+mi} offset:{off+256}")
            if mi == 0:
                r.append(f"ds_read_b128 {v(xf(st,1),4)}, v{V_XA+s_} offset:4096")
        return r
    def step(st, rd, extra=()):
        mf = []
        for mi in range(3):
            for n in range(2):
                mf.append(f"v_mfma_f32_32x32x16_bf16 {v(acc(mi,n),16)}, {v(wf(st,mi),4)}, {v(xf(st,n),4)}, {v(acc(mi,n),16)}")
        rd = list(extra) + list(rd)
        cnts = opts.get('rdsched', (2,2,2,2,0,0))
        if extra: cnts = (4,4,3,3,0,0)
        slots = [[] for _ in range(6)]
        ri = 0
        for k, cnt in enumerate(cnts):
            slots[k] += rd[ri:ri+cnt]; ri += cnt
        slots[5] += rd[ri:]
        for k in range(6):
            if not opts.get('nomfma'): a(mf[k])
            elif opts.get('nomfma') == 2 and k % 2 == 0: a(mf[k])
            for l in slots[k]: a(l)
    stamp(a, opts, 2)
    a("s_barrier")
    stamp(a, opts, 3)
    stamp(a, opts, 12, real=True)
    for l in reads(0, 0): a(l)
    lp = a.label('gloop'); lend = a.label('gend')
    a(f"s_mov_b32 s{S_CNT}, 0")
    a(f"s_mov_b32 s{S_STG}, 0")
    a(f"{lp}:")
    for s_ in range(3):
        a("s_waitcnt lgkmcnt(0)")
        step(s_ & 1, reads((s_+1) & 1, s_+1))
    a("s_waitcnt lgkmcnt(0)")
    a(f"s_cmp_eq_u32 s{S_CNT}, 7")
    a(f"s_cbranch_scc1 {lend}")
    if opts.get('tsg'):
        a(f"s_add_u32 s90, s{S_CNT}, 16"); stamp(a, opts, "s90")
    a("s_barrier")
    if opts.get('tsg'):
        a(f"s_add_u32 s90, s{S_CNT}, 24"); stamp(a, opts, "s90")
    a(f"""
    s_add_u32 s{S_STG}, s{S_STG}, {STAGE}
    s_cmp_eq_u32 s{S_STG}, {3*STAGE}
    s_cselect_b32 s{S_DELTA}, s30, s31
    s_cselect_b32 s{S_STG}, 0, s{S_STG}
    s_add_u32 s{S_CNT}, s{S_CNT}, 1
    """)
    adv = [f"v_add_u32 v{V_XA+k}, s{S_DELTA}, v{V_XA+k}" for k in range(4)] + [f"v_add_u32 v{V_WA+k}, s{S_DELTA}, v{V_WA+k}" for k in range(3)]
    adv = [adv[0], adv[4], adv[5], adv[6], adv[1], adv[2], adv[3]]
    for l in adv[:4]: a(l)
    step(1, reads(0, 0) + adv[4:])
    a(f"s_branch {lp}")
    a(f"{lend}:")
    step(1, [])
    stamp(a, opts, 4)
    stamp(a, opts, 13, real=True)
    a("s_barrier")
    stamp(a, opts, 9)
    if opts.get('epi2'):
        a("s_mov_b32 s87, 0")
        a("L_epi_again:")
    a(f"""
    v_and_b32 v1, 31, v0
    s_lshl_b32 s7, s{S_TW}, 6
    v_add_u32 v1, s7, v1
    v_lshlrev_b32 v2, 3, v1
    v_add_u32 v2, {A_STATS}, v2
    ds_read_b64 v[8:9], v2
    ds_read_b64 v[10:11], v2 offset:256
    v_lshrrev_b32 v3, 5, v0
    v_lshlrev_b32 v3, 4, v3
    s_mul_i32 s7, s{S_FW}, 384
    s_add_u32 s7, s7, {A_CS}
    v_add_u32 v3, s7, v3
    v_lshlrev_b32 v4, 4, v0
    """)
    CSR = 32
    def cs_read(mi):
        for g in range(4):
            a(f"ds_read_b128 {v(CSR+4*g,4)}, v3 offset:{mi*128+g*32}")
    cs_read(0)
    K1 = -2*0.7978845608028654*1.4426950408889634
    a("s_waitcnt lgkmcnt(4)")
    for n in range(2):
        b = 12 + 8*n
        m_, s_ = 8+2*n, 9+2*n
        a(f"""
        v_mov_b32 v{b}, v{m_}
        v_rcp_f32 v1, v{s_}
        v_mul_f32 v{b+6}, v{s_}, v{s_}
        v_mul_f32 v{b+2}, {hx(K1)}, v1
        v_mul_f32 v2, v1, v1
        v_mul_f32 v2, {hx(0.044715)}, v2
        v_mul_f32 v{b+4}, v{b+2}, v2
        """)
    S_T0, S_T1, S_TT = 28, 29, 32
    a(f"""
    s_lshl_b32 s{S_TT}, s{S_RB}, 2
    s_lshl_b32 s7, s{S_TW}, 1
    s_add_u32 s{S_TT}, s{S_TT}, s7
    s_mul_i32 s{S_TT}, s{S_TT}, 86          ; (4rb+2tw)*86
    s_mul_i32 s{S_T0}, s{S_CT}, 6
    s_mul_i32 s7, s{S_FW}, 3
    s_add_u32 s{S_T0}, s{S_T0}, s7
    """)
    T = 48
    OUTS = (28, 160)
    for mi in range(3):
        skip = a.label('skip')
        a("s_waitcnt lgkmcnt(0)")
        for n in range(2):
            b = 12 + 8*n
            A = acc(mi, n)
            for p in range(8):
                a(f"v_pk_fma_f32 {v(A+2*p,2)}, {v(CSR+2*p,2)}, {v(b,2)}, {v(A+2*p,2)} op_sel_hi:[1,0,1] neg_lo:[0,1,0] neg_hi:[0,1,0]")
        if mi < 2: cs_read(mi+1)
        for p in range(4):
            regs = []
            for n in range(2):
                A = acc(mi, n); b = 12 + 8*n
                regs.append((A+2*p, A+8+2*p, b, T+8*n))
            for (g_, u_, b, t) in regs: a(f"v_pk_mul_f32 {v(t,2)}, {v(g_,2)}, {v(g_,2)}")
            for (g_, u_, b, t) in regs: a(f"v_pk_fma_f32 {v(t,2)}, {v(t,2)}, {v(b+4,2)}, {v(b+2,2)} op_sel_hi:[1,0,0]")
            for (g_, u_, b, t) in regs: a(f"v_pk_mul_f32 {v(t,2)}, {v(t,2)}, {v(g_,2)}")
            for (g_, u_, b, t) in regs: a(f"v_pk_mul_f32 {v(t+2,2)}, {v(g_,2)}, {v(u_,2)}")
            for (g_, u_, b, t) in regs:
                a(f"v_exp_f32 v{t}, v{t}")
                a(f"v_exp_f32 v{t+1}, v{t+1}")
            for (g_, u_, b, t) in regs: a(f"v_pk_fma_f32 {v(t,2)}, {v(t,2)}, {v(b+6,2)}, {v(b+6,2)} op_sel_hi:[1,0,0]")
            for (g_, u_, b, t) in regs:
                a(f"v_rcp_f32 v{t}, v{t}")
                a(f"v_rcp_f32 v{t+1}, v{t+1}")
            for (g_, u_, b, t) in regs: a(f"v_pk_mul_f32 {v(t+2,2)}, {v(t+2,2)}, {v(t,2)}")
            for n, (g_, u_, b, t) in enumerate(regs): a(f"v_cvt_pk_bf16_f32 v{OUTS[n]+p}, v{t+2}, v{t+3}")
        a(f"s_add_u32 s7, s{S_T0}, {mi}")
        a(f"s_cmp_ge_u32 s7, 86")
        a(f"s_cbranch_scc1 {skip}")
        a(f"s_add_u32 s7, s7, s{S_TT}")
        a(f"s_lshl_b32 s7, s7, 10")
        sc = " sc1" if opts.get('fused') else ""
        a(f"buffer_store_dwordx4 {v(OUTS[0],4)}, v4, s[{SRD_T0}:{SRD_T0+3}], s7 offen{sc}")
        a(f"s_add_u32 s7, s7, {86*1024}")
        a(f"buffer_store_dwordx4 {v(OUTS[1],4)}, v4, s[{SRD_T0}:{SRD_T0+3}], s7 offen{sc}")
        a(f"{skip}:")
        a("s_nop 1")
    if opts.get('epi2'):
        a("s_add_u32 s90, s87, 14"); stamp(a, opts, "s90")
        a("s_add_u32 s87, s87, 1")
        a("s_cmp_lt_u32 s87, 2")
        a("s_cbranch_scc1 L_epi_again")
    stamp(a, opts, 6)
    if opts.get('fused'):
        from kerF import gemm2_F
        gemm2_F(a, opts)
        return
    if opts.get('ts'): a("s_waitcnt vmcnt(0)")
    stamp(a, opts, 8)
    stamp(a, opts, 7, real=True)
    stamp_flush(a, opts, 0)
    a("s_endpgm")

from kerA_help import helper_A, loader_tail_A, A_M, A_R, A_PUB, A_LDS as A_LDS2

def gen_A(a, name, opts):
    a(kernel_head(name))
    if opts.get('cpf', 1):
        opts = dict(opts); opts['abeg'] = name; opts['aend'] = 1
    lend = a.label('endA')
    prologue_A(a, lend, opts)
    lab = {k: a.label(k) for k in ('g','ld','h')}
    a(f"""
    s_cmp_lt_u32 s{S_WAVE}, 4
    s_cbranch_scc1 {lab['g']}
    s_cmp_ge_u32 s{S_WAVE}, 8
    s_cbranch_scc1 {lab['h']}
    """)
    loader_A(a, opts)
    a(f"{lab['h']}:"); helper_A(a, opts)
    a(f"{lab['g']}:"); gemm_A(a, opts)
    a(f"{lend}:")
    a("s_endpgm")
    a(kernel_desc(name, 168))
```

```python
from core import *
import struct
def f2u(x): return struct.unpack('<I', struct.pack('<f', x))[0]
def hx(x): return hex(f2u(x))
STAGE = 40960
A_KT = 3*STAGE; A_STATS = A_KT + 32768; A_CS = A_STATS + 1024
A_M = A_CS + 768; A_R = A_M + 512; A_PUB = A_R + 512; A_LDS = A_PUB + 64
S_WAVE, S_RB, S_CT, S_ROT = 3, 4, 5, 6
SRD_X, SRD_WG, SRD_WU, SRD_T0, SRD_T1, SRD_T2 = 8, 12, 16, 20, 24, 28
LOG2E = 1.4426950408889634
INV2PI = 0.15915494309189535

def cmul(a, dst, p, q, tmp):
    a(f"v_pk_mul_f32 {v(tmp,2)}, {v(p,2)}, {v(q,2)} op_sel:[0,0] op_sel_hi:[0,1]")
    a(f"v_pk_fma_f32 {v(dst,2)}, {v(p,2)}, {v(q,2)}, {v(tmp,2)} op_sel:[1,1,0] op_sel_hi:[1,0,1] neg_lo:[1,0,0]")

def kgen(a, opts):
    S_W, S_TB = 68, 69
    A2, B2, W, Z1, Z2, Z4, Z8, Z16, Z256 = 16, 17, 18, 20, 22, 24, 26, 28, 30
    C0, C1, T0, T1, BH = 32, 34, 36, 38, 40
    WA, RA, VF, UF, ACC = 44, 48, 56, 72, 80
    WB = 144
    PK = 112
    a(f"""
    s_setprio 3
    s_sub_u32 s{S_W}, s{S_WAVE}, 8
    s_lshr_b32 s7, s{S_W}, 1
    s_lshl_b32 s32, s2, 1
    s_add_u32 s32, s32, s7              ; channel d
    s_and_b32 s7, s{S_W}, 1
    s_lshl_b32 s7, s7, 7
    s_lshl_b32 s33, s32, 8              ; d*128*2
    s_add_u32 s33, s33, s7
    v_lshlrev_b32 v1, 1, v0
    v_add_u32 v1, s33, v1
    s_lshl_b32 s34, s32, 1              ; d*2
    v_mov_b32 v2, s34
    s_lshl_b32 s{S_TB}, s{S_W}, 13
    s_add_u32 s{S_TB}, s{S_TB}, {A_KT}
    s_waitcnt lgkmcnt(0)
    """)
    names = ['are','aim','bre','bim','cre','cim']
    for i, nme in enumerate(names):
        a(f"global_load_ushort v{8+i}, v1, s[{SP[nme]}:{SP[nme]+1}]")
    a(f"global_load_ushort v14, v2, s[{SP['logdt']}:{SP['logdt']+1}]")
    stamp(a, opts, 1)
    nn = a.label('nononce')
    a(f"""
    s_or_b32 s7, s2, s{S_W}
    s_cmp_lg_u32 s7, 0
    s_cbranch_scc1 {nn}
    s_memrealtime s[70:71]
    v_mov_b32 v2, 0
    s_waitcnt lgkmcnt(0)
    s_or_b32 s70, s70, 1
    v_mov_b32 v4, s70
    v_mov_b32 v5, s71
    s_mov_b64 exec, 1
    global_store_dwordx2 v2, v[4:5], s[{SP['dbg']}:{SP['dbg']+1}] sc1
    v_mov_b32 v2, {WS_NONCE}
    global_store_dwordx2 v2, v[4:5], s[{SP['ws']}:{SP['ws']+1}]
    s_mov_b64 exec, -1
    {nn}:
    """)
    stamp(a, opts, 9)
    grab_setup(a, opts)
    a("v_mov_b32 v150, 0")
    a(f"""
    v_lshrrev_b32 v3, 4, v0
    v_lshrrev_b32 v4, 2, v0
    v_and_b32 v4, 3, v4                  ; q (write)
    v_and_b32 v5, 3, v0                  ; e
    v_lshlrev_b32 v6, 10, v3
    v_lshlrev_b32 v5, 2, v5
    v_add_u32 v6, v6, v5
    v_add_u32 v6, s{S_TB}, v6
    """)
    for g in range(4):
        a(f"v_xor_b32 v5, {(4-g)&3}, v4")
        a(f"v_lshlrev_b32 v5, 4, v5")
        a(f"v_add_u32 v{WA+g}, v6, v5")
        a(f"v_add_u32 v{WB+g}, 4096, v{WA+g}")
    a("v_and_b32 v4, 15, v0               ; c")
    def raddr(dst, shift, base):
        if shift == 0:
            a(f"v_mov_b32 v5, v4")
        else:
            a(f"v_lshrrev_b32 v5, {shift}, v4")
            a(f"v_and_b32 v5, 1, v5")
            a(f"v_add_u32 v5, v5, v4")
            if shift > 1: a(f"v_add_u32 v5, {(1<<(shift-1))-1}, v5")
            a(f"v_lshrrev_b32 v5, {shift}, v5")
        if base: a(f"v_add_u32 v5, {base}, v5")
        a(f"v_lshrrev_b32 v6, 2, v5")
        a(f"v_sub_u32 v6, 4, v6")
        a(f"v_and_b32 v6, 3, v6")
        a(f"v_xor_b32 v6, v6, v3")
        a(f"v_lshlrev_b32 v6, 4, v6")
        a(f"v_lshlrev_b32 v5, 6, v5")
        a(f"v_add_u32 v5, v5, v6")
        a(f"v_add_u32 v{dst}, s{S_TB}, v5")
    cfg = [(0,0),(1,0),(2,9),(2,0),(3,5),(3,8),(3,11),(3,0)]
    for T,(sh,b) in enumerate(cfg): raddr(RA+T, sh, b)
    for i in range(32): a(f"v_mov_b32 v{ACC+i}, 0")
    stamp(a, opts, 11)
    a("s_waitcnt vmcnt(0)")
    stamp(a, opts, 2)
    for i in range(7): a(f"v_lshlrev_b32 v{8+i}, 16, v{8+i}")
    a(f"""
    v_mul_f32 v14, {hx(LOG2E)}, v14
    v_exp_f32 v14, v14
    s_nop 0
    v_cvt_pk_bf16_f32 v14, v14, v14
    v_and_b32 v14, 0xffff0000, v14
    v_mul_f32 v8, v14, v8
    v_mul_f32 v9, v14, v9
    v_mul_f32 v10, v14, v10               ; dB_re
    v_mul_f32 v11, v14, v11               ; dB_im
    v_mul_f32 v{A2}, {hx(LOG2E)}, v8
    v_mul_f32 v{B2}, {hx(INV2PI)}, v9
    v_mul_f32 v{W}, v12, v10
    v_mul_f32 v{W+1}, v12, v11
    v_fma_f32 v{W}, -v13, v11, v{W}
    v_fma_f32 v{W+1}, v13, v10, v{W+1}
    """)
    def zpow(dst, c):
        cf = hx(float(c))
        a(f"""
        v_mul_f32 v1, {cf}, v{A2}
        v_mul_f32 v2, {cf}, v{B2}
        v_exp_f32 v1, v1
        v_fract_f32 v2, v2
        v_cos_f32 v5, v2
        v_sin_f32 v6, v2
        s_nop 0
        v_mul_f32 v{dst}, v1, v5
        v_mul_f32 v{dst+1}, v1, v6
        """)
    zpow(Z1, 1); zpow(Z16, 16); zpow(Z256, 256)
    cmul(a, Z2, Z1, Z1, T0); cmul(a, Z4, Z2, Z2, T0); cmul(a, Z8, Z4, Z4, T0)
    if opts.get('tsk'): stamp(a, opts, 11)
    pkc = [0]
    pend = {}
    def put(row, buf, reg, conj=False, last=False):
        r = PK + (pkc[0] & 7); pkc[0] += 1
        if conj: a(f"v_cvt_pk_bf16_f32 v{r}, v{reg}, -v{reg+1}")
        else:    a(f"v_cvt_pk_bf16_f32 v{r}, v{reg}, v{reg+1}")
        wa = (WA if buf == 0 else WB) + (row >> 2)
        if (row & 1) and (buf, row-1) in pend:
            r0 = pend.pop((buf, row-1))
            a(f"ds_write2_b32 v{wa}, v{r0}, v{r} offset0:{(row-1)*16} offset1:{row*16}")
        elif (row & 1) or last:
            a(f"ds_write_b32 v{wa}, v{r} offset:{row*64}")
        else:
            pend[(buf, row)] = r
    def flush():
        assert not pend
    def rd(dst, T, buf, kap):
        a(f"ds_read_b128 {v(dst,4)}, v{RA+T} offset:{buf*4096 + kap*1024}")
    a(f"v_mov_b32 v{C0}, 1.0")
    a(f"v_mov_b32 v{C0+1}, 0")
    a(f"v_mov_b32 v{C1}, v{W}")
    a(f"v_mov_b32 v{C1+1}, v{W+1}")
    for j in range(16):
        put(j, 0, C0, conj=True)
        put(j, 1, C1)
        if j < 15:
            a(f"v_pk_mul_f32 {v(T0,2)}, {v(C0,2)}, {v(Z16,2)} op_sel:[0,0] op_sel_hi:[0,1]")
            a(f"v_pk_mul_f32 {v(T1,2)}, {v(C1,2)}, {v(Z1,2)} op_sel:[0,0] op_sel_hi:[0,1]")
            a(f"v_pk_fma_f32 {v(C0,2)}, {v(C0,2)}, {v(Z16,2)}, {v(T0,2)} op_sel:[1,1,0] op_sel_hi:[1,0,1] neg_lo:[1,0,0]")
            a(f"v_pk_fma_f32 {v(C1,2)}, {v(C1,2)}, {v(Z1,2)}, {v(T1,2)} op_sel:[1,1,0] op_sel_hi:[1,0,1] neg_lo:[1,0,0]")
    if opts.get('tsk'): stamp(a, opts, 12)
    for kap in range(4): rd(VF+4*kap, 0, 0, kap)
    def chain(rows, buf, start, mult, n):
        a(f"v_mov_b32 v{C0}, v{start}")
        a(f"v_mov_b32 v{C0+1}, v{start+1}")
        for i in range(n):
            put(rows+i, buf, C0, last=(i == n-1))
            if i < n-1: cmul(a, C0, C0, mult, T0)
    def two_chains(specs):
        regs = [(C0,T0),(C1,T1)]
        for (r0,b,st,m,n),(c,t) in zip(specs, regs):
            a(f"v_mov_b32 v{c}, v{st}")
            a(f"v_mov_b32 v{c+1}, v{st+1}")
        nmax = max(sp[4] for sp in specs)
        for i in range(nmax):
            for (r0,b,st,m,n),(c,t) in zip(specs, regs):
                if i < n: put(r0+i, b, c, last=(i == n-1))
            for (r0,b,st,m,n),(c,t) in zip(specs, regs):
                if i < n-1: a(f"v_pk_mul_f32 {v(t,2)}, {v(c,2)}, {v(m,2)} op_sel:[0,0] op_sel_hi:[0,1]")
            for (r0,b,st,m,n),(c,t) in zip(specs, regs):
                if i < n-1: a(f"v_pk_fma_f32 {v(c,2)}, {v(c,2)}, {v(m,2)}, {v(t,2)} op_sel:[1,1,0] op_sel_hi:[1,0,1] neg_lo:[1,0,0]")
    def mm(T, buf):
        for kap in range(4): rd(UF + 0, T, buf, kap) if False else None
    BH2 = 42
    cmul(a, BH, W, Z256, T0)
    cmul(a, BH2, BH, Z256, T0)
    two_chains([(0,0,BH,Z2,9),(9,0,BH2,Z4,5)])
    flush()
    UFS = [[72, 76, 120, 124], [128, 132, 136, 140]]
    def rdtile(T, buf, st):
        for kap in range(4): rd(UFS[st][kap], T, buf, kap)
    def mmt(T, st, later):
        a(f"s_waitcnt lgkmcnt({min(later,15)})")
        for kap in range(4):
            a(f"v_mfma_f32_16x16x32_bf16 {v(ACC+4*T,4)}, {v(UFS[st][kap],4)}, {v(VF+4*kap,4)}, {v(ACC+4*T,4)}")
    if opts.get('tsk'): stamp(a, opts, 13)
    rdtile(0, 1, 0)
    rdtile(1, 0, 1)
    mmt(0, 0, 4)
    rdtile(2, 0, 0)
    cmul(a, BH, BH2, Z256, T0)
    cmul(a, BH2, BH, Z256, T0)
    two_chains([(0,1,BH,Z4,5),(5,1,BH2,Z8,3)])
    cmul(a, BH, BH2, Z256, T0)
    cmul(a, BH2, BH, Z256, T0)
    two_chains([(8,1,BH,Z8,3),(11,1,BH2,Z8,3)])
    flush()
    def seg0():
        a("s_waitcnt lgkmcnt(0)")
        for T, st in ((1,1),(2,0)):
            for kap in range(4):
                a(f"v_mfma_f32_16x16x32_bf16 {v(ACC+4*T,4)}, {v(UFS[st][kap],4)}, {v(VF+4*kap,4)}, {v(ACC+4*T,4)}")
        rdtile(3, 1, 0)
        rdtile(4, 1, 1)
        cmul(a, BH, BH2, Z256, T0)
        chain(0, 0, BH, Z8, 3)
        flush()
        mmt(3, 0, 6)
    def seg1():
        rdtile(5, 1, 0)
        mmt(4, 1, 4)
        rdtile(6, 1, 1)
        mmt(5, 0, 4)
        rdtile(7, 0, 0)
        mmt(6, 1, 4)
    def seg2():
        mmt(7, 0, 0)
    return seg0, seg1, seg2

V_SL = 154
def grab(a, opts, c):
    if opts.get('hk',0) & 64: return
    skip = a.label('ng')
    a(f"s_cmp_lg_u32 s77, {c}")
    a(f"s_cbranch_scc1 {skip}")
    stg = (c % 3)*STAGE
    for r in range(2):
        for e in range(2):
            a(f"ds_read_b64_tr_b16 {v(V_SL+4*r+2*e,2)}, v{162+e} offset:{r*2048 + e*512 + (stg if stg < 49152 else 0)}") if stg < 49152 else None
    if stg >= 49152:
        a(f"v_add_u32 v162, {stg}, v162")
        a(f"v_add_u32 v163, {stg}, v163")
        for r in range(2):
            for e in range(2):
                a(f"ds_read_b64_tr_b16 {v(V_SL+4*r+2*e,2)}, v{162+e} offset:{r*2048 + e*512}")
    a("s_waitcnt lgkmcnt(0)")
    a(f"{skip}:")

def grab_setup(a, opts):
    S_W = 68
    a(f"""
    s_lshr_b32 s7, s{S_CT}, 1
    s_sub_u32 s77, s7, s{S_ROT}
    s_and_b32 s77, s77, 7
    v_and_b32 v1, 15, v0
    v_lshrrev_b32 v2, 2, v1              ; r'
    v_and_b32 v1, 3, v1                  ; c'
    v_lshrrev_b32 v3, 4, v0
    v_and_b32 v4, 1, v3                  ; ch16
    v_lshrrev_b32 v3, 1, v3              ; tg
    s_and_b32 s7, s{S_CT}, 1
    s_lshl_b32 s7, s7, 2
    v_lshlrev_b32 v5, 1, v4
    v_add_u32 v5, s7, v5
    v_lshrrev_b32 v6, 1, v1
    v_add_u32 v5, v5, v6
    v_lshlrev_b32 v6, 2, v3              ; 4 tg
    v_lshrrev_b32 v7, 1, v2
    v_add_u32 v6, v6, v7                 ; 4tg + (r'>>1)   (e=0)
    v_lshlrev_b32 v7, 3, v3              ; 8 tg
    v_add_u32 v7, v7, v2                 ; + r'
    s_lshl_b32 s7, s{S_W}, 5             ; 16*R0 = 32 w
    v_add_u32 v7, s7, v7
    v_lshlrev_b32 v7, 7, v7              ; row*128
    v_and_b32 v1, 1, v1
    v_lshlrev_b32 v1, 3, v1              ; (c'&1)*8
    v_add_u32 v7, v7, v1
    v_xor_b32 v1, v5, v6
    v_lshlrev_b32 v1, 4, v1
    v_add_u32 v162, v7, v1
    v_add_u32 v6, 2, v6                  ; e=1 : +2
    v_and_b32 v6, 7, v6
    v_xor_b32 v1, v5, v6
    v_lshlrev_b32 v1, 4, v1
    v_add_u32 v163, v7, v1
    """)

def helper_A(a, opts):
    S_W, S_TB = 68, 69
    ACC = 80
    seg0, seg1, seg2 = kgen(a, opts)
    lab = {k: a.label('h'+k) for k in ('0','1','2','3','odd','even','nf','rest','fin')}
    a(f"""
    s_cmp_lg_u32 s{S_W}, 1
    s_cbranch_scc1 {lab['0']}
    global_load_dwordx2 v[152:153], v150, s[{SP['dbg']}:{SP['dbg']+1}] sc1
    {lab['0']}:
    """)
    a("s_setprio 0")
    stamp(a, opts, 3)
    bar(a, opts, 0)
    stamp(a, opts, 4)
    grab(a, opts, 0)
    a("s_setprio 2")
    seg0()
    a("s_setprio 0")
    a(f"""
    s_cmp_lg_u32 s{S_W}, 1
    s_cbranch_scc1 {lab['nf']}
    v_lshlrev_b32 v1, 2, v0
    v_add_u32 v1, {A_PUB}, v1
    ds_read_b32 v4, v1
    s_waitcnt vmcnt(0)
    """)
    nonce_check(a, 152)
    srd(a, SRD_T1, SP['ws'], 2048*8, WS_STAT)
    a(f"""
    s_lshl_b32 s32, s{S_RB}, 4
    s_add_u32 s32, s32, s{S_CT}
    s_lshl_b32 s32, s32, 6
    v_lshlrev_b32 v1, 3, v0
    v_mov_b32 v5, s70
    s_waitcnt lgkmcnt(0)
    s_mov_b64 exec, 0xff
    s_setprio 3
    buffer_store_dwordx2 v[4:5], v1, s[{SRD_T1}:{SRD_T1+3}], s32 offen sc1
    s_setprio 0
    s_mov_b64 exec, -1
    {lab['nf']}:
    """)
    bar(a, opts, 1)
    grab(a, opts, 1)
    a("s_setprio 2")
    seg1()
    a("s_setprio 0")
    a("s_waitcnt lgkmcnt(0)")
    bar(a, opts, 2)
    grab(a, opts, 2)
    a("s_setprio 2")
    seg2()
    a(f"s_cmp_lg_u32 s{S_W}, 1")
    a(f"s_cbranch_scc1 {lab['rest']}")
    if not opts.get('hk',0) & 16: colsum_A(a, opts)
    a(f"{lab['rest']}:")
    a("s_setprio 0")
    for c in range(3, 8):
        bar(a, opts, c)
        grab(a, opts, c)
    a(f"""
    s_and_b32 s7, s{S_W}, 1
    s_cmp_eq_u32 s7, 0
    s_cbranch_scc1 {lab['even']}
    v_lshlrev_b32 v1, 4, v0
    v_add_u32 v1, s{S_TB}, v1
    """)
    for T in range(8):
        a(f"ds_write_b128 v1, {v(ACC+4*T,4)} offset:{T*1024}")
    a("s_waitcnt lgkmcnt(0)")
    a(f"{lab['even']}:")
    xnt_setup(a, opts)
    bar(a, opts, 8)
    if opts.get('fused'):
        from kerF import conv_F
        conv_F(a, opts)
        return
    a(f"""
    s_and_b32 s7, s{S_W}, 1
    s_cmp_eq_u32 s7, 1
    s_cbranch_scc1 {lab['fin']}
    """)
    srd(a, SRD_T1, SP['ws'], WS_K_SZ, WS_K)
    a(f"""
    v_lshlrev_b32 v1, 4, v0
    v_add_u32 v1, s{S_TB}, v1
    """)
    for T in range(8):
        a(f"ds_read_b128 {v(16+4*T,4)}, v1 offset:{8192 + T*1024}")
    a(f"""
    v_and_b32 v2, 15, v0
    v_lshlrev_b32 v2, 5, v2               ; 32*j
    v_lshrrev_b32 v3, 4, v0
    v_lshlrev_b32 v3, 3, v3               ; 8*q
    v_add_u32 v2, v2, v3
    v_sub_u32 v2, 4088, v2
    s_lshr_b32 s7, s{S_W}, 1
    s_lshl_b32 s34, s2, 1
    s_add_u32 s34, s34, s7
    s_mul_i32 s34, s34, {K_STRIDE}
    v_mov_b32 v4, 0
    v_mov_b32 v5, 0
    v_lshlrev_b32 v6, 3, v0
    v_add_u32 v6, 4096, v6
    s_mov_b64 exec, 0xff
    buffer_store_dwordx2 v[4:5], v6, s[{SRD_T1}:{SRD_T1+3}], s34 offen
    s_mov_b64 exec, -1
    """)
    for T in range(8):
        a(f"s_waitcnt lgkmcnt({7-T})")
        for i in range(4):
            a(f"v_add_f32 v{ACC+4*T+i}, v{ACC+4*T+i}, v{16+4*T+i}")
        a(f"v_cvt_pk_bf16_f32 v{48+2*T}, v{ACC+4*T+3}, v{ACC+4*T+2}")
        a(f"v_cvt_pk_bf16_f32 v{49+2*T}, v{ACC+4*T+1}, v{ACC+4*T}")
    for T in range(8):
        if T: a(f"v_subrev_u32 v2, 512, v2")
        a(f"buffer_store_dwordx2 {v(48+2*T,2)}, v2, s[{SRD_T1}:{SRD_T1+3}], s34 offen")
    stamp(a, opts, 5)
    a(f"{lab['fin']}:")
    xnt_A(a, opts)

def nonce_check(a, vreg):
    lp = a.label('npoll'); ok = a.label('nok')
    a(f"""
    s_mov_b32 s7, 0
    {lp}:
    v_readfirstlane_b32 s70, v{vreg}
    v_readfirstlane_b32 s71, v{vreg+1}
    s_add_u32 s7, s7, 1
    s_cmp_lg_u32 s70, 0
    s_cbranch_scc1 {ok}
    s_cmp_gt_u32 s7, 200000
    s_cbranch_scc1 {ok}
    global_load_dwordx2 v[{vreg}:{vreg+1}], v150, s[{SP['dbg']}:{SP['dbg']+1}] sc1
    s_waitcnt vmcnt(0)
    s_branch {lp}
    {ok}:
    """)

def colsum_A(a, opts):
    WA0, SEL, FR, AC, G = 8, 12, 16, 112, 16
    a("s_setprio 3")
    a(f"""
    v_lshrrev_b32 v2, 5, v0                ; h
    v_lshrrev_b32 v3, 4, v0
    v_and_b32 v3, 1, v3                    ; gu
    v_mul_u32_u24 v4, 12288, v3
    v_lshlrev_b32 v5, 9, v2
    v_add_u32 v4, v4, v5
    v_and_b32 v5, 15, v0
    v_lshrrev_b32 v6, 2, v5
    v_lshlrev_b32 v6, 6, v6
    v_add_u32 v4, v4, v6
    v_and_b32 v5, 3, v5
    v_lshlrev_b32 v5, 3, v5
    v_add_u32 v4, v4, v5
    s_lshr_b32 s7, s{S_RB}, 3
    s_lshl_b32 s7, s7, 11
    s_add_u32 s7, s7, {16384 + 2*STAGE}
    v_add_u32 v4, s7, v4
    v_lshlrev_b32 v5, 5, v3
    v_add_u32 v{WA0}, v4, v5               ; b=0
    v_xor_b32 v5, 32, v5
    v_add_u32 v{WA0+1}, v4, v5             ; b=1
    """)
    for m in range(6):
        P, b = m >> 1, m & 1
        for s_ in range(2):
            f = FR + (m*2+s_)*4
            a(f"ds_read_b64_tr_b16 {v(f,2)}, v{WA0+b} offset:{P*4096 + s_*1024}")
            a(f"ds_read_b64_tr_b16 {v(f+2,2)}, v{WA0+b} offset:{P*4096 + s_*1024 + 256}")
    a(f"""
    v_and_b32 v5, 15, v0
    v_cmp_eq_u32 vcc, v5, v3
    v_mov_b32 v6, 0x3f803f80
    v_mov_b32 v7, 0
    v_cndmask_b32 v{SEL}, v7, v6, vcc
    v_mov_b32 v{SEL+1}, v{SEL}
    v_mov_b32 v{SEL+2}, v{SEL}
    v_mov_b32 v{SEL+3}, v{SEL}
    """)
    for i in range(24): a(f"v_mov_b32 v{AC+i}, 0")
    srd(a, SRD_T0, SP['ws'], 16*16*1024, WS_CSP)
    a("s_waitcnt lgkmcnt(0)")
    for s_ in range(2):
        for m in range(6):
            f = FR + (m*2+s_)*4
            a(f"v_mfma_f32_16x16x32_bf16 {v(AC+4*m,4)}, {v(f,4)}, {v(SEL,4)}, {v(AC+4*m,4)}")
    a(f"""
    v_and_b32 v5, 15, v0
    v_lshlrev_b32 v1, 6, v5                ; col*64
    v_lshrrev_b32 v2, 4, v0
    v_lshlrev_b32 v2, 4, v2                ; q*16
    v_add_u32 v1, v1, v2
    s_lshl_b32 s7, s{S_CT}, 4
    s_add_u32 s7, s7, s{S_RB}
    s_lshl_b32 s33, s7, 10
    v_cmp_gt_u32 vcc, 2, v5
    s_nop 3
    """)
    for g in range(8): a(f"v_mov_b32 v{G+4*g+3}, s70")
    for e in range(24): a(f"v_mov_b32 v{G+4*(e//3)+(e%3)}, v{AC+e}")
    a("s_and_saveexec_b64 s[34:35], vcc")
    for g in range(8):
        a(f"buffer_store_dwordx4 {v(G+4*g,4)}, v1, s[{SRD_T0}:{SRD_T0+3}], s33 offen offset:{g*128} sc1")
    a("s_mov_b64 exec, s[34:35]")
    stamp(a, opts, 6)

def xnt_setup(a, opts):
    S_W = 68
    srd(a, SRD_T0, SP['ws'], WS_XT_SZ, WS_XT)
    a(f"""
    v_lshrrev_b32 v3, 4, v0
    v_and_b32 v4, 1, v3                  ; ch16
    v_lshrrev_b32 v3, 1, v3              ; tg
    v_and_b32 v1, 15, v0
    v_lshlrev_b32 v5, 4, v4
    v_add_u32 v1, v1, v5
    v_lshlrev_b32 v1, 12, v1
    v_lshlrev_b32 v5, 4, v3
    v_add_u32 v8, v1, v5
    s_lshl_b32 s32, s{S_CT}, 17
    s_lshl_b32 s33, s{S_RB}, 8
    s_add_u32 s32, s32, s33
    s_lshl_b32 s33, s{S_W}, 6            ; R0*32 bytes = 2w*32
    s_add_u32 s32, s32, s33
    v_lshlrev_b32 v9, 5, v3              ; 8 tg * 4B
    s_lshl_b32 s33, s{S_W}, 7            ; 16*R0*4B = 32 w * 4
    s_add_u32 s33, s33, {A_M}
    v_add_u32 v9, s33, v9
    """)

def xnt_A(a, opts):
    xnt_body(a, opts, "")
    stamp(a, opts, 8)
    stamp(a, opts, 7, real=True)
    if opts.get('ts'): a("s_waitcnt vmcnt(0)")
    stamp_flush(a, opts, 0)
    a("s_endpgm")

def xnt_body(a, opts, sc):
    S_W = 68
    for r in range(2):
        M, R_ = 16 + 16*r, 24 + 16*r
        a(f"ds_read_b128 {v(M,4)}, v9 offset:{r*64}")
        a(f"ds_read_b128 {v(M+4,4)}, v9 offset:{r*64+16}")
        a(f"ds_read_b128 {v(R_,4)}, v9 offset:{512 + r*64}")
        a(f"ds_read_b128 {v(R_+4,4)}, v9 offset:{512 + r*64+16}")
    for r in range(2):
        M, R_ = 16 + 16*r, 24 + 16*r
        U = 48 + 16*r
        X = V_SL + 4*r
        for j in range(4):
            a(f"v_lshlrev_b32 v{U+2*j}, 16, v{X+j}")
            a(f"v_and_b32 v{U+2*j+1}, 0xffff0000, v{X+j}")
        a(f"s_waitcnt lgkmcnt({4*(1-r)})")
        for j in range(4): a(f"v_pk_add_f32 {v(U+2*j,2)}, {v(U+2*j,2)}, {v(M+2*j,2)} neg_lo:[0,1] neg_hi:[0,1]")
        for j in range(4): a(f"v_cvt_pk_bf16_f32 v{U+8+j}, v{U+2*j}, v{U+2*j+1}")
        for j in range(4):
            a(f"v_lshlrev_b32 v{U+2*j}, 16, v{U+8+j}")
            a(f"v_and_b32 v{U+2*j+1}, 0xffff0000, v{U+8+j}")
        for j in range(4): a(f"v_pk_mul_f32 {v(U+2*j,2)}, {v(U+2*j,2)}, {v(R_+2*j,2)}")
        for j in range(4): a(f"v_cvt_pk_bf16_f32 v{U+8+j}, v{U+2*j}, v{U+2*j+1}")
        a(f"buffer_store_dwordx4 {v(U+8,4)}, v8, s[{SRD_T0}:{SRD_T0+3}], s32 offen offset:{r*32}{sc}")

def loader_tail_A(a, opts, SJ, nrem):
    l0 = a.label('l0')
    a(f"s_cmp_eq_u32 s{SJ}, 0")
    a(f"s_cbranch_scc1 {l0}")
    a("s_waitcnt vmcnt(0)")
    bar(a, opts, 7)
    stamp(a, opts, 7, real=True)
    stamp_flush(a, opts, 0)
    a("s_endpgm")
    a(f"{l0}:")
    srd(a, SRD_T0, SP['ws'], 2048*8, WS_STAT)
    srd(a, SRD_T1, SP['ws'], 16*16*1024, WS_CSP)
    a(f"""
    v_mov_b32 v150, 0
    v_lshlrev_b32 v8, 4, v0
    s_lshl_b32 s72, s{S_RB}, 10            ; 128 rows * 8 B
    s_lshl_b32 s73, s{S_CT}, 14            ; 16 parts * 1024
    """)
    def issue():
        a(f"global_load_dwordx2 v[152:153], v150, s[{SP['dbg']}:{SP['dbg']+1}] sc1")
        a(f"buffer_load_dwordx4 v[12:15], v8, s[{SRD_T0}:{SRD_T0+3}], s72 offen sc1")
        for p in range(16):
            if p*1024 < 4096:
                a(f"buffer_load_dwordx4 {v(16+4*p,4)}, v8, s[{SRD_T1}:{SRD_T1+3}], s73 offen offset:{p*1024} sc1")
            else:
                a(f"s_add_u32 s74, s73, {p*1024}")
                a(f"buffer_load_dwordx4 {v(16+4*p,4)}, v8, s[{SRD_T1}:{SRD_T1+3}], s74 offen sc1")
    a("s_setprio 3")
    issue()
    npf = 0
    if not opts.get('nopf'):
        a(f"""
        s_lshr_b32 s74, s2, 3
        s_mul_i32 s74, s74, {43*1024}
        v_lshlrev_b32 v9, 6, v0
        v_add_u32 v9, s74, v9
        """)
        srd(a, SRD_X, SP['wd'], 1409024)
        for i in range(11):
            a(f"s_mov_b32 s74, {i*4096}")
            a(f"buffer_load_dword v{84+i}, v9, s[{SRD_X}:{SRD_X+3}], s74 offen")
        npf = 11
        if opts.get('bcode') and not opts.get('fused'):
            pc = a.label('pc')
            a(f"""
            s_getpc_b64 s[74:75]
            {pc}:
            s_add_u32 s74, s74, {opts['bcode']}-{pc}
            s_addc_u32 s75, s75, 0
            s_lshr_b32 s76, s2, 3
            s_and_b32 s76, s76, 1
            s_lshl_b32 s76, s76, 12
            v_lshlrev_b32 v9, 6, v0
            v_add_u32 v9, s76, v9
            global_load_dword v95, v9, s[74:75]
            """)
            npf += 1
    a(f"s_waitcnt vmcnt({18+npf})")
    bar(a, opts, 7)
    lp = a.label('gchk'); ok = a.label('gok')
    a(f"""
    s_mov_b32 s75, 0
    s_waitcnt vmcnt({npf})
    {lp}:
    v_cmp_ne_u32 vcc, v152, v13
    v_cmp_ne_u32 s[32:33], v152, v15
    s_or_b64 vcc, vcc, s[32:33]
    v_cmp_eq_u32 s[32:33], 0, v152
    s_or_b64 vcc, vcc, s[32:33]
    """)
    for p in range(16):
        a(f"v_cmp_ne_u32 s[32:33], v152, v{16+4*p+3}")
        a(f"s_or_b64 vcc, vcc, s[32:33]")
    a(f"""
    s_add_u32 s75, s75, 1
    s_cmp_eq_u64 vcc, 0
    s_cbranch_scc1 {ok}
    s_cmp_gt_u32 s75, {0 if opts.get('hk',0) else 100000}
    s_cbranch_scc1 {ok}
    """)
    issue()
    a("s_waitcnt vmcnt(0)")
    a(f"s_branch {lp}")
    a(f"{ok}:")
    stamp(a, opts, 5)
    a(f"""
    v_lshlrev_b32 v4, 16, v12
    v_and_b32 v5, 0xffff0000, v12
    v_lshlrev_b32 v6, 16, v14
    v_and_b32 v7, 0xffff0000, v14
    v_lshlrev_b32 v1, 4, v0
    v_add_u32 v1, {A_STATS}, v1
    ds_write_b128 v1, v[4:7]
    v_rcp_f32 v10, v5
    v_rcp_f32 v11, v7
    v_mov_b32 v5, v6
    v_lshlrev_b32 v1, 3, v0
    v_add_u32 v1, {A_M}, v1
    ds_write_b64 v1, v[4:5]
    ds_write_b64 v1, v[10:11] offset:512
    """)
    for st in (8, 4, 2, 1):
        for p in range(st):
            for i in range(3):
                a(f"v_add_f32 v{16+4*p+i}, v{16+4*p+i}, v{16+4*(p+st)+i}")
    a(f"""
    v_lshrrev_b32 v1, 3, v0              ; g
    v_mul_u32_u24 v1, 3, v1              ; 3g
    v_bfe_u32 v2, v0, 2, 1               ; col
    v_lshlrev_b32 v2, 4, v2
    v_and_b32 v3, 3, v0                  ; q
    v_lshlrev_b32 v3, 2, v3
    v_add_u32 v2, v2, v3                 ; col*16 + 4q
    """)
    for k in range(3):
        a(f"""
        v_add_u32 v4, {k}, v1
        v_lshrrev_b32 v5, 2, v4
        v_lshlrev_b32 v5, 5, v5
        v_and_b32 v4, 3, v4
        v_add_u32 v4, v4, v5
        v_add_u32 v4, v4, v2
        v_lshlrev_b32 v4, 2, v4
        v_add_u32 v4, {A_CS}, v4
        ds_write_b32 v4, v{16+k}
        """)
    if opts.get('fused'):
        from kerF import F_NON
        a(f"v_mov_b32 v1, {F_NON}")
        a("ds_write_b64 v1, v[152:153]")
    a("s_waitcnt lgkmcnt(0)")
    stamp(a, opts, 6)
    bar(a, opts, 8)
    stamp(a, opts, 7, real=True)
    stamp_flush(a, opts, 0)
    a("s_endpgm")
```

```python
from core import *
import struct
def f2u(x): return struct.unpack('<I', struct.pack('<f', x))[0]
def hx(x): return hex(f2u(x))
STAGE = 40960
A_KT = 3*STAGE
DEPTH = 4
CT_U, CT_V0, CT_V1, CT_SZ = 0, 4608, 4608+4160, 4608+4160+4160
F_CT = 0
F_EX = F_CT + 2*CT_SZ
F_WR = F_EX + 4*4096
F_YT = F_WR + 4*DEPTH*2048
F_P  = F_YT + 10240
PROW = 272
F_SY = 158528
F_NON, F_CNTH, F_CNTX, F_HRDY, F_KRDY, F_URDY, F_XFL = F_SY, F_SY+8, F_SY+12, F_SY+16, F_SY+20, F_SY+28, F_SY+36
F_LDS = F_SY + 64
S_WAVE, S_RB, S_CT = 3, 4, 5
S_RT, S_C2, S_WP = 78, 79, 80
SRD_WS, SRD_WD, SRD_O = 8, 12, 16
V_XT, V_NON, V_OFF = 160, 164, 166
SPIN = 200000

def map_B(a):
    a(f"""
    s_and_b32 s7, s2, 7
    s_lshr_b32 s33, s2, 3
    s_lshl_b32 s7, s7, 2
    s_and_b32 s32, s33, 3
    s_add_u32 s{S_RT}, s7, s32
    s_lshr_b32 s{S_C2}, s33, 2
    s_and_b32 s32, s{S_WP}, 3
    s_lshl_b32 s32, s32, 4
    s_lshl_b32 s33, s{S_RT}, 6
    s_add_u32 s32, s32, s33               ; 64 rt + 16 (w&3)
    v_and_b32 v2, 15, v0
    v_add_u32 v2, s32, v2
    v_lshlrev_b32 v2, 10, v2              ; row*1024
    s_lshr_b32 s32, s{S_WP}, 2
    s_lshl_b32 s32, s32, 6
    s_lshl_b32 s33, s{S_C2}, 7
    s_add_u32 s32, s32, s33
    v_lshrrev_b32 v3, 4, v0
    v_lshlrev_b32 v3, 4, v3
    v_add_u32 v2, v2, v3
    v_add_u32 v{V_OFF}, s32, v2
    """)

def lds_count_last(a, addr, n, lab_skip):
    a(f"""
    v_mov_b32 v1, {addr}
    v_mov_b32 v2, 1
    s_mov_b64 exec, 1
    ds_add_rtn_u32 v3, v1, v2
    s_mov_b64 exec, -1
    s_waitcnt lgkmcnt(0)
    v_readfirstlane_b32 s7, v3
    s_cmp_lg_u32 s7, {n-1}
    s_cbranch_scc1 {lab_skip}
    """)
def lds_set(a, addr_expr_sgpr_or_int):
    if isinstance(addr_expr_sgpr_or_int, int): a(f"v_mov_b32 v1, {addr_expr_sgpr_or_int}")
    else: a(f"v_mov_b32 v1, {addr_expr_sgpr_or_int}")
    a("v_mov_b32 v2, 1")
    a("ds_write_b32 v1, v2")
def lds_spin(a, addrs):
    lp = a.label('spin')
    for i, ad in enumerate(addrs): a(f"v_mov_b32 v{1+i}, {ad}")
    a("s_mov_b32 s25, 0")
    a(f"{lp}:")
    for i in range(len(addrs)): a(f"ds_read_b32 v{3+i}, v{1+i}")
    a("s_add_u32 s25, s25, 1")
    a("s_waitcnt lgkmcnt(0)")
    if len(addrs) == 2: a("v_min_u32 v3, v3, v4"); a("s_nop 0")
    a(f"""
    v_readfirstlane_b32 s24, v3
    s_cmp_gt_u32 s25, {5*SPIN}
    s_cselect_b32 s24, 1, s24
    s_cmp_eq_u32 s24, 0
    s_cbranch_scc1 {lp}
    """)
def flag_store(a, base, idx_sgpr):
    a(f"""
    s_lshl_b32 s7, {idx_sgpr}, 7
    s_add_u32 s7, s7, {base}
    v_mov_b32 v1, s7
    s_mov_b64 exec, 1
    global_store_dwordx2 v1, v[{V_NON}:{V_NON+1}], s[{SP['ws']}:{SP['ws']+1}] sc1
    s_mov_b64 exec, -1
    """)
def flag_poll(a, vaddr, vdst):
    lp = a.label('poll'); ok = a.label('pok')
    a(f"""
    s_mov_b32 s25, 0
    {lp}:
    global_load_dwordx2 v[{vdst}:{vdst+1}], v{vaddr}, s[{SP['ws']}:{SP['ws']+1}] sc1
    s_add_u32 s25, s25, 1
    s_waitcnt vmcnt(0)
    v_cmp_ne_u32 vcc, v{V_NON}, v{vdst}
    v_cmp_ne_u32 s[30:31], v{V_NON+1}, v{vdst+1}
    s_or_b64 vcc, vcc, s[30:31]
    s_cmp_eq_u64 vcc, 0
    s_cbranch_scc1 {ok}
    s_cmp_gt_u32 s25, {SPIN}
    s_cbranch_scc1 {ok}
    s_sleep 1
    s_branch {lp}
    {ok}:
    """)

def gemm2_F(a, opts):
    D = DEPTH
    ACC, HF, WF, YG = 16, 80, 112, 128
    VH0, VH1, VWD, VA0, VA1, VY = 8, 9, 10, 11, 13, 12
    S_S0, S_N, S_CUR, S_OFF, S_RING, S_WC = 86, 81, 26, 27, 28, 29
    S_PO = 82
    def acc(m, n): return ACC + (m*2+n)*16
    def hf(st, n): return HF + st*8 + n*4
    def wf(st, m): return WF + st*8 + m*4
    vm = VmTrack(a)
    vm.op('hstore')
    a(f"s_mov_b32 s{S_WP}, s{S_WAVE}")
    map_B(a)
    a(f"""
    s_mul_i32 s{S_S0}, s{S_WAVE}, 22
    s_mov_b32 s{S_N}, 22
    s_cmp_ge_u32 s{S_WAVE}, 2
    s_cselect_b32 s{S_N}, 21, s{S_N}
    s_cmp_eq_u32 s{S_WAVE}, 3
    s_cselect_b32 s7, 1, 0
    s_sub_u32 s{S_S0}, s{S_S0}, s7          ; 0, 22, 44, 65
    s_mul_i32 s7, s{S_C2}, 11
    s_lshr_b32 s{S_CUR}, s7, 2              ; rotation 0..19
    v_lshlrev_b32 v1, 4, v0
    s_mul_i32 s7, s{S_RT}, {2*86*1024}
    s_add_u32 s7, s7, {WS_H}
    v_add_u32 v{VH0}, s7, v1
    v_add_u32 v{VH1}, {86*1024}, v{VH0}
    v_lshrrev_b32 v2, 3, v0
    v_lshlrev_b32 v2, 10, v2
    v_and_b32 v3, 7, v0
    v_bfe_u32 v4, v0, 4, 1
    v_lshlrev_b32 v4, 2, v4
    v_xor_b32 v3, v3, v4
    v_lshlrev_b32 v3, 4, v3
    v_add_u32 v{VWD}, v2, v3
    s_lshl_b32 s{S_WC}, s{S_C2}, 7
    s_mul_i32 s{S_RING}, s{S_WAVE}, {D*2048}
    s_add_u32 s{S_RING}, s{S_RING}, {F_WR}
    """)
    srd(a, SRD_WS, SP['ws'], 19*MB)
    srd(a, SRD_WD, SP['wd'], 1409024)
    def nextstep(dst):
        a(f"""
        s_add_u32 s{dst}, s{S_S0}, s{S_CUR}
        s_add_u32 s{S_CUR}, s{S_CUR}, 1
        s_cmp_eq_u32 s{S_CUR}, s{S_N}
        s_cselect_b32 s{S_CUR}, 0, s{S_CUR}
        """)
    def issue_w(st, sidx, step):
        a(f"""
        s_lshl_b32 s30, s{sidx}, 14
        s_add_u32 s30, s30, s{S_WC}
        s_add_u32 m0, s{S_RING}, {st*2048}
        s_add_u32 s31, s30, 8192
        buffer_load_dwordx4 v{VWD}, s[{SRD_WD}:{SRD_WD+3}], s30 offen lds
        s_add_u32 m0, s{S_RING}, {st*2048+1024}
        s_nop 0
        buffer_load_dwordx4 v{VWD}, s[{SRD_WD}:{SRD_WD+3}], s31 offen lds
        """)
        vm.op(('w', step)); vm.op(('w', step))
    def issue_h(st, sidx, step):
        a(f"""
        s_lshl_b32 s{S_OFF}, s{sidx}, 10
        buffer_load_dwordx4 {v(hf(st,0),4)}, v{VH0}, s[{SRD_WS}:{SRD_WS+3}], s{S_OFF} offen sc1
        buffer_load_dwordx4 {v(hf(st,1),4)}, v{VH1}, s[{SRD_WS}:{SRD_WS+3}], s{S_OFF} offen sc1
        """)
        vm.op(('h', step)); vm.op(('h', step))
    a(f"""
    v_lshrrev_b32 v2, 5, v0
    v_lshlrev_b32 v2, 2, v2                 ; 4h
    v_bfe_u32 v3, v0, 2, 2                  ; r'
    v_add_u32 v2, v2, v3
    v_lshlrev_b32 v2, 7, v2
    v_lshrrev_b32 v3, 1, v3
    v_lshlrev_b32 v3, 6, v3
    v_add_u32 v2, v2, v3
    v_bfe_u32 v3, v0, 4, 1
    v_lshlrev_b32 v3, 5, v3
    v_add_u32 v2, v2, v3
    v_and_b32 v3, 3, v0
    v_lshlrev_b32 v3, 3, v3
    v_add_u32 v2, v2, v3
    v_add_u32 v{VA0}, s{S_RING}, v2
    v_xor_b32 v2, 64, v2
    v_add_u32 v{VA1}, s{S_RING}, v2
    v_lshrrev_b32 v2, 4, v0
    s_lshl_b32 s7, s{S_WAVE}, 4
    s_lshl_b32 s30, s{S_C2}, 6
    s_add_u32 s7, s7, s30                  ; 64 ct + 16 w
    v_add_u32 v2, s7, v2
    v_lshlrev_b32 v2, 13, v2               ; ch*8192
    v_and_b32 v3, 15, v0
    v_lshlrev_b32 v3, 4, v3
    v_add_u32 v2, v2, v3
    s_lshl_b32 s7, s{S_RT}, 8
    s_add_u32 s7, s7, {WS_Y}
    v_add_u32 v{VY}, s7, v2                ; y address
    v_mov_b32 v1, {F_NON}
    ds_read_b64 v[{V_NON}:{V_NON+1}], v1
    """)
    for i in range(64): a(f"v_mov_b32 v{ACC+i}, 0")
    nf = a.label('nfh')
    a("s_waitcnt vmcnt(0) lgkmcnt(0)")
    stamp(a, opts, 14)
    lds_count_last(a, F_CNTH, 4, nf)
    a(f"s_lshl_b32 s30, s{S_RB}, 4")
    a(f"s_add_u32 s30, s30, s{S_CT}")
    flag_store(a, WS_FLAGH, "s30")
    a(f"{nf}:")
    for st in range(D):
        nextstep(S_PO+st)
        issue_w(st, S_PO+st, st)
    a(f"global_load_dwordx4 {v(V_XT,4)}, v{V_OFF}, s[{SP['x']}:{SP['x']+1}]")
    oth = a.label('hoth'); go = a.label('hgo')
    a(f"s_cmp_lg_u32 s{S_WAVE}, 0")
    a(f"s_cbranch_scc1 {oth}")
    a(f"""
    v_min_u32 v2, 14, v0
    s_lshr_b32 s7, s{S_RT}, 1
    s_lshl_b32 s7, s7, 4
    v_add_u32 v2, s7, v2
    v_lshlrev_b32 v2, 7, v2
    v_add_u32 v2, {WS_FLAGH}, v2
    """)
    flag_poll(a, 2, 4)
    lds_set(a, F_HRDY)
    a(f"s_branch {go}")
    a(f"{oth}:")
    lds_spin(a, [F_HRDY])
    a("s_waitcnt vmcnt(0)")
    a(f"{go}:")
    stamp(a, opts, 15)
    vm.ops = []
    for st in range(D): issue_h(st, S_PO+st, st)
    def wreads(i):
        st, ws_ = i % D, i & 1
        for m, va in ((0, VA0), (1, VA1)):
            a(f"ds_read_b64_tr_b16 {v(wf(ws_,m),2)}, v{va} offset:{st*2048}")
            a(f"ds_read_b64_tr_b16 {v(wf(ws_,m)+2,2)}, v{va} offset:{st*2048+1024}")
    def yissue():
        for i in range(4):
            if i == 0: a(f"buffer_load_dwordx4 {v(YG,4)}, v{VY}, s[{SRD_WS}:{SRD_WS+3}], 0 offen sc1")
            else:
                a(f"s_mov_b32 s{S_OFF}, {i*4*8192}")
                a(f"buffer_load_dwordx4 {v(YG+4*i,4)}, v{VY}, s[{SRD_WS}:{SRD_WS+3}], s{S_OFF} offen sc1")
            vm.op('y')
    NS = 22
    wreads(0)
    lskip = a.label('gskip')
    for i in range(NS):
        st = i % D
        if i == NS - 1:
            a(f"s_cmp_eq_u32 s{S_N}, 21")
            a(f"s_cbranch_scc1 {lskip}")
        need = [('h', i)]
        if i + 1 < NS and i + 1 >= D: need.append(('w', i+1))
        n = min(vm.count_after(t) for t in need)
        a(f"s_waitcnt vmcnt({n}) lgkmcnt(0)")
        if i + 1 < NS: wreads(i+1)
        for m in range(2):
            for n_ in range(2):
                a(f"v_mfma_f32_32x32x16_bf16 {v(acc(m,n_),16)}, {v(wf(i&1,m),4)}, {v(hf(st,n_),4)}, {v(acc(m,n_),16)}")
        if i + D < NS:
            nextstep(S_PO)
            issue_w(st, S_PO, i+D)
            issue_h(st, S_PO, i+D)
        if i + D == NS: yissue()
    a(f"{lskip}:")
    stamp(a, opts, 16+8)
    a(f"""
    v_and_b32 v1, 31, v0
    v_mul_u32_u24 v1, {PROW}, v1
    v_lshrrev_b32 v2, 5, v0
    v_lshlrev_b32 v2, 4, v2
    v_add_u32 v1, v1, v2
    s_mul_i32 s7, s{S_WAVE}, {64*PROW}
    s_add_u32 s7, s7, {F_P}
    v_add_u32 v1, s7, v1
    v_lshrrev_b32 v2, 4, v0
    s_lshl_b32 s7, s{S_WAVE}, 4
    v_add_u32 v2, s7, v2
    v_mul_u32_u24 v2, 160, v2
    v_and_b32 v3, 15, v0
    v_lshlrev_b32 v3, 3, v3
    v_add_u32 v2, v2, v3
    v_add_u32 v2, {F_YT}, v2
    """)
    for m in range(2):
        for n_ in range(2):
            for g in range(4):
                a(f"ds_write_b128 v1, {v(acc(m,n_)+4*g,4)} offset:{n_*32*PROW + m*128 + g*32}")
    lp = a.label('ychk'); ok = a.label('yok')
    a(f"""
    s_mov_b32 s28, 0
    {lp}:
    s_waitcnt vmcnt(0)
    v_cmp_ne_u32 vcc, v{V_NON}, v{YG+2}
    """)
    for i in range(1, 4):
        a(f"v_cmp_ne_u32 s[30:31], v{V_NON}, v{YG+4*i+2}"); a("s_or_b64 vcc, vcc, s[30:31]")
    for i in range(4):
        a(f"v_cmp_ne_u32 s[30:31], v{V_NON+1}, v{YG+4*i+3}"); a("s_or_b64 vcc, vcc, s[30:31]")
    a(f"""
    s_add_u32 s28, s28, 1
    s_cmp_eq_u64 vcc, 0
    s_cbranch_scc1 {ok}
    s_cmp_gt_u32 s28, {SPIN}
    s_cbranch_scc1 {ok}
    """)
    yissue()
    a(f"s_branch {lp}")
    a(f"{ok}:")
    stamp(a, opts, 16+9)
    for i in range(4):
        a(f"ds_write_b64 v2, {v(YG+4*i,2)} offset:{i*4*160}")
    a(f"s_branch {opts['lfinal']}")

def conv_F(a, opts):
    from kerA_help import xnt_body
    S_W, S_TBK = 68, 69
    S_TB, S_CH, S_RH, S_C = 70, 71, 72, 73
    ACC, AF, BF = 16, 48, 112
    VA, VB = 8, 12
    KACC = 80
    a("s_setprio 2")
    xnt_body(a, opts, " sc1")
    a(f"""
    v_mov_b32 v1, {F_NON}
    ds_read_b64 v[{V_NON}:{V_NON+1}], v1
    s_sub_u32 s{S_WP}, s{S_WAVE}, 4
    s_lshr_b32 s{S_C}, s{S_W}, 1
    s_and_b32 s{S_RH}, s{S_W}, 1
    s_lshl_b32 s{S_CH}, s2, 1
    s_add_u32 s{S_CH}, s{S_CH}, s{S_C}      ; channel
    s_mul_i32 s{S_TB}, s{S_C}, {CT_SZ}
    s_add_u32 s{S_TB}, s{S_TB}, {F_CT}
    """)
    map_B(a)
    srd(a, SRD_WS, SP['ws'], 19*MB)
    odd = a.label('codd'); join = a.label('cjoin')
    a(f"s_cmp_eq_u32 s{S_RH}, 1")
    a(f"s_cbranch_scc1 {odd}")
    a(f"""
    v_lshlrev_b32 v1, 4, v0
    v_add_u32 v2, s{S_TBK}, v1
    """)
    for T in range(8):
        a(f"ds_read_b128 {v(16+4*T,4)}, v2 offset:{8192 + T*1024}")
    a(f"""
    v_and_b32 v2, 15, v0
    v_lshlrev_b32 v2, 5, v2               ; 32*j
    v_lshrrev_b32 v3, 4, v0
    v_lshlrev_b32 v3, 3, v3               ; 8*q
    v_add_u32 v2, v2, v3
    v_sub_u32 v2, {504}, v2               ; 4088 - 512*7 - (32 j + 8 q)
    s_add_u32 s7, s{S_TB}, {CT_V0}
    v_add_u32 v2, s7, v2
    """)
    for T in range(8):
        a(f"s_waitcnt lgkmcnt({7-T})")
        for i in range(4):
            a(f"v_add_f32 v{KACC+4*T+i}, v{KACC+4*T+i}, v{16+4*T+i}")
        a(f"v_cvt_pk_bf16_f32 v{48+2*T}, v{KACC+4*T+3}, v{KACC+4*T+2}")
        a(f"v_cvt_pk_bf16_f32 v{49+2*T}, v{KACC+4*T+1}, v{KACC+4*T}")
    for T in range(8):
        a(f"ds_write_b64 v2, {v(48+2*T,2)} offset:{(7-T)*512}")
    a(f"""
    v_mov_b32 v6, 0
    v_mov_b32 v7, 0
    v_lshlrev_b32 v3, 3, v0
    s_add_u32 s7, s{S_TB}, {CT_V0+4096}
    v_add_u32 v2, s7, v3
    s_mov_b64 exec, 0xff
    ds_write_b64 v2, v[6:7]
    ds_write_b64 v2, v[6:7] offset:{CT_V1-CT_V0}
    s_mov_b64 exec, -1
    s_add_u32 s7, s{S_TB}, {CT_V0}
    v_add_u32 v2, s7, v1
    """)
    for i in range(4):
        a(f"ds_read_b128 {v(16+8*i,4)}, v2 offset:{i*1024}")
        a(f"ds_read_b32 v{20+8*i}, v2 offset:{i*1024+16}")
    for i in range(4):
        a(f"s_waitcnt lgkmcnt({6-2*i})")
        for j in range(4):
            a(f"v_alignbit_b32 v{48+4*i+j}, v{16+8*i+j+1}, v{16+8*i+j}, 16")
    for i in range(4):
        a(f"ds_write_b128 v2, {v(48+4*i,4)} offset:{CT_V1-CT_V0 + i*1024}")
    a("s_waitcnt lgkmcnt(0)")
    a(f"s_lshl_b32 s7, s{S_C}, 2")
    a(f"s_add_u32 s7, s7, {F_KRDY}")
    lds_set(a, "s7")
    a(f"s_branch {join}")
    a(f"{odd}:")
    a(f"""
    v_lshlrev_b32 v1, 4, v0
    v_mov_b32 v16, 0
    v_mov_b32 v17, 0
    v_mov_b32 v18, 0
    v_mov_b32 v19, 0
    v_add_u32 v3, s{S_TB}, v1
    s_mov_b64 exec, 0x3fffffff
    ds_write_b128 v3, v[16:19] offset:{CT_U}
    s_mov_b64 exec, -1
    """)
    a(f"{join}:")
    nf = a.label('nfx')
    a("s_waitcnt vmcnt(0) lgkmcnt(0)")
    stamp(a, opts, 14)
    lds_count_last(a, F_CNTX, 4, nf)
    a(f"s_lshl_b32 s30, s{S_RB}, 4")
    a(f"s_add_u32 s30, s30, s{S_CT}")
    flag_store(a, WS_FLAGX, "s30")
    a(f"{nf}:")
    a(f"""
    s_lshl_b32 s28, s{S_CH}, 1
    v_mov_b32 v4, s28
    global_load_ushort v5, v4, s[{SP['dskip']}:{SP['dskip']+1}]
    global_load_dwordx4 {v(V_XT,4)}, v{V_OFF}, s[{SP['x']}:{SP['x']+1}]
    """)
    ev = a.label('cev')
    a(f"s_cmp_eq_u32 s{S_RH}, 0")
    a(f"s_cbranch_scc1 {ev}")
    a(f"""
    v_and_b32 v2, 15, v0
    v_lshlrev_b32 v2, 4, v2
    s_lshr_b32 s7, s2, 4
    v_add_u32 v2, s7, v2
    v_lshlrev_b32 v2, 7, v2
    v_add_u32 v2, {WS_FLAGX}, v2
    """)
    flag_poll(a, 2, 6)
    stamp(a, opts, 15)
    a(f"""
    s_lshl_b32 s26, s{S_CH}, 12
    s_add_u32 s26, s26, {WS_XT}
    v_lshlrev_b32 v1, 4, v0
    """)
    for i in range(4):
        a(f"buffer_load_dwordx4 {v(16+4*i,4)}, v1, s[{SRD_WS}:{SRD_WS+3}], s26 offen offset:{i*1024} sc1")
    a(f"v_add_u32 v3, s{S_TB}, v1")
    for i in range(4):
        a(f"s_waitcnt vmcnt({3-i})")
        a(f"ds_write_b128 v3, {v(16+4*i,4)} offset:{CT_U + 480 + i*1024}")
    a("s_waitcnt lgkmcnt(0)")
    a(f"s_lshl_b32 s7, s{S_C}, 2")
    a(f"s_add_u32 s7, s7, {F_URDY}")
    lds_set(a, "s7")
    a(f"{ev}:")
    a(f"""
    v_and_b32 v1, 15, v0                   ; b / a
    v_lshrrev_b32 v2, 4, v0                ; q
    v_lshrrev_b32 v3, 1, v1                ; beta
    v_lshlrev_b32 v6, 2, v2
    v_sub_u32 v6, v6, v3                   ; 4q - beta
    s_lshl_b32 s7, s{S_RH}, 6
    s_sub_u32 s7, {1015-128-48}, s7
    v_add_u32 v6, s7, v6
    v_lshlrev_b32 v6, 2, v6
    v_and_b32 v3, 1, v1
    v_xor_b32 v3, 1, v3
    v_mul_u32_u24 v3, {CT_V1-CT_V0}, v3
    v_add_u32 v6, v6, v3
    s_add_u32 s7, s{S_TB}, {CT_V0}
    v_add_u32 v{VA}, s7, v6
    v_subrev_u32 v{VA+1}, 1024, v{VA}
    v_subrev_u32 v{VA+2}, 2048, v{VA}
    v_subrev_u32 v{VA+3}, 3072, v{VA}
    v_lshlrev_b32 v3, 5, v1
    v_lshlrev_b32 v6, 4, v2
    v_add_u32 v3, v3, v6
    s_lshl_b32 s7, s{S_RH}, 8
    s_sub_u32 s7, {448-192}, s7
    s_add_u32 s7, s7, s{S_TB}
    v_add_u32 v{VB}, s7, v3
    """)
    for i in range(32): a(f"v_mov_b32 v{ACC+i}, 0")
    a(f"s_lshl_b32 s7, s{S_C}, 2")
    a(f"s_add_u32 s26, s7, {F_KRDY}")
    a(f"s_add_u32 s27, s7, {F_URDY}")
    lds_spin(a, ["s26", "s27"])
    a("s_waitcnt vmcnt(0)")
    stamp(a, opts, 16)
    a("v_lshlrev_b32 v5, 16, v5             ; Dskip")
    a(f"s_setprio {opts.get('cprio', 1)}")
    lg = LgTrack(a)
    def rdA(st, dl, rp):
        Dd, e = dl >> 1, dl & 1
        o = (1-e)*128 + (3-rp)*16
        r = AF + st*32 + dl*4
        return [(f"ds_read2_b32 {v(r,2)}, v{VA+Dd} offset0:{o} offset1:{o+1}", ('A', rp, dl)),
                (f"ds_read2_b32 {v(r+2,2)}, v{VA+Dd} offset0:{o+2} offset1:{o+3}", ('A', rp, dl))]
    def rdB(p, rp):
        return (f"ds_read_b128 {v(BF+p*4,4)}, v{VB} offset:{CT_U + 512*p + (3-rp)*64}", ('B', rp, p))
    def emit(x): a(x[0]); lg.op(x[1])
    emit(rdB(0, 0))
    for dl in range(8):
        for x in rdA(0, dl, 0): emit(x)
    for p in range(1, 8): emit(rdB(p, 0))
    for rp in range(4):
        st = rp & 1
        nxtA = []
        if rp < 3:
            for dl in range(8): nxtA += rdA(1-st, dl, rp+1)
        ni = 0
        for p in range(8):
            for dl in range(8-p):
                lg.wait([('A', rp, dl), ('B', rp, p)])
                a(f"v_mfma_f32_16x16x32_bf16 {v(ACC+4*(dl+p),4)}, {v(AF+st*32+dl*4,4)}, {v(BF+p*4,4)}, {v(ACC+4*(dl+p),4)}")
                if ni < len(nxtA): emit(nxtA[ni]); ni += 1
            if rp < 3: emit(rdB(p, rp+1))
    a("s_setprio 0")
    stamp(a, opts, 17)
    ex0 = a.label('ex0'); exd = a.label('exd')
    a(f"""
    v_lshlrev_b32 v13, 4, v0
    s_lshl_b32 s7, s{S_W}, 12
    s_add_u32 s7, s7, {F_EX}
    v_add_u32 v3, s7, v13
    s_cmp_eq_u32 s{S_RH}, 0
    s_nop 4
    s_cbranch_scc1 {ex0}
    """)
    for T in range(4): a(f"ds_write_b128 v3, {v(ACC+4*T,4)} offset:{T*1024}")
    for i in range(16): a(f"v_mov_b32 v{ACC+i}, v{ACC+16+i}")
    a(f"s_branch {exd}")
    a(f"{ex0}:")
    for T in range(4): a(f"ds_write_b128 v3, {v(ACC+16+4*T,4)} offset:{T*1024}")
    a(f"{exd}:")
    a("s_waitcnt lgkmcnt(0)")
    a(f"s_lshl_b32 s7, s{S_W}, 2")
    a(f"s_add_u32 s7, s7, {F_XFL}")
    lds_set(a, "s7")
    a(f"""
    s_xor_b32 s7, s{S_W}, 1
    s_lshl_b32 s26, s7, 2
    s_add_u32 s26, s26, {F_XFL}
    s_lshl_b32 s27, s7, 12
    s_add_u32 s27, s27, {F_EX}
    v_add_u32 v14, s27, v13
    """)
    lds_spin(a, ["s26"])
    for T in range(4): a(f"ds_read_b128 {v(32+4*T,4)}, v14 offset:{T*1024}")
    a(f"""
    v_and_b32 v1, 15, v0
    v_lshlrev_b32 v1, 5, v1
    v_lshrrev_b32 v2, 4, v0
    v_lshlrev_b32 v2, 3, v2
    v_add_u32 v1, v1, v2                   ; 2*(16a + 4q)
    s_lshl_b32 s7, s{S_RH}, 11
    s_add_u32 s24, s7, s{S_TB}
    v_add_u32 v2, s24, v1
    """)
    for k in range(4): a(f"ds_read_b64 {v(48+2*k,2)}, v2 offset:{CT_U + 480 + k*512}")
    a(f"""
    v_and_b32 v1, 15, v0
    v_lshlrev_b32 v1, 6, v1
    v_lshrrev_b32 v2, 4, v0
    v_lshlrev_b32 v2, 4, v2
    v_add_u32 v1, v1, v2
    s_lshl_b32 s24, s{S_CH}, 13
    s_add_u32 s24, s24, {WS_Y}
    s_lshl_b32 s7, s{S_RH}, 12
    s_add_u32 s24, s24, s7
    s_waitcnt lgkmcnt(0)
    """)
    for k in range(4):
        A = ACC + 4*k
        for i in range(4): a(f"v_add_f32 v{A+i}, v{A+i}, v{32+4*k+i}")
        U = 64
        a(f"v_cvt_pk_bf16_f32 v{U}, v{A}, v{A+1}")
        a(f"v_cvt_pk_bf16_f32 v{U+1}, v{A+2}, v{A+3}")
        for j in range(2):
            a(f"v_lshlrev_b32 v{U+2+2*j}, 16, v{48+2*k+j}")
            a(f"v_and_b32 v{U+3+2*j}, 0xffff0000, v{48+2*k+j}")
        for i in range(4): a(f"v_mul_f32 v{U+2+i}, v{U+2+i}, v5")
        a(f"v_cvt_pk_bf16_f32 v{U+6}, v{U+2}, v{U+3}")
        a(f"v_cvt_pk_bf16_f32 v{U+7}, v{U+4}, v{U+5}")
        for j in range(2):
            a(f"v_lshlrev_b32 v{U+2+2*j}, 16, v{U+6+j}")
            a(f"v_and_b32 v{U+3+2*j}, 0xffff0000, v{U+6+j}")
            a(f"v_lshlrev_b32 v{U+8+2*j}, 16, v{U+j}")
            a(f"v_and_b32 v{U+9+2*j}, 0xffff0000, v{U+j}")
        for i in range(4): a(f"v_add_f32 v{U+2+i}, v{U+2+i}, v{U+8+i}")
        O = 80 + 4*k
        a(f"v_cvt_pk_bf16_f32 v{O}, v{U+2}, v{U+3}")
        a(f"v_cvt_pk_bf16_f32 v{O+1}, v{U+4}, v{U+5}")
        a(f"v_mov_b32 v{O+2}, v{V_NON}")
        a(f"v_mov_b32 v{O+3}, v{V_NON+1}")
        a("s_setprio 3")
        a(f"buffer_store_dwordx4 {v(O,4)}, v1, s[{SRD_WS}:{SRD_WS+3}], s24 offen offset:{k*1024} sc1")
        a("s_setprio 0")
    stamp(a, opts, 18)
    a(f"s_branch {opts['lfinal']}")

def final_F(a, opts):
    srd(a, SRD_O, SP['out'], 2097152)
    a(f"""
    s_and_b32 s7, s{S_WP}, 3
    s_lshl_b32 s7, s7, 4
    v_and_b32 v1, 15, v0
    v_add_u32 v2, s7, v1                  ; t
    v_mul_u32_u24 v2, {PROW}, v2
    s_lshr_b32 s24, s{S_WP}, 2
    s_lshl_b32 s24, s24, 2
    v_lshrrev_b32 v3, 4, v0
    v_add_u32 v3, s24, v3                 ; octet
    v_lshlrev_b32 v4, 5, v3
    v_add_u32 v2, v2, v4
    v_add_u32 v2, {F_P}, v2
    v_lshlrev_b32 v4, 3, v3
    v_lshrrev_b32 v5, 2, v1
    v_add_u32 v4, v4, v5
    v_mul_u32_u24 v4, 160, v4
    v_and_b32 v5, 3, v1
    v_lshlrev_b32 v5, 3, v5
    v_add_u32 v4, v4, v5
    s_lshl_b32 s7, s7, 1
    s_add_u32 s7, s7, {F_YT}
    v_add_u32 v4, s7, v4
    """)
    U = 56
    a("s_waitcnt vmcnt(4)") if False else None
    a("s_waitcnt lgkmcnt(0)")
    stamp(a, opts, 26)
    a("s_barrier")
    stamp(a, opts, 27)
    P = 16
    for pw in range(4):
        a(f"ds_read_b128 {v(P+8*pw,4)}, v2 offset:{pw*64*PROW}")
        a(f"ds_read_b128 {v(P+8*pw+4,4)}, v2 offset:{pw*64*PROW+16}")
    a(f"ds_read_b64_tr_b16 v[8:9], v4")
    a(f"ds_read_b64_tr_b16 v[10:11], v4 offset:{4*160}")
    for j in range(4):
        a(f"v_lshlrev_b32 v{U+2*j}, 16, v{V_XT+j}")
        a(f"v_and_b32 v{U+2*j+1}, 0xffff0000, v{V_XT+j}")
    a("s_waitcnt lgkmcnt(6)")
    for i in range(8): a(f"v_add_f32 v{P+i}, v{P+i}, v{P+8+i}")
    a("s_waitcnt lgkmcnt(2)")
    for i in range(8): a(f"v_add_f32 v{P+16+i}, v{P+16+i}, v{P+24+i}")
    for i in range(8): a(f"v_add_f32 v{P+i}, v{P+i}, v{P+16+i}")
    for j in range(4): a(f"v_cvt_pk_bf16_f32 v{48+j}, v{P+2*j}, v{P+2*j+1}")
    a("s_waitcnt lgkmcnt(0)")
    for j in range(4):
        a(f"v_lshlrev_b32 v{U+8+2*j}, 16, v{8+j}")
        a(f"v_and_b32 v{U+8+2*j+1}, 0xffff0000, v{8+j}")
    for i in range(8): a(f"v_add_f32 v{U+i}, v{U+i}, v{U+8+i}")
    for j in range(4): a(f"v_cvt_pk_bf16_f32 v{72+j}, v{U+2*j}, v{U+2*j+1}")
    for j in range(4):
        a(f"v_lshlrev_b32 v{U+2*j}, 16, v{72+j}")
        a(f"v_and_b32 v{U+2*j+1}, 0xffff0000, v{72+j}")
        a(f"v_lshlrev_b32 v{U+8+2*j}, 16, v{48+j}")
        a(f"v_and_b32 v{U+8+2*j+1}, 0xffff0000, v{48+j}")
    for i in range(8): a(f"v_add_f32 v{U+i}, v{U+i}, v{U+8+i}")
    for j in range(4): a(f"v_cvt_pk_bf16_f32 v{76+j}, v{U+2*j}, v{U+2*j+1}")
    a(f"buffer_store_dwordx4 v[76:79], v{V_OFF}, s[{SRD_O}:{SRD_O+3}], 0 offen")
    stamp(a, opts, 28)
    if opts.get('ts'): a("s_waitcnt vmcnt(0)")
    stamp(a, opts, 8)
    stamp(a, opts, 7, real=True)
    stamp_flush(a, opts, 0)
    a("s_endpgm")

def gen_F(a, name, opts):
    import kerA
    opts = dict(opts); opts['fused'] = 1
    opts['lfinal'] = a.label('final')
    if opts.get('cpf', 1):
        opts['abeg'] = name; opts['aend'] = 1
    a(kernel_head(name))
    lend = a.label('endF')
    kerA.prologue_A(a, lend, opts)
    lab = {k: a.label(k) for k in ('g','ld','h')}
    a(f"""
    s_cmp_lt_u32 s{S_WAVE}, 4
    s_cbranch_scc1 {lab['g']}
    s_cmp_ge_u32 s{S_WAVE}, 8
    s_cbranch_scc1 {lab['h']}
    """)
    kerA.loader_A(a, opts)
    a(f"{lab['h']}:"); kerA.helper_A(a, opts)
    a(f"{lab['g']}:"); kerA.gemm_A(a, opts)
    a(f"{opts['lfinal']}:"); final_F(a, opts)
    a(f"{lend}:")
    a("s_endpgm")
    a(".fill 3072, 4, 0xbf800000")
    a(kernel_desc(name, 168))
```

```python
import sys, os
sys.path.insert(0, os.path.dirname(__file__))
from core import *
import core, kerF
NAME = 'parallel_sum__ssm_conv_s4__geglu_ffn__prompt_kernel'
def make(opts):
    ref = open('parallel_sum__ssm_conv_s4__geglu_ffn__prompt.s.ref').read()
    hdr = ref[:ref.index('; Override launch geometry')]
    hdr += f"; @launch grid=(256,1,1) block=(768,1,1) lds={kerF.F_LDS}\n"
    a = Asm()
    a('.amdgcn_target "amdgcn-amd-amdhsa--gfx950"')
    core.set_vts(167)
    kerF.gen_F(a, NAME, opts)
    return hdr + a.text()
if __name__ == '__main__':
    out = sys.argv[1]
    opts = {}
    for x in sys.argv[2:]:
        k,_,val = x.partition('=')
        opts[k] = int(val) if val else 1
    s = make(opts)
    open(out,'w').write(s)
    print('wrote', out, len(s))
```

```python
from core import *
import struct
def f2u(x): return struct.unpack('<I', struct.pack('<f', x))[0]
def hx(x): return hex(f2u(x))

STAGE = 40960
A_KT   = 3*STAGE
A_STATS = A_KT + 32768
A_CS   = A_STATS + 1024
A_LDS  = A_CS + 768

S_WAVE, S_RB, S_CT, S_ROT = 3, 4, 5, 6
SRD_X, SRD_WG, SRD_WU, SRD_T0, SRD_T1, SRD_T2 = 8, 12, 16, 20, 24, 28

def prologue_A(a, lend, opts):
    a(f"""
    s_cmp_ge_u32 s2, 256
    s_cbranch_scc1 {lend}
    """)
    stamp_init(a, opts)
    stamp(a, opts, 10, real=True)
    stamp(a, opts, 0)
    a(f"""
    s_load_dwordx16 s[36:51], s[0:1], 0
    s_load_dwordx16 s[52:67], s[0:1], 64
    """)
    a(f"""
    v_lshrrev_b32 v1, 6, v0
    v_and_b32 v0, 63, v0
    s_and_b32 s7, s2, 7
    v_readfirstlane_b32 s{S_WAVE}, v1
    s_lshr_b32 s24, s2, 3
    s_and_b32 s25, s7, 1
    s_lshl_b32 s25, s25, 3
    s_and_b32 s26, s24, 7
    s_add_u32 s{S_RB}, s25, s26
    s_lshr_b32 s25, s7, 1
    s_lshl_b32 s25, s25, 2
    s_lshr_b32 s26, s24, 3
    s_add_u32 s{S_CT}, s25, s26
    s_lshl_b32 s25, s{S_CT}, 1
    s_add_u32 s25, s25, s{S_RB}
    s_and_b32 s{S_ROT}, s25, 7
    """)

def loader_A(a, opts):
    SJ, SXB, SWB, SLX, SLW, ST, SXO, SWO, SCC, SSTG = 68, 25, 26, 27, 28, 29, 30, 31, 32, 33
    a(f"""
    s_sub_u32 s{SJ}, s{S_WAVE}, 4
    v_lshrrev_b32 v6, 3, v0
    v_lshlrev_b32 v2, 10, v6
    v_and_b32 v6, 7, v0
    v_lshrrev_b32 v7, 4, v0
    v_xor_b32 v6, v6, v7
    v_lshlrev_b32 v6, 4, v6
    v_add_u32 v2, v2, v6
    v_xor_b32 v3, 64, v2
    v_lshrrev_b32 v6, 2, v0
    s_movk_i32 s{ST}, 2752
    v_mul_lo_u32 v4, v6, s{ST}
    v_and_b32 v6, 3, v0
    v_lshlrev_b32 v7, 4, v6
    v_xor_b32 v6, 2, v6
    v_lshlrev_b32 v6, 4, v6
    v_add_u32 v5, v4, v6
    v_add_u32 v4, v4, v7
    s_lshl_b32 s{SXB}, s{S_RB}, 17
    s_lshl_b32 s{ST}, s{SJ}, 15
    s_add_u32 s{SXB}, s{SXB}, s{ST}
    s_mul_i32 s{SWB}, s{SJ}, {16*2752}
    s_mul_i32 s{ST}, s{S_CT}, 192
    s_add_u32 s{SWB}, s{SWB}, s{ST}
    s_lshl_b32 s{SLX}, s{SJ}, 12
    s_lshl_b32 s{SLW}, s{SJ}, 10
    s_add_u32 s{SLW}, s{SLW}, 16384
    s_mov_b32 s{SCC}, s{S_ROT}
    s_waitcnt lgkmcnt(0)
    """)
    srd(a, SRD_X, SP['x'], 2097152)
    srd(a, SRD_WG, SP['wg'], 1409024)
    srd(a, SRD_WU, SP['wu'], 1409024)
    def setup(stage_off):
        a(f"""
        s_lshl_b32 s{SXO}, s{SCC}, 7
        s_add_u32 s{SXO}, s{SXO}, s{SXB}
        s_mul_i32 s{SWO}, s{SCC}, {64*2752}
        s_add_u32 s{SWO}, s{SWO}, s{SWB}
        s_add_u32 s34, s{SLX}, {stage_off}
        s_add_u32 s35, s{SLW}, {stage_off}
        s_add_u32 s{SCC}, s{SCC}, 1
        s_and_b32 s{SCC}, s{SCC}, 7
        """)
    def dma(k):
        if opts.get('nodma') and dma.n >= 13:
            return
        dma.n += 1
        order = [('x',0),('g',0),('u',0),('x',1),('g',1),('u',1),('x',2),('g',2),('u',2),('x',3)]
        t, i = order[k]
        if t == 'x':
            a(f"s_add_u32 m0, s34, {i*1024}")
            a(f"s_add_u32 s{ST}, s{SXO}, {i*8192}")
            a(f"buffer_load_dwordx4 v{2+(i&1)}, s[{SRD_X}:{SRD_X+3}], s{ST} offen lds")
        elif t == 'g':
            a(f"s_add_u32 m0, s35, {i*4096}")
            a(f"s_add_u32 s{ST}, s{SWO}, {i*64}")
            a(f"buffer_load_dwordx4 v4, s[{SRD_WG}:{SRD_WG+3}], s{ST} offen lds")
        else:
            a(f"s_add_u32 m0, s35, {i*4096+12288}")
            a(f"s_add_u32 s{ST}, s{SWO}, {i*64}")
            a(f"buffer_load_dwordx4 v5, s[{SRD_WU}:{SRD_WU+3}], s{ST} offen lds")
    dma.n = 0
    H = opts.get('half', 3)
    for _ in range(opts.get('ldelay', 0)): a("s_sleep 2")
    stamp(a, opts, 1)
    setup(0)
    for k in range(10): dma(k)
    setup(STAGE)
    for k in range(H): dma(k)
    stamp(a, opts, 2)
    a(f"s_waitcnt vmcnt({H})")
    stamp(a, opts, 3)
    a("s_barrier")
    lp = a.label('ldloop')
    a(f"s_mov_b32 s{SSTG}, {2*STAGE}")
    a(f"s_mov_b32 s7, 0")
    a(f"{lp}:")
    for k in range(H, 10): dma(k)
    setup(f"s{SSTG}")
    for k in range(H): dma(k)
    if opts.get('tsl'):
        a("s_add_u32 s90, s7, 16"); stamp(a, opts, "s90")
    a(f"s_waitcnt vmcnt({H})")
    if opts.get('tsl'):
        a("s_add_u32 s90, s7, 24"); stamp(a, opts, "s90")
    if opts.get('tsb'):
        a("s_add_u32 s90, s7, 33"); stamp(a, opts, "s90")
    a("s_barrier")
    a(f"""
    s_add_u32 s{SSTG}, s{SSTG}, {STAGE}
    s_cmp_eq_u32 s{SSTG}, {3*STAGE}
    s_cselect_b32 s{SSTG}, 0, s{SSTG}
    s_add_u32 s7, s7, 1
    s_cmp_lt_u32 s7, 6
    s_cbranch_scc1 {lp}
    """)
    for k in range(H, 10): dma(k)
    stamp(a, opts, 4)
    from kerA_help import loader_tail_A
    loader_tail_A(a, opts, SJ, 10-H)

def stats_produce(a, opts):
    X = 8
    a(f"""
    s_setprio 3
    v_lshrrev_b32 v1, 5, v0
    v_lshlrev_b32 v1, 10, v1
    v_and_b32 v2, 31, v0
    v_lshlrev_b32 v2, 4, v2
    v_add_u32 v1, v1, v2
    s_lshl_b32 s7, s{S_RB}, 4
    s_add_u32 s7, s7, s{S_CT}
    s_lshl_b32 s7, s7, 3
    s_lshl_b32 s33, s{S_WAVE}, 1
    s_add_u32 s7, s7, s33           ; row0
    s_lshl_b32 s33, s7, 10
    v_add_u32 v1, s33, v1
    s_waitcnt lgkmcnt(0)
    global_load_dwordx4 {v(X,4)}, v1, s[{SP['x']}:{SP['x']+1}]
    global_load_dwordx4 {v(X+4,4)}, v1, s[{SP['x']}:{SP['x']+1}] offset:512
    s_setprio 0
    """)
    stamp(a, opts, 1)

def stats_finish(a, opts):
    from kerA_help import A_PUB as A_PUB_
    X = 8; U = 16
    a("s_waitcnt vmcnt(0)")
    for j in range(8):
        a(f"v_lshlrev_b32 v{U+2*j}, 16, v{X+j}")
        a(f"v_and_b32 v{U+2*j+1}, 0xffff0000, v{X+j}")
    a(f"v_add_f32 v2, v{U}, v{U+1}")
    a(f"v_add_f32 v3, v{U+2}, v{U+3}")
    for j in range(2, 8):
        a(f"v_add_f32 v{2+(j&1)}, v{2+(j&1)}, v{U+2*j}")
        a(f"v_add_f32 v{2+(j&1)}, v{2+(j&1)}, v{U+2*j+1}")
    def red32(r):
        a("s_nop 1")
        a(f"v_add_f32_dpp v{r}, v{r}, v{r} quad_perm:[1,0,3,2] row_mask:0xf bank_mask:0xf")
        a("s_nop 1")
        a(f"v_add_f32_dpp v{r}, v{r}, v{r} quad_perm:[2,3,0,1] row_mask:0xf bank_mask:0xf")
        a("s_nop 1")
        a(f"v_add_f32_dpp v{r}, v{r}, v{r} row_half_mirror row_mask:0xf bank_mask:0xf")
        a("s_nop 1")
        a(f"v_add_f32_dpp v{r}, v{r}, v{r} row_mirror row_mask:0xf bank_mask:0xf")
        a(f"v_mov_b32 v5, v{r}")
        a("s_nop 1")
        a(f"v_permlane16_swap_b32 v{r}, v5")
        a("s_nop 1")
        a(f"v_add_f32 v{r}, v{r}, v5")
    a("v_add_f32 v2, v2, v3")
    red32(2)
    a("v_mul_f32 v2, 0x3b000000, v2        ; mean")
    a("v_mov_b32 v3, 0")
    a("v_mov_b32 v4, 0")
    for i in range(16):
        a(f"v_sub_f32 v{U+i}, v{U+i}, v2")
    for i in range(16):
        a(f"v_fmac_f32 v{3+(i&1)}, v{U+i}, v{U+i}")
    a("v_add_f32 v4, v4, v3")
    red32(4)
    a(f"""
    v_mul_f32 v4, 0x3b000000, v4          ; var
    v_cvt_pk_bf16_f32 v2, v2, v4
    v_and_b32 v4, 0xffff0000, v2
    v_add_f32 v4, {hx(1e-5)}, v4
    v_cvt_pk_bf16_f32 v4, v4, v4
    v_and_b32 v4, 0xffff0000, v4
    v_sqrt_f32 v4, v4
    v_and_b32 v2, 0xffff, v2
    v_cvt_pk_bf16_f32 v4, v4, v4
    v_and_b32 v4, 0xffff0000, v4
    v_or_b32 v2, v2, v4
    v_lshrrev_b32 v1, 5, v0
    s_lshl_b32 s33, s{S_WAVE}, 1
    v_add_u32 v1, s33, v1
    v_lshlrev_b32 v1, 2, v1
    v_add_u32 v1, {A_PUB_}, v1
    ds_write_b32 v1, v2
    s_waitcnt lgkmcnt(0)
    """)

V_WF = 8
V_XF = 32
V_XA = 48
V_WA = 52
V_ACC = 64
def wf(st, mi): return V_WF + st*12 + mi*4
def xf(st, n): return V_XF + st*8 + n*4
def acc(mi, n): return V_ACC + (mi*2+n)*16

def gemm_A(a, opts):
    S_DELTA, S_STG, S_CNT, S_TW, S_FW = 25, 26, 27, 68, 69
    stats_produce(a, opts)
    a("s_mov_b32 s88, s7")
    if opts.get('aend'):
        pc = a.label('pc')
        a(f"""
        s_getpc_b64 s[74:75]
        {pc}:
        s_add_u32 s74, s74, {opts['abeg']}-{pc}
        s_addc_u32 s75, s75, -1
        s_lshr_b32 s76, s2, 3
        s_and_b32 s76, s76, 1
        s_lshl_b32 s76, s76, 2
        s_add_u32 s76, s76, s{S_WAVE}
        s_min_u32 s76, s76, {6 if opts.get('fused') else 5}
        s_lshl_b32 s76, s76, 12
        v_lshlrev_b32 v6, 6, v0
        v_add_u32 v6, s76, v6
        global_load_dword v7, v6, s[74:75]
        """)
    srd(a, SRD_T0, SP['ws'], WS_H_SZ, WS_H)
    a(f"""
    s_and_b32 s{S_TW}, s{S_WAVE}, 1
    s_lshr_b32 s{S_FW}, s{S_WAVE}, 1
    s_mov_b32 s30, {-2*STAGE & 0xffffffff}
    s_mov_b32 s31, {STAGE}
    v_and_b32 v1, 31, v0
    v_lshrrev_b32 v2, 5, v0
    v_lshrrev_b32 v3, 1, v1
    v_and_b32 v3, 7, v3
    s_lshl_b32 s7, s{S_TW}, 6
    v_add_u32 v4, s7, v1
    v_lshlrev_b32 v4, 7, v4
    """)
    for s_ in range(4):
        a(f"v_add_u32 v5, {2*s_}, v2")
        a(f"v_xor_b32 v5, v5, v3")
        a(f"v_lshlrev_b32 v5, 4, v5")
        a(f"v_add_u32 v{V_XA+s_}, v4, v5")
    a(f"""
    v_lshrrev_b32 v3, 4, v0
    v_and_b32 v3, 1, v3                    ; gu
    v_mul_u32_u24 v4, 12288, v3
    v_lshlrev_b32 v5, 9, v2
    v_add_u32 v4, v4, v5
    v_and_b32 v5, 15, v0
    v_lshrrev_b32 v6, 2, v5
    v_lshlrev_b32 v6, 6, v6
    v_add_u32 v4, v4, v6
    v_and_b32 v5, 3, v5
    v_lshlrev_b32 v5, 3, v5
    v_add_u32 v4, v4, v5
    v_add_u32 v4, 16384, v4
    s_mul_i32 s7, s{S_FW}, 3
    """)
    for mi in range(3):
        a(f"""
        s_add_u32 s32, s7, {mi}
        s_lshr_b32 s33, s32, 1
        s_lshl_b32 s33, s33, 12            ; P*4096
        s_and_b32 s32, s32, 1              ; b
        v_xor_b32 v5, s32, v3
        v_lshlrev_b32 v5, 5, v5
        v_add_u32 v5, s33, v5
        v_add_u32 v{V_WA+mi}, v4, v5
        """)
    for i in range(96): a(f"v_mov_b32 v{V_ACC+i}, 0")
    if opts.get('fused'):
        from kerF import F_SY
        a(f"""
        v_lshlrev_b32 v5, 2, v0
        v_add_u32 v5, {F_SY}, v5
        v_mov_b32 v6, 0
        s_mov_b64 exec, 0xffff
        ds_write_b32 v5, v6
        s_mov_b64 exec, -1
        """)
    a("s_mov_b32 s7, s88")
    stats_finish(a, opts)
    stamp(a, opts, 5)
    def reads(st, s_):
        r = []
        r.append(f"ds_read_b128 {v(xf(st,0),4)}, v{V_XA+s_}")
        for mi in range(3):
            off = s_*1024
            r.append(f"ds_read_b64_tr_b16 {v(wf(st,mi),2)}, v{V_WA+mi} offset:{off}")
            r.append(f"ds_read_b64_tr_b16 {v(wf(st,mi)+2,2)}, v{V_WA+mi} offset:{off+256}")
            if mi == 0:
                r.append(f"ds_read_b128 {v(xf(st,1),4)}, v{V_XA+s_} offset:4096")
        return r
    def step(st, rd, extra=()):
        mf = []
        for mi in range(3):
            for n in range(2):
                mf.append(f"v_mfma_f32_32x32x16_bf16 {v(acc(mi,n),16)}, {v(wf(st,mi),4)}, {v(xf(st,n),4)}, {v(acc(mi,n),16)}")
        rd = list(extra) + list(rd)
        cnts = opts.get('rdsched', (2,2,2,2,0,0))
        if extra: cnts = (4,4,3,3,0,0)
        slots = [[] for _ in range(6)]
        ri = 0
        for k, cnt in enumerate(cnts):
            slots[k] += rd[ri:ri+cnt]; ri += cnt
        slots[5] += rd[ri:]
        for k in range(6):
            if not opts.get('nomfma'): a(mf[k])
            elif opts.get('nomfma') == 2 and k % 2 == 0: a(mf[k])
            for l in slots[k]: a(l)
    stamp(a, opts, 2)
    a("s_barrier")
    stamp(a, opts, 3)
    stamp(a, opts, 12, real=True)
    for l in reads(0, 0): a(l)
    lp = a.label('gloop'); lend = a.label('gend')
    a(f"s_mov_b32 s{S_CNT}, 0")
    a(f"s_mov_b32 s{S_STG}, 0")
    a(f"{lp}:")
    for s_ in range(3):
        a("s_waitcnt lgkmcnt(0)")
        step(s_ & 1, reads((s_+1) & 1, s_+1))
    a("s_waitcnt lgkmcnt(0)")
    a(f"s_cmp_eq_u32 s{S_CNT}, 7")
    a(f"s_cbranch_scc1 {lend}")
    if opts.get('tsg'):
        a(f"s_add_u32 s90, s{S_CNT}, 16"); stamp(a, opts, "s90")
    a("s_barrier")
    if opts.get('tsg'):
        a(f"s_add_u32 s90, s{S_CNT}, 24"); stamp(a, opts, "s90")
    a(f"""
    s_add_u32 s{S_STG}, s{S_STG}, {STAGE}
    s_cmp_eq_u32 s{S_STG}, {3*STAGE}
    s_cselect_b32 s{S_DELTA}, s30, s31
    s_cselect_b32 s{S_STG}, 0, s{S_STG}
    s_add_u32 s{S_CNT}, s{S_CNT}, 1
    """)
    adv = [f"v_add_u32 v{V_XA+k}, s{S_DELTA}, v{V_XA+k}" for k in range(4)] + [f"v_add_u32 v{V_WA+k}, s{S_DELTA}, v{V_WA+k}" for k in range(3)]
    adv = [adv[0], adv[4], adv[5], adv[6], adv[1], adv[2], adv[3]]
    for l in adv[:4]: a(l)
    step(1, reads(0, 0) + adv[4:])
    a(f"s_branch {lp}")
    a(f"{lend}:")
    step(1, [])
    stamp(a, opts, 4)
    stamp(a, opts, 13, real=True)
    a("s_barrier")
    if opts.get('eprio'): a(f"s_setprio {opts['eprio']}")
    stamp(a, opts, 9)
    stamp(a, opts, 43, real=True)
    if opts.get('epi2'):
        a("s_mov_b32 s87, 0")
        a("L_epi_again:")
    a(f"""
    v_and_b32 v1, 31, v0
    s_lshl_b32 s7, s{S_TW}, 6
    v_add_u32 v1, s7, v1
    v_lshlrev_b32 v2, 3, v1
    v_add_u32 v2, {A_STATS}, v2
    ds_read_b64 v[8:9], v2
    ds_read_b64 v[10:11], v2 offset:256
    v_lshrrev_b32 v3, 5, v0
    v_lshlrev_b32 v3, 4, v3
    s_mul_i32 s7, s{S_FW}, 384
    s_add_u32 s7, s7, {A_CS}
    v_add_u32 v3, s7, v3
    v_lshlrev_b32 v4, 4, v0
    """)
    CSR = 32
    def cs_read(mi):
        for g in range(4):
            a(f"ds_read_b128 {v(CSR+4*g,4)}, v3 offset:{mi*128+g*32}")
    cs_read(0)
    K1 = -2*0.7978845608028654*1.4426950408889634
    a("s_waitcnt lgkmcnt(4)")
    for n in range(2):
        b = 12 + 8*n
        m_, s_ = 8+2*n, 9+2*n
        a(f"""
        v_mov_b32 v{b}, v{m_}
        v_rcp_f32 v1, v{s_}
        v_mul_f32 v{b+6}, v{s_}, v{s_}
        v_mul_f32 v{b+2}, {hx(K1)}, v1
        v_mul_f32 v2, v1, v1
        v_mul_f32 v2, {hx(0.044715)}, v2
        v_mul_f32 v{b+4}, v{b+2}, v2
        """)
    S_T0, S_T1, S_TT = 28, 29, 32
    a(f"""
    s_lshl_b32 s{S_TT}, s{S_RB}, 2
    s_lshl_b32 s7, s{S_TW}, 1
    s_add_u32 s{S_TT}, s{S_TT}, s7
    s_mul_i32 s{S_TT}, s{S_TT}, 86          ; (4rb+2tw)*86
    s_mul_i32 s{S_T0}, s{S_CT}, 6
    s_mul_i32 s7, s{S_FW}, 3
    s_add_u32 s{S_T0}, s{S_T0}, s7
    """)
    T = 48
    OUTS = (28, 160)
    for mi in range(3):
        skip = a.label('skip')
        a("s_waitcnt lgkmcnt(0)")
        for n in range(2):
            b = 12 + 8*n
            A = acc(mi, n)
            for p in range(8):
                a(f"v_pk_fma_f32 {v(A+2*p,2)}, {v(CSR+2*p,2)}, {v(b,2)}, {v(A+2*p,2)} op_sel_hi:[1,0,1] neg_lo:[0,1,0] neg_hi:[0,1,0]")
        if mi < 2: cs_read(mi+1)
        for p in range(4):
            regs = []
            for n in range(2):
                A = acc(mi, n); b = 12 + 8*n
                regs.append((A+2*p, A+8+2*p, b, T+8*n))
            for (g_, u_, b, t) in regs: a(f"v_pk_mul_f32 {v(t,2)}, {v(g_,2)}, {v(g_,2)}")
            for (g_, u_, b, t) in regs: a(f"v_pk_fma_f32 {v(t,2)}, {v(t,2)}, {v(b+4,2)}, {v(b+2,2)} op_sel_hi:[1,0,0]")
            for (g_, u_, b, t) in regs: a(f"v_pk_mul_f32 {v(t,2)}, {v(t,2)}, {v(g_,2)}")
            for (g_, u_, b, t) in regs: a(f"v_pk_mul_f32 {v(t+2,2)}, {v(g_,2)}, {v(u_,2)}")
            for (g_, u_, b, t) in regs:
                a(f"v_exp_f32 v{t}, v{t}")
                a(f"v_exp_f32 v{t+1}, v{t+1}")
            for (g_, u_, b, t) in regs: a(f"v_pk_fma_f32 {v(t,2)}, {v(t,2)}, {v(b+6,2)}, {v(b+6,2)} op_sel_hi:[1,0,0]")
            for (g_, u_, b, t) in regs:
                a(f"v_rcp_f32 v{t}, v{t}")
                a(f"v_rcp_f32 v{t+1}, v{t+1}")
            for (g_, u_, b, t) in regs: a(f"v_pk_mul_f32 {v(t+2,2)}, {v(t+2,2)}, {v(t,2)}")
            for n, (g_, u_, b, t) in enumerate(regs): a(f"v_cvt_pk_bf16_f32 v{OUTS[n]+p}, v{t+2}, v{t+3}")
        a(f"s_add_u32 s7, s{S_T0}, {mi}")
        a(f"s_cmp_ge_u32 s7, 86")
        a(f"s_cbranch_scc1 {skip}")
        a(f"s_add_u32 s7, s7, s{S_TT}")
        a(f"s_lshl_b32 s7, s7, 10")
        sc = " sc1" if opts.get('fused') else ""
        a(f"buffer_store_dwordx4 {v(OUTS[0],4)}, v4, s[{SRD_T0}:{SRD_T0+3}], s7 offen{sc}")
        a(f"s_add_u32 s7, s7, {86*1024}")
        a(f"buffer_store_dwordx4 {v(OUTS[1],4)}, v4, s[{SRD_T0}:{SRD_T0+3}], s7 offen{sc}")
        a(f"{skip}:")
        a("s_nop 1")
    if opts.get('epi2'):
        a("s_add_u32 s90, s87, 14"); stamp(a, opts, "s90")
        a("s_add_u32 s87, s87, 1")
        a("s_cmp_lt_u32 s87, 2")
        a("s_cbranch_scc1 L_epi_again")
    stamp(a, opts, 6)
    stamp(a, opts, 44, real=True)
    if opts.get('fused'):
        from kerF import gpub_F
        gpub_F(a, opts)
        return
    if opts.get('ts'): a("s_waitcnt vmcnt(0)")
    stamp(a, opts, 8)
    stamp(a, opts, 7, real=True)
    stamp_flush(a, opts, 0)
    a("s_endpgm")

from kerA_help import helper_A, loader_tail_A, A_M, A_R, A_PUB, A_LDS as A_LDS2

def gen_A(a, name, opts):
    a(kernel_head(name))
    if opts.get('cpf', 1):
        opts = dict(opts); opts['abeg'] = name; opts['aend'] = 1
    lend = a.label('endA')
    prologue_A(a, lend, opts)
    lab = {k: a.label(k) for k in ('g','ld','h')}
    a(f"""
    s_cmp_lt_u32 s{S_WAVE}, 4
    s_cbranch_scc1 {lab['g']}
    s_cmp_ge_u32 s{S_WAVE}, 8
    s_cbranch_scc1 {lab['h']}
    """)
    loader_A(a, opts)
    a(f"{lab['h']}:"); helper_A(a, opts)
    a(f"{lab['g']}:"); gemm_A(a, opts)
    a(f"{lend}:")
    a("s_endpgm")
    a(kernel_desc(name, 168))
```

```python
from core import *
import struct
def f2u(x): return struct.unpack('<I', struct.pack('<f', x))[0]
def hx(x): return hex(f2u(x))
STAGE = 40960
A_KT = 3*STAGE; A_STATS = A_KT + 32768; A_CS = A_STATS + 1024
A_M = A_CS + 768; A_R = A_M + 512; A_PUB = A_R + 512; A_LDS = A_PUB + 64
S_WAVE, S_RB, S_CT, S_ROT = 3, 4, 5, 6
SRD_X, SRD_WG, SRD_WU, SRD_T0, SRD_T1, SRD_T2 = 8, 12, 16, 20, 24, 28
LOG2E = 1.4426950408889634
INV2PI = 0.15915494309189535

def cmul(a, dst, p, q, tmp):
    a(f"v_pk_mul_f32 {v(tmp,2)}, {v(p,2)}, {v(q,2)} op_sel:[0,0] op_sel_hi:[0,1]")
    a(f"v_pk_fma_f32 {v(dst,2)}, {v(p,2)}, {v(q,2)}, {v(tmp,2)} op_sel:[1,1,0] op_sel_hi:[1,0,1] neg_lo:[1,0,0]")

def kgen(a, opts):
    S_W, S_TB = 68, 69
    A2, B2, W, Z1, Z2, Z4, Z8, Z16, Z256 = 16, 17, 18, 20, 22, 24, 26, 28, 30
    C0, C1, T0, T1, BH = 32, 34, 36, 38, 40
    WA, RA, VF, UF, ACC = 44, 48, 56, 72, 80
    WB = 144
    PK = 112
    a(f"""
    s_setprio 3
    s_sub_u32 s{S_W}, s{S_WAVE}, 8
    s_lshr_b32 s7, s{S_W}, 1
    s_lshl_b32 s32, s2, 1
    s_add_u32 s32, s32, s7              ; channel d
    s_and_b32 s7, s{S_W}, 1
    s_lshl_b32 s7, s7, 7
    s_lshl_b32 s33, s32, 8              ; d*128*2
    s_add_u32 s33, s33, s7
    v_lshlrev_b32 v1, 1, v0
    v_add_u32 v1, s33, v1
    s_lshl_b32 s34, s32, 1              ; d*2
    v_mov_b32 v2, s34
    s_lshl_b32 s{S_TB}, s{S_W}, 13
    s_add_u32 s{S_TB}, s{S_TB}, {A_KT}
    s_waitcnt lgkmcnt(0)
    """)
    names = ['are','aim','bre','bim','cre','cim']
    for i, nme in enumerate(names):
        a(f"global_load_ushort v{8+i}, v1, s[{SP[nme]}:{SP[nme]+1}]")
    a(f"global_load_ushort v14, v2, s[{SP['logdt']}:{SP['logdt']+1}]")
    if opts.get('fused'): a(f"global_load_ushort v151, v2, s[{SP['dskip']}:{SP['dskip']+1}]")
    stamp(a, opts, 1)
    nn = a.label('nononce')
    a(f"""
    s_or_b32 s7, s2, s{S_W}
    s_cmp_lg_u32 s7, 0
    s_cbranch_scc1 {nn}
    s_memrealtime s[70:71]
    v_mov_b32 v2, 0
    s_waitcnt lgkmcnt(0)
    s_or_b32 s70, s70, 1
    v_mov_b32 v4, s70
    v_mov_b32 v5, s71
    s_mov_b64 exec, 1
    global_store_dwordx2 v2, v[4:5], s[{SP['dbg']}:{SP['dbg']+1}] sc1
    v_mov_b32 v2, {WS_NONCE}
    global_store_dwordx2 v2, v[4:5], s[{SP['ws']}:{SP['ws']+1}]
    s_mov_b64 exec, -1
    {nn}:
    """)
    stamp(a, opts, 9)
    grab_setup(a, opts)
    a("v_mov_b32 v150, 0")
    a(f"""
    v_lshrrev_b32 v3, 4, v0
    v_lshrrev_b32 v4, 2, v0
    v_and_b32 v4, 3, v4                  ; q (write)
    v_and_b32 v5, 3, v0                  ; e
    v_lshlrev_b32 v6, 10, v3
    v_lshlrev_b32 v5, 2, v5
    v_add_u32 v6, v6, v5
    v_add_u32 v6, s{S_TB}, v6
    """)
    for g in range(4):
        a(f"v_xor_b32 v5, {(4-g)&3}, v4")
        a(f"v_lshlrev_b32 v5, 4, v5")
        a(f"v_add_u32 v{WA+g}, v6, v5")
        a(f"v_add_u32 v{WB+g}, 4096, v{WA+g}")
    a("v_and_b32 v4, 15, v0               ; c")
    def raddr(dst, shift, base):
        if shift == 0:
            a(f"v_mov_b32 v5, v4")
        else:
            a(f"v_lshrrev_b32 v5, {shift}, v4")
            a(f"v_and_b32 v5, 1, v5")
            a(f"v_add_u32 v5, v5, v4")
            if shift > 1: a(f"v_add_u32 v5, {(1<<(shift-1))-1}, v5")
            a(f"v_lshrrev_b32 v5, {shift}, v5")
        if base: a(f"v_add_u32 v5, {base}, v5")
        a(f"v_lshrrev_b32 v6, 2, v5")
        a(f"v_sub_u32 v6, 4, v6")
        a(f"v_and_b32 v6, 3, v6")
        a(f"v_xor_b32 v6, v6, v3")
        a(f"v_lshlrev_b32 v6, 4, v6")
        a(f"v_lshlrev_b32 v5, 6, v5")
        a(f"v_add_u32 v5, v5, v6")
        a(f"v_add_u32 v{dst}, s{S_TB}, v5")
    cfg = [(0,0),(1,0),(2,9),(2,0),(3,5),(3,8),(3,11),(3,0)]
    for T,(sh,b) in enumerate(cfg): raddr(RA+T, sh, b)
    for i in range(32): a(f"v_mov_b32 v{ACC+i}, 0")
    stamp(a, opts, 11)
    a("s_waitcnt vmcnt(0)")
    stamp(a, opts, 2)
    for i in range(7): a(f"v_lshlrev_b32 v{8+i}, 16, v{8+i}")
    a(f"""
    v_mul_f32 v14, {hx(LOG2E)}, v14
    v_exp_f32 v14, v14
    s_nop 0
    v_cvt_pk_bf16_f32 v14, v14, v14
    v_and_b32 v14, 0xffff0000, v14
    v_mul_f32 v8, v14, v8
    v_mul_f32 v9, v14, v9
    v_mul_f32 v10, v14, v10               ; dB_re
    v_mul_f32 v11, v14, v11               ; dB_im
    v_mul_f32 v{A2}, {hx(LOG2E)}, v8
    v_mul_f32 v{B2}, {hx(INV2PI)}, v9
    v_mul_f32 v{W}, v12, v10
    v_mul_f32 v{W+1}, v12, v11
    v_fma_f32 v{W}, -v13, v11, v{W}
    v_fma_f32 v{W+1}, v13, v10, v{W+1}
    """)
    def zpow(dst, c):
        cf = hx(float(c))
        a(f"""
        v_mul_f32 v1, {cf}, v{A2}
        v_mul_f32 v2, {cf}, v{B2}
        v_exp_f32 v1, v1
        v_fract_f32 v2, v2
        v_cos_f32 v5, v2
        v_sin_f32 v6, v2
        s_nop 0
        v_mul_f32 v{dst}, v1, v5
        v_mul_f32 v{dst+1}, v1, v6
        """)
    zpow(Z1, 1); zpow(Z16, 16); zpow(Z256, 256)
    cmul(a, Z2, Z1, Z1, T0); cmul(a, Z4, Z2, Z2, T0); cmul(a, Z8, Z4, Z4, T0)
    if opts.get('tsk'): stamp(a, opts, 11)
    pkc = [0]
    pend = {}
    def put(row, buf, reg, conj=False, last=False):
        r = PK + (pkc[0] & 7); pkc[0] += 1
        if conj: a(f"v_cvt_pk_bf16_f32 v{r}, v{reg}, -v{reg+1}")
        else:    a(f"v_cvt_pk_bf16_f32 v{r}, v{reg}, v{reg+1}")
        wa = (WA if buf == 0 else WB) + (row >> 2)
        if (row & 1) and (buf, row-1) in pend:
            r0 = pend.pop((buf, row-1))
            a(f"ds_write2_b32 v{wa}, v{r0}, v{r} offset0:{(row-1)*16} offset1:{row*16}")
        elif (row & 1) or last:
            a(f"ds_write_b32 v{wa}, v{r} offset:{row*64}")
        else:
            pend[(buf, row)] = r
    def flush():
        assert not pend
    def rd(dst, T, buf, kap):
        a(f"ds_read_b128 {v(dst,4)}, v{RA+T} offset:{buf*4096 + kap*1024}")
    a(f"v_mov_b32 v{C0}, 1.0")
    a(f"v_mov_b32 v{C0+1}, 0")
    a(f"v_mov_b32 v{C1}, v{W}")
    a(f"v_mov_b32 v{C1+1}, v{W+1}")
    for j in range(16):
        put(j, 0, C0, conj=True)
        put(j, 1, C1)
        if j < 15:
            a(f"v_pk_mul_f32 {v(T0,2)}, {v(C0,2)}, {v(Z16,2)} op_sel:[0,0] op_sel_hi:[0,1]")
            a(f"v_pk_mul_f32 {v(T1,2)}, {v(C1,2)}, {v(Z1,2)} op_sel:[0,0] op_sel_hi:[0,1]")
            a(f"v_pk_fma_f32 {v(C0,2)}, {v(C0,2)}, {v(Z16,2)}, {v(T0,2)} op_sel:[1,1,0] op_sel_hi:[1,0,1] neg_lo:[1,0,0]")
            a(f"v_pk_fma_f32 {v(C1,2)}, {v(C1,2)}, {v(Z1,2)}, {v(T1,2)} op_sel:[1,1,0] op_sel_hi:[1,0,1] neg_lo:[1,0,0]")
    if opts.get('tsk'): stamp(a, opts, 12)
    for kap in range(4): rd(VF+4*kap, 0, 0, kap)
    def chain(rows, buf, start, mult, n):
        a(f"v_mov_b32 v{C0}, v{start}")
        a(f"v_mov_b32 v{C0+1}, v{start+1}")
        for i in range(n):
            put(rows+i, buf, C0, last=(i == n-1))
            if i < n-1: cmul(a, C0, C0, mult, T0)
    def two_chains(specs):
        regs = [(C0,T0),(C1,T1)]
        for (r0,b,st,m,n),(c,t) in zip(specs, regs):
            a(f"v_mov_b32 v{c}, v{st}")
            a(f"v_mov_b32 v{c+1}, v{st+1}")
        nmax = max(sp[4] for sp in specs)
        for i in range(nmax):
            for (r0,b,st,m,n),(c,t) in zip(specs, regs):
                if i < n: put(r0+i, b, c, last=(i == n-1))
            for (r0,b,st,m,n),(c,t) in zip(specs, regs):
                if i < n-1: a(f"v_pk_mul_f32 {v(t,2)}, {v(c,2)}, {v(m,2)} op_sel:[0,0] op_sel_hi:[0,1]")
            for (r0,b,st,m,n),(c,t) in zip(specs, regs):
                if i < n-1: a(f"v_pk_fma_f32 {v(c,2)}, {v(c,2)}, {v(m,2)}, {v(t,2)} op_sel:[1,1,0] op_sel_hi:[1,0,1] neg_lo:[1,0,0]")
    def mm(T, buf):
        for kap in range(4): rd(UF + 0, T, buf, kap) if False else None
    BH2 = 42
    cmul(a, BH, W, Z256, T0)
    cmul(a, BH2, BH, Z256, T0)
    two_chains([(0,0,BH,Z2,9),(9,0,BH2,Z4,5)])
    flush()
    UFS = [[72, 76, 120, 124], [128, 132, 136, 140]]
    def rdtile(T, buf, st):
        for kap in range(4): rd(UFS[st][kap], T, buf, kap)
    def mmt(T, st, later):
        a(f"s_waitcnt lgkmcnt({min(later,15)})")
        for kap in range(4):
            a(f"v_mfma_f32_16x16x32_bf16 {v(ACC+4*T,4)}, {v(UFS[st][kap],4)}, {v(VF+4*kap,4)}, {v(ACC+4*T,4)}")
    if opts.get('tsk'): stamp(a, opts, 13)
    rdtile(0, 1, 0)
    rdtile(1, 0, 1)
    mmt(0, 0, 4)
    rdtile(2, 0, 0)
    cmul(a, BH, BH2, Z256, T0)
    cmul(a, BH2, BH, Z256, T0)
    two_chains([(0,1,BH,Z4,5),(5,1,BH2,Z8,3)])
    cmul(a, BH, BH2, Z256, T0)
    cmul(a, BH2, BH, Z256, T0)
    two_chains([(8,1,BH,Z8,3),(11,1,BH2,Z8,3)])
    flush()
    def seg0():
        a("s_waitcnt lgkmcnt(0)")
        for T, st in ((1,1),(2,0)):
            for kap in range(4):
                a(f"v_mfma_f32_16x16x32_bf16 {v(ACC+4*T,4)}, {v(UFS[st][kap],4)}, {v(VF+4*kap,4)}, {v(ACC+4*T,4)}")
        rdtile(3, 1, 0)
        rdtile(4, 1, 1)
        cmul(a, BH, BH2, Z256, T0)
        chain(0, 0, BH, Z8, 3)
        flush()
        mmt(3, 0, 6)
    def seg1():
        rdtile(5, 1, 0)
        mmt(4, 1, 4)
        rdtile(6, 1, 1)
        mmt(5, 0, 4)
        rdtile(7, 0, 0)
        mmt(6, 1, 4)
    def seg2():
        mmt(7, 0, 0)
    return seg0, seg1, seg2

V_SL = 154
def grab(a, opts, c):
    if opts.get('hk',0) & 64: return
    skip = a.label('ng')
    a(f"s_cmp_lg_u32 s77, {c}")
    a(f"s_cbranch_scc1 {skip}")
    stg = (c % 3)*STAGE
    for r in range(2):
        for e in range(2):
            a(f"ds_read_b64_tr_b16 {v(V_SL+4*r+2*e,2)}, v{162+e} offset:{r*4096 + e*512 + (stg if stg < 49152 else 0)}") if stg < 49152 else None
    if stg >= 49152:
        a(f"v_add_u32 v162, {stg}, v162")
        a(f"v_add_u32 v163, {stg}, v163")
        for r in range(2):
            for e in range(2):
                a(f"ds_read_b64_tr_b16 {v(V_SL+4*r+2*e,2)}, v{162+e} offset:{r*4096 + e*512}")
    a("s_waitcnt lgkmcnt(0)")
    a(f"{skip}:")

def grab_setup(a, opts):
    S_W = 68
    a(f"""
    s_lshr_b32 s77, s{S_CT}, 3
    v_and_b32 v1, 15, v0
    v_lshrrev_b32 v2, 2, v1              ; r'
    v_and_b32 v1, 3, v1                  ; c'
    v_lshrrev_b32 v3, 4, v0              ; G
    s_bfe_u32 s7, s{S_CT}, 0x10002
    s_lshl_b32 s7, s7, 1
    s_and_b32 s33, s{S_W}, 1
    s_add_u32 s7, s7, s33
    s_lshl_b32 s7, s7, 1
    v_lshrrev_b32 v6, 1, v1
    v_add_u32 v5, s7, v6                 ; granule
    v_and_b32 v6, 1, v3
    v_lshlrev_b32 v6, 2, v6              ; 4 (G&1)
    v_lshrrev_b32 v7, 1, v2
    v_add_u32 v6, v6, v7                 ; + (r'>>1)   (e=0)
    v_lshlrev_b32 v7, 3, v3              ; 8 G
    v_add_u32 v7, v7, v2                 ; + r'
    s_lshr_b32 s7, s{S_W}, 1
    s_lshl_b32 s7, s7, 6                 ; 64 th
    v_add_u32 v7, s7, v7
    v_lshlrev_b32 v7, 7, v7              ; row*128
    v_and_b32 v1, 1, v1
    v_lshlrev_b32 v1, 3, v1              ; (c'&1)*8
    v_add_u32 v7, v7, v1
    v_xor_b32 v1, v5, v6
    v_lshlrev_b32 v1, 4, v1
    v_add_u32 v162, v7, v1
    v_add_u32 v6, 2, v6                  ; e=1 : +2
    v_xor_b32 v1, v5, v6
    v_lshlrev_b32 v1, 4, v1
    v_add_u32 v163, v7, v1
    """)

def helper_A(a, opts):
    S_W, S_TB = 68, 69
    ACC = 80
    seg0, seg1, seg2 = kgen(a, opts)
    lab = {k: a.label('h'+k) for k in ('0','1','2','3','odd','even','nf','rest','fin')}
    a(f"""
    s_cmp_lg_u32 s{S_W}, 1
    s_cbranch_scc1 {lab['0']}
    global_load_dwordx2 v[152:153], v150, s[{SP['dbg']}:{SP['dbg']+1}] sc1
    {lab['0']}:
    """)
    a("s_setprio 0")
    stamp(a, opts, 3)
    bar(a, opts, 0)
    stamp(a, opts, 4)
    grab(a, opts, 0)
    a("s_setprio 2")
    seg0()
    a("s_setprio 0")
    a(f"""
    s_cmp_lg_u32 s{S_W}, 1
    s_cbranch_scc1 {lab['nf']}
    v_lshlrev_b32 v1, 2, v0
    v_add_u32 v1, {A_PUB}, v1
    ds_read_b32 v4, v1
    s_waitcnt vmcnt(0)
    """)
    nonce_check(a, 152)
    srd(a, SRD_T1, SP['ws'], 2048*8, WS_STAT)
    a(f"""
    s_lshl_b32 s32, s{S_RB}, 4
    s_add_u32 s32, s32, s{S_CT}
    s_lshl_b32 s32, s32, 6
    v_lshlrev_b32 v1, 3, v0
    v_mov_b32 v5, s70
    s_waitcnt lgkmcnt(0)
    s_mov_b64 exec, 0xff
    s_setprio 3
    buffer_store_dwordx2 v[4:5], v1, s[{SRD_T1}:{SRD_T1+3}], s32 offen sc1
    s_setprio 0
    s_mov_b64 exec, -1
    {lab['nf']}:
    """)
    bar(a, opts, 1)
    grab(a, opts, 1)
    a("s_setprio 2")
    seg1()
    a("s_setprio 0")
    a("s_waitcnt lgkmcnt(0)")
    bar(a, opts, 2)
    grab(a, opts, 2)
    a("s_setprio 2")
    seg2()
    a(f"s_cmp_lg_u32 s{S_W}, 1")
    a(f"s_cbranch_scc1 {lab['rest']}")
    if not opts.get('hk',0) & 16: colsum_A(a, opts)
    a(f"{lab['rest']}:")
    a("s_setprio 0")
    for c in range(3, 8):
        bar(a, opts, c)
        grab(a, opts, c)
    a(f"""
    s_and_b32 s7, s{S_W}, 1
    s_cmp_eq_u32 s7, 0
    s_cbranch_scc1 {lab['even']}
    v_lshlrev_b32 v1, 4, v0
    v_add_u32 v1, s{S_TB}, v1
    """)
    for T in range(8):
        a(f"ds_write_b128 v1, {v(ACC+4*T,4)} offset:{T*1024}")
    a("s_waitcnt lgkmcnt(0)")
    a(f"{lab['even']}:")
    xnt_setup(a, opts)
    bar(a, opts, 8)
    if opts.get('fused'):
        from kerF import conv_F
        conv_F(a, opts)
        return
    a(f"""
    s_and_b32 s7, s{S_W}, 1
    s_cmp_eq_u32 s7, 1
    s_cbranch_scc1 {lab['fin']}
    """)
    srd(a, SRD_T1, SP['ws'], WS_K_SZ, WS_K)
    a(f"""
    v_lshlrev_b32 v1, 4, v0
    v_add_u32 v1, s{S_TB}, v1
    """)
    for T in range(8):
        a(f"ds_read_b128 {v(16+4*T,4)}, v1 offset:{8192 + T*1024}")
    a(f"""
    v_and_b32 v2, 15, v0
    v_lshlrev_b32 v2, 5, v2               ; 32*j
    v_lshrrev_b32 v3, 4, v0
    v_lshlrev_b32 v3, 3, v3               ; 8*q
    v_add_u32 v2, v2, v3
    v_sub_u32 v2, 4088, v2
    s_lshr_b32 s7, s{S_W}, 1
    s_lshl_b32 s34, s2, 1
    s_add_u32 s34, s34, s7
    s_mul_i32 s34, s34, {K_STRIDE}
    v_mov_b32 v4, 0
    v_mov_b32 v5, 0
    v_lshlrev_b32 v6, 3, v0
    v_add_u32 v6, 4096, v6
    s_mov_b64 exec, 0xff
    buffer_store_dwordx2 v[4:5], v6, s[{SRD_T1}:{SRD_T1+3}], s34 offen
    s_mov_b64 exec, -1
    """)
    for T in range(8):
        a(f"s_waitcnt lgkmcnt({7-T})")
        for i in range(4):
            a(f"v_add_f32 v{ACC+4*T+i}, v{ACC+4*T+i}, v{16+4*T+i}")
        a(f"v_cvt_pk_bf16_f32 v{48+2*T}, v{ACC+4*T+3}, v{ACC+4*T+2}")
        a(f"v_cvt_pk_bf16_f32 v{49+2*T}, v{ACC+4*T+1}, v{ACC+4*T}")
    for T in range(8):
        if T: a(f"v_subrev_u32 v2, 512, v2")
        a(f"buffer_store_dwordx2 {v(48+2*T,2)}, v2, s[{SRD_T1}:{SRD_T1+3}], s34 offen")
    stamp(a, opts, 5)
    a(f"{lab['fin']}:")
    xnt_A(a, opts)

def nonce_check(a, vreg):
    lp = a.label('npoll'); ok = a.label('nok')
    a(f"""
    s_mov_b32 s7, 0
    {lp}:
    v_readfirstlane_b32 s70, v{vreg}
    v_readfirstlane_b32 s71, v{vreg+1}
    s_add_u32 s7, s7, 1
    s_cmp_lg_u32 s70, 0
    s_cbranch_scc1 {ok}
    s_cmp_gt_u32 s7, 200000
    s_cbranch_scc1 {ok}
    global_load_dwordx2 v[{vreg}:{vreg+1}], v150, s[{SP['dbg']}:{SP['dbg']+1}] sc1
    s_waitcnt vmcnt(0)
    s_branch {lp}
    {ok}:
    """)

def colsum_A(a, opts):
    WA0, SEL, FR, AC, G = 8, 12, 16, 112, 16
    a("s_setprio 3")
    a(f"""
    v_lshrrev_b32 v2, 5, v0                ; h
    v_lshrrev_b32 v3, 4, v0
    v_and_b32 v3, 1, v3                    ; gu
    v_mul_u32_u24 v4, 12288, v3
    v_lshlrev_b32 v5, 9, v2
    v_add_u32 v4, v4, v5
    v_and_b32 v5, 15, v0
    v_lshrrev_b32 v6, 2, v5
    v_lshlrev_b32 v6, 6, v6
    v_add_u32 v4, v4, v6
    v_and_b32 v5, 3, v5
    v_lshlrev_b32 v5, 3, v5
    v_add_u32 v4, v4, v5
    s_lshr_b32 s7, s{S_RB}, 3
    s_lshl_b32 s7, s7, 11
    s_add_u32 s7, s7, {16384 + 2*STAGE}
    v_add_u32 v4, s7, v4
    v_lshlrev_b32 v5, 5, v3
    v_add_u32 v{WA0}, v4, v5               ; b=0
    v_xor_b32 v5, 32, v5
    v_add_u32 v{WA0+1}, v4, v5             ; b=1
    """)
    for m in range(6):
        P, b = m >> 1, m & 1
        for s_ in range(2):
            f = FR + (m*2+s_)*4
            a(f"ds_read_b64_tr_b16 {v(f,2)}, v{WA0+b} offset:{P*4096 + s_*1024}")
            a(f"ds_read_b64_tr_b16 {v(f+2,2)}, v{WA0+b} offset:{P*4096 + s_*1024 + 256}")
    a(f"""
    v_and_b32 v5, 15, v0
    v_cmp_eq_u32 vcc, v5, v3
    v_mov_b32 v6, 0x3f803f80
    v_mov_b32 v7, 0
    v_cndmask_b32 v{SEL}, v7, v6, vcc
    v_mov_b32 v{SEL+1}, v{SEL}
    v_mov_b32 v{SEL+2}, v{SEL}
    v_mov_b32 v{SEL+3}, v{SEL}
    """)
    for i in range(24): a(f"v_mov_b32 v{AC+i}, 0")
    srd(a, SRD_T0, SP['ws'], 16*16*1024, WS_CSP)
    a("s_waitcnt lgkmcnt(0)")
    for s_ in range(2):
        for m in range(6):
            f = FR + (m*2+s_)*4
            a(f"v_mfma_f32_16x16x32_bf16 {v(AC+4*m,4)}, {v(f,4)}, {v(SEL,4)}, {v(AC+4*m,4)}")
    a(f"""
    v_and_b32 v5, 15, v0
    v_lshlrev_b32 v1, 6, v5                ; col*64
    v_lshrrev_b32 v2, 4, v0
    v_lshlrev_b32 v2, 4, v2                ; q*16
    v_add_u32 v1, v1, v2
    s_lshl_b32 s7, s{S_CT}, 4
    s_add_u32 s7, s7, s{S_RB}
    s_lshl_b32 s33, s7, 10
    v_cmp_gt_u32 vcc, 2, v5
    s_nop 3
    """)
    for g in range(8): a(f"v_mov_b32 v{G+4*g+3}, s70")
    for e in range(24): a(f"v_mov_b32 v{G+4*(e//3)+(e%3)}, v{AC+e}")
    a("s_and_saveexec_b64 s[34:35], vcc")
    for g in range(8):
        a(f"buffer_store_dwordx4 {v(G+4*g,4)}, v1, s[{SRD_T0}:{SRD_T0+3}], s33 offen offset:{g*128} sc1")
    a("s_mov_b64 exec, s[34:35]")
    stamp(a, opts, 6)

def xnt_setup(a, opts):
    S_W = 68
    srd(a, SRD_T0, SP['ws'], WS_XT_SZ, WS_XT)
    a(f"""
    v_lshrrev_b32 v3, 4, v0              ; G
    v_and_b32 v1, 15, v0
    s_and_b32 s7, s{S_W}, 1
    s_lshl_b32 s7, s7, 4
    v_add_u32 v1, s7, v1
    v_lshlrev_b32 v1, 12, v1
    v_lshlrev_b32 v5, 4, v3
    v_add_u32 v8, v1, v5
    s_lshl_b32 s32, s{S_CT}, 17
    s_lshl_b32 s33, s{S_RB}, 8
    s_add_u32 s32, s32, s33
    s_lshr_b32 s7, s{S_W}, 1
    s_lshl_b32 s33, s7, 7
    s_add_u32 s32, s32, s33
    v_lshlrev_b32 v9, 5, v3              ; 8 G * 4B
    s_lshl_b32 s33, s7, 8                ; 64 th * 4B
    s_add_u32 s33, s33, {A_M}
    v_add_u32 v9, s33, v9
    """)

def xnt_A(a, opts):
    xnt_body(a, opts, "")
    stamp(a, opts, 8)
    stamp(a, opts, 7, real=True)
    if opts.get('ts'): a("s_waitcnt vmcnt(0)")
    stamp_flush(a, opts, 0)
    a("s_endpgm")

def xnt_body(a, opts, sc):
    S_W = 68
    for r in range(2):
        M, R_ = 16 + 16*r, 24 + 16*r
        a(f"ds_read_b128 {v(M,4)}, v9 offset:{r*128}")
        a(f"ds_read_b128 {v(M+4,4)}, v9 offset:{r*128+16}")
        a(f"ds_read_b128 {v(R_,4)}, v9 offset:{512 + r*128}")
        a(f"ds_read_b128 {v(R_+4,4)}, v9 offset:{512 + r*128+16}")
    for r in range(2):
        M, R_ = 16 + 16*r, 24 + 16*r
        U = 48 + 16*r
        X = V_SL + 4*r
        for j in range(4):
            a(f"v_lshlrev_b32 v{U+2*j}, 16, v{X+j}")
            a(f"v_and_b32 v{U+2*j+1}, 0xffff0000, v{X+j}")
        a(f"s_waitcnt lgkmcnt({4*(1-r)})")
        for j in range(4): a(f"v_pk_add_f32 {v(U+2*j,2)}, {v(U+2*j,2)}, {v(M+2*j,2)} neg_lo:[0,1] neg_hi:[0,1]")
        for j in range(4): a(f"v_cvt_pk_bf16_f32 v{U+8+j}, v{U+2*j}, v{U+2*j+1}")
        for j in range(4):
            a(f"v_lshlrev_b32 v{U+2*j}, 16, v{U+8+j}")
            a(f"v_and_b32 v{U+2*j+1}, 0xffff0000, v{U+8+j}")
        for j in range(4): a(f"v_pk_mul_f32 {v(U+2*j,2)}, {v(U+2*j,2)}, {v(R_+2*j,2)}")
        for j in range(4): a(f"v_cvt_pk_bf16_f32 v{U+8+j}, v{U+2*j}, v{U+2*j+1}")
        a(f"buffer_store_dwordx4 {v(U+8,4)}, v8, s[{SRD_T0}:{SRD_T0+3}], s32 offen offset:{r*64}{sc}")

def loader_tail_A(a, opts, SJ, nrem):
    l0 = a.label('l0')
    a(f"s_cmp_eq_u32 s{SJ}, 0")
    a(f"s_cbranch_scc1 {l0}")
    a("s_waitcnt vmcnt(0)")
    bar(a, opts, 7)
    if opts.get('fused'):
        bar(a, opts, 8)
        a(f"s_branch {opts['lg2']}")
    else:
        stamp(a, opts, 7, real=True)
        stamp_flush(a, opts, 0)
        a("s_endpgm")
    from kerF import F_NON
    a(f"{l0}:")
    srd(a, SRD_T1, SP['ws'], 16*16*1024, WS_CSP)
    a(f"""
    v_mov_b32 v1, {F_NON}
    ds_read_b64 v[152:153], v1
    v_lshlrev_b32 v8, 4, v0
    s_lshl_b32 s73, s{S_CT}, 14            ; 16 parts * 1024
    """)
    def issue():
        for p in range(16):
            if p*1024 < 4096:
                a(f"buffer_load_dwordx4 {v(16+4*p,4)}, v8, s[{SRD_T1}:{SRD_T1+3}], s73 offen offset:{p*1024} sc1")
            else:
                a(f"s_add_u32 s74, s73, {p*1024}")
                a(f"buffer_load_dwordx4 {v(16+4*p,4)}, v8, s[{SRD_T1}:{SRD_T1+3}], s74 offen sc1")
    a("s_setprio 3")
    issue()
    npf = 0
    if not opts.get('nopf') and opts.get('pfmode',0) == 0:
        a(f"""
        s_lshr_b32 s74, s2, 3
        s_mul_i32 s74, s74, {43*1024}
        v_lshlrev_b32 v9, 7, v0
        v_add_u32 v9, s74, v9
        """)
        srd(a, SRD_X, SP['wd'], 1409024)
        npf = opts.get('npf', 6)
        for i in range(npf):
            a(f"s_mov_b32 s74, {i*8192}")
            a(f"buffer_load_dword v{84+i}, v9, s[{SRD_X}:{SRD_X+3}], s74 offen")
        if opts.get('bcode') and not opts.get('fused'):
            pc = a.label('pc')
            a(f"""
            s_getpc_b64 s[74:75]
            {pc}:
            s_add_u32 s74, s74, {opts['bcode']}-{pc}
            s_addc_u32 s75, s75, 0
            s_lshr_b32 s76, s2, 3
            s_and_b32 s76, s76, 1
            s_lshl_b32 s76, s76, 12
            v_lshlrev_b32 v9, 6, v0
            v_add_u32 v9, s76, v9
            global_load_dword v95, v9, s[74:75]
            """)
            npf += 1
    a(f"s_waitcnt vmcnt({16+npf})")
    bar(a, opts, 7)
    lp = a.label('gchk'); ok = a.label('gok')
    a(f"""
    s_mov_b32 s75, 0
    s_waitcnt vmcnt({npf})
    s_waitcnt lgkmcnt(0)
    {lp}:
    s_mov_b64 vcc, 0
    """)
    for p in range(16):
        a(f"v_cmp_ne_u32 s[32:33], v152, v{16+4*p+3}")
        a(f"s_or_b64 vcc, vcc, s[32:33]")
    a(f"""
    s_add_u32 s75, s75, 1
    s_cmp_eq_u64 vcc, 0
    s_cbranch_scc1 {ok}
    s_cmp_gt_u32 s75, {0 if opts.get('hk',0) else 100000}
    s_cbranch_scc1 {ok}
    """)
    issue()
    a("s_waitcnt vmcnt(0)")
    a(f"s_branch {lp}")
    a(f"{ok}:")
    stamp(a, opts, 5)
    for st in (8, 4, 2, 1):
        for p in range(st):
            for i in range(3):
                a(f"v_add_f32 v{16+4*p+i}, v{16+4*p+i}, v{16+4*(p+st)+i}")
    a(f"""
    v_lshrrev_b32 v1, 3, v0              ; g
    v_mul_u32_u24 v1, 3, v1              ; 3g
    v_bfe_u32 v2, v0, 2, 1               ; col
    v_lshlrev_b32 v2, 4, v2
    v_and_b32 v3, 3, v0                  ; q
    v_lshlrev_b32 v3, 2, v3
    v_add_u32 v2, v2, v3                 ; col*16 + 4q
    """)
    for k in range(3):
        a(f"""
        v_add_u32 v4, {k}, v1
        v_lshrrev_b32 v5, 2, v4
        v_lshlrev_b32 v5, 5, v5
        v_and_b32 v4, 3, v4
        v_add_u32 v4, v4, v5
        v_add_u32 v4, v4, v2
        v_lshlrev_b32 v4, 2, v4
        v_add_u32 v4, {A_CS}, v4
        ds_write_b32 v4, v{16+k}
        """)
    a("s_waitcnt lgkmcnt(0)")
    stamp(a, opts, 6)
    bar(a, opts, 8)
    if opts.get('fused'):
        a("s_setprio 0")
        return
    stamp(a, opts, 7, real=True)
    stamp_flush(a, opts, 0)
    a("s_endpgm")
```

```python
from core import *
import struct
def f2u(x): return struct.unpack('<I', struct.pack('<f', x))[0]
def hx(x): return hex(f2u(x))
STAGE = 40960
A_KT = 3*STAGE
DEPTH = 4
CT_U, CT_V0, CT_V1, CT_SZ = 0, 4608, 4608+4160, 4608+4160+4160
F_CT = 0
F_EX = F_CT + 2*CT_SZ
F_WR = F_EX + 4*4096
F_YT = F_WR + 4*DEPTH*2048
F_P  = F_YT + 10240
PROW = 272
F_SY = 158528
F_NON, F_CNTH, F_CNTX, F_HRDY, F_KRDY, F_URDY, F_XFL, F_ORD = F_SY, F_SY+8, F_SY+12, F_SY+16, F_SY+20, F_SY+28, F_SY+36, F_SY+52
F_LDS = F_SY + 64
S_WAVE, S_RB, S_CT = 3, 4, 5
S_RT, S_C2, S_WP = 78, 79, 80
SRD_WS, SRD_WD, SRD_O = 8, 12, 16
V_XT, V_NON, V_OFF = 160, 164, 166
SPIN = 200000

def map_B(a):
    a(f"""
    s_and_b32 s7, s2, 7
    s_lshr_b32 s33, s2, 3
    s_lshl_b32 s7, s7, 2
    s_and_b32 s32, s33, 3
    s_add_u32 s{S_RT}, s7, s32
    s_lshr_b32 s{S_C2}, s33, 2
    s_and_b32 s32, s{S_WP}, 3
    s_lshl_b32 s32, s32, 4
    s_lshl_b32 s33, s{S_RT}, 6
    s_add_u32 s32, s32, s33               ; 64 rt + 16 (w&3)
    v_and_b32 v2, 15, v0
    v_add_u32 v2, s32, v2
    v_lshlrev_b32 v2, 10, v2              ; row*1024
    s_lshr_b32 s32, s{S_WP}, 2
    s_lshl_b32 s32, s32, 6
    s_lshl_b32 s33, s{S_C2}, 7
    s_add_u32 s32, s32, s33
    v_lshrrev_b32 v3, 4, v0
    v_lshlrev_b32 v3, 4, v3
    v_add_u32 v2, v2, v3
    v_add_u32 v{V_OFF}, s32, v2
    """)

def lds_count_last(a, addr, n, lab_skip):
    a(f"""
    v_mov_b32 v1, {addr}
    v_mov_b32 v2, 1
    s_mov_b64 exec, 1
    ds_add_rtn_u32 v3, v1, v2
    s_mov_b64 exec, -1
    s_waitcnt lgkmcnt(0)
    v_readfirstlane_b32 s7, v3
    s_cmp_lg_u32 s7, {n-1}
    s_cbranch_scc1 {lab_skip}
    """)
def lds_set(a, addr_expr_sgpr_or_int):
    if isinstance(addr_expr_sgpr_or_int, int): a(f"v_mov_b32 v1, {addr_expr_sgpr_or_int}")
    else: a(f"v_mov_b32 v1, {addr_expr_sgpr_or_int}")
    a("v_mov_b32 v2, 1")
    a("ds_write_b32 v1, v2")
def lds_spin(a, addrs):
    lp = a.label('spin')
    for i, ad in enumerate(addrs): a(f"v_mov_b32 v{1+i}, {ad}")
    a("s_mov_b32 s25, 0")
    a(f"{lp}:")
    for i in range(len(addrs)): a(f"ds_read_b32 v{3+i}, v{1+i}")
    a("s_add_u32 s25, s25, 1")
    a("s_waitcnt lgkmcnt(0)")
    if len(addrs) == 2: a("v_min_u32 v3, v3, v4"); a("s_nop 0")
    a(f"""
    v_readfirstlane_b32 s24, v3
    s_cmp_gt_u32 s25, {5*SPIN}
    s_cselect_b32 s24, 1, s24
    s_cmp_eq_u32 s24, 0
    s_cbranch_scc1 {lp}
    """)
def flag_store(a, base, idx_sgpr):
    a(f"""
    s_lshl_b32 s7, {idx_sgpr}, 7
    s_add_u32 s7, s7, {base}
    v_mov_b32 v1, s7
    s_mov_b64 exec, 1
    global_store_dwordx2 v1, v[{V_NON}:{V_NON+1}], s[{SP['ws']}:{SP['ws']+1}] sc1
    s_mov_b64 exec, -1
    """)
def flag_poll(a, vaddr, vdst):
    lp = a.label('poll'); ok = a.label('pok')
    a(f"""
    s_mov_b32 s25, 0
    {lp}:
    global_load_dwordx2 v[{vdst}:{vdst+1}], v{vaddr}, s[{SP['ws']}:{SP['ws']+1}] sc1
    s_add_u32 s25, s25, 1
    s_waitcnt vmcnt(0)
    v_cmp_ne_u32 vcc, v{V_NON}, v{vdst}
    v_cmp_ne_u32 s[30:31], v{V_NON+1}, v{vdst+1}
    s_or_b64 vcc, vcc, s[30:31]
    s_cmp_eq_u64 vcc, 0
    s_cbranch_scc1 {ok}
    s_cmp_gt_u32 s25, {SPIN}
    s_cbranch_scc1 {ok}
    s_sleep 1
    s_branch {lp}
    {ok}:
    """)


def touch_group(a, sg, srt, sc2, vdst):
    a(f"""
    s_cmp_eq_u32 s{sg}, 3
    s_cselect_b32 s30, 14, 24
    s_lshl_b32 s31, s30, 1
    s_mul_i32 s33, s{sc2}, s31
    v_add_u32 v1, s33, v0
    s_lshl_b32 s33, s30, 3
    v_cmp_le_u32 vcc, s33, v1
    v_mov_b32 v2, s33
    v_mov_b32 v3, 0
    v_cndmask_b32 v2, v3, v2, vcc
    v_sub_u32 v1, v1, v2
    v_mov_b32 v2, {86*1024}
    v_cndmask_b32 v2, v3, v2, vcc
    v_lshlrev_b32 v1, 7, v1
    v_add_u32 v1, v1, v2
    s_mul_i32 s33, s{srt}, {2*86*1024}
    s_mul_i32 s7, s{sg}, {24*1024}
    s_add_u32 s33, s33, s7
    s_add_u32 s33, s33, {WS_H}
    v_add_u32 v1, s33, v1
    v_cmp_gt_u32 vcc, s31, v0
    s_and_saveexec_b64 s[30:31], vcc
    global_load_dword v{vdst}, v1, s[{SP['ws']}:{SP['ws']+1}] sc1
    s_mov_b64 exec, s[30:31]
    """)

def gpub_F(a, opts):
    nf = a.label('nfh'); end = a.label('gpe')
    a(f"""
    v_mov_b32 v1, {F_NON}
    ds_read_b64 v[{V_NON}:{V_NON+1}], v1
    s_waitcnt vmcnt(0) lgkmcnt(0)
    """)
    stamp(a, opts, 14)
    stamp(a, opts, 40, real=True)
    lds_count_last(a, F_CNTH, 4, nf)
    a(f"s_lshl_b32 s30, s{S_RB}, 4")
    a(f"s_add_u32 s30, s30, s{S_CT}")
    flag_store(a, WS_FLAGH, "s30")
    a(f"{nf}:")
    a(f"s_cmp_lg_u32 s{S_WAVE}, 0")
    a(f"s_cbranch_scc1 {end}")
    a(f"""
    s_and_b32 s7, s2, 7
    s_lshl_b32 s7, s7, 2
    s_lshr_b32 s33, s2, 3
    s_and_b32 s33, s33, 3
    s_add_u32 s7, s7, s33
    s_lshr_b32 s7, s7, 1
    s_lshl_b32 s7, s7, 4
    v_min_u32 v2, 14, v0
    v_add_u32 v2, s7, v2
    v_lshlrev_b32 v2, 7, v2
    v_add_u32 v2, {WS_FLAGH}, v2
    """)
    flag_poll(a, 2, 4)
    if not opts.get('notouch'):
        a(f"""
        s_and_b32 s7, s2, 7
        s_lshl_b32 s7, s7, 2
        s_lshr_b32 s33, s2, 3
        s_and_b32 s34, s33, 3
        s_add_u32 s34, s7, s34
        s_lshr_b32 s35, s33, 2
        """)
        for g in range(4):
            a(f"s_mov_b32 s86, {g}")
            touch_group(a, 86, 34, 35, 8+g)
    lds_set(a, F_HRDY)
    a("s_waitcnt lgkmcnt(0)")
    a(f"{end}:")
    stamp(a, opts, 15)
    stamp(a, opts, 7, real=True)
    if opts.get('ts'): a("s_waitcnt vmcnt(0)")
    stamp_flush(a, opts, 0)
    a("s_endpgm")

def gemm2_F(a, opts):
    D = DEPTH
    ACC, HF, WF, YG = 16, 80, 112, 128
    VH0, VH1, VWD, VA0, VA1, VY = 8, 9, 10, 11, 13, 12
    S_N, S_OFF, S_RING, S_WC = 81, 27, 28, 29
    S_GB, S_GL, S_STEP, S_CNT, S_ROT, S_GD = 70, 74, 82, 83, 84, 85
    def acc(m, n): return ACC + (m*2+n)*16
    def hf(st, n): return HF + st*8 + n*4
    def wf(st, m): return WF + st*8 + m*4
    vm = VmTrack(a)
    a(f"s_mov_b32 s{S_WP}, s68")
    srd(a, SRD_WD, SP['wd'], 1409024)
    if opts.get('pfmode',0) == 1:
        npf = a.label('nopf')
        a(f"s_cmp_lg_u32 s{S_WP}, 1")
        a(f"s_cbranch_scc1 {npf}")
        if opts.get('pfwait'): lds_spin(a, [F_URDY, F_URDY+4])
        a(f"""
        s_lshr_b32 s30, s2, 3
        s_mul_i32 s30, s30, {43*1024}
        v_lshlrev_b32 v1, 7, v0
        v_add_u32 v1, s30, v1
        """)
        for i in range(6):
            a(f"s_mov_b32 s30, {i*8192}")
            a(f"buffer_load_dword v{144+i}, v1, s[{SRD_WD}:{SRD_WD+3}], s30 offen")
        a(f"{npf}:")
    map_B(a)
    a(f"""
    s_mov_b32 s{S_N}, 22
    s_cmp_ge_u32 s{S_WP}, 2
    s_cselect_b32 s{S_N}, 21, s{S_N}
    v_lshlrev_b32 v1, 4, v0
    s_mul_i32 s7, s{S_RT}, {2*86*1024}
    s_add_u32 s7, s7, {WS_H}
    v_add_u32 v{VH0}, s7, v1
    v_add_u32 v{VH1}, {86*1024}, v{VH0}
    v_lshrrev_b32 v2, 3, v0
    v_lshlrev_b32 v2, 10, v2
    v_and_b32 v3, 7, v0
    v_bfe_u32 v4, v0, 4, 1
    v_lshlrev_b32 v4, 2, v4
    v_xor_b32 v3, v3, v4
    v_lshlrev_b32 v3, 4, v3
    v_add_u32 v{VWD}, v2, v3
    s_lshl_b32 s{S_WC}, s{S_C2}, 7
    s_mul_i32 s{S_RING}, s{S_WP}, {D*2048}
    s_add_u32 s{S_RING}, s{S_RING}, {F_WR}
    v_lshrrev_b32 v2, 5, v0
    v_lshlrev_b32 v2, 2, v2                 ; 4h
    v_bfe_u32 v3, v0, 2, 2                  ; r'
    v_add_u32 v2, v2, v3
    v_lshlrev_b32 v2, 7, v2
    v_lshrrev_b32 v3, 1, v3
    v_lshlrev_b32 v3, 6, v3
    v_add_u32 v2, v2, v3
    v_bfe_u32 v3, v0, 4, 1
    v_lshlrev_b32 v3, 5, v3
    v_add_u32 v2, v2, v3
    v_and_b32 v3, 3, v0
    v_lshlrev_b32 v3, 3, v3
    v_add_u32 v2, v2, v3
    v_add_u32 v{VA0}, s{S_RING}, v2
    v_xor_b32 v2, 64, v2
    v_add_u32 v{VA1}, s{S_RING}, v2
    v_lshrrev_b32 v2, 4, v0
    s_lshl_b32 s7, s{S_WP}, 4
    s_lshl_b32 s30, s{S_C2}, 6
    s_add_u32 s7, s7, s30                  ; 64 ct + 16 w
    v_add_u32 v2, s7, v2
    v_lshlrev_b32 v2, 13, v2               ; ch*8192
    v_and_b32 v3, 15, v0
    v_lshlrev_b32 v3, 4, v3
    v_add_u32 v2, v2, v3
    s_lshl_b32 s7, s{S_RT}, 8
    s_add_u32 s7, s7, {WS_Y}
    v_add_u32 v{VY}, s7, v2                ; y address
    v_mov_b32 v1, {F_NON}
    ds_read_b64 v[{V_NON}:{V_NON+1}], v1
    """)
    srd(a, SRD_WS, SP['ws'], 19*MB)
    srd(a, SRD_WD, SP['wd'], 1409024)
    for i in range(64): a(f"v_mov_b32 v{ACC+i}, 0")
    a("s_waitcnt lgkmcnt(0)")
    stamp(a, opts, 14)
    oth = a.label('hoth'); go = a.label('hgo'); lp = a.label('opoll'); ok = a.label('ook')
    a(f"s_cmp_lg_u32 s{S_WP}, 0")
    a(f"s_cbranch_scc1 {oth}")
    a(f"""
    v_min_u32 v2, 14, v0
    s_lshr_b32 s7, s{S_RT}, 1
    s_lshl_b32 s7, s7, 4
    v_add_u32 v2, s7, v2
    v_lshlrev_b32 v2, 7, v2
    v_add_u32 v2, {WS_FLAGH}, v2
    s_mov_b32 s25, 0
    {lp}:
    global_load_dwordx2 v[4:5], v2, s[{SP['ws']}:{SP['ws']+1}] sc1
    s_add_u32 s25, s25, 1
    s_waitcnt vmcnt(0)
    v_cmp_ne_u32 vcc, v{V_NON}, v4
    v_cmp_ne_u32 s[30:31], v{V_NON+1}, v5
    s_or_b64 vcc, vcc, s[30:31]
    s_mov_b32 s24, 0
    s_and_b32 s7, vcc_lo, 0xf
    s_cselect_b32 s30, 0, 1
    s_or_b32 s24, s24, s30
    s_and_b32 s7, vcc_lo, 0xf0
    s_cselect_b32 s30, 0, 2
    s_or_b32 s24, s24, s30
    s_and_b32 s7, vcc_lo, 0xf00
    s_cselect_b32 s30, 0, 4
    s_or_b32 s24, s24, s30
    s_and_b32 s7, vcc_lo, 0x7000
    s_cselect_b32 s30, 0, 8
    s_or_b32 s24, s24, s30
    s_cmp_gt_u32 s25, {SPIN}
    s_cselect_b32 s24, 15, s24
    s_bcnt1_i32_b32 s7, s24
    s_cmp_ge_u32 s7, {opts.get('gmin', 2)}
    s_cbranch_scc1 {ok}
    s_branch {lp}
    {ok}:
    s_ff1_i32_b32 s30, s24                  ; a
    s_lshl_b32 s7, 1, s30
    s_andn2_b32 s31, s24, s7
    s_ff1_i32_b32 s31, s31                  ; b
    s_lshl_b32 s32, 1, s31
    s_or_b32 s7, s7, s32
    s_andn2_b32 s32, 15, s7                 ; remaining
    s_ff1_i32_b32 s33, s32                  ; c
    s_lshl_b32 s7, 1, s33
    s_andn2_b32 s32, s32, s7
    s_ff1_i32_b32 s32, s32                  ; d
    s_lshl_b32 s31, s31, 2
    s_lshl_b32 s33, s33, 4
    s_lshl_b32 s32, s32, 6
    s_or_b32 s30, s30, s31
    s_or_b32 s30, s30, s33
    s_or_b32 s30, s30, s32
    s_or_b32 s30, s30, 0x100
    s_mov_b32 s24, s30
    """)
    if not opts.get('notouch'):
        a("s_and_b32 s86, s24, 3")
        touch_group(a, 86, S_RT, S_C2, 6)
        a("s_lshr_b32 s86, s24, 2")
        a("s_and_b32 s86, s86, 3")
        touch_group(a, 86, S_RT, S_C2, 7)
    a(f"""
    v_mov_b32 v1, {F_ORD}
    v_mov_b32 v2, s24
    ds_write_b32 v1, v2
    s_branch {go}
    """)
    a(f"{oth}:")
    lds_spin(a, [F_ORD])
    a("s_waitcnt vmcnt(0)")
    a(f"{go}:")
    stamp(a, opts, 15)
    stamp(a, opts, 41, real=True)
    a(f"""
    s_mul_i32 s30, s{S_WP}, 6
    s_lshl_b32 s31, s{S_WP}, 2
    s_cmp_eq_u32 s{S_WP}, 3
    s_cselect_b32 s31, 11, s31
    s_cmp_ge_u32 s{S_WP}, 2
    s_cselect_b32 s32, 3, 4
    """)
    for k in range(4):
        a(f"""
        s_lshr_b32 s7, s24, {2*k}
        s_and_b32 s7, s7, 3
        s_mul_i32 s33, s7, 24
        s_cmp_eq_u32 s7, 3
        s_cselect_b32 s25, s31, s30
        s_add_u32 s{S_GB+k}, s33, s25
        s_cselect_b32 s{S_GL+k}, s32, 6
        """.replace("        s_add_u32 s%d, s33, s25\n        s_cselect_b32" % (S_GB+k), "        s_add_u32 s%d, s33, s25\n        s_cmp_eq_u32 s7, 3\n        s_cselect_b32" % (S_GB+k)))
    S_OW, S_OH, S_REM = 82, 83, 84
    def load_group():
        a(f"""
        s_lshl_b32 s{S_OW}, s{S_GB}, 14
        s_add_u32 s{S_OW}, s{S_OW}, s{S_WC}
        s_lshl_b32 s{S_OH}, s{S_GB}, 10
        s_mov_b32 s{S_REM}, s{S_GL}
        """)
    a(f"s_mov_b32 s{S_GD}, 0")
    load_group()
    a(f"s_setprio {opts.get('gprio', 1)}")
    def advance(pos):
        adv = a.label('noadv')
        a(f"""
        s_add_u32 s{S_OW}, s{S_OW}, 16384
        s_add_u32 s{S_OH}, s{S_OH}, 1024
        s_sub_u32 s{S_REM}, s{S_REM}, 1
        s_cmp_lg_u32 s{S_REM}, 0
        s_cbranch_scc1 {adv}
        s_mov_b32 s{S_GB}, s{S_GB+1}
        s_mov_b32 s{S_GB+1}, s{S_GB+2}
        s_mov_b32 s{S_GB+2}, s{S_GB+3}
        s_mov_b32 s{S_GL}, s{S_GL+1}
        s_mov_b32 s{S_GL+1}, s{S_GL+2}
        s_mov_b32 s{S_GL+2}, s{S_GL+3}
        s_add_u32 s{S_GD}, s{S_GD}, 1
        """)
        load_group()
        if pos + 1 in (9, 10, 12):
            a(f"s_cmp_lg_u32 s{S_GD}, 2")
            a(f"s_cbranch_scc1 {adv}")
            lds_spin(a, [F_HRDY])
        a(f"{adv}:")
    def ops(st, step):
        g = []
        g.append((f"s_add_u32 m0, s{S_RING}, {st*2048}\ns_add_u32 s31, s{S_OW}, 8192\nbuffer_load_dwordx4 v{VWD}, s[{SRD_WD}:{SRD_WD+3}], s{S_OW} offen lds"))
        g.append((f"buffer_load_dwordx4 {v(hf(st,0),4)}, v{VH0}, s[{SRD_WS}:{SRD_WS+3}], s{S_OH} offen sc1"))
        g.append((f"s_add_u32 m0, s{S_RING}, {st*2048+1024}\ns_nop 0\nbuffer_load_dwordx4 v{VWD}, s[{SRD_WD}:{SRD_WD+3}], s31 offen lds"))
        g.append((f"buffer_load_dwordx4 {v(hf(st,1),4)}, v{VH1}, s[{SRD_WS}:{SRD_WS+3}], s{S_OH} offen sc1"))
        return g
    def issue(st, step):
        for x in ops(st, step):
            a(x); vm.op(('s', step))
        advance(step)
    for st in range(D): issue(st, st)
    def wreads(i):
        st, ws_ = i % D, i & 1
        for m, va in ((0, VA0), (1, VA1)):
            a(f"ds_read_b64_tr_b16 {v(wf(ws_,m),2)}, v{va} offset:{st*2048}")
            a(f"ds_read_b64_tr_b16 {v(wf(ws_,m)+2,2)}, v{va} offset:{st*2048+1024}")
    def yissue(first=False):
        if first:
            a(f"global_load_dwordx4 {v(V_XT,4)}, v{V_OFF}, s[{SP['x']}:{SP['x']+1}]"); vm.op('x')
        for i in range(4):
            if i == 0: a(f"buffer_load_dwordx4 {v(YG,4)}, v{VY}, s[{SRD_WS}:{SRD_WS+3}], 0 offen sc1")
            else:
                a(f"s_mov_b32 s{S_OFF}, {i*4*8192}")
                a(f"buffer_load_dwordx4 {v(YG+4*i,4)}, v{VY}, s[{SRD_WS}:{SRD_WS+3}], s{S_OFF} offen sc1")
            vm.op('y')
    NS = 22
    vm.wait(('s', 0))
    wreads(0)
    lskip = a.label('gskip')
    for i in range(NS):
        st = i % D
        if i == NS - 1:
            a(f"s_cmp_eq_u32 s{S_N}, 21")
            a(f"s_cbranch_scc1 {lskip}")
        if i + 1 < NS:
            vm.wait(('s', i+1), ' lgkmcnt(0)')
            wreads(i+1)
        else:
            a("s_waitcnt lgkmcnt(0)")
        nx = ops(st, i+D) if i + D < NS else [None]*4
        for k, (m, n_) in enumerate(((0,0),(1,0),(0,1),(1,1))):
            a(f"v_mfma_f32_32x32x16_bf16 {v(acc(m,n_),16)}, {v(wf(i&1,m),4)}, {v(hf(st,n_),4)}, {v(acc(m,n_),16)}")
            kk = (0, 1, 2, 3)[k]
            if nx[kk] is not None:
                a(nx[kk]); vm.op(('s', i+D))
        if i + D < NS: advance(i+D)
        if i + D == NS: yissue(True)
    a(f"{lskip}:")
    stamp(a, opts, 16+8)
    stamp(a, opts, 42, real=True)
    a(f"""
    v_and_b32 v1, 31, v0
    v_mul_u32_u24 v1, {PROW}, v1
    v_lshrrev_b32 v2, 5, v0
    v_lshlrev_b32 v2, 4, v2
    v_add_u32 v1, v1, v2
    s_mul_i32 s7, s{S_WP}, {64*PROW}
    s_add_u32 s7, s7, {F_P}
    v_add_u32 v1, s7, v1
    v_lshrrev_b32 v2, 4, v0
    s_lshl_b32 s7, s{S_WP}, 4
    v_add_u32 v2, s7, v2
    v_mul_u32_u24 v2, 160, v2
    v_and_b32 v3, 15, v0
    v_lshlrev_b32 v3, 3, v3
    v_add_u32 v2, v2, v3
    v_add_u32 v2, {F_YT}, v2
    """)
    for m in range(2):
        for n_ in range(2):
            for g in range(4):
                a(f"ds_write_b128 v1, {v(acc(m,n_)+4*g,4)} offset:{n_*32*PROW + m*128 + g*32}")
    lp = a.label('ychk'); ok = a.label('yok')
    a(f"""
    s_mov_b32 s28, 0
    {lp}:
    s_waitcnt vmcnt(0)
    v_cmp_ne_u32 vcc, v{V_NON}, v{YG+2}
    """)
    for i in range(1, 4):
        a(f"v_cmp_ne_u32 s[30:31], v{V_NON}, v{YG+4*i+2}"); a("s_or_b64 vcc, vcc, s[30:31]")
    for i in range(4):
        a(f"v_cmp_ne_u32 s[30:31], v{V_NON+1}, v{YG+4*i+3}"); a("s_or_b64 vcc, vcc, s[30:31]")
    a(f"""
    s_add_u32 s28, s28, 1
    s_cmp_eq_u64 vcc, 0
    s_cbranch_scc1 {ok}
    s_cmp_gt_u32 s28, {0 if opts.get('noconv') else SPIN}
    s_cbranch_scc1 {ok}
    """)
    yissue()
    a(f"s_branch {lp}")
    a(f"{ok}:")
    stamp(a, opts, 16+9)
    for i in range(4):
        a(f"ds_write_b64 v2, {v(YG+4*i,2)} offset:{i*4*160}")
    a(f"s_branch {opts['lfinal']}")


S_SL = 87
def helper_F(a, opts):
    import kerA_help as H
    from kerA_help import kgen, grab, nonce_check, colsum_A, A_PUB, A_STATS, A_M, V_SL
    S_W, S_TB, S_ROT = 68, 69, 6
    SRD_T0, SRD_T1 = 20, 24
    ACC = 80
    a(f"""
    s_lshr_b32 s7, s{S_CT}, 3
    s_add_u32 s7, s7, s{S_ROT}
    s_and_b32 s7, s7, 7
    s_lshl_b32 s7, s7, 1
    s_bfe_u32 s33, s{S_CT}, 0x10002
    s_add_u32 s{S_SL}, s7, s33
    """)
    seg0, seg1, seg2 = kgen(a, opts)
    lab = {k: a.label('h'+k) for k in ('0','nf','rest','even','g1','g2')}
    a(f"""
    s_cmp_lg_u32 s{S_W}, 1
    s_cbranch_scc1 {lab['0']}
    global_load_dwordx2 v[152:153], v150, s[{SP['dbg']}:{SP['dbg']+1}] sc1
    {lab['0']}:
    s_setprio 0
    """)
    stamp(a, opts, 3)
    bar(a, opts, 0)
    stamp(a, opts, 4)
    grab(a, opts, 0)
    a("s_setprio 2")
    seg0()
    a("s_setprio 0")
    a(f"""
    s_cmp_lg_u32 s{S_W}, 1
    s_cbranch_scc1 {lab['nf']}
    v_lshlrev_b32 v1, 2, v0
    v_add_u32 v1, {A_PUB}, v1
    ds_read_b32 v4, v1
    s_waitcnt vmcnt(0)
    """)
    nonce_check(a, 152)
    srd(a, SRD_T1, SP['ws'], 2048*8, WS_STAT)
    a(f"""
    s_lshl_b32 s32, s{S_RB}, 4
    s_add_u32 s32, s32, s{S_CT}
    s_lshl_b32 s32, s32, 6
    v_lshlrev_b32 v1, 3, v0
    v_mov_b32 v5, s70
    s_waitcnt lgkmcnt(0)
    s_mov_b64 exec, 0xff
    s_setprio 3
    buffer_store_dwordx2 v[4:5], v1, s[{SRD_T1}:{SRD_T1+3}], s32 offen sc1
    s_setprio 0
    s_mov_b64 exec, 1
    v_mov_b32 v1, {F_NON}
    ds_write_b64 v1, v[152:153]
    s_mov_b64 exec, -1
    s_waitcnt lgkmcnt(0)
    {lab['nf']}:
    """)
    bar(a, opts, 1)
    grab(a, opts, 1)
    a("s_setprio 2")
    seg1()
    a("s_setprio 0")
    a("s_waitcnt lgkmcnt(0)")
    bar(a, opts, 2)
    a("s_setprio 2")
    seg2()
    a(f"s_cmp_lg_u32 s{S_W}, 1")
    a(f"s_cbranch_scc1 {lab['rest']}")
    colsum_A(a, opts)
    a(f"{lab['rest']}:")
    a("s_setprio 0")
    bar(a, opts, 3)
    srd(a, SRD_T1, SP['ws'], 2048*8, WS_STAT)
    a(f"""
    v_mov_b32 v1, {F_NON}
    ds_read_b64 v[{V_NON}:{V_NON+1}], v1
    v_lshlrev_b32 v8, 4, v0
    s_lshl_b32 s72, s{S_RB}, 10            ; 128 rows * 8 B
    s_cmp_lg_u32 s{S_W}, 0
    s_cbranch_scc1 {lab['g1']}
    s_setprio 3
    buffer_load_dwordx4 v[12:15], v8, s[{SRD_T1}:{SRD_T1+3}], s72 offen sc1
    s_setprio 0
    {lab['g1']}:
    s_waitcnt lgkmcnt(0)
    """)
    bar(a, opts, 4)
    lp = a.label('schk'); ok = a.label('sok')
    a(f"""
    s_cmp_lg_u32 s{S_W}, 0
    s_cbranch_scc1 {lab['g2']}
    s_mov_b32 s75, 0
    {lp}:
    s_waitcnt vmcnt(0)
    v_cmp_ne_u32 vcc, v{V_NON}, v13
    v_cmp_ne_u32 s[32:33], v{V_NON}, v15
    s_or_b64 vcc, vcc, s[32:33]
    s_add_u32 s75, s75, 1
    s_cmp_eq_u64 vcc, 0
    s_cbranch_scc1 {ok}
    s_cmp_gt_u32 s75, {SPIN}
    s_cbranch_scc1 {ok}
    buffer_load_dwordx4 v[12:15], v8, s[{SRD_T1}:{SRD_T1+3}], s72 offen sc1
    s_branch {lp}
    {ok}:
    v_lshlrev_b32 v4, 16, v12
    v_and_b32 v5, 0xffff0000, v12
    v_lshlrev_b32 v6, 16, v14
    v_and_b32 v7, 0xffff0000, v14
    v_lshlrev_b32 v1, 4, v0
    v_add_u32 v1, {A_STATS}, v1
    ds_write_b128 v1, v[4:7]
    v_rcp_f32 v10, v5
    v_rcp_f32 v11, v7
    v_mov_b32 v5, v6
    v_lshlrev_b32 v1, 3, v0
    v_add_u32 v1, {A_M}, v1
    ds_write_b64 v1, v[4:5]
    ds_write_b64 v1, v[10:11] offset:512
    s_waitcnt lgkmcnt(0)
    {lab['g2']}:
    """)
    stamp(a, opts, 5)
    bar(a, opts, 5)
    srd(a, SRD_T0, SP['ws'], WS_XT_SZ, WS_XT)
    a(f"""
    v_lshrrev_b32 v3, 4, v0              ; G
    v_and_b32 v1, 15, v0
    s_and_b32 s7, s{S_W}, 1
    s_lshl_b32 s7, s7, 4
    v_add_u32 v1, s7, v1
    v_lshlrev_b32 v1, 12, v1
    v_lshlrev_b32 v5, 4, v3
    v_add_u32 v8, v1, v5
    s_lshl_b32 s32, s{S_SL}, 17
    s_lshl_b32 s33, s{S_RB}, 8
    s_add_u32 s32, s32, s33
    s_lshr_b32 s7, s{S_W}, 1
    s_lshl_b32 s33, s7, 7
    s_add_u32 s32, s32, s33
    v_lshlrev_b32 v9, 5, v3
    s_lshl_b32 s33, s7, 8
    s_add_u32 s33, s33, {A_M}
    v_add_u32 v9, s33, v9
    """)
    for r in range(2):
        M, R_ = 16 + 16*r, 24 + 16*r
        a(f"ds_read_b128 {v(M,4)}, v9 offset:{r*128}")
        a(f"ds_read_b128 {v(M+4,4)}, v9 offset:{r*128+16}")
        a(f"ds_read_b128 {v(R_,4)}, v9 offset:{512 + r*128}")
        a(f"ds_read_b128 {v(R_+4,4)}, v9 offset:{512 + r*128+16}")
    for r in range(2):
        M, R_ = 16 + 16*r, 24 + 16*r
        U = 48 + 12*r
        X = V_SL + 4*r
        for j in range(4):
            a(f"v_lshlrev_b32 v{U+2*j}, 16, v{X+j}")
            a(f"v_and_b32 v{U+2*j+1}, 0xffff0000, v{X+j}")
        a(f"s_waitcnt lgkmcnt({4*(1-r)})")
        for j in range(8): a(f"v_sub_f32 v{U+j}, v{U+j}, v{M+j}")
        for j in range(4): a(f"v_cvt_pk_bf16_f32 v{U+8+j}, v{U+2*j}, v{U+2*j+1}")
        for j in range(4):
            a(f"v_lshlrev_b32 v{U+2*j}, 16, v{U+8+j}")
            a(f"v_and_b32 v{U+2*j+1}, 0xffff0000, v{U+8+j}")
        for j in range(8): a(f"v_mul_f32 v{U+j}, v{U+j}, v{R_+j}")
        for j in range(4): a(f"v_cvt_pk_bf16_f32 v{U+8+j}, v{U+2*j}, v{U+2*j+1}")
        a("s_setprio 3")
        a(f"buffer_store_dwordx4 {v(U+8,4)}, v8, s[{SRD_T0}:{SRD_T0+3}], s32 offen offset:{r*64} sc1")
        a("s_setprio 0")
    bar(a, opts, 6)
    bar(a, opts, 7)
    nf = a.label('nfx')
    a("s_waitcnt vmcnt(0)")
    stamp(a, opts, 14)
    stamp(a, opts, 40, real=True)
    lds_count_last(a, F_CNTX, 4, nf)
    a(f"s_lshl_b32 s30, s{S_RB}, 4")
    a(f"s_add_u32 s30, s30, s{S_SL}")
    flag_store(a, WS_FLAGX, "s30")
    a(f"{nf}:")
    a(f"""
    s_and_b32 s7, s{S_W}, 1
    s_cmp_eq_u32 s7, 0
    s_cbranch_scc1 {lab['even']}
    v_lshlrev_b32 v1, 4, v0
    v_add_u32 v1, s{S_TB}, v1
    """)
    for T in range(8):
        a(f"ds_write_b128 v1, {v(ACC+4*T,4)} offset:{T*1024}")
    a("s_waitcnt lgkmcnt(0)")
    a(f"{lab['even']}:")
    bar(a, opts, 8)
    conv_F(a, opts)

def conv_F(a, opts):
    S_W, S_TBK = 68, 69
    S_TB, S_CH, S_RH, S_C = 70, 71, 72, 73
    ACC, AF, BF = 16, 48, 112
    VA, VB = 8, 12
    KACC = 80
    a(f"s_setprio {opts.get('kprio',0)}")
    a(f"""
    v_mov_b32 v1, {F_NON}
    ds_read_b64 v[{V_NON}:{V_NON+1}], v1
    s_sub_u32 s{S_WP}, s{S_WAVE}, 4
    s_lshr_b32 s{S_C}, s{S_W}, 1
    s_and_b32 s{S_RH}, s{S_W}, 1
    s_lshl_b32 s{S_CH}, s2, 1
    s_add_u32 s{S_CH}, s{S_CH}, s{S_C}      ; channel
    s_mul_i32 s{S_TB}, s{S_C}, {CT_SZ}
    s_add_u32 s{S_TB}, s{S_TB}, {F_CT}
    """)
    map_B(a)
    srd(a, SRD_WS, SP['ws'], 19*MB)
    odd = a.label('codd'); join = a.label('cjoin')
    a(f"s_cmp_eq_u32 s{S_RH}, 1")
    a(f"s_cbranch_scc1 {odd}")
    a(f"""
    v_lshlrev_b32 v1, 4, v0
    v_add_u32 v2, s{S_TBK}, v1
    """)
    for T in range(8):
        a(f"ds_read_b128 {v(16+4*T,4)}, v2 offset:{8192 + T*1024}")
    a(f"""
    v_and_b32 v2, 15, v0
    v_lshlrev_b32 v2, 5, v2               ; 32*j
    v_lshrrev_b32 v3, 4, v0
    v_lshlrev_b32 v3, 3, v3               ; 8*q
    v_add_u32 v2, v2, v3
    v_sub_u32 v2, {504}, v2               ; 4088 - 512*7 - (32 j + 8 q)
    s_add_u32 s7, s{S_TB}, {CT_V0}
    v_add_u32 v2, s7, v2
    """)
    for T in range(8):
        a(f"s_waitcnt lgkmcnt({7-T})")
        for i in range(4):
            a(f"v_add_f32 v{KACC+4*T+i}, v{KACC+4*T+i}, v{16+4*T+i}")
        a(f"v_cvt_pk_bf16_f32 v{48+2*T}, v{KACC+4*T+3}, v{KACC+4*T+2}")
        a(f"v_cvt_pk_bf16_f32 v{49+2*T}, v{KACC+4*T+1}, v{KACC+4*T}")
    for T in range(8):
        a(f"ds_write_b64 v2, {v(48+2*T,2)} offset:{(7-T)*512}")
    a(f"""
    v_mov_b32 v6, 0
    v_mov_b32 v7, 0
    v_lshlrev_b32 v3, 3, v0
    s_add_u32 s7, s{S_TB}, {CT_V0+4096}
    v_add_u32 v2, s7, v3
    s_mov_b64 exec, 0xff
    ds_write_b64 v2, v[6:7]
    ds_write_b64 v2, v[6:7] offset:{CT_V1-CT_V0}
    s_mov_b64 exec, -1
    s_add_u32 s7, s{S_TB}, {CT_V0}
    v_add_u32 v2, s7, v1
    """)
    for i in range(4):
        a(f"ds_read_b128 {v(16+8*i,4)}, v2 offset:{i*1024}")
        a(f"ds_read_b32 v{20+8*i}, v2 offset:{i*1024+16}")
    for i in range(4):
        a(f"s_waitcnt lgkmcnt({6-2*i})")
        for j in range(4):
            a(f"v_alignbit_b32 v{48+4*i+j}, v{16+8*i+j+1}, v{16+8*i+j}, 16")
    for i in range(4):
        a(f"ds_write_b128 v2, {v(48+4*i,4)} offset:{CT_V1-CT_V0 + i*1024}")
    a("s_waitcnt lgkmcnt(0)")
    a(f"s_lshl_b32 s7, s{S_C}, 2")
    a(f"s_add_u32 s7, s7, {F_KRDY}")
    lds_set(a, "s7")
    a(f"s_branch {join}")
    a(f"{odd}:")
    a(f"""
    v_lshlrev_b32 v1, 4, v0
    v_mov_b32 v16, 0
    v_mov_b32 v17, 0
    v_mov_b32 v18, 0
    v_mov_b32 v19, 0
    v_add_u32 v3, s{S_TB}, v1
    s_mov_b64 exec, 0x3fffffff
    ds_write_b128 v3, v[16:19] offset:{CT_U}
    s_mov_b64 exec, -1
    """)
    a(f"{join}:")
    a("s_waitcnt lgkmcnt(0)")
    if opts.get('noconv'):
        a("s_waitcnt vmcnt(0)")
        a(f"s_branch {opts['lfinal']}")
    ev = a.label('cev')
    a(f"s_cmp_eq_u32 s{S_RH}, 0")
    a(f"s_cbranch_scc1 {ev}")
    a(f"""
    v_and_b32 v2, 15, v0
    v_lshlrev_b32 v2, 4, v2
    s_lshr_b32 s7, s2, 4
    v_add_u32 v2, s7, v2
    v_lshlrev_b32 v2, 7, v2
    v_add_u32 v2, {WS_FLAGX}, v2
    """)
    flag_poll(a, 2, 6)
    stamp(a, opts, 15)
    stamp(a, opts, 41, real=True)
    a(f"""
    s_lshl_b32 s26, s{S_CH}, 12
    s_add_u32 s26, s26, {WS_XT}
    v_lshlrev_b32 v1, 4, v0
    """)
    for i in range(4):
        a(f"buffer_load_dwordx4 {v(16+4*i,4)}, v1, s[{SRD_WS}:{SRD_WS+3}], s26 offen offset:{i*1024} sc1")
    a(f"v_add_u32 v3, s{S_TB}, v1")
    for i in range(4):
        a(f"s_waitcnt vmcnt({3-i})")
        a(f"ds_write_b128 v3, {v(16+4*i,4)} offset:{CT_U + 480 + i*1024}")
    a("s_waitcnt lgkmcnt(0)")
    a(f"s_lshl_b32 s7, s{S_C}, 2")
    a(f"s_add_u32 s7, s7, {F_URDY}")
    lds_set(a, "s7")
    a(f"{ev}:")
    a(f"""
    v_and_b32 v1, 15, v0                   ; b / a
    v_lshrrev_b32 v2, 4, v0                ; q
    v_lshrrev_b32 v3, 1, v1                ; beta
    v_lshlrev_b32 v6, 2, v2
    v_sub_u32 v6, v6, v3                   ; 4q - beta
    s_lshl_b32 s7, s{S_RH}, 6
    s_sub_u32 s7, {1015-128-48}, s7
    v_add_u32 v6, s7, v6
    v_lshlrev_b32 v6, 2, v6
    v_and_b32 v3, 1, v1
    v_xor_b32 v3, 1, v3
    v_mul_u32_u24 v3, {CT_V1-CT_V0}, v3
    v_add_u32 v6, v6, v3
    s_add_u32 s7, s{S_TB}, {CT_V0}
    v_add_u32 v{VA}, s7, v6
    v_subrev_u32 v{VA+1}, 1024, v{VA}
    v_subrev_u32 v{VA+2}, 2048, v{VA}
    v_subrev_u32 v{VA+3}, 3072, v{VA}
    v_lshlrev_b32 v3, 5, v1
    v_lshlrev_b32 v6, 4, v2
    v_add_u32 v3, v3, v6
    s_lshl_b32 s7, s{S_RH}, 8
    s_sub_u32 s7, {448-192}, s7
    s_add_u32 s7, s7, s{S_TB}
    v_add_u32 v{VB}, s7, v3
    """)
    for i in range(32): a(f"v_mov_b32 v{ACC+i}, 0")
    a(f"s_lshl_b32 s7, s{S_C}, 2")
    a(f"s_add_u32 s26, s7, {F_KRDY}")
    a(f"s_add_u32 s27, s7, {F_URDY}")
    lds_spin(a, ["s26", "s27"])
    a("s_waitcnt vmcnt(0)")
    stamp(a, opts, 16)
    a("v_lshlrev_b32 v5, 16, v151           ; Dskip")
    a(f"s_setprio {opts.get('cprio', 0)}")
    lg = LgTrack(a)
    def rdA(st, dl, rp):
        Dd, e = dl >> 1, dl & 1
        o = (1-e)*128 + (3-rp)*16
        r = AF + st*32 + dl*4
        return [(f"ds_read2_b32 {v(r,2)}, v{VA+Dd} offset0:{o} offset1:{o+1}", ('A', rp, dl)),
                (f"ds_read2_b32 {v(r+2,2)}, v{VA+Dd} offset0:{o+2} offset1:{o+3}", ('A', rp, dl))]
    def rdB(p, rp):
        return (f"ds_read_b128 {v(BF+p*4,4)}, v{VB} offset:{CT_U + 512*p + (3-rp)*64}", ('B', rp, p))
    def emit(x): a(x[0]); lg.op(x[1])
    emit(rdB(0, 0))
    for dl in range(8):
        for x in rdA(0, dl, 0): emit(x)
    for p in range(1, 8): emit(rdB(p, 0))
    for rp in range(4):
        st = rp & 1
        nxtA = []
        if rp < 3:
            for dl in range(8): nxtA += rdA(1-st, dl, rp+1)
        ni = 0
        for p in range(8):
            for dl in range(8-p):
                lg.wait([('A', rp, dl), ('B', rp, p)])
                a(f"v_mfma_f32_16x16x32_bf16 {v(ACC+4*(dl+p),4)}, {v(AF+st*32+dl*4,4)}, {v(BF+p*4,4)}, {v(ACC+4*(dl+p),4)}")
                if ni < len(nxtA): emit(nxtA[ni]); ni += 1
            if rp < 3: emit(rdB(p, rp+1))
    a("s_setprio 0")
    stamp(a, opts, 17)
    ex0 = a.label('ex0'); exd = a.label('exd')
    a(f"""
    v_lshlrev_b32 v13, 4, v0
    s_lshl_b32 s7, s{S_W}, 12
    s_add_u32 s7, s7, {F_EX}
    v_add_u32 v3, s7, v13
    s_cmp_eq_u32 s{S_RH}, 0
    s_nop 4
    s_cbranch_scc1 {ex0}
    """)
    for T in range(4): a(f"ds_write_b128 v3, {v(ACC+4*T,4)} offset:{T*1024}")
    for i in range(16): a(f"v_mov_b32 v{ACC+i}, v{ACC+16+i}")
    a(f"s_branch {exd}")
    a(f"{ex0}:")
    for T in range(4): a(f"ds_write_b128 v3, {v(ACC+16+4*T,4)} offset:{T*1024}")
    a(f"{exd}:")
    a("s_waitcnt lgkmcnt(0)")
    a(f"s_lshl_b32 s7, s{S_W}, 2")
    a(f"s_add_u32 s7, s7, {F_XFL}")
    lds_set(a, "s7")
    a(f"""
    s_xor_b32 s7, s{S_W}, 1
    s_lshl_b32 s26, s7, 2
    s_add_u32 s26, s26, {F_XFL}
    s_lshl_b32 s27, s7, 12
    s_add_u32 s27, s27, {F_EX}
    v_add_u32 v14, s27, v13
    """)
    lds_spin(a, ["s26"])
    for T in range(4): a(f"ds_read_b128 {v(32+4*T,4)}, v14 offset:{T*1024}")
    a(f"""
    v_and_b32 v1, 15, v0
    v_lshlrev_b32 v1, 5, v1
    v_lshrrev_b32 v2, 4, v0
    v_lshlrev_b32 v2, 3, v2
    v_add_u32 v1, v1, v2                   ; 2*(16a + 4q)
    s_lshl_b32 s7, s{S_RH}, 11
    s_add_u32 s24, s7, s{S_TB}
    v_add_u32 v2, s24, v1
    """)
    for k in range(4): a(f"ds_read_b64 {v(48+2*k,2)}, v2 offset:{CT_U + 480 + k*512}")
    a(f"""
    v_and_b32 v1, 15, v0
    v_lshlrev_b32 v1, 6, v1
    v_lshrrev_b32 v2, 4, v0
    v_lshlrev_b32 v2, 4, v2
    v_add_u32 v1, v1, v2
    s_lshl_b32 s24, s{S_CH}, 13
    s_add_u32 s24, s24, {WS_Y}
    s_lshl_b32 s7, s{S_RH}, 12
    s_add_u32 s24, s24, s7
    s_waitcnt lgkmcnt(0)
    """)
    for k in range(4):
        A = ACC + 4*k
        for i in range(4): a(f"v_add_f32 v{A+i}, v{A+i}, v{32+4*k+i}")
        U = 64
        a(f"v_cvt_pk_bf16_f32 v{U}, v{A}, v{A+1}")
        a(f"v_cvt_pk_bf16_f32 v{U+1}, v{A+2}, v{A+3}")
        for j in range(2):
            a(f"v_lshlrev_b32 v{U+2+2*j}, 16, v{48+2*k+j}")
            a(f"v_and_b32 v{U+3+2*j}, 0xffff0000, v{48+2*k+j}")
        for i in range(4): a(f"v_mul_f32 v{U+2+i}, v{U+2+i}, v5")
        a(f"v_cvt_pk_bf16_f32 v{U+6}, v{U+2}, v{U+3}")
        a(f"v_cvt_pk_bf16_f32 v{U+7}, v{U+4}, v{U+5}")
        for j in range(2):
            a(f"v_lshlrev_b32 v{U+2+2*j}, 16, v{U+6+j}")
            a(f"v_and_b32 v{U+3+2*j}, 0xffff0000, v{U+6+j}")
            a(f"v_lshlrev_b32 v{U+8+2*j}, 16, v{U+j}")
            a(f"v_and_b32 v{U+9+2*j}, 0xffff0000, v{U+j}")
        for i in range(4): a(f"v_add_f32 v{U+2+i}, v{U+2+i}, v{U+8+i}")
        O = 80 + 4*k
        a(f"v_cvt_pk_bf16_f32 v{O}, v{U+2}, v{U+3}")
        a(f"v_cvt_pk_bf16_f32 v{O+1}, v{U+4}, v{U+5}")
        a(f"v_mov_b32 v{O+2}, v{V_NON}")
        a(f"v_mov_b32 v{O+3}, v{V_NON+1}")
        a("s_setprio 3")
        a(f"buffer_store_dwordx4 {v(O,4)}, v1, s[{SRD_WS}:{SRD_WS+3}], s24 offen offset:{k*1024} sc1")
        a("s_setprio 0")
    a(f"global_load_dwordx4 {v(V_XT,4)}, v{V_OFF}, s[{SP['x']}:{SP['x']+1}]")
    stamp(a, opts, 18)
    a("s_waitcnt vmcnt(0)")
    a(f"s_branch {opts['lfinal']}")

def final_F(a, opts):
    srd(a, SRD_O, SP['out'], 2097152)
    a(f"""
    s_and_b32 s7, s{S_WP}, 3
    s_lshl_b32 s7, s7, 4
    v_and_b32 v1, 15, v0
    v_add_u32 v2, s7, v1                  ; t
    v_mul_u32_u24 v2, {PROW}, v2
    s_lshr_b32 s24, s{S_WP}, 2
    s_lshl_b32 s24, s24, 2
    v_lshrrev_b32 v3, 4, v0
    v_add_u32 v3, s24, v3                 ; octet
    v_lshlrev_b32 v4, 5, v3
    v_add_u32 v2, v2, v4
    v_add_u32 v2, {F_P}, v2
    v_lshlrev_b32 v4, 3, v3
    v_lshrrev_b32 v5, 2, v1
    v_add_u32 v4, v4, v5
    v_mul_u32_u24 v4, 160, v4
    v_and_b32 v5, 3, v1
    v_lshlrev_b32 v5, 3, v5
    v_add_u32 v4, v4, v5
    s_lshl_b32 s7, s7, 1
    s_add_u32 s7, s7, {F_YT}
    v_add_u32 v4, s7, v4
    """)
    U = 56
    a("s_waitcnt vmcnt(4)") if False else None
    a("s_waitcnt lgkmcnt(0)")
    stamp(a, opts, 26)
    a("s_barrier")
    stamp(a, opts, 27)
    P = 16
    for pw in range(4):
        a(f"ds_read_b128 {v(P+8*pw,4)}, v2 offset:{pw*64*PROW}")
        a(f"ds_read_b128 {v(P+8*pw+4,4)}, v2 offset:{pw*64*PROW+16}")
    a(f"ds_read_b64_tr_b16 v[8:9], v4")
    a(f"ds_read_b64_tr_b16 v[10:11], v4 offset:{4*160}")
    for j in range(4):
        a(f"v_lshlrev_b32 v{U+2*j}, 16, v{V_XT+j}")
        a(f"v_and_b32 v{U+2*j+1}, 0xffff0000, v{V_XT+j}")
    a("s_waitcnt lgkmcnt(6)")
    for i in range(8): a(f"v_add_f32 v{P+i}, v{P+i}, v{P+8+i}")
    a("s_waitcnt lgkmcnt(2)")
    for i in range(8): a(f"v_add_f32 v{P+16+i}, v{P+16+i}, v{P+24+i}")
    for i in range(8): a(f"v_add_f32 v{P+i}, v{P+i}, v{P+16+i}")
    for j in range(4): a(f"v_cvt_pk_bf16_f32 v{48+j}, v{P+2*j}, v{P+2*j+1}")
    a("s_waitcnt lgkmcnt(0)")
    for j in range(4):
        a(f"v_lshlrev_b32 v{U+8+2*j}, 16, v{8+j}")
        a(f"v_and_b32 v{U+8+2*j+1}, 0xffff0000, v{8+j}")
    for i in range(8): a(f"v_add_f32 v{U+i}, v{U+i}, v{U+8+i}")
    for j in range(4): a(f"v_cvt_pk_bf16_f32 v{72+j}, v{U+2*j}, v{U+2*j+1}")
    for j in range(4):
        a(f"v_lshlrev_b32 v{U+2*j}, 16, v{72+j}")
        a(f"v_and_b32 v{U+2*j+1}, 0xffff0000, v{72+j}")
        a(f"v_lshlrev_b32 v{U+8+2*j}, 16, v{48+j}")
        a(f"v_and_b32 v{U+8+2*j+1}, 0xffff0000, v{48+j}")
    for i in range(8): a(f"v_add_f32 v{U+i}, v{U+i}, v{U+8+i}")
    for j in range(4): a(f"v_cvt_pk_bf16_f32 v{76+j}, v{U+2*j}, v{U+2*j+1}")
    a(f"buffer_store_dwordx4 v[76:79], v{V_OFF}, s[{SRD_O}:{SRD_O+3}], 0 offen")
    stamp(a, opts, 28)
    if opts.get('ts'): a("s_waitcnt vmcnt(0)")
    stamp(a, opts, 8)
    stamp(a, opts, 7, real=True)
    stamp_flush(a, opts, 0)
    a("s_endpgm")

def gen_F(a, name, opts):
    import kerA
    opts = dict(opts); opts['fused'] = 1
    opts['lfinal'] = a.label('final')
    if opts.get('cpf', 1):
        opts['abeg'] = name; opts['aend'] = 1
    a(kernel_head(name))
    lend = a.label('endF')
    kerA.prologue_A(a, lend, opts)
    lab = {k: a.label(k) for k in ('g','ld','h')}
    a(f"""
    s_cmp_lt_u32 s{S_WAVE}, 4
    s_cbranch_scc1 {lab['g']}
    s_cmp_ge_u32 s{S_WAVE}, 8
    s_cbranch_scc1 {lab['h']}
    """)
    opts['lg2'] = a.label('gemm2')
    kerA.loader_A(a, opts)
    a(f"{opts['lg2']}:"); gemm2_F(a, opts)
    a(f"{lab['h']}:"); helper_F(a, opts)
    a(f"{lab['g']}:"); kerA.gemm_A(a, opts)
    a(f"{opts['lfinal']}:"); final_F(a, opts)
    a(f"{lend}:")
    a("s_endpgm")
    a(".fill 3072, 4, 0xbf800000")
    a(kernel_desc(name, 168))
```

```python
from core import *
import struct
def f2u(x): return struct.unpack('<I', struct.pack('<f', x))[0]
def hx(x): return hex(f2u(x))

STAGE = 40960
A_KT   = 3*STAGE
A_STATS = A_KT + 32768
A_CS   = A_STATS + 1024
A_LDS  = A_CS + 768

S_WAVE, S_RB, S_CT, S_ROT = 3, 4, 5, 6
SRD_X, SRD_WG, SRD_WU, SRD_T0, SRD_T1, SRD_T2 = 8, 12, 16, 20, 24, 28

def prologue_A(a, lend, opts):
    a(f"""
    s_cmp_ge_u32 s2, 256
    s_cbranch_scc1 {lend}
    """)
    stamp_init(a, opts)
    stamp(a, opts, 10, real=True)
    stamp(a, opts, 0)
    a(f"""
    s_load_dwordx16 s[36:51], s[0:1], 0
    s_load_dwordx16 s[52:67], s[0:1], 64
    """)
    if opts.get('aend') and opts.get('earlypf', 1):
        pc = a.label('pc0')
        a(f"""
        s_getpc_b64 s[74:75]
        {pc}:
        s_add_u32 s74, s74, {opts['abeg']}-{pc}
        s_addc_u32 s75, s75, -1
        s_lshr_b32 s76, s2, 3
        s_and_b32 s76, s76, 3
        s_mul_i32 s76, s76, 96
        v_lshrrev_b32 v1, 6, v0
        v_lshlrev_b32 v1, 3, v1
        v_and_b32 v2, 7, v0
        v_add_u32 v1, v1, v2
        v_add_u32 v1, s76, v1
        v_lshlrev_b32 v1, 6, v1
        v_and_b32 v2, 63, v0
        v_cmp_gt_u32 vcc, 8, v2
        s_and_saveexec_b64 s[76:77], vcc
        global_load_dword v166, v1, s[74:75]
        s_mov_b64 exec, s[76:77]
        """)
    a(f"""
    v_lshrrev_b32 v1, 6, v0
    v_and_b32 v0, 63, v0
    s_and_b32 s7, s2, 7
    v_readfirstlane_b32 s{S_WAVE}, v1
    s_lshr_b32 s24, s2, 3
    s_and_b32 s25, s7, 1
    s_lshl_b32 s25, s25, 3
    s_and_b32 s26, s24, 7
    s_add_u32 s{S_RB}, s25, s26
    s_lshr_b32 s25, s7, 1
    s_lshl_b32 s25, s25, 2
    s_lshr_b32 s26, s24, 3
    s_add_u32 s{S_CT}, s25, s26
    s_lshl_b32 s25, s{S_CT}, 1
    s_add_u32 s25, s25, s{S_RB}
    s_and_b32 s{S_ROT}, s25, 7
    """)

def loader_A(a, opts):
    SJ, SXB, SWB, SLX, SLW, ST, SXO, SWO, SCC, SSTG = 68, 25, 26, 27, 28, 29, 30, 31, 32, 33
    a(f"""
    s_sub_u32 s{SJ}, s{S_WAVE}, 4
    v_lshrrev_b32 v6, 3, v0
    v_lshlrev_b32 v2, 10, v6
    v_and_b32 v6, 7, v0
    v_lshrrev_b32 v7, 4, v0
    v_xor_b32 v6, v6, v7
    v_lshlrev_b32 v6, 4, v6
    v_add_u32 v2, v2, v6
    v_xor_b32 v3, 64, v2
    v_lshrrev_b32 v6, 2, v0
    s_movk_i32 s{ST}, 2752
    v_mul_lo_u32 v4, v6, s{ST}
    v_and_b32 v6, 3, v0
    v_lshlrev_b32 v7, 4, v6
    v_xor_b32 v6, 2, v6
    v_lshlrev_b32 v6, 4, v6
    v_add_u32 v5, v4, v6
    v_add_u32 v4, v4, v7
    s_lshl_b32 s{SXB}, s{S_RB}, 17
    s_lshl_b32 s{ST}, s{SJ}, 15
    s_add_u32 s{SXB}, s{SXB}, s{ST}
    s_mul_i32 s{SWB}, s{SJ}, {16*2752}
    s_mul_i32 s{ST}, s{S_CT}, 192
    s_add_u32 s{SWB}, s{SWB}, s{ST}
    s_lshl_b32 s{SLX}, s{SJ}, 12
    s_lshl_b32 s{SLW}, s{SJ}, 10
    s_add_u32 s{SLW}, s{SLW}, 16384
    s_mov_b32 s{SCC}, s{S_ROT}
    s_waitcnt lgkmcnt(0)
    """)
    srd(a, SRD_X, SP['x'], 2097152)
    srd(a, SRD_WG, SP['wg'], 1409024)
    srd(a, SRD_WU, SP['wu'], 1409024)
    def setup(stage_off):
        a(f"""
        s_lshl_b32 s{SXO}, s{SCC}, 7
        s_add_u32 s{SXO}, s{SXO}, s{SXB}
        s_mul_i32 s{SWO}, s{SCC}, {64*2752}
        s_add_u32 s{SWO}, s{SWO}, s{SWB}
        s_add_u32 s34, s{SLX}, {stage_off}
        s_add_u32 s35, s{SLW}, {stage_off}
        s_add_u32 s{SCC}, s{SCC}, 1
        s_and_b32 s{SCC}, s{SCC}, 7
        """)
    def dma(k):
        if opts.get('nodma') and dma.n >= 13:
            return
        dma.n += 1
        order = [('x',0),('g',0),('u',0),('x',1),('g',1),('u',1),('x',2),('g',2),('u',2),('x',3)]
        t, i = order[k]
        if t == 'x':
            a(f"s_add_u32 m0, s34, {i*1024}")
            a(f"s_add_u32 s{ST}, s{SXO}, {i*8192}")
            a(f"buffer_load_dwordx4 v{2+(i&1)}, s[{SRD_X}:{SRD_X+3}], s{ST} offen lds")
        elif t == 'g':
            a(f"s_add_u32 m0, s35, {i*4096}")
            a(f"s_add_u32 s{ST}, s{SWO}, {i*64}")
            a(f"buffer_load_dwordx4 v4, s[{SRD_WG}:{SRD_WG+3}], s{ST} offen lds")
        else:
            a(f"s_add_u32 m0, s35, {i*4096+12288}")
            a(f"s_add_u32 s{ST}, s{SWO}, {i*64}")
            a(f"buffer_load_dwordx4 v5, s[{SRD_WU}:{SRD_WU+3}], s{ST} offen lds")
    dma.n = 0
    H = opts.get('half', 3)
    for _ in range(opts.get('ldelay', 0)): a("s_sleep 2")
    stamp(a, opts, 1)
    setup(0)
    for k in range(10): dma(k)
    setup(STAGE)
    for k in range(H): dma(k)
    stamp(a, opts, 2)
    a(f"s_waitcnt vmcnt({H})")
    stamp(a, opts, 3)
    a("s_barrier")
    lp = a.label('ldloop')
    a(f"s_mov_b32 s{SSTG}, {2*STAGE}")
    a(f"s_mov_b32 s7, 0")
    a(f"{lp}:")
    for k in range(H, 10): dma(k)
    setup(f"s{SSTG}")
    for k in range(H): dma(k)
    if opts.get('tsl'):
        a("s_add_u32 s90, s7, 16"); stamp(a, opts, "s90")
    a(f"s_waitcnt vmcnt({H})")
    if opts.get('tsl'):
        a("s_add_u32 s90, s7, 24"); stamp(a, opts, "s90")
    if opts.get('tsb'):
        a("s_add_u32 s90, s7, 33"); stamp(a, opts, "s90")
    a("s_barrier")
    a(f"""
    s_add_u32 s{SSTG}, s{SSTG}, {STAGE}
    s_cmp_eq_u32 s{SSTG}, {3*STAGE}
    s_cselect_b32 s{SSTG}, 0, s{SSTG}
    s_add_u32 s7, s7, 1
    s_cmp_lt_u32 s7, 6
    s_cbranch_scc1 {lp}
    """)
    for k in range(H, 10): dma(k)
    stamp(a, opts, 4)
    from kerA_help import loader_tail_A
    loader_tail_A(a, opts, SJ, 10-H)

def stats_produce(a, opts):
    X = 8
    a(f"""
    s_setprio 3
    v_lshrrev_b32 v1, 5, v0
    v_lshlrev_b32 v1, 10, v1
    v_and_b32 v2, 31, v0
    v_lshlrev_b32 v2, 4, v2
    v_add_u32 v1, v1, v2
    s_lshl_b32 s7, s{S_RB}, 4
    s_add_u32 s7, s7, s{S_CT}
    s_lshl_b32 s7, s7, 3
    s_lshl_b32 s33, s{S_WAVE}, 1
    s_add_u32 s7, s7, s33           ; row0
    s_lshl_b32 s33, s7, 10
    v_add_u32 v1, s33, v1
    s_waitcnt lgkmcnt(0)
    global_load_dwordx4 {v(X,4)}, v1, s[{SP['x']}:{SP['x']+1}]
    global_load_dwordx4 {v(X+4,4)}, v1, s[{SP['x']}:{SP['x']+1}] offset:512
    s_setprio 0
    """)
    stamp(a, opts, 1)

def stats_finish(a, opts):
    from kerA_help import A_PUB as A_PUB_
    X = 8; U = 16
    a("s_waitcnt vmcnt(0)")
    for j in range(8):
        a(f"v_lshlrev_b32 v{U+2*j}, 16, v{X+j}")
        a(f"v_and_b32 v{U+2*j+1}, 0xffff0000, v{X+j}")
    a(f"v_add_f32 v2, v{U}, v{U+1}")
    a(f"v_add_f32 v3, v{U+2}, v{U+3}")
    for j in range(2, 8):
        a(f"v_add_f32 v{2+(j&1)}, v{2+(j&1)}, v{U+2*j}")
        a(f"v_add_f32 v{2+(j&1)}, v{2+(j&1)}, v{U+2*j+1}")
    def red32(r):
        a("s_nop 1")
        a(f"v_add_f32_dpp v{r}, v{r}, v{r} quad_perm:[1,0,3,2] row_mask:0xf bank_mask:0xf")
        a("s_nop 1")
        a(f"v_add_f32_dpp v{r}, v{r}, v{r} quad_perm:[2,3,0,1] row_mask:0xf bank_mask:0xf")
        a("s_nop 1")
        a(f"v_add_f32_dpp v{r}, v{r}, v{r} row_half_mirror row_mask:0xf bank_mask:0xf")
        a("s_nop 1")
        a(f"v_add_f32_dpp v{r}, v{r}, v{r} row_mirror row_mask:0xf bank_mask:0xf")
        a(f"v_mov_b32 v5, v{r}")
        a("s_nop 1")
        a(f"v_permlane16_swap_b32 v{r}, v5")
        a("s_nop 1")
        a(f"v_add_f32 v{r}, v{r}, v5")
    a("v_add_f32 v2, v2, v3")
    red32(2)
    a("v_mul_f32 v2, 0x3b000000, v2        ; mean")
    a("v_mov_b32 v3, 0")
    a("v_mov_b32 v4, 0")
    for i in range(16):
        a(f"v_sub_f32 v{U+i}, v{U+i}, v2")
    for i in range(16):
        a(f"v_fmac_f32 v{3+(i&1)}, v{U+i}, v{U+i}")
    a("v_add_f32 v4, v4, v3")
    red32(4)
    a(f"""
    v_mul_f32 v4, 0x3b000000, v4          ; var
    v_cvt_pk_bf16_f32 v2, v2, v4
    v_and_b32 v4, 0xffff0000, v2
    v_add_f32 v4, {hx(1e-5)}, v4
    v_cvt_pk_bf16_f32 v4, v4, v4
    v_and_b32 v4, 0xffff0000, v4
    v_sqrt_f32 v4, v4
    v_and_b32 v2, 0xffff, v2
    v_cvt_pk_bf16_f32 v4, v4, v4
    v_and_b32 v4, 0xffff0000, v4
    v_or_b32 v2, v2, v4
    v_lshrrev_b32 v1, 5, v0
    s_lshl_b32 s33, s{S_WAVE}, 1
    v_add_u32 v1, s33, v1
    v_lshlrev_b32 v1, 2, v1
    v_add_u32 v1, {A_PUB_}, v1
    ds_write_b32 v1, v2
    s_waitcnt lgkmcnt(0)
    """)

V_WF = 8
V_XF = 32
V_XA = 48
V_WA = 52
V_ACC = 64
def wf(st, mi): return V_WF + st*12 + mi*4
def xf(st, n): return V_XF + st*8 + n*4
def acc(mi, n): return V_ACC + (mi*2+n)*16

def gemm_A(a, opts):
    S_DELTA, S_STG, S_CNT, S_TW, S_FW = 25, 26, 27, 68, 69
    stats_produce(a, opts)
    a("s_mov_b32 s88, s7")
    if opts.get('aend') and not opts.get('earlypf', 1):
        pc = a.label('pc')
        a(f"""
        s_getpc_b64 s[74:75]
        {pc}:
        s_add_u32 s74, s74, {opts['abeg']}-{pc}
        s_addc_u32 s75, s75, -1
        s_lshr_b32 s76, s2, 3
        s_and_b32 s76, s76, 1
        s_lshl_b32 s76, s76, 2
        s_add_u32 s76, s76, s{S_WAVE}
        s_min_u32 s76, s76, {6 if opts.get('fused') else 5}
        s_lshl_b32 s76, s76, 12
        v_lshlrev_b32 v6, 6, v0
        v_add_u32 v6, s76, v6
        global_load_dword v7, v6, s[74:75]
        """)
    srd(a, SRD_T0, SP['ws'], WS_H_SZ, WS_H)
    a(f"""
    s_and_b32 s{S_TW}, s{S_WAVE}, 1
    s_lshr_b32 s{S_FW}, s{S_WAVE}, 1
    s_mov_b32 s30, {-2*STAGE & 0xffffffff}
    s_mov_b32 s31, {STAGE}
    v_and_b32 v1, 31, v0
    v_lshrrev_b32 v2, 5, v0
    v_lshrrev_b32 v3, 1, v1
    v_and_b32 v3, 7, v3
    s_lshl_b32 s7, s{S_TW}, 6
    v_add_u32 v4, s7, v1
    v_lshlrev_b32 v4, 7, v4
    """)
    for s_ in range(4):
        a(f"v_add_u32 v5, {2*s_}, v2")
        a(f"v_xor_b32 v5, v5, v3")
        a(f"v_lshlrev_b32 v5, 4, v5")
        a(f"v_add_u32 v{V_XA+s_}, v4, v5")
    a(f"""
    v_lshrrev_b32 v3, 4, v0
    v_and_b32 v3, 1, v3                    ; gu
    v_mul_u32_u24 v4, 12288, v3
    v_lshlrev_b32 v5, 9, v2
    v_add_u32 v4, v4, v5
    v_and_b32 v5, 15, v0
    v_lshrrev_b32 v6, 2, v5
    v_lshlrev_b32 v6, 6, v6
    v_add_u32 v4, v4, v6
    v_and_b32 v5, 3, v5
    v_lshlrev_b32 v5, 3, v5
    v_add_u32 v4, v4, v5
    v_add_u32 v4, 16384, v4
    s_mul_i32 s7, s{S_FW}, 3
    """)
    for mi in range(3):
        a(f"""
        s_add_u32 s32, s7, {mi}
        s_lshr_b32 s33, s32, 1
        s_lshl_b32 s33, s33, 12            ; P*4096
        s_and_b32 s32, s32, 1              ; b
        v_xor_b32 v5, s32, v3
        v_lshlrev_b32 v5, 5, v5
        v_add_u32 v5, s33, v5
        v_add_u32 v{V_WA+mi}, v4, v5
        """)
    for i in range(96): a(f"v_mov_b32 v{V_ACC+i}, 0")
    if opts.get('fused'):
        from kerF import F_SY
        a(f"""
        v_lshlrev_b32 v5, 2, v0
        v_add_u32 v5, {F_SY}, v5
        v_mov_b32 v6, 0
        s_mov_b64 exec, 0xffffffff
        ds_write_b32 v5, v6
        s_mov_b64 exec, -1
        """)
    a("s_mov_b32 s7, s88")
    stats_finish(a, opts)
    stamp(a, opts, 5)
    def reads(st, s_):
        r = []
        r.append(f"ds_read_b128 {v(xf(st,0),4)}, v{V_XA+s_}")
        for mi in range(3):
            off = s_*1024
            r.append(f"ds_read_b64_tr_b16 {v(wf(st,mi),2)}, v{V_WA+mi} offset:{off}")
            r.append(f"ds_read_b64_tr_b16 {v(wf(st,mi)+2,2)}, v{V_WA+mi} offset:{off+256}")
            if mi == 0:
                r.append(f"ds_read_b128 {v(xf(st,1),4)}, v{V_XA+s_} offset:4096")
        return r
    def step(st, rd, extra=()):
        mf = []
        for mi in range(3):
            for n in range(2):
                mf.append(f"v_mfma_f32_32x32x16_bf16 {v(acc(mi,n),16)}, {v(wf(st,mi),4)}, {v(xf(st,n),4)}, {v(acc(mi,n),16)}")
        rd = list(extra) + list(rd)
        cnts = opts.get('rdsched', (2,2,2,2,0,0))
        if extra: cnts = (4,4,3,3,0,0)
        slots = [[] for _ in range(6)]
        ri = 0
        for k, cnt in enumerate(cnts):
            slots[k] += rd[ri:ri+cnt]; ri += cnt
        slots[5] += rd[ri:]
        for k in range(6):
            if not opts.get('nomfma'): a(mf[k])
            elif opts.get('nomfma') == 2 and k % 2 == 0: a(mf[k])
            for l in slots[k]: a(l)
    stamp(a, opts, 2)
    a("s_barrier")
    stamp(a, opts, 3)
    stamp(a, opts, 12, real=True)
    for l in reads(0, 0): a(l)
    lp = a.label('gloop'); lend = a.label('gend')
    a(f"s_mov_b32 s{S_CNT}, 0")
    a(f"s_mov_b32 s{S_STG}, 0")
    a(f"{lp}:")
    for s_ in range(3):
        a("s_waitcnt lgkmcnt(0)")
        step(s_ & 1, reads((s_+1) & 1, s_+1))
    a("s_waitcnt lgkmcnt(0)")
    a(f"s_cmp_eq_u32 s{S_CNT}, 7")
    a(f"s_cbranch_scc1 {lend}")
    if opts.get('tsg'):
        a(f"s_add_u32 s90, s{S_CNT}, 16"); stamp(a, opts, "s90")
    a("s_barrier")
    if opts.get('tsg'):
        a(f"s_add_u32 s90, s{S_CNT}, 24"); stamp(a, opts, "s90")
    a(f"""
    s_add_u32 s{S_STG}, s{S_STG}, {STAGE}
    s_cmp_eq_u32 s{S_STG}, {3*STAGE}
    s_cselect_b32 s{S_DELTA}, s30, s31
    s_cselect_b32 s{S_STG}, 0, s{S_STG}
    s_add_u32 s{S_CNT}, s{S_CNT}, 1
    """)
    adv = [f"v_add_u32 v{V_XA+k}, s{S_DELTA}, v{V_XA+k}" for k in range(4)] + [f"v_add_u32 v{V_WA+k}, s{S_DELTA}, v{V_WA+k}" for k in range(3)]
    adv = [adv[0], adv[4], adv[5], adv[6], adv[1], adv[2], adv[3]]
    for l in adv[:4]: a(l)
    step(1, reads(0, 0) + adv[4:])
    a(f"s_branch {lp}")
    a(f"{lend}:")
    step(1, [])
    stamp(a, opts, 4)
    stamp(a, opts, 13, real=True)
    if opts.get('fused'):
        from kerF import F_GDN, F_CSR, lds_spin
        a(f"""
        v_mov_b32 v1, {F_GDN}
        v_mov_b32 v2, 1
        s_mov_b64 exec, 1
        ds_add_u32 v1, v2
        s_mov_b64 exec, -1
        """)
        lds_spin(a, [F_CSR])
    else:
        a("s_barrier")
    if opts.get('eprio'): a(f"s_setprio {opts['eprio']}")
    stamp(a, opts, 9)
    stamp(a, opts, 43, real=True)
    if opts.get('epi2'):
        a("s_mov_b32 s87, 0")
        a("L_epi_again:")
    a(f"""
    v_and_b32 v1, 31, v0
    s_lshl_b32 s7, s{S_TW}, 6
    v_add_u32 v1, s7, v1
    v_lshlrev_b32 v2, 3, v1
    v_add_u32 v2, {A_STATS}, v2
    ds_read_b64 v[8:9], v2
    ds_read_b64 v[10:11], v2 offset:256
    v_lshrrev_b32 v3, 5, v0
    v_lshlrev_b32 v3, 4, v3
    s_mul_i32 s7, s{S_FW}, 384
    s_add_u32 s7, s7, {A_CS}
    v_add_u32 v3, s7, v3
    v_lshlrev_b32 v4, 4, v0
    """)
    CSR = 32
    def cs_read(mi):
        for g in range(4):
            a(f"ds_read_b128 {v(CSR+4*g,4)}, v3 offset:{mi*128+g*32}")
    cs_read(0)
    K1 = -2*0.7978845608028654*1.4426950408889634
    a("s_waitcnt lgkmcnt(4)")
    for n in range(2):
        b = 12 + 8*n
        m_, s_ = 8+2*n, 9+2*n
        a(f"""
        v_mov_b32 v{b}, v{m_}
        v_rcp_f32 v1, v{s_}
        v_mul_f32 v{b+6}, v{s_}, v{s_}
        v_mul_f32 v{b+2}, {hx(K1)}, v1
        v_mul_f32 v2, v1, v1
        v_mul_f32 v2, {hx(0.044715)}, v2
        v_mul_f32 v{b+4}, v{b+2}, v2
        """)
    S_T0, S_T1, S_TT = 28, 29, 32
    a(f"""
    s_lshl_b32 s{S_TT}, s{S_RB}, 2
    s_lshl_b32 s7, s{S_TW}, 1
    s_add_u32 s{S_TT}, s{S_TT}, s7
    s_mul_i32 s{S_TT}, s{S_TT}, 86          ; (4rb+2tw)*86
    s_mul_i32 s{S_T0}, s{S_CT}, 6
    s_mul_i32 s7, s{S_FW}, 3
    s_add_u32 s{S_T0}, s{S_T0}, s7
    """)
    T = 48
    OUTS = (28, 160)
    for mi in range(3):
        skip = a.label('skip')
        a("s_waitcnt lgkmcnt(0)")
        for n in range(2):
            b = 12 + 8*n
            A = acc(mi, n)
            for p in range(8):
                a(f"v_pk_fma_f32 {v(A+2*p,2)}, {v(CSR+2*p,2)}, {v(b,2)}, {v(A+2*p,2)} op_sel_hi:[1,0,1] neg_lo:[0,1,0] neg_hi:[0,1,0]")
        if mi < 2: cs_read(mi+1)
        for p in range(4):
            regs = []
            for n in range(2):
                A = acc(mi, n); b = 12 + 8*n
                regs.append((A+2*p, A+8+2*p, b, T+8*n))
            for (g_, u_, b, t) in regs: a(f"v_pk_mul_f32 {v(t,2)}, {v(g_,2)}, {v(g_,2)}")
            for (g_, u_, b, t) in regs: a(f"v_pk_fma_f32 {v(t,2)}, {v(t,2)}, {v(b+4,2)}, {v(b+2,2)} op_sel_hi:[1,0,0]")
            for (g_, u_, b, t) in regs: a(f"v_pk_mul_f32 {v(t,2)}, {v(t,2)}, {v(g_,2)}")
            for (g_, u_, b, t) in regs: a(f"v_pk_mul_f32 {v(t+2,2)}, {v(g_,2)}, {v(u_,2)}")
            for (g_, u_, b, t) in regs:
                a(f"v_exp_f32 v{t}, v{t}")
                a(f"v_exp_f32 v{t+1}, v{t+1}")
            for (g_, u_, b, t) in regs: a(f"v_pk_fma_f32 {v(t,2)}, {v(t,2)}, {v(b+6,2)}, {v(b+6,2)} op_sel_hi:[1,0,0]")
            for (g_, u_, b, t) in regs:
                a(f"v_rcp_f32 v{t}, v{t}")
                a(f"v_rcp_f32 v{t+1}, v{t+1}")
            for (g_, u_, b, t) in regs: a(f"v_pk_mul_f32 {v(t+2,2)}, {v(t+2,2)}, {v(t,2)}")
            for n, (g_, u_, b, t) in enumerate(regs): a(f"v_cvt_pk_bf16_f32 v{OUTS[n]+p}, v{t+2}, v{t+3}")
        a(f"s_add_u32 s7, s{S_T0}, {mi}")
        a(f"s_cmp_ge_u32 s7, 86")
        a(f"s_cbranch_scc1 {skip}")
        a(f"s_add_u32 s7, s7, s{S_TT}")
        a(f"s_lshl_b32 s7, s7, 10")
        sc = " sc1" if opts.get('fused') else ""
        a(f"buffer_store_dwordx4 {v(OUTS[0],4)}, v4, s[{SRD_T0}:{SRD_T0+3}], s7 offen{sc}")
        a(f"s_add_u32 s7, s7, {86*1024}")
        a(f"buffer_store_dwordx4 {v(OUTS[1],4)}, v4, s[{SRD_T0}:{SRD_T0+3}], s7 offen{sc}")
        a(f"{skip}:")
        a("s_nop 1")
    if opts.get('epi2'):
        a("s_add_u32 s90, s87, 14"); stamp(a, opts, "s90")
        a("s_add_u32 s87, s87, 1")
        a("s_cmp_lt_u32 s87, 2")
        a("s_cbranch_scc1 L_epi_again")
    stamp(a, opts, 6)
    stamp(a, opts, 44, real=True)
    if opts.get('fused'):
        from kerF import gpub_F
        gpub_F(a, opts)
        return
    if opts.get('ts'): a("s_waitcnt vmcnt(0)")
    stamp(a, opts, 8)
    stamp(a, opts, 7, real=True)
    stamp_flush(a, opts, 0)
    a("s_endpgm")

from kerA_help import helper_A, loader_tail_A, A_M, A_R, A_PUB, A_LDS as A_LDS2

def gen_A(a, name, opts):
    a(kernel_head(name))
    if opts.get('cpf', 1):
        opts = dict(opts); opts['abeg'] = name; opts['aend'] = 1
    lend = a.label('endA')
    prologue_A(a, lend, opts)
    lab = {k: a.label(k) for k in ('g','ld','h')}
    a(f"""
    s_cmp_lt_u32 s{S_WAVE}, 4
    s_cbranch_scc1 {lab['g']}
    s_cmp_ge_u32 s{S_WAVE}, 8
    s_cbranch_scc1 {lab['h']}
    """)
    loader_A(a, opts)
    a(f"{lab['h']}:"); helper_A(a, opts)
    a(f"{lab['g']}:"); gemm_A(a, opts)
    a(f"{lend}:")
    a("s_endpgm")
    a(kernel_desc(name, 168))
```

```python
from core import *
import struct
def f2u(x): return struct.unpack('<I', struct.pack('<f', x))[0]
def hx(x): return hex(f2u(x))
STAGE = 40960
A_KT = 3*STAGE; A_STATS = A_KT + 32768; A_CS = A_STATS + 1024
A_M = A_CS + 768; A_R = A_M + 512; A_PUB = A_R + 512; A_LDS = A_PUB + 64
S_WAVE, S_RB, S_CT, S_ROT = 3, 4, 5, 6
SRD_X, SRD_WG, SRD_WU, SRD_T0, SRD_T1, SRD_T2 = 8, 12, 16, 20, 24, 28
LOG2E = 1.4426950408889634
INV2PI = 0.15915494309189535

def cmul(a, dst, p, q, tmp):
    a(f"v_pk_mul_f32 {v(tmp,2)}, {v(p,2)}, {v(q,2)} op_sel:[0,0] op_sel_hi:[0,1]")
    a(f"v_pk_fma_f32 {v(dst,2)}, {v(p,2)}, {v(q,2)}, {v(tmp,2)} op_sel:[1,1,0] op_sel_hi:[1,0,1] neg_lo:[1,0,0]")

def kgen(a, opts):
    S_W, S_TB = 68, 69
    A2, B2, W, Z1, Z2, Z4, Z8, Z16, Z256 = 16, 17, 18, 20, 22, 24, 26, 28, 30
    C0, C1, T0, T1, BH = 32, 34, 36, 38, 40
    WA, RA, VF, UF, ACC = 44, 48, 56, 72, 80
    WB = 144
    PK = 112
    a(f"""
    s_setprio 3
    s_sub_u32 s{S_W}, s{S_WAVE}, 8
    s_lshr_b32 s7, s{S_W}, 1
    s_lshl_b32 s32, s2, 1
    s_add_u32 s32, s32, s7              ; channel d
    s_and_b32 s7, s{S_W}, 1
    s_lshl_b32 s7, s7, 7
    s_lshl_b32 s33, s32, 8              ; d*128*2
    s_add_u32 s33, s33, s7
    v_lshlrev_b32 v1, 1, v0
    v_add_u32 v1, s33, v1
    s_lshl_b32 s34, s32, 1              ; d*2
    v_mov_b32 v2, s34
    s_lshl_b32 s{S_TB}, s{S_W}, 13
    s_add_u32 s{S_TB}, s{S_TB}, {A_KT}
    s_waitcnt lgkmcnt(0)
    """)
    names = ['are','aim','bre','bim','cre','cim']
    for i, nme in enumerate(names):
        a(f"global_load_ushort v{8+i}, v1, s[{SP[nme]}:{SP[nme]+1}]")
    a(f"global_load_ushort v14, v2, s[{SP['logdt']}:{SP['logdt']+1}]")
    if opts.get('fused'): a(f"global_load_ushort v151, v2, s[{SP['dskip']}:{SP['dskip']+1}]")
    stamp(a, opts, 1)
    nn = a.label('nononce')
    a(f"""
    s_or_b32 s7, s2, s{S_W}
    s_cmp_lg_u32 s7, 0
    s_cbranch_scc1 {nn}
    s_memrealtime s[70:71]
    v_mov_b32 v2, 0
    s_waitcnt lgkmcnt(0)
    s_or_b32 s70, s70, 1
    v_mov_b32 v4, s70
    v_mov_b32 v5, s71
    s_mov_b64 exec, 1
    global_store_dwordx2 v2, v[4:5], s[{SP['dbg']}:{SP['dbg']+1}] sc1
    v_mov_b32 v2, {WS_NONCE}
    global_store_dwordx2 v2, v[4:5], s[{SP['ws']}:{SP['ws']+1}]
    s_mov_b64 exec, -1
    {nn}:
    """)
    stamp(a, opts, 9)
    grab_setup(a, opts)
    a("v_mov_b32 v150, 0")
    a(f"""
    v_lshrrev_b32 v3, 4, v0
    v_lshrrev_b32 v4, 2, v0
    v_and_b32 v4, 3, v4                  ; q (write)
    v_and_b32 v5, 3, v0                  ; e
    v_lshlrev_b32 v6, 10, v3
    v_lshlrev_b32 v5, 2, v5
    v_add_u32 v6, v6, v5
    v_add_u32 v6, s{S_TB}, v6
    """)
    for g in range(4):
        a(f"v_xor_b32 v5, {(4-g)&3}, v4")
        a(f"v_lshlrev_b32 v5, 4, v5")
        a(f"v_add_u32 v{WA+g}, v6, v5")
        a(f"v_add_u32 v{WB+g}, 4096, v{WA+g}")
    a("v_and_b32 v4, 15, v0               ; c")
    def raddr(dst, shift, base):
        if shift == 0:
            a(f"v_mov_b32 v5, v4")
        else:
            a(f"v_lshrrev_b32 v5, {shift}, v4")
            a(f"v_and_b32 v5, 1, v5")
            a(f"v_add_u32 v5, v5, v4")
            if shift > 1: a(f"v_add_u32 v5, {(1<<(shift-1))-1}, v5")
            a(f"v_lshrrev_b32 v5, {shift}, v5")
        if base: a(f"v_add_u32 v5, {base}, v5")
        a(f"v_lshrrev_b32 v6, 2, v5")
        a(f"v_sub_u32 v6, 4, v6")
        a(f"v_and_b32 v6, 3, v6")
        a(f"v_xor_b32 v6, v6, v3")
        a(f"v_lshlrev_b32 v6, 4, v6")
        a(f"v_lshlrev_b32 v5, 6, v5")
        a(f"v_add_u32 v5, v5, v6")
        a(f"v_add_u32 v{dst}, s{S_TB}, v5")
    cfg = [(0,0),(1,0),(2,9),(2,0),(3,5),(3,8),(3,11),(3,0)]
    for T,(sh,b) in enumerate(cfg): raddr(RA+T, sh, b)
    for i in range(32): a(f"v_mov_b32 v{ACC+i}, 0")
    stamp(a, opts, 11)
    a("s_waitcnt vmcnt(0)")
    stamp(a, opts, 2)
    for i in range(7): a(f"v_lshlrev_b32 v{8+i}, 16, v{8+i}")
    a(f"""
    v_mul_f32 v14, {hx(LOG2E)}, v14
    v_exp_f32 v14, v14
    s_nop 0
    v_cvt_pk_bf16_f32 v14, v14, v14
    v_and_b32 v14, 0xffff0000, v14
    v_mul_f32 v8, v14, v8
    v_mul_f32 v9, v14, v9
    v_mul_f32 v10, v14, v10               ; dB_re
    v_mul_f32 v11, v14, v11               ; dB_im
    v_mul_f32 v{A2}, {hx(LOG2E)}, v8
    v_mul_f32 v{B2}, {hx(INV2PI)}, v9
    v_mul_f32 v{W}, v12, v10
    v_mul_f32 v{W+1}, v12, v11
    v_fma_f32 v{W}, -v13, v11, v{W}
    v_fma_f32 v{W+1}, v13, v10, v{W+1}
    """)
    def zpow(dst, c):
        cf = hx(float(c))
        a(f"""
        v_mul_f32 v1, {cf}, v{A2}
        v_mul_f32 v2, {cf}, v{B2}
        v_exp_f32 v1, v1
        v_fract_f32 v2, v2
        v_cos_f32 v5, v2
        v_sin_f32 v6, v2
        s_nop 0
        v_mul_f32 v{dst}, v1, v5
        v_mul_f32 v{dst+1}, v1, v6
        """)
    zpow(Z1, 1); zpow(Z16, 16); zpow(Z256, 256)
    cmul(a, Z2, Z1, Z1, T0); cmul(a, Z4, Z2, Z2, T0); cmul(a, Z8, Z4, Z4, T0)
    if opts.get('tsk'): stamp(a, opts, 11)
    pkc = [0]
    pend = {}
    def put(row, buf, reg, conj=False, last=False):
        r = PK + (pkc[0] & 7); pkc[0] += 1
        if conj: a(f"v_cvt_pk_bf16_f32 v{r}, v{reg}, -v{reg+1}")
        else:    a(f"v_cvt_pk_bf16_f32 v{r}, v{reg}, v{reg+1}")
        wa = (WA if buf == 0 else WB) + (row >> 2)
        if (row & 1) and (buf, row-1) in pend:
            r0 = pend.pop((buf, row-1))
            a(f"ds_write2_b32 v{wa}, v{r0}, v{r} offset0:{(row-1)*16} offset1:{row*16}")
        elif (row & 1) or last:
            a(f"ds_write_b32 v{wa}, v{r} offset:{row*64}")
        else:
            pend[(buf, row)] = r
    def flush():
        assert not pend
    def rd(dst, T, buf, kap):
        a(f"ds_read_b128 {v(dst,4)}, v{RA+T} offset:{buf*4096 + kap*1024}")
    a(f"v_mov_b32 v{C0}, 1.0")
    a(f"v_mov_b32 v{C0+1}, 0")
    a(f"v_mov_b32 v{C1}, v{W}")
    a(f"v_mov_b32 v{C1+1}, v{W+1}")
    for j in range(16):
        put(j, 0, C0, conj=True)
        put(j, 1, C1)
        if j < 15:
            a(f"v_pk_mul_f32 {v(T0,2)}, {v(C0,2)}, {v(Z16,2)} op_sel:[0,0] op_sel_hi:[0,1]")
            a(f"v_pk_mul_f32 {v(T1,2)}, {v(C1,2)}, {v(Z1,2)} op_sel:[0,0] op_sel_hi:[0,1]")
            a(f"v_pk_fma_f32 {v(C0,2)}, {v(C0,2)}, {v(Z16,2)}, {v(T0,2)} op_sel:[1,1,0] op_sel_hi:[1,0,1] neg_lo:[1,0,0]")
            a(f"v_pk_fma_f32 {v(C1,2)}, {v(C1,2)}, {v(Z1,2)}, {v(T1,2)} op_sel:[1,1,0] op_sel_hi:[1,0,1] neg_lo:[1,0,0]")
    if opts.get('tsk'): stamp(a, opts, 12)
    for kap in range(4): rd(VF+4*kap, 0, 0, kap)
    def chain(rows, buf, start, mult, n):
        a(f"v_mov_b32 v{C0}, v{start}")
        a(f"v_mov_b32 v{C0+1}, v{start+1}")
        for i in range(n):
            put(rows+i, buf, C0, last=(i == n-1))
            if i < n-1: cmul(a, C0, C0, mult, T0)
    def two_chains(specs):
        regs = [(C0,T0),(C1,T1)]
        for (r0,b,st,m,n),(c,t) in zip(specs, regs):
            a(f"v_mov_b32 v{c}, v{st}")
            a(f"v_mov_b32 v{c+1}, v{st+1}")
        nmax = max(sp[4] for sp in specs)
        for i in range(nmax):
            for (r0,b,st,m,n),(c,t) in zip(specs, regs):
                if i < n: put(r0+i, b, c, last=(i == n-1))
            for (r0,b,st,m,n),(c,t) in zip(specs, regs):
                if i < n-1: a(f"v_pk_mul_f32 {v(t,2)}, {v(c,2)}, {v(m,2)} op_sel:[0,0] op_sel_hi:[0,1]")
            for (r0,b,st,m,n),(c,t) in zip(specs, regs):
                if i < n-1: a(f"v_pk_fma_f32 {v(c,2)}, {v(c,2)}, {v(m,2)}, {v(t,2)} op_sel:[1,1,0] op_sel_hi:[1,0,1] neg_lo:[1,0,0]")
    def mm(T, buf):
        for kap in range(4): rd(UF + 0, T, buf, kap) if False else None
    BH2 = 42
    cmul(a, BH, W, Z256, T0)
    cmul(a, BH2, BH, Z256, T0)
    two_chains([(0,0,BH,Z2,9),(9,0,BH2,Z4,5)])
    flush()
    UFS = [[72, 76, 120, 124], [128, 132, 136, 140]]
    def rdtile(T, buf, st):
        for kap in range(4): rd(UFS[st][kap], T, buf, kap)
    def mmt(T, st, later):
        a(f"s_waitcnt lgkmcnt({min(later,15)})")
        for kap in range(4):
            a(f"v_mfma_f32_16x16x32_bf16 {v(ACC+4*T,4)}, {v(UFS[st][kap],4)}, {v(VF+4*kap,4)}, {v(ACC+4*T,4)}")
    if opts.get('tsk'): stamp(a, opts, 13)
    rdtile(0, 1, 0)
    rdtile(1, 0, 1)
    mmt(0, 0, 4)
    rdtile(2, 0, 0)
    cmul(a, BH, BH2, Z256, T0)
    cmul(a, BH2, BH, Z256, T0)
    two_chains([(0,1,BH,Z4,5),(5,1,BH2,Z8,3)])
    cmul(a, BH, BH2, Z256, T0)
    cmul(a, BH2, BH, Z256, T0)
    two_chains([(8,1,BH,Z8,3),(11,1,BH2,Z8,3)])
    flush()
    def seg0():
        a("s_waitcnt lgkmcnt(0)")
        for T, st in ((1,1),(2,0)):
            for kap in range(4):
                a(f"v_mfma_f32_16x16x32_bf16 {v(ACC+4*T,4)}, {v(UFS[st][kap],4)}, {v(VF+4*kap,4)}, {v(ACC+4*T,4)}")
        rdtile(3, 1, 0)
        rdtile(4, 1, 1)
        cmul(a, BH, BH2, Z256, T0)
        chain(0, 0, BH, Z8, 3)
        flush()
        mmt(3, 0, 6)
    def seg1():
        rdtile(5, 1, 0)
        mmt(4, 1, 4)
        rdtile(6, 1, 1)
        mmt(5, 0, 4)
        rdtile(7, 0, 0)
        mmt(6, 1, 4)
    def seg2():
        mmt(7, 0, 0)
    return seg0, seg1, seg2

V_SL = 154
def grab(a, opts, c):
    if opts.get('hk',0) & 64: return
    skip = a.label('ng')
    a(f"s_cmp_lg_u32 s77, {c}")
    a(f"s_cbranch_scc1 {skip}")
    stg = (c % 3)*STAGE
    for r in range(2):
        for e in range(2):
            a(f"ds_read_b64_tr_b16 {v(V_SL+4*r+2*e,2)}, v{162+e} offset:{r*4096 + e*512 + (stg if stg < 49152 else 0)}") if stg < 49152 else None
    if stg >= 49152:
        a(f"v_add_u32 v162, {stg}, v162")
        a(f"v_add_u32 v163, {stg}, v163")
        for r in range(2):
            for e in range(2):
                a(f"ds_read_b64_tr_b16 {v(V_SL+4*r+2*e,2)}, v{162+e} offset:{r*4096 + e*512}")
    a("s_waitcnt lgkmcnt(0)")
    a(f"{skip}:")

def grab_setup(a, opts):
    S_W = 68
    a(f"""
    s_lshr_b32 s77, s{S_CT}, 3
    v_and_b32 v1, 15, v0
    v_lshrrev_b32 v2, 2, v1              ; r'
    v_and_b32 v1, 3, v1                  ; c'
    v_lshrrev_b32 v3, 4, v0              ; G
    s_bfe_u32 s7, s{S_CT}, 0x10002
    s_lshl_b32 s7, s7, 1
    s_and_b32 s33, s{S_W}, 1
    s_add_u32 s7, s7, s33
    s_lshl_b32 s7, s7, 1
    v_lshrrev_b32 v6, 1, v1
    v_add_u32 v5, s7, v6                 ; granule
    v_and_b32 v6, 1, v3
    v_lshlrev_b32 v6, 2, v6              ; 4 (G&1)
    v_lshrrev_b32 v7, 1, v2
    v_add_u32 v6, v6, v7                 ; + (r'>>1)   (e=0)
    v_lshlrev_b32 v7, 3, v3              ; 8 G
    v_add_u32 v7, v7, v2                 ; + r'
    s_lshr_b32 s7, s{S_W}, 1
    s_lshl_b32 s7, s7, 6                 ; 64 th
    v_add_u32 v7, s7, v7
    v_lshlrev_b32 v7, 7, v7              ; row*128
    v_and_b32 v1, 1, v1
    v_lshlrev_b32 v1, 3, v1              ; (c'&1)*8
    v_add_u32 v7, v7, v1
    v_xor_b32 v1, v5, v6
    v_lshlrev_b32 v1, 4, v1
    v_add_u32 v162, v7, v1
    v_add_u32 v6, 2, v6                  ; e=1 : +2
    v_xor_b32 v1, v5, v6
    v_lshlrev_b32 v1, 4, v1
    v_add_u32 v163, v7, v1
    """)

def helper_A(a, opts):
    S_W, S_TB = 68, 69
    ACC = 80
    seg0, seg1, seg2 = kgen(a, opts)
    lab = {k: a.label('h'+k) for k in ('0','1','2','3','odd','even','nf','rest','fin')}
    a(f"""
    s_cmp_lg_u32 s{S_W}, 1
    s_cbranch_scc1 {lab['0']}
    global_load_dwordx2 v[152:153], v150, s[{SP['dbg']}:{SP['dbg']+1}] sc1
    {lab['0']}:
    """)
    a("s_setprio 0")
    stamp(a, opts, 3)
    bar(a, opts, 0)
    stamp(a, opts, 4)
    grab(a, opts, 0)
    a("s_setprio 2")
    seg0()
    a("s_setprio 0")
    a(f"""
    s_cmp_lg_u32 s{S_W}, 1
    s_cbranch_scc1 {lab['nf']}
    v_lshlrev_b32 v1, 2, v0
    v_add_u32 v1, {A_PUB}, v1
    ds_read_b32 v4, v1
    s_waitcnt vmcnt(0)
    """)
    nonce_check(a, 152)
    srd(a, SRD_T1, SP['ws'], 2048*8, WS_STAT)
    a(f"""
    s_lshl_b32 s32, s{S_RB}, 4
    s_add_u32 s32, s32, s{S_CT}
    s_lshl_b32 s32, s32, 6
    v_lshlrev_b32 v1, 3, v0
    v_mov_b32 v5, s70
    s_waitcnt lgkmcnt(0)
    s_mov_b64 exec, 0xff
    s_setprio 3
    buffer_store_dwordx2 v[4:5], v1, s[{SRD_T1}:{SRD_T1+3}], s32 offen sc1
    s_setprio 0
    s_mov_b64 exec, -1
    {lab['nf']}:
    """)
    bar(a, opts, 1)
    grab(a, opts, 1)
    a("s_setprio 2")
    seg1()
    a("s_setprio 0")
    a("s_waitcnt lgkmcnt(0)")
    bar(a, opts, 2)
    grab(a, opts, 2)
    a("s_setprio 2")
    seg2()
    a(f"s_cmp_lg_u32 s{S_W}, 1")
    a(f"s_cbranch_scc1 {lab['rest']}")
    if not opts.get('hk',0) & 16: colsum_A(a, opts)
    a(f"{lab['rest']}:")
    a("s_setprio 0")
    for c in range(3, 8):
        bar(a, opts, c)
        grab(a, opts, c)
    a(f"""
    s_and_b32 s7, s{S_W}, 1
    s_cmp_eq_u32 s7, 0
    s_cbranch_scc1 {lab['even']}
    v_lshlrev_b32 v1, 4, v0
    v_add_u32 v1, s{S_TB}, v1
    """)
    for T in range(8):
        a(f"ds_write_b128 v1, {v(ACC+4*T,4)} offset:{T*1024}")
    a("s_waitcnt lgkmcnt(0)")
    a(f"{lab['even']}:")
    xnt_setup(a, opts)
    bar(a, opts, 8)
    if opts.get('fused'):
        from kerF import conv_F
        conv_F(a, opts)
        return
    a(f"""
    s_and_b32 s7, s{S_W}, 1
    s_cmp_eq_u32 s7, 1
    s_cbranch_scc1 {lab['fin']}
    """)
    srd(a, SRD_T1, SP['ws'], WS_K_SZ, WS_K)
    a(f"""
    v_lshlrev_b32 v1, 4, v0
    v_add_u32 v1, s{S_TB}, v1
    """)
    for T in range(8):
        a(f"ds_read_b128 {v(16+4*T,4)}, v1 offset:{8192 + T*1024}")
    a(f"""
    v_and_b32 v2, 15, v0
    v_lshlrev_b32 v2, 5, v2               ; 32*j
    v_lshrrev_b32 v3, 4, v0
    v_lshlrev_b32 v3, 3, v3               ; 8*q
    v_add_u32 v2, v2, v3
    v_sub_u32 v2, 4088, v2
    s_lshr_b32 s7, s{S_W}, 1
    s_lshl_b32 s34, s2, 1
    s_add_u32 s34, s34, s7
    s_mul_i32 s34, s34, {K_STRIDE}
    v_mov_b32 v4, 0
    v_mov_b32 v5, 0
    v_lshlrev_b32 v6, 3, v0
    v_add_u32 v6, 4096, v6
    s_mov_b64 exec, 0xff
    buffer_store_dwordx2 v[4:5], v6, s[{SRD_T1}:{SRD_T1+3}], s34 offen
    s_mov_b64 exec, -1
    """)
    for T in range(8):
        a(f"s_waitcnt lgkmcnt({7-T})")
        for i in range(4):
            a(f"v_add_f32 v{ACC+4*T+i}, v{ACC+4*T+i}, v{16+4*T+i}")
        a(f"v_cvt_pk_bf16_f32 v{48+2*T}, v{ACC+4*T+3}, v{ACC+4*T+2}")
        a(f"v_cvt_pk_bf16_f32 v{49+2*T}, v{ACC+4*T+1}, v{ACC+4*T}")
    for T in range(8):
        if T: a(f"v_subrev_u32 v2, 512, v2")
        a(f"buffer_store_dwordx2 {v(48+2*T,2)}, v2, s[{SRD_T1}:{SRD_T1+3}], s34 offen")
    stamp(a, opts, 5)
    a(f"{lab['fin']}:")
    xnt_A(a, opts)

def nonce_check(a, vreg):
    lp = a.label('npoll'); ok = a.label('nok')
    a(f"""
    s_mov_b32 s7, 0
    {lp}:
    v_readfirstlane_b32 s70, v{vreg}
    v_readfirstlane_b32 s71, v{vreg+1}
    s_add_u32 s7, s7, 1
    s_cmp_lg_u32 s70, 0
    s_cbranch_scc1 {ok}
    s_cmp_gt_u32 s7, 200000
    s_cbranch_scc1 {ok}
    global_load_dwordx2 v[{vreg}:{vreg+1}], v150, s[{SP['dbg']}:{SP['dbg']+1}] sc1
    s_waitcnt vmcnt(0)
    s_branch {lp}
    {ok}:
    """)

def colsum_A(a, opts):
    WA0, SEL, FR, AC, G = 8, 12, 16, 112, 16
    a("s_setprio 3")
    a(f"""
    v_lshrrev_b32 v2, 5, v0                ; h
    v_lshrrev_b32 v3, 4, v0
    v_and_b32 v3, 1, v3                    ; gu
    v_mul_u32_u24 v4, 12288, v3
    v_lshlrev_b32 v5, 9, v2
    v_add_u32 v4, v4, v5
    v_and_b32 v5, 15, v0
    v_lshrrev_b32 v6, 2, v5
    v_lshlrev_b32 v6, 6, v6
    v_add_u32 v4, v4, v6
    v_and_b32 v5, 3, v5
    v_lshlrev_b32 v5, 3, v5
    v_add_u32 v4, v4, v5
    s_lshr_b32 s7, s{S_RB}, 3
    s_lshl_b32 s7, s7, 11
    s_add_u32 s7, s7, {16384 + 2*STAGE}
    v_add_u32 v4, s7, v4
    v_lshlrev_b32 v5, 5, v3
    v_add_u32 v{WA0}, v4, v5               ; b=0
    v_xor_b32 v5, 32, v5
    v_add_u32 v{WA0+1}, v4, v5             ; b=1
    """)
    for m in range(6):
        P, b = m >> 1, m & 1
        for s_ in range(2):
            f = FR + (m*2+s_)*4
            a(f"ds_read_b64_tr_b16 {v(f,2)}, v{WA0+b} offset:{P*4096 + s_*1024}")
            a(f"ds_read_b64_tr_b16 {v(f+2,2)}, v{WA0+b} offset:{P*4096 + s_*1024 + 256}")
    a(f"""
    v_and_b32 v5, 15, v0
    v_cmp_eq_u32 vcc, v5, v3
    v_mov_b32 v6, 0x3f803f80
    v_mov_b32 v7, 0
    v_cndmask_b32 v{SEL}, v7, v6, vcc
    v_mov_b32 v{SEL+1}, v{SEL}
    v_mov_b32 v{SEL+2}, v{SEL}
    v_mov_b32 v{SEL+3}, v{SEL}
    """)
    for i in range(24): a(f"v_mov_b32 v{AC+i}, 0")
    srd(a, SRD_T0, SP['ws'], 16*16*1024, WS_CSP)
    a("s_waitcnt lgkmcnt(0)")
    for s_ in range(2):
        for m in range(6):
            f = FR + (m*2+s_)*4
            a(f"v_mfma_f32_16x16x32_bf16 {v(AC+4*m,4)}, {v(f,4)}, {v(SEL,4)}, {v(AC+4*m,4)}")
    a(f"""
    v_and_b32 v5, 15, v0
    v_lshlrev_b32 v1, 6, v5                ; col*64
    v_lshrrev_b32 v2, 4, v0
    v_lshlrev_b32 v2, 4, v2                ; q*16
    v_add_u32 v1, v1, v2
    s_lshl_b32 s7, s{S_CT}, 4
    s_add_u32 s7, s7, s{S_RB}
    s_lshl_b32 s33, s7, 10
    v_cmp_gt_u32 vcc, 2, v5
    s_nop 3
    """)
    for g in range(8): a(f"v_mov_b32 v{G+4*g+3}, s70")
    for e in range(24): a(f"v_mov_b32 v{G+4*(e//3)+(e%3)}, v{AC+e}")
    a("s_and_saveexec_b64 s[34:35], vcc")
    for g in range(8):
        a(f"buffer_store_dwordx4 {v(G+4*g,4)}, v1, s[{SRD_T0}:{SRD_T0+3}], s33 offen offset:{g*128} sc1")
    a("s_mov_b64 exec, s[34:35]")
    stamp(a, opts, 6)

def xnt_setup(a, opts):
    S_W = 68
    srd(a, SRD_T0, SP['ws'], WS_XT_SZ, WS_XT)
    a(f"""
    v_lshrrev_b32 v3, 4, v0              ; G
    v_and_b32 v1, 15, v0
    s_and_b32 s7, s{S_W}, 1
    s_lshl_b32 s7, s7, 4
    v_add_u32 v1, s7, v1
    v_lshlrev_b32 v1, 12, v1
    v_lshlrev_b32 v5, 4, v3
    v_add_u32 v8, v1, v5
    s_lshl_b32 s32, s{S_CT}, 17
    s_lshl_b32 s33, s{S_RB}, 8
    s_add_u32 s32, s32, s33
    s_lshr_b32 s7, s{S_W}, 1
    s_lshl_b32 s33, s7, 7
    s_add_u32 s32, s32, s33
    v_lshlrev_b32 v9, 5, v3              ; 8 G * 4B
    s_lshl_b32 s33, s7, 8                ; 64 th * 4B
    s_add_u32 s33, s33, {A_M}
    v_add_u32 v9, s33, v9
    """)

def xnt_A(a, opts):
    xnt_body(a, opts, "")
    stamp(a, opts, 8)
    stamp(a, opts, 7, real=True)
    if opts.get('ts'): a("s_waitcnt vmcnt(0)")
    stamp_flush(a, opts, 0)
    a("s_endpgm")

def xnt_body(a, opts, sc):
    S_W = 68
    for r in range(2):
        M, R_ = 16 + 16*r, 24 + 16*r
        a(f"ds_read_b128 {v(M,4)}, v9 offset:{r*128}")
        a(f"ds_read_b128 {v(M+4,4)}, v9 offset:{r*128+16}")
        a(f"ds_read_b128 {v(R_,4)}, v9 offset:{512 + r*128}")
        a(f"ds_read_b128 {v(R_+4,4)}, v9 offset:{512 + r*128+16}")
    for r in range(2):
        M, R_ = 16 + 16*r, 24 + 16*r
        U = 48 + 16*r
        X = V_SL + 4*r
        for j in range(4):
            a(f"v_lshlrev_b32 v{U+2*j}, 16, v{X+j}")
            a(f"v_and_b32 v{U+2*j+1}, 0xffff0000, v{X+j}")
        a(f"s_waitcnt lgkmcnt({4*(1-r)})")
        for j in range(4): a(f"v_pk_add_f32 {v(U+2*j,2)}, {v(U+2*j,2)}, {v(M+2*j,2)} neg_lo:[0,1] neg_hi:[0,1]")
        for j in range(4): a(f"v_cvt_pk_bf16_f32 v{U+8+j}, v{U+2*j}, v{U+2*j+1}")
        for j in range(4):
            a(f"v_lshlrev_b32 v{U+2*j}, 16, v{U+8+j}")
            a(f"v_and_b32 v{U+2*j+1}, 0xffff0000, v{U+8+j}")
        for j in range(4): a(f"v_pk_mul_f32 {v(U+2*j,2)}, {v(U+2*j,2)}, {v(R_+2*j,2)}")
        for j in range(4): a(f"v_cvt_pk_bf16_f32 v{U+8+j}, v{U+2*j}, v{U+2*j+1}")
        a(f"buffer_store_dwordx4 {v(U+8,4)}, v8, s[{SRD_T0}:{SRD_T0+3}], s32 offen offset:{r*64}{sc}")

def loader_tail_A(a, opts, SJ, nrem):
    l0 = a.label('l0')
    a(f"s_cmp_eq_u32 s{SJ}, {opts.get('lgather', 3)}")
    a(f"s_cbranch_scc1 {l0}")
    a("s_waitcnt vmcnt(0)")
    bar(a, opts, 7)
    if opts.get('fused'):
        a(f"s_branch {opts['lg2']}")
    else:
        stamp(a, opts, 7, real=True)
        stamp_flush(a, opts, 0)
        a("s_endpgm")
    from kerF import F_NON
    a(f"{l0}:")
    srd(a, SRD_T1, SP['ws'], 16*16*1024, WS_CSP)
    a(f"""
    v_mov_b32 v1, {F_NON}
    ds_read_b64 v[152:153], v1
    v_lshlrev_b32 v8, 4, v0
    s_lshl_b32 s73, s{S_CT}, 14            ; 16 parts * 1024
    """)
    def issue():
        for p in range(16):
            if p*1024 < 4096:
                a(f"buffer_load_dwordx4 {v(16+4*p,4)}, v8, s[{SRD_T1}:{SRD_T1+3}], s73 offen offset:{p*1024} sc1")
            else:
                a(f"s_add_u32 s74, s73, {p*1024}")
                a(f"buffer_load_dwordx4 {v(16+4*p,4)}, v8, s[{SRD_T1}:{SRD_T1+3}], s74 offen sc1")
    if opts.get('lgprio'): a("s_setprio 3")
    issue()
    npf = 0
    if not opts.get('nopf') and opts.get('pfmode',0) == 0:
        if opts.get('map2', 1) == 0:
            a(f"""
            s_lshr_b32 s74, s2, 3
            s_mul_i32 s74, s74, {43*1024}
            v_lshlrev_b32 v9, 7, v0
            v_add_u32 v9, s74, v9
            """)
            npf = opts.get('npf', 6); step = 8192
        else:
            a(f"""
            s_lshr_b32 s74, s2, 3
            s_mul_i32 s74, s74, {43*1024}
            s_and_b32 s75, s2, 1
            s_lshl_b32 s75, s75, 9
            s_add_u32 s74, s74, s75
            v_lshrrev_b32 v9, 2, v0
            v_lshlrev_b32 v9, 10, v9
            v_and_b32 v10, 3, v0
            v_lshlrev_b32 v10, 7, v10
            v_add_u32 v9, v9, v10
            v_add_u32 v9, s74, v9
            """)
            npf = 3; step = 16384
        srd(a, SRD_X, SP['wd'], 1409024)
        for i in range(npf):
            a(f"s_mov_b32 s74, {i*step}")
            a(f"buffer_load_dword v{84+i}, v9, s[{SRD_X}:{SRD_X+3}], s74 offen")
        if opts.get('bcode') and not opts.get('fused'):
            pc = a.label('pc')
            a(f"""
            s_getpc_b64 s[74:75]
            {pc}:
            s_add_u32 s74, s74, {opts['bcode']}-{pc}
            s_addc_u32 s75, s75, 0
            s_lshr_b32 s76, s2, 3
            s_and_b32 s76, s76, 1
            s_lshl_b32 s76, s76, 12
            v_lshlrev_b32 v9, 6, v0
            v_add_u32 v9, s76, v9
            global_load_dword v95, v9, s[74:75]
            """)
            npf += 1
    a(f"s_waitcnt vmcnt({16+npf})")
    bar(a, opts, 7)
    lp = a.label('gchk'); ok = a.label('gok')
    a(f"""
    s_setprio 3
    s_mov_b32 s75, 0
    s_waitcnt vmcnt({npf})
    s_waitcnt lgkmcnt(0)
    {lp}:
    s_mov_b64 vcc, 0
    """)
    for p in range(16):
        a(f"v_cmp_ne_u32 s[32:33], v152, v{16+4*p+3}")
        a(f"s_or_b64 vcc, vcc, s[32:33]")
    a(f"""
    s_add_u32 s75, s75, 1
    s_cmp_eq_u64 vcc, 0
    s_cbranch_scc1 {ok}
    s_cmp_gt_u32 s75, {0 if opts.get('hk',0) else 100000}
    s_cbranch_scc1 {ok}
    """)
    issue()
    a("s_waitcnt vmcnt(0)")
    a(f"s_branch {lp}")
    a(f"{ok}:")
    stamp(a, opts, 5)
    for st in (8, 4, 2, 1):
        for p in range(st):
            for i in range(3):
                a(f"v_add_f32 v{16+4*p+i}, v{16+4*p+i}, v{16+4*(p+st)+i}")
    a(f"""
    v_lshrrev_b32 v1, 3, v0              ; g
    v_mul_u32_u24 v1, 3, v1              ; 3g
    v_bfe_u32 v2, v0, 2, 1               ; col
    v_lshlrev_b32 v2, 4, v2
    v_and_b32 v3, 3, v0                  ; q
    v_lshlrev_b32 v3, 2, v3
    v_add_u32 v2, v2, v3                 ; col*16 + 4q
    """)
    for k in range(3):
        a(f"""
        v_add_u32 v4, {k}, v1
        v_lshrrev_b32 v5, 2, v4
        v_lshlrev_b32 v5, 5, v5
        v_and_b32 v4, 3, v4
        v_add_u32 v4, v4, v5
        v_add_u32 v4, v4, v2
        v_lshlrev_b32 v4, 2, v4
        v_add_u32 v4, {A_CS}, v4
        ds_write_b32 v4, v{16+k}
        """)
    a("s_waitcnt lgkmcnt(0)")
    stamp(a, opts, 6)
    if opts.get('fused'):
        from kerF import F_CSR, lds_set
        lds_set(a, F_CSR)
        a("s_setprio 0")
        return
    bar(a, opts, 8)
    stamp(a, opts, 7, real=True)
    stamp_flush(a, opts, 0)
    a("s_endpgm")
```

```python
from core import *
import struct
def f2u(x): return struct.unpack('<I', struct.pack('<f', x))[0]
def hx(x): return hex(f2u(x))
STAGE = 40960
A_KT = 3*STAGE
DEPTH = 4
CT_U, CT_V0, CT_V1, CT_SZ = 0, 4608, 4608+4160, 4608+4160+4160
F_CT = 0
F_EX = F_CT + 2*CT_SZ
F_WR = F_EX + 4*4096
F_YT = F_WR + 4*DEPTH*2048
F_P  = F_YT + 10240
PROW = 272
F_SY = 158528
F_NON, F_CNTH, F_CNTX, F_HRDY, F_KRDY, F_URDY, F_XFL, F_ORD = F_SY, F_SY+8, F_SY+12, F_SY+16, F_SY+20, F_SY+28, F_SY+36, F_SY+52
F_CSR, F_GDN, F_PRDY = F_SY+56, F_SY+60, F_SY+64
F_LDS = F_SY + 128
S_WAVE, S_RB, S_CT = 3, 4, 5
S_RT, S_C2, S_WP = 78, 79, 80
SRD_WS, SRD_WD, SRD_O = 8, 12, 16
V_XT, V_NON, V_OFF = 160, 164, 166
SPIN = 200000

MAP2 = [1]
def map_tile(a, srt, sc2):
    if MAP2[0] == 0:
        a(f"""
        s_and_b32 s7, s2, 7
        s_lshr_b32 s33, s2, 3
        s_lshl_b32 s7, s7, 2
        s_and_b32 s{sc2}, s33, 3
        s_add_u32 s{srt}, s7, s{sc2}
        s_lshr_b32 s{sc2}, s33, 2
        """)
    else:
        a(f"""
        s_and_b32 s7, s2, 7
        s_lshr_b32 s33, s2, 3
        s_lshr_b32 s{srt}, s7, 1
        s_lshl_b32 s{srt}, s{srt}, 3
        s_and_b32 s{sc2}, s33, 7
        s_add_u32 s{srt}, s{srt}, s{sc2}
        s_and_b32 s7, s7, 1
        s_lshl_b32 s7, s7, 2
        s_lshr_b32 s{sc2}, s33, 3
        s_add_u32 s{sc2}, s{sc2}, s7
        """)
def map_B(a):
    map_tile(a, S_RT, S_C2)
    a(f"""
    s_and_b32 s32, s{S_WP}, 3
    s_lshl_b32 s32, s32, 4
    s_lshl_b32 s33, s{S_RT}, 6
    s_add_u32 s32, s32, s33               ; 64 rt + 16 (w&3)
    v_and_b32 v2, 15, v0
    v_add_u32 v2, s32, v2
    v_lshlrev_b32 v2, 10, v2              ; row*1024
    s_lshr_b32 s32, s{S_WP}, 2
    s_lshl_b32 s32, s32, 6
    s_lshl_b32 s33, s{S_C2}, 7
    s_add_u32 s32, s32, s33
    v_lshrrev_b32 v3, 4, v0
    v_lshlrev_b32 v3, 4, v3
    v_add_u32 v2, v2, v3
    v_add_u32 v{V_OFF}, s32, v2
    """)

def lds_count_last(a, addr, n, lab_skip):
    a(f"""
    v_mov_b32 v1, {addr}
    v_mov_b32 v2, 1
    s_mov_b64 exec, 1
    ds_add_rtn_u32 v3, v1, v2
    s_mov_b64 exec, -1
    s_waitcnt lgkmcnt(0)
    v_readfirstlane_b32 s7, v3
    s_cmp_lg_u32 s7, {n-1}
    s_cbranch_scc1 {lab_skip}
    """)
def lds_set(a, addr_expr_sgpr_or_int):
    if isinstance(addr_expr_sgpr_or_int, int): a(f"v_mov_b32 v1, {addr_expr_sgpr_or_int}")
    else: a(f"v_mov_b32 v1, {addr_expr_sgpr_or_int}")
    a("v_mov_b32 v2, 1")
    a("ds_write_b32 v1, v2")
def lds_spin(a, addrs):
    lp = a.label('spin')
    for i, ad in enumerate(addrs): a(f"v_mov_b32 v{1+i}, {ad}")
    a("s_mov_b32 s25, 0")
    a(f"{lp}:")
    for i in range(len(addrs)): a(f"ds_read_b32 v{3+i}, v{1+i}")
    a("s_add_u32 s25, s25, 1")
    a("s_waitcnt lgkmcnt(0)")
    if len(addrs) == 2: a("v_min_u32 v3, v3, v4"); a("s_nop 0")
    a(f"""
    v_readfirstlane_b32 s24, v3
    s_cmp_gt_u32 s25, {5*SPIN}
    s_cselect_b32 s24, 1, s24
    s_cmp_eq_u32 s24, 0
    s_cbranch_scc1 {lp}
    """)
def lds_spin_eq(a, addr, val):
    lp = a.label('spinq')
    a(f"""
    v_mov_b32 v1, {addr}
    s_mov_b32 s25, 0
    {lp}:
    ds_read_b32 v3, v1
    s_add_u32 s25, s25, 1
    s_waitcnt lgkmcnt(0)
    v_readfirstlane_b32 s7, v3
    s_cmp_gt_u32 s25, {5*SPIN}
    s_cselect_b32 s7, {val}, s7
    s_cmp_lg_u32 s7, {val}
    s_cbranch_scc1 {lp}
    """)
def flag_store(a, base, idx_sgpr):
    a(f"""
    s_lshl_b32 s7, {idx_sgpr}, 7
    s_add_u32 s7, s7, {base}
    v_mov_b32 v1, s7
    s_mov_b64 exec, 1
    global_store_dwordx2 v1, v[{V_NON}:{V_NON+1}], s[{SP['ws']}:{SP['ws']+1}] sc1
    s_mov_b64 exec, -1
    """)
def flag_poll(a, vaddr, vdst):
    lp = a.label('poll'); ok = a.label('pok')
    a(f"""
    s_mov_b32 s25, 0
    {lp}:
    global_load_dwordx2 v[{vdst}:{vdst+1}], v{vaddr}, s[{SP['ws']}:{SP['ws']+1}] sc1
    s_add_u32 s25, s25, 1
    s_waitcnt vmcnt(0)
    v_cmp_ne_u32 vcc, v{V_NON}, v{vdst}
    v_cmp_ne_u32 s[30:31], v{V_NON+1}, v{vdst+1}
    s_or_b64 vcc, vcc, s[30:31]
    s_cmp_eq_u64 vcc, 0
    s_cbranch_scc1 {ok}
    s_cmp_gt_u32 s25, {SPIN}
    s_cbranch_scc1 {ok}
    s_sleep 1
    s_branch {lp}
    {ok}:
    """)


def touch_group(a, sg, srt, sc2, vdst):
    a(f"""
    s_cmp_eq_u32 s{sg}, 3
    s_cselect_b32 s30, 14, 24
    s_lshl_b32 s31, s30, 1
    s_mul_i32 s33, s{sc2}, s31
    v_add_u32 v1, s33, v0
    s_lshl_b32 s33, s30, 3
    v_cmp_le_u32 vcc, s33, v1
    v_mov_b32 v2, s33
    v_mov_b32 v3, 0
    v_cndmask_b32 v2, v3, v2, vcc
    v_sub_u32 v1, v1, v2
    v_mov_b32 v2, {86*1024}
    v_cndmask_b32 v2, v3, v2, vcc
    v_lshlrev_b32 v1, 7, v1
    v_add_u32 v1, v1, v2
    s_mul_i32 s33, s{srt}, {2*86*1024}
    s_mul_i32 s7, s{sg}, {24*1024}
    s_add_u32 s33, s33, s7
    s_add_u32 s33, s33, {WS_H}
    v_add_u32 v1, s33, v1
    v_cmp_gt_u32 vcc, s31, v0
    s_and_saveexec_b64 s[30:31], vcc
    global_load_dword v{vdst}, v1, s[{SP['ws']}:{SP['ws']+1}] sc1
    s_mov_b64 exec, s[30:31]
    """)

def gpub_F(a, opts):
    nf = a.label('nfh'); end = a.label('gpe')
    a(f"""
    v_mov_b32 v1, {F_NON}
    ds_read_b64 v[{V_NON}:{V_NON+1}], v1
    s_waitcnt vmcnt(0) lgkmcnt(0)
    """)
    stamp(a, opts, 14)
    stamp(a, opts, 40, real=True)
    lds_count_last(a, F_CNTH, 4, nf)
    a(f"s_lshl_b32 s30, s{S_RB}, 4")
    a(f"s_add_u32 s30, s30, s{S_CT}")
    flag_store(a, WS_FLAGH, "s30")
    a(f"{nf}:")
    a(f"s_cmp_lg_u32 s{S_WAVE}, 0")
    a(f"s_cbranch_scc1 {end}")
    map_tile(a, 34, 35)
    a(f"""
    s_lshr_b32 s7, s34, 1
    s_lshl_b32 s7, s7, 4
    v_min_u32 v2, 14, v0
    v_add_u32 v2, s7, v2
    v_lshlrev_b32 v2, 7, v2
    v_add_u32 v2, {WS_FLAGH}, v2
    """)
    flag_poll(a, 2, 4)
    if opts.get('touch'):
        a(f"""
        s_and_b32 s7, s2, 7
        s_lshl_b32 s7, s7, 2
        s_lshr_b32 s33, s2, 3
        s_and_b32 s34, s33, 3
        s_add_u32 s34, s7, s34
        s_lshr_b32 s35, s33, 2
        """)
        for g in range(4):
            a(f"s_mov_b32 s86, {g}")
            touch_group(a, 86, 34, 35, 8+g)
    lds_set(a, F_HRDY)
    a("s_waitcnt lgkmcnt(0)")
    a(f"{end}:")
    stamp(a, opts, 15)
    stamp(a, opts, 7, real=True)
    if opts.get('ts'): a("s_waitcnt vmcnt(0)")
    stamp_flush(a, opts, 0)
    a("s_endpgm")

def gemm2_F(a, opts):
    D = DEPTH
    ACC, HF, WF, YG = 16, 80, 112, 128
    VH0, VH1, VWD, VA0, VA1, VY = 8, 9, 10, 11, 13, 12
    S_N, S_OFF, S_RING, S_WC = 81, 27, 28, 29
    S_GB, S_GL, S_STEP, S_CNT, S_ROT, S_GD = 70, 74, 82, 83, 84, 85
    def acc(m, n): return ACC + (m*2+n)*16
    def hf(st, n): return HF + st*8 + n*4
    def wf(st, m): return WF + st*8 + m*4
    vm = VmTrack(a)
    a(f"s_mov_b32 s{S_WP}, s68")
    srd(a, SRD_WD, SP['wd'], 1409024)
    if opts.get('pfmode',0) == 1:
        npf = a.label('nopf')
        a(f"s_cmp_lg_u32 s{S_WP}, 1")
        a(f"s_cbranch_scc1 {npf}")
        if opts.get('pfwait'): lds_spin(a, [F_URDY, F_URDY+4])
        a(f"""
        s_lshr_b32 s30, s2, 3
        s_mul_i32 s30, s30, {43*1024}
        v_lshlrev_b32 v1, 7, v0
        v_add_u32 v1, s30, v1
        """)
        for i in range(6):
            a(f"s_mov_b32 s30, {i*8192}")
            a(f"buffer_load_dword v{144+i}, v1, s[{SRD_WD}:{SRD_WD+3}], s30 offen")
        a(f"{npf}:")
    map_B(a)
    a(f"""
    s_mov_b32 s{S_N}, 22
    s_cmp_ge_u32 s{S_WP}, 2
    s_cselect_b32 s{S_N}, 21, s{S_N}
    v_lshlrev_b32 v1, 4, v0
    s_mul_i32 s7, s{S_RT}, {2*86*1024}
    s_add_u32 s7, s7, {WS_H}
    v_add_u32 v{VH0}, s7, v1
    v_add_u32 v{VH1}, {86*1024}, v{VH0}
    v_lshrrev_b32 v2, 3, v0
    v_lshlrev_b32 v2, 10, v2
    v_and_b32 v3, 7, v0
    v_bfe_u32 v4, v0, 4, 1
    v_lshlrev_b32 v4, 2, v4
    v_xor_b32 v3, v3, v4
    v_lshlrev_b32 v3, 4, v3
    v_add_u32 v{VWD}, v2, v3
    s_lshl_b32 s{S_WC}, s{S_C2}, 7
    s_mul_i32 s{S_RING}, s{S_WP}, {D*2048}
    s_add_u32 s{S_RING}, s{S_RING}, {F_WR}
    v_lshrrev_b32 v2, 5, v0
    v_lshlrev_b32 v2, 2, v2                 ; 4h
    v_bfe_u32 v3, v0, 2, 2                  ; r'
    v_add_u32 v2, v2, v3
    v_lshlrev_b32 v2, 7, v2
    v_lshrrev_b32 v3, 1, v3
    v_lshlrev_b32 v3, 6, v3
    v_add_u32 v2, v2, v3
    v_bfe_u32 v3, v0, 4, 1
    v_lshlrev_b32 v3, 5, v3
    v_add_u32 v2, v2, v3
    v_and_b32 v3, 3, v0
    v_lshlrev_b32 v3, 3, v3
    v_add_u32 v2, v2, v3
    v_add_u32 v{VA0}, s{S_RING}, v2
    v_xor_b32 v2, 64, v2
    v_add_u32 v{VA1}, s{S_RING}, v2
    v_lshrrev_b32 v2, 4, v0
    s_lshl_b32 s7, s{S_WP}, 4
    s_lshl_b32 s30, s{S_C2}, 6
    s_add_u32 s7, s7, s30                  ; 64 ct + 16 w
    v_add_u32 v2, s7, v2
    v_lshlrev_b32 v2, 13, v2               ; ch*8192
    v_and_b32 v3, 15, v0
    v_lshlrev_b32 v3, 4, v3
    v_add_u32 v2, v2, v3
    s_lshl_b32 s7, s{S_RT}, 8
    s_add_u32 s7, s7, {WS_Y}
    v_add_u32 v{VY}, s7, v2                ; y address
    v_mov_b32 v1, {F_NON}
    ds_read_b64 v[{V_NON}:{V_NON+1}], v1
    """)
    srd(a, SRD_WS, SP['ws'], 19*MB)
    srd(a, SRD_WD, SP['wd'], 1409024)
    for i in range(64): a(f"v_mov_b32 v{ACC+i}, 0")
    a("s_waitcnt lgkmcnt(0)")
    stamp(a, opts, 14)
    oth = a.label('hoth'); go = a.label('hgo'); lp = a.label('opoll'); ok = a.label('ook')
    a(f"s_cmp_lg_u32 s{S_WP}, 0")
    a(f"s_cbranch_scc1 {oth}")
    a(f"""
    v_min_u32 v2, 14, v0
    s_lshr_b32 s7, s{S_RT}, 1
    s_lshl_b32 s7, s7, 4
    v_add_u32 v2, s7, v2
    v_lshlrev_b32 v2, 7, v2
    v_add_u32 v2, {WS_FLAGH}, v2
    s_mov_b32 s25, 0
    {lp}:
    global_load_dwordx2 v[4:5], v2, s[{SP['ws']}:{SP['ws']+1}] sc1
    s_add_u32 s25, s25, 1
    s_waitcnt vmcnt(0)
    v_cmp_ne_u32 vcc, v{V_NON}, v4
    v_cmp_ne_u32 s[30:31], v{V_NON+1}, v5
    s_or_b64 vcc, vcc, s[30:31]
    s_mov_b32 s24, 0
    s_and_b32 s7, vcc_lo, 0xf
    s_cselect_b32 s30, 0, 1
    s_or_b32 s24, s24, s30
    s_and_b32 s7, vcc_lo, 0xf0
    s_cselect_b32 s30, 0, 2
    s_or_b32 s24, s24, s30
    s_and_b32 s7, vcc_lo, 0xf00
    s_cselect_b32 s30, 0, 4
    s_or_b32 s24, s24, s30
    s_and_b32 s7, vcc_lo, 0x7000
    s_cselect_b32 s30, 0, 8
    s_or_b32 s24, s24, s30
    s_cmp_gt_u32 s25, {SPIN}
    s_cselect_b32 s24, 15, s24
    s_and_b32 s7, s24, {opts.get('gfirst', 3)}
    s_cmp_eq_u32 s7, {opts.get('gfirst', 3)}
    s_cbranch_scc1 {ok}
    s_branch {lp}
    {ok}:
    s_mov_b32 s30, {0x100 | 0 | (1 << 2) | (3 << 4) | (2 << 6)}
    s_mov_b32 s24, s30
    """)
    if opts.get('touch'):
        a("s_and_b32 s86, s24, 3")
        touch_group(a, 86, S_RT, S_C2, 6)
        a("s_lshr_b32 s86, s24, 2")
        a("s_and_b32 s86, s86, 3")
        touch_group(a, 86, S_RT, S_C2, 7)
    a(f"""
    v_mov_b32 v1, {F_ORD}
    v_mov_b32 v2, s24
    ds_write_b32 v1, v2
    s_branch {go}
    """)
    a(f"{oth}:")
    lds_spin(a, [F_ORD])
    a("s_waitcnt vmcnt(0)")
    a(f"{go}:")
    stamp(a, opts, 15)
    stamp(a, opts, 41, real=True)
    a(f"""
    s_mul_i32 s30, s{S_WP}, 6
    s_lshl_b32 s31, s{S_WP}, 2
    s_cmp_eq_u32 s{S_WP}, 3
    s_cselect_b32 s31, 11, s31
    s_cmp_ge_u32 s{S_WP}, 2
    s_cselect_b32 s32, 3, 4
    """)
    for k in range(4):
        a(f"""
        s_lshr_b32 s7, s24, {2*k}
        s_and_b32 s7, s7, 3
        s_mul_i32 s33, s7, 24
        s_cmp_eq_u32 s7, 3
        s_cselect_b32 s25, s31, s30
        s_add_u32 s{S_GB+k}, s33, s25
        s_cselect_b32 s{S_GL+k}, s32, 6
        """.replace("        s_add_u32 s%d, s33, s25\n        s_cselect_b32" % (S_GB+k), "        s_add_u32 s%d, s33, s25\n        s_cmp_eq_u32 s7, 3\n        s_cselect_b32" % (S_GB+k)))
    S_OW, S_OH, S_REM = 82, 83, 84
    def load_group():
        a(f"""
        s_lshl_b32 s{S_OW}, s{S_GB}, 14
        s_add_u32 s{S_OW}, s{S_OW}, s{S_WC}
        s_lshl_b32 s{S_OH}, s{S_GB}, 10
        s_mov_b32 s{S_REM}, s{S_GL}
        """)
    a(f"s_mov_b32 s{S_GD}, 0")
    load_group()
    lds_spin_eq(a, F_GDN, 4)
    a(f"s_setprio {opts.get('gprio', 1)}")
    def advance(pos):
        adv = a.label('noadv')
        a(f"""
        s_add_u32 s{S_OW}, s{S_OW}, 16384
        s_add_u32 s{S_OH}, s{S_OH}, 1024
        s_sub_u32 s{S_REM}, s{S_REM}, 1
        s_cmp_lg_u32 s{S_REM}, 0
        s_cbranch_scc1 {adv}
        s_mov_b32 s{S_GB}, s{S_GB+1}
        s_mov_b32 s{S_GB+1}, s{S_GB+2}
        s_mov_b32 s{S_GB+2}, s{S_GB+3}
        s_mov_b32 s{S_GL}, s{S_GL+1}
        s_mov_b32 s{S_GL+1}, s{S_GL+2}
        s_mov_b32 s{S_GL+2}, s{S_GL+3}
        s_add_u32 s{S_GD}, s{S_GD}, 1
        """)
        load_group()
        if pos + 1 in (9, 10, 12):
            a(f"s_cmp_lg_u32 s{S_GD}, 2")
            a(f"s_cbranch_scc1 {adv}")
            lds_spin(a, [F_HRDY])
        a(f"{adv}:")
    def ops(st, step):
        g = []
        g.append((f"s_add_u32 m0, s{S_RING}, {st*2048}\ns_add_u32 s31, s{S_OW}, 8192\nbuffer_load_dwordx4 v{VWD}, s[{SRD_WD}:{SRD_WD+3}], s{S_OW} offen lds"))
        g.append((f"buffer_load_dwordx4 {v(hf(st,0),4)}, v{VH0}, s[{SRD_WS}:{SRD_WS+3}], s{S_OH} offen sc1"))
        g.append((f"s_add_u32 m0, s{S_RING}, {st*2048+1024}\ns_nop 0\nbuffer_load_dwordx4 v{VWD}, s[{SRD_WD}:{SRD_WD+3}], s31 offen lds"))
        g.append((f"buffer_load_dwordx4 {v(hf(st,1),4)}, v{VH1}, s[{SRD_WS}:{SRD_WS+3}], s{S_OH} offen sc1"))
        return g
    def issue(st, step):
        for x in ops(st, step):
            a(x); vm.op(('s', step))
        advance(step)
    for st in range(D): issue(st, st)
    def wreads(i):
        st, ws_ = i % D, i & 1
        for m, va in ((0, VA0), (1, VA1)):
            a(f"ds_read_b64_tr_b16 {v(wf(ws_,m),2)}, v{va} offset:{st*2048}")
            a(f"ds_read_b64_tr_b16 {v(wf(ws_,m)+2,2)}, v{va} offset:{st*2048+1024}")
    def yissue(first=False):
        if first:
            a(f"global_load_dwordx4 {v(V_XT,4)}, v{V_OFF}, s[{SP['x']}:{SP['x']+1}]"); vm.op('x')
        for i in range(4):
            if i == 0: a(f"buffer_load_dwordx4 {v(YG,4)}, v{VY}, s[{SRD_WS}:{SRD_WS+3}], 0 offen sc1")
            else:
                a(f"s_mov_b32 s{S_OFF}, {i*4*8192}")
                a(f"buffer_load_dwordx4 {v(YG+4*i,4)}, v{VY}, s[{SRD_WS}:{SRD_WS+3}], s{S_OFF} offen sc1")
            vm.op('y')
    NS = 22
    vm.wait(('s', 0))
    wreads(0)
    lskip = a.label('gskip')
    for i in range(NS):
        st = i % D
        if i == NS - 1:
            a(f"s_cmp_eq_u32 s{S_N}, 21")
            a(f"s_cbranch_scc1 {lskip}")
        if i + 1 < NS:
            vm.wait(('s', i+1), ' lgkmcnt(0)')
            wreads(i+1)
        else:
            a("s_waitcnt lgkmcnt(0)")
        nx = ops(st, i+D) if i + D < NS else [None]*4
        for k, (m, n_) in enumerate(((0,0),(1,0),(0,1),(1,1))):
            a(f"v_mfma_f32_32x32x16_bf16 {v(acc(m,n_),16)}, {v(wf(i&1,m),4)}, {v(hf(st,n_),4)}, {v(acc(m,n_),16)}")
            kk = (0, 1, 2, 3)[k]
            if nx[kk] is not None:
                a(nx[kk]); vm.op(('s', i+D))
        if i + D < NS: advance(i+D)
        if i + D == NS: yissue(True)
    a(f"{lskip}:")
    stamp(a, opts, 16+8)
    stamp(a, opts, 42, real=True)
    a(f"""
    v_and_b32 v1, 31, v0
    v_mul_u32_u24 v1, {PROW}, v1
    v_lshrrev_b32 v2, 5, v0
    v_lshlrev_b32 v2, 4, v2
    v_add_u32 v1, v1, v2
    s_mul_i32 s7, s{S_WP}, {64*PROW}
    s_add_u32 s7, s7, {F_P}
    v_add_u32 v1, s7, v1
    v_lshrrev_b32 v2, 4, v0
    s_lshl_b32 s7, s{S_WP}, 4
    v_add_u32 v2, s7, v2
    v_mul_u32_u24 v2, 160, v2
    v_and_b32 v3, 15, v0
    v_lshlrev_b32 v3, 3, v3
    v_add_u32 v2, v2, v3
    v_add_u32 v2, {F_YT}, v2
    """)
    for m in range(2):
        for n_ in range(2):
            for g in range(4):
                a(f"ds_write_b128 v1, {v(acc(m,n_)+4*g,4)} offset:{n_*32*PROW + m*128 + g*32}")
    lp = a.label('ychk'); ok = a.label('yok')
    a(f"""
    s_mov_b32 s28, 0
    {lp}:
    s_waitcnt vmcnt(0)
    v_cmp_ne_u32 vcc, v{V_NON}, v{YG+2}
    """)
    for i in range(1, 4):
        a(f"v_cmp_ne_u32 s[30:31], v{V_NON}, v{YG+4*i+2}"); a("s_or_b64 vcc, vcc, s[30:31]")
    for i in range(4):
        a(f"v_cmp_ne_u32 s[30:31], v{V_NON+1}, v{YG+4*i+3}"); a("s_or_b64 vcc, vcc, s[30:31]")
    a(f"""
    s_add_u32 s28, s28, 1
    s_cmp_eq_u64 vcc, 0
    s_cbranch_scc1 {ok}
    s_cmp_gt_u32 s28, {0 if opts.get('noconv') else SPIN}
    s_cbranch_scc1 {ok}
    """)
    yissue()
    a(f"s_branch {lp}")
    a(f"{ok}:")
    stamp(a, opts, 16+9)
    for i in range(4):
        a(f"ds_write_b64 v2, {v(YG+4*i,2)} offset:{i*4*160}")
    a(f"s_branch {opts['lfinal']}")


S_SL = 87
def helper_F(a, opts):
    import kerA_help as H
    from kerA_help import kgen, grab, nonce_check, colsum_A, A_PUB, A_STATS, A_M, V_SL
    S_W, S_TB, S_ROT = 68, 69, 6
    SRD_T0, SRD_T1 = 20, 24
    ACC = 80
    a(f"""
    s_lshr_b32 s7, s{S_CT}, 3
    s_add_u32 s7, s7, s{S_ROT}
    s_and_b32 s7, s7, 7
    s_lshl_b32 s7, s7, 1
    s_bfe_u32 s33, s{S_CT}, 0x10002
    s_add_u32 s{S_SL}, s7, s33
    """)
    seg0, seg1, seg2 = kgen(a, opts)
    lab = {k: a.label('h'+k) for k in ('0','nf','rest','even','g1','g2')}
    a(f"""
    s_cmp_lg_u32 s{S_W}, 1
    s_cbranch_scc1 {lab['0']}
    global_load_dwordx2 v[152:153], v150, s[{SP['dbg']}:{SP['dbg']+1}] sc1
    {lab['0']}:
    s_setprio 0
    """)
    stamp(a, opts, 3)
    bar(a, opts, 0)
    stamp(a, opts, 4)
    grab(a, opts, 0)
    a("s_setprio 2")
    seg0()
    a("s_setprio 0")
    a(f"""
    s_cmp_lg_u32 s{S_W}, 1
    s_cbranch_scc1 {lab['nf']}
    v_lshlrev_b32 v1, 2, v0
    v_add_u32 v1, {A_PUB}, v1
    ds_read_b32 v4, v1
    s_waitcnt vmcnt(0)
    """)
    nonce_check(a, 152)
    srd(a, SRD_T1, SP['ws'], 2048*8, WS_STAT)
    a(f"""
    s_lshl_b32 s32, s{S_RB}, 4
    s_add_u32 s32, s32, s{S_CT}
    s_lshl_b32 s32, s32, 6
    v_lshlrev_b32 v1, 3, v0
    v_mov_b32 v5, s70
    s_waitcnt lgkmcnt(0)
    s_mov_b64 exec, 0xff
    s_setprio 3
    buffer_store_dwordx2 v[4:5], v1, s[{SRD_T1}:{SRD_T1+3}], s32 offen sc1
    s_setprio 0
    s_mov_b64 exec, 1
    v_mov_b32 v1, {F_NON}
    ds_write_b64 v1, v[152:153]
    s_mov_b64 exec, -1
    s_waitcnt lgkmcnt(0)
    {lab['nf']}:
    """)
    bar(a, opts, 1)
    grab(a, opts, 1)
    a("s_setprio 2")
    seg1()
    a("s_setprio 0")
    a("s_waitcnt lgkmcnt(0)")
    bar(a, opts, 2)
    a("s_setprio 2")
    seg2()
    a(f"s_cmp_lg_u32 s{S_W}, 1")
    a(f"s_cbranch_scc1 {lab['rest']}")
    colsum_A(a, opts)
    a(f"{lab['rest']}:")
    a("s_setprio 0")
    bar(a, opts, 3)
    srd(a, SRD_T1, SP['ws'], 2048*8, WS_STAT)
    a(f"""
    v_mov_b32 v1, {F_NON}
    ds_read_b64 v[{V_NON}:{V_NON+1}], v1
    v_lshlrev_b32 v8, 4, v0
    s_lshl_b32 s72, s{S_RB}, 10            ; 128 rows * 8 B
    s_cmp_lg_u32 s{S_W}, 0
    s_cbranch_scc1 {lab['g1']}
    s_setprio 3
    buffer_load_dwordx4 v[12:15], v8, s[{SRD_T1}:{SRD_T1+3}], s72 offen sc1
    s_setprio 0
    {lab['g1']}:
    s_waitcnt lgkmcnt(0)
    """)
    bar(a, opts, 4)
    lp = a.label('schk'); ok = a.label('sok')
    a(f"""
    s_cmp_lg_u32 s{S_W}, 0
    s_cbranch_scc1 {lab['g2']}
    s_mov_b32 s75, 0
    {lp}:
    s_waitcnt vmcnt(0)
    v_cmp_ne_u32 vcc, v{V_NON}, v13
    v_cmp_ne_u32 s[32:33], v{V_NON}, v15
    s_or_b64 vcc, vcc, s[32:33]
    s_add_u32 s75, s75, 1
    s_cmp_eq_u64 vcc, 0
    s_cbranch_scc1 {ok}
    s_cmp_gt_u32 s75, {SPIN}
    s_cbranch_scc1 {ok}
    buffer_load_dwordx4 v[12:15], v8, s[{SRD_T1}:{SRD_T1+3}], s72 offen sc1
    s_branch {lp}
    {ok}:
    v_lshlrev_b32 v4, 16, v12
    v_and_b32 v5, 0xffff0000, v12
    v_lshlrev_b32 v6, 16, v14
    v_and_b32 v7, 0xffff0000, v14
    v_lshlrev_b32 v1, 4, v0
    v_add_u32 v1, {A_STATS}, v1
    ds_write_b128 v1, v[4:7]
    v_rcp_f32 v10, v5
    v_rcp_f32 v11, v7
    v_mov_b32 v5, v6
    v_lshlrev_b32 v1, 3, v0
    v_add_u32 v1, {A_M}, v1
    ds_write_b64 v1, v[4:5]
    ds_write_b64 v1, v[10:11] offset:512
    s_waitcnt lgkmcnt(0)
    {lab['g2']}:
    """)
    stamp(a, opts, 5)
    bar(a, opts, 5)
    srd(a, SRD_T0, SP['ws'], WS_XT_SZ, WS_XT)
    a(f"""
    v_lshrrev_b32 v3, 4, v0              ; G
    v_and_b32 v1, 15, v0
    s_and_b32 s7, s{S_W}, 1
    s_lshl_b32 s7, s7, 4
    v_add_u32 v1, s7, v1
    v_lshlrev_b32 v1, 12, v1
    v_lshlrev_b32 v5, 4, v3
    v_add_u32 v8, v1, v5
    s_lshl_b32 s32, s{S_SL}, 17
    s_lshl_b32 s33, s{S_RB}, 8
    s_add_u32 s32, s32, s33
    s_lshr_b32 s7, s{S_W}, 1
    s_lshl_b32 s33, s7, 7
    s_add_u32 s32, s32, s33
    v_lshlrev_b32 v9, 5, v3
    s_lshl_b32 s33, s7, 8
    s_add_u32 s33, s33, {A_M}
    v_add_u32 v9, s33, v9
    """)
    for r in range(2):
        M, R_ = 16 + 16*r, 24 + 16*r
        a(f"ds_read_b128 {v(M,4)}, v9 offset:{r*128}")
        a(f"ds_read_b128 {v(M+4,4)}, v9 offset:{r*128+16}")
        a(f"ds_read_b128 {v(R_,4)}, v9 offset:{512 + r*128}")
        a(f"ds_read_b128 {v(R_+4,4)}, v9 offset:{512 + r*128+16}")
    for r in range(2):
        M, R_ = 16 + 16*r, 24 + 16*r
        U = 48 + 12*r
        X = V_SL + 4*r
        for j in range(4):
            a(f"v_lshlrev_b32 v{U+2*j}, 16, v{X+j}")
            a(f"v_and_b32 v{U+2*j+1}, 0xffff0000, v{X+j}")
        a(f"s_waitcnt lgkmcnt({4*(1-r)})")
        for j in range(8): a(f"v_sub_f32 v{U+j}, v{U+j}, v{M+j}")
        for j in range(4): a(f"v_cvt_pk_bf16_f32 v{U+8+j}, v{U+2*j}, v{U+2*j+1}")
        for j in range(4):
            a(f"v_lshlrev_b32 v{U+2*j}, 16, v{U+8+j}")
            a(f"v_and_b32 v{U+2*j+1}, 0xffff0000, v{U+8+j}")
        for j in range(8): a(f"v_mul_f32 v{U+j}, v{U+j}, v{R_+j}")
        for j in range(4): a(f"v_cvt_pk_bf16_f32 v{U+8+j}, v{U+2*j}, v{U+2*j+1}")
        a("s_setprio 3")
        a(f"buffer_store_dwordx4 {v(U+8,4)}, v8, s[{SRD_T0}:{SRD_T0+3}], s32 offen offset:{r*64} sc1")
        a("s_setprio 0")
    bar(a, opts, 6)
    bar(a, opts, 7)
    nf = a.label('nfx')
    a("s_waitcnt vmcnt(0)")
    stamp(a, opts, 14)
    stamp(a, opts, 40, real=True)
    lds_count_last(a, F_CNTX, 4, nf)
    a(f"s_lshl_b32 s30, s{S_RB}, 4")
    a(f"s_add_u32 s30, s30, s{S_SL}")
    flag_store(a, WS_FLAGX, "s30")
    a(f"{nf}:")
    a(f"""
    s_and_b32 s7, s{S_W}, 1
    s_cmp_eq_u32 s7, 0
    s_cbranch_scc1 {lab['even']}
    v_lshlrev_b32 v1, 4, v0
    v_add_u32 v1, s{S_TB}, v1
    """)
    for T in range(8):
        a(f"ds_write_b128 v1, {v(ACC+4*T,4)} offset:{T*1024}")
    a("s_waitcnt lgkmcnt(0)")
    a(f"s_lshr_b32 s7, s{S_W}, 1")
    a(f"s_lshl_b32 s7, s7, 2")
    a(f"s_add_u32 s7, s7, {F_PRDY}")
    lds_set(a, "s7")
    a(f"{lab['even']}:")
    conv_F(a, opts)

def conv_F(a, opts):
    S_W, S_TBK = 68, 69
    S_TB, S_CH, S_RH, S_C = 70, 71, 72, 73
    ACC, AF, BF = 16, 48, 112
    VA, VB = 8, 12
    KACC = 80
    a(f"s_setprio {opts.get('kprio',0)}")
    a(f"""
    v_mov_b32 v1, {F_NON}
    ds_read_b64 v[{V_NON}:{V_NON+1}], v1
    s_sub_u32 s{S_WP}, s{S_WAVE}, 4
    s_lshr_b32 s{S_C}, s{S_W}, 1
    s_and_b32 s{S_RH}, s{S_W}, 1
    s_lshl_b32 s{S_CH}, s2, 1
    s_add_u32 s{S_CH}, s{S_CH}, s{S_C}      ; channel
    s_mul_i32 s{S_TB}, s{S_C}, {CT_SZ}
    s_add_u32 s{S_TB}, s{S_TB}, {F_CT}
    """)
    map_B(a)
    srd(a, SRD_WS, SP['ws'], 19*MB)
    odd = a.label('codd'); join = a.label('cjoin')
    a(f"s_cmp_eq_u32 s{S_RH}, 1")
    a(f"s_cbranch_scc1 {odd}")
    a(f"s_lshl_b32 s26, s{S_C}, 2")
    a(f"s_add_u32 s26, s26, {F_PRDY}")
    lds_spin(a, ["s26"])
    a(f"""
    v_lshlrev_b32 v1, 4, v0
    v_add_u32 v2, s{S_TBK}, v1
    """)
    for T in range(8):
        a(f"ds_read_b128 {v(16+4*T,4)}, v2 offset:{8192 + T*1024}")
    a(f"""
    v_and_b32 v2, 15, v0
    v_lshlrev_b32 v2, 5, v2               ; 32*j
    v_lshrrev_b32 v3, 4, v0
    v_lshlrev_b32 v3, 3, v3               ; 8*q
    v_add_u32 v2, v2, v3
    v_sub_u32 v2, {504}, v2               ; 4088 - 512*7 - (32 j + 8 q)
    s_add_u32 s7, s{S_TB}, {CT_V0}
    v_add_u32 v2, s7, v2
    """)
    for T in range(8):
        a(f"s_waitcnt lgkmcnt({7-T})")
        for i in range(4):
            a(f"v_add_f32 v{KACC+4*T+i}, v{KACC+4*T+i}, v{16+4*T+i}")
        a(f"v_cvt_pk_bf16_f32 v{48+2*T}, v{KACC+4*T+3}, v{KACC+4*T+2}")
        a(f"v_cvt_pk_bf16_f32 v{49+2*T}, v{KACC+4*T+1}, v{KACC+4*T}")
    for T in range(8):
        a(f"ds_write_b64 v2, {v(48+2*T,2)} offset:{(7-T)*512}")
    a(f"""
    v_mov_b32 v6, 0
    v_mov_b32 v7, 0
    v_lshlrev_b32 v3, 3, v0
    s_add_u32 s7, s{S_TB}, {CT_V0+4096}
    v_add_u32 v2, s7, v3
    s_mov_b64 exec, 0xff
    ds_write_b64 v2, v[6:7]
    ds_write_b64 v2, v[6:7] offset:{CT_V1-CT_V0}
    s_mov_b64 exec, -1
    s_add_u32 s7, s{S_TB}, {CT_V0}
    v_add_u32 v2, s7, v1
    """)
    for i in range(4):
        a(f"ds_read_b128 {v(16+8*i,4)}, v2 offset:{i*1024}")
        a(f"ds_read_b32 v{20+8*i}, v2 offset:{i*1024+16}")
    for i in range(4):
        a(f"s_waitcnt lgkmcnt({6-2*i})")
        for j in range(4):
            a(f"v_alignbit_b32 v{48+4*i+j}, v{16+8*i+j+1}, v{16+8*i+j}, 16")
    for i in range(4):
        a(f"ds_write_b128 v2, {v(48+4*i,4)} offset:{CT_V1-CT_V0 + i*1024}")
    a("s_waitcnt lgkmcnt(0)")
    a(f"s_lshl_b32 s7, s{S_C}, 2")
    a(f"s_add_u32 s7, s7, {F_KRDY}")
    lds_set(a, "s7")
    a(f"s_branch {join}")
    a(f"{odd}:")
    a(f"""
    v_lshlrev_b32 v1, 4, v0
    v_mov_b32 v16, 0
    v_mov_b32 v17, 0
    v_mov_b32 v18, 0
    v_mov_b32 v19, 0
    v_add_u32 v3, s{S_TB}, v1
    s_mov_b64 exec, 0x3fffffff
    ds_write_b128 v3, v[16:19] offset:{CT_U}
    s_mov_b64 exec, -1
    """)
    a(f"{join}:")
    a("s_waitcnt lgkmcnt(0)")
    if opts.get('noconv'):
        a("s_waitcnt vmcnt(0)")
        a(f"s_branch {opts['lfinal']}")
    ev = a.label('cev')
    a(f"s_cmp_eq_u32 s{S_RH}, 0")
    a(f"s_cbranch_scc1 {ev}")
    a(f"""
    v_and_b32 v2, 15, v0
    v_lshlrev_b32 v2, 4, v2
    s_lshr_b32 s7, s2, 4
    v_add_u32 v2, s7, v2
    v_lshlrev_b32 v2, 7, v2
    v_add_u32 v2, {WS_FLAGX}, v2
    """)
    flag_poll(a, 2, 6)
    stamp(a, opts, 15)
    stamp(a, opts, 41, real=True)
    a(f"""
    s_lshl_b32 s26, s{S_CH}, 12
    s_add_u32 s26, s26, {WS_XT}
    v_lshlrev_b32 v1, 4, v0
    """)
    for i in range(4):
        a(f"buffer_load_dwordx4 {v(16+4*i,4)}, v1, s[{SRD_WS}:{SRD_WS+3}], s26 offen offset:{i*1024} sc1")
    a(f"v_add_u32 v3, s{S_TB}, v1")
    for i in range(4):
        a(f"s_waitcnt vmcnt({3-i})")
        a(f"ds_write_b128 v3, {v(16+4*i,4)} offset:{CT_U + 480 + i*1024}")
    a("s_waitcnt lgkmcnt(0)")
    a(f"s_lshl_b32 s7, s{S_C}, 2")
    a(f"s_add_u32 s7, s7, {F_URDY}")
    lds_set(a, "s7")
    a(f"{ev}:")
    a(f"""
    v_and_b32 v1, 15, v0                   ; b / a
    v_lshrrev_b32 v2, 4, v0                ; q
    v_lshrrev_b32 v3, 1, v1                ; beta
    v_lshlrev_b32 v6, 2, v2
    v_sub_u32 v6, v6, v3                   ; 4q - beta
    s_lshl_b32 s7, s{S_RH}, 6
    s_sub_u32 s7, {1015-128-48}, s7
    v_add_u32 v6, s7, v6
    v_lshlrev_b32 v6, 2, v6
    v_and_b32 v3, 1, v1
    v_xor_b32 v3, 1, v3
    v_mul_u32_u24 v3, {CT_V1-CT_V0}, v3
    v_add_u32 v6, v6, v3
    s_add_u32 s7, s{S_TB}, {CT_V0}
    v_add_u32 v{VA}, s7, v6
    v_subrev_u32 v{VA+1}, 1024, v{VA}
    v_subrev_u32 v{VA+2}, 2048, v{VA}
    v_subrev_u32 v{VA+3}, 3072, v{VA}
    v_lshlrev_b32 v3, 5, v1
    v_lshlrev_b32 v6, 4, v2
    v_add_u32 v3, v3, v6
    s_lshl_b32 s7, s{S_RH}, 8
    s_sub_u32 s7, {448-192}, s7
    s_add_u32 s7, s7, s{S_TB}
    v_add_u32 v{VB}, s7, v3
    """)
    for i in range(32): a(f"v_mov_b32 v{ACC+i}, 0")
    a(f"s_lshl_b32 s7, s{S_C}, 2")
    a(f"s_add_u32 s26, s7, {F_KRDY}")
    a(f"s_add_u32 s27, s7, {F_URDY}")
    lds_spin(a, ["s26", "s27"])
    a("s_waitcnt vmcnt(0)")
    stamp(a, opts, 16)
    a("v_lshlrev_b32 v5, 16, v151           ; Dskip")
    a(f"s_setprio {opts.get('cprio', 0)}")
    lg = LgTrack(a)
    def rdA(st, dl, rp):
        Dd, e = dl >> 1, dl & 1
        o = (1-e)*128 + (3-rp)*16
        r = AF + st*32 + dl*4
        return [(f"ds_read2_b32 {v(r,2)}, v{VA+Dd} offset0:{o} offset1:{o+1}", ('A', rp, dl)),
                (f"ds_read2_b32 {v(r+2,2)}, v{VA+Dd} offset0:{o+2} offset1:{o+3}", ('A', rp, dl))]
    def rdB(p, rp):
        return (f"ds_read_b128 {v(BF+p*4,4)}, v{VB} offset:{CT_U + 512*p + (3-rp)*64}", ('B', rp, p))
    def emit(x): a(x[0]); lg.op(x[1])
    emit(rdB(0, 0))
    for dl in range(8):
        for x in rdA(0, dl, 0): emit(x)
    for p in range(1, 8): emit(rdB(p, 0))
    for rp in range(4):
        st = rp & 1
        nxtA = []
        if rp < 3:
            for dl in range(8): nxtA += rdA(1-st, dl, rp+1)
        ni = 0
        for p in range(8):
            for dl in range(8-p):
                lg.wait([('A', rp, dl), ('B', rp, p)])
                a(f"v_mfma_f32_16x16x32_bf16 {v(ACC+4*(dl+p),4)}, {v(AF+st*32+dl*4,4)}, {v(BF+p*4,4)}, {v(ACC+4*(dl+p),4)}")
                if ni < len(nxtA): emit(nxtA[ni]); ni += 1
            if rp < 3: emit(rdB(p, rp+1))
    a("s_setprio 0")
    stamp(a, opts, 17)
    ex0 = a.label('ex0'); exd = a.label('exd')
    a(f"""
    v_lshlrev_b32 v13, 4, v0
    s_lshl_b32 s7, s{S_W}, 12
    s_add_u32 s7, s7, {F_EX}
    v_add_u32 v3, s7, v13
    s_cmp_eq_u32 s{S_RH}, 0
    s_nop 4
    s_cbranch_scc1 {ex0}
    """)
    for T in range(4): a(f"ds_write_b128 v3, {v(ACC+4*T,4)} offset:{T*1024}")
    for i in range(16): a(f"v_mov_b32 v{ACC+i}, v{ACC+16+i}")
    a(f"s_branch {exd}")
    a(f"{ex0}:")
    for T in range(4): a(f"ds_write_b128 v3, {v(ACC+16+4*T,4)} offset:{T*1024}")
    a(f"{exd}:")
    a("s_waitcnt lgkmcnt(0)")
    a(f"s_lshl_b32 s7, s{S_W}, 2")
    a(f"s_add_u32 s7, s7, {F_XFL}")
    lds_set(a, "s7")
    a(f"""
    s_xor_b32 s7, s{S_W}, 1
    s_lshl_b32 s26, s7, 2
    s_add_u32 s26, s26, {F_XFL}
    s_lshl_b32 s27, s7, 12
    s_add_u32 s27, s27, {F_EX}
    v_add_u32 v14, s27, v13
    """)
    lds_spin(a, ["s26"])
    for T in range(4): a(f"ds_read_b128 {v(32+4*T,4)}, v14 offset:{T*1024}")
    a(f"""
    v_and_b32 v1, 15, v0
    v_lshlrev_b32 v1, 5, v1
    v_lshrrev_b32 v2, 4, v0
    v_lshlrev_b32 v2, 3, v2
    v_add_u32 v1, v1, v2                   ; 2*(16a + 4q)
    s_lshl_b32 s7, s{S_RH}, 11
    s_add_u32 s24, s7, s{S_TB}
    v_add_u32 v2, s24, v1
    """)
    for k in range(4): a(f"ds_read_b64 {v(48+2*k,2)}, v2 offset:{CT_U + 480 + k*512}")
    a(f"""
    v_and_b32 v1, 15, v0
    v_lshlrev_b32 v1, 6, v1
    v_lshrrev_b32 v2, 4, v0
    v_lshlrev_b32 v2, 4, v2
    v_add_u32 v1, v1, v2
    s_lshl_b32 s24, s{S_CH}, 13
    s_add_u32 s24, s24, {WS_Y}
    s_lshl_b32 s7, s{S_RH}, 12
    s_add_u32 s24, s24, s7
    s_waitcnt lgkmcnt(0)
    """)
    for k in range(4):
        A = ACC + 4*k
        for i in range(4): a(f"v_add_f32 v{A+i}, v{A+i}, v{32+4*k+i}")
        U = 64
        a(f"v_cvt_pk_bf16_f32 v{U}, v{A}, v{A+1}")
        a(f"v_cvt_pk_bf16_f32 v{U+1}, v{A+2}, v{A+3}")
        for j in range(2):
            a(f"v_lshlrev_b32 v{U+2+2*j}, 16, v{48+2*k+j}")
            a(f"v_and_b32 v{U+3+2*j}, 0xffff0000, v{48+2*k+j}")
        for i in range(4): a(f"v_mul_f32 v{U+2+i}, v{U+2+i}, v5")
        a(f"v_cvt_pk_bf16_f32 v{U+6}, v{U+2}, v{U+3}")
        a(f"v_cvt_pk_bf16_f32 v{U+7}, v{U+4}, v{U+5}")
        for j in range(2):
            a(f"v_lshlrev_b32 v{U+2+2*j}, 16, v{U+6+j}")
            a(f"v_and_b32 v{U+3+2*j}, 0xffff0000, v{U+6+j}")
            a(f"v_lshlrev_b32 v{U+8+2*j}, 16, v{U+j}")
            a(f"v_and_b32 v{U+9+2*j}, 0xffff0000, v{U+j}")
        for i in range(4): a(f"v_add_f32 v{U+2+i}, v{U+2+i}, v{U+8+i}")
        O = 80 + 4*k
        a(f"v_cvt_pk_bf16_f32 v{O}, v{U+2}, v{U+3}")
        a(f"v_cvt_pk_bf16_f32 v{O+1}, v{U+4}, v{U+5}")
        a(f"v_mov_b32 v{O+2}, v{V_NON}")
        a(f"v_mov_b32 v{O+3}, v{V_NON+1}")
        a("s_setprio 3")
        a(f"buffer_store_dwordx4 {v(O,4)}, v1, s[{SRD_WS}:{SRD_WS+3}], s24 offen offset:{k*1024} sc1")
        a("s_setprio 0")
    a(f"global_load_dwordx4 {v(V_XT,4)}, v{V_OFF}, s[{SP['x']}:{SP['x']+1}]")
    stamp(a, opts, 18)
    a("s_waitcnt vmcnt(0)")
    a(f"s_branch {opts['lfinal']}")

def final_F(a, opts):
    srd(a, SRD_O, SP['out'], 2097152)
    a(f"""
    s_and_b32 s7, s{S_WP}, 3
    s_lshl_b32 s7, s7, 4
    v_and_b32 v1, 15, v0
    v_add_u32 v2, s7, v1                  ; t
    v_mul_u32_u24 v2, {PROW}, v2
    s_lshr_b32 s24, s{S_WP}, 2
    s_lshl_b32 s24, s24, 2
    v_lshrrev_b32 v3, 4, v0
    v_add_u32 v3, s24, v3                 ; octet
    v_lshlrev_b32 v4, 5, v3
    v_add_u32 v2, v2, v4
    v_add_u32 v2, {F_P}, v2
    v_lshlrev_b32 v4, 3, v3
    v_lshrrev_b32 v5, 2, v1
    v_add_u32 v4, v4, v5
    v_mul_u32_u24 v4, 160, v4
    v_and_b32 v5, 3, v1
    v_lshlrev_b32 v5, 3, v5
    v_add_u32 v4, v4, v5
    s_lshl_b32 s7, s7, 1
    s_add_u32 s7, s7, {F_YT}
    v_add_u32 v4, s7, v4
    """)
    U = 56
    a("s_waitcnt vmcnt(4)") if False else None
    a("s_waitcnt lgkmcnt(0)")
    stamp(a, opts, 26)
    a("s_barrier")
    stamp(a, opts, 27)
    P = 16
    for pw in range(4):
        a(f"ds_read_b128 {v(P+8*pw,4)}, v2 offset:{pw*64*PROW}")
        a(f"ds_read_b128 {v(P+8*pw+4,4)}, v2 offset:{pw*64*PROW+16}")
    a(f"ds_read_b64_tr_b16 v[8:9], v4")
    a(f"ds_read_b64_tr_b16 v[10:11], v4 offset:{4*160}")
    for j in range(4):
        a(f"v_lshlrev_b32 v{U+2*j}, 16, v{V_XT+j}")
        a(f"v_and_b32 v{U+2*j+1}, 0xffff0000, v{V_XT+j}")
    a("s_waitcnt lgkmcnt(6)")
    for i in range(8): a(f"v_add_f32 v{P+i}, v{P+i}, v{P+8+i}")
    a("s_waitcnt lgkmcnt(2)")
    for i in range(8): a(f"v_add_f32 v{P+16+i}, v{P+16+i}, v{P+24+i}")
    for i in range(8): a(f"v_add_f32 v{P+i}, v{P+i}, v{P+16+i}")
    for j in range(4): a(f"v_cvt_pk_bf16_f32 v{48+j}, v{P+2*j}, v{P+2*j+1}")
    a("s_waitcnt lgkmcnt(0)")
    for j in range(4):
        a(f"v_lshlrev_b32 v{U+8+2*j}, 16, v{8+j}")
        a(f"v_and_b32 v{U+8+2*j+1}, 0xffff0000, v{8+j}")
    for i in range(8): a(f"v_add_f32 v{U+i}, v{U+i}, v{U+8+i}")
    for j in range(4): a(f"v_cvt_pk_bf16_f32 v{72+j}, v{U+2*j}, v{U+2*j+1}")
    for j in range(4):
        a(f"v_lshlrev_b32 v{U+2*j}, 16, v{72+j}")
        a(f"v_and_b32 v{U+2*j+1}, 0xffff0000, v{72+j}")
        a(f"v_lshlrev_b32 v{U+8+2*j}, 16, v{48+j}")
        a(f"v_and_b32 v{U+8+2*j+1}, 0xffff0000, v{48+j}")
    for i in range(8): a(f"v_add_f32 v{U+i}, v{U+i}, v{U+8+i}")
    for j in range(4): a(f"v_cvt_pk_bf16_f32 v{76+j}, v{U+2*j}, v{U+2*j+1}")
    a(f"buffer_store_dwordx4 v[76:79], v{V_OFF}, s[{SRD_O}:{SRD_O+3}], 0 offen {('', 'sc1', 'nt', 'sc0 sc1')[opts.get('osc', 0)]}")
    stamp(a, opts, 28)
    if opts.get('ts'): a("s_waitcnt vmcnt(0)")
    stamp(a, opts, 8)
    stamp(a, opts, 7, real=True)
    stamp_flush(a, opts, 0)
    a("s_endpgm")

def gen_F(a, name, opts):
    import kerA
    MAP2[0] = opts.get('map2', 1)
    opts = dict(opts); opts['fused'] = 1
    opts['lfinal'] = a.label('final')
    if opts.get('cpf', 1):
        opts['abeg'] = name; opts['aend'] = 1
    a(kernel_head(name))
    lend = a.label('endF')
    kerA.prologue_A(a, lend, opts)
    lab = {k: a.label(k) for k in ('g','ld','h')}
    opts['lg2'] = a.label('gemm2')
    a(f"""
    s_cmp_lt_u32 s{S_WAVE}, 4
    s_cbranch_scc1 {lab['g']}
    s_cmp_lt_u32 s{S_WAVE}, 8
    s_cbranch_scc1 {lab['ld']}
    """)
    helper_F(a, opts)
    a(f"{lab['ld']}:"); kerA.loader_A(a, opts)
    a(f"s_branch {opts['lg2']}")
    a(f"{lab['g']}:"); kerA.gemm_A(a, opts)
    a(f"{opts['lg2']}:"); gemm2_F(a, opts)
    a(f"{opts['lfinal']}:"); final_F(a, opts)
    a(f"{lend}:")
    a("s_endpgm")
    a(".fill 3072, 4, 0xbf800000")
    a(kernel_desc(name, 168))
```

```python
from core import *
import struct
def f2u(x): return struct.unpack('<I', struct.pack('<f', x))[0]
def hx(x): return hex(f2u(x))

STAGE = 40960
A_KT   = 3*STAGE
A_STATS = A_KT + 32768
A_CS   = A_STATS + 1024
A_LDS  = A_CS + 768

S_WAVE, S_RB, S_CT, S_ROT = 3, 4, 5, 6
SRD_X, SRD_WG, SRD_WU, SRD_T0, SRD_T1, SRD_T2 = 8, 12, 16, 20, 24, 28

def prologue_A(a, lend, opts):
    a(f"""
    s_cmp_ge_u32 s2, 256
    s_cbranch_scc1 {lend}
    """)
    stamp_init(a, opts)
    stamp(a, opts, 10, real=True)
    stamp(a, opts, 0)
    a(f"""
    s_load_dwordx16 s[36:51], s[0:1], 0
    s_load_dwordx16 s[52:67], s[0:1], 64
    """)
    if opts.get('aend') and opts.get('earlypf', 1):
        pc = a.label('pc0')
        a(f"""
        s_getpc_b64 s[74:75]
        {pc}:
        s_add_u32 s74, s74, {opts['abeg']}-{pc}
        s_addc_u32 s75, s75, -1
        s_lshr_b32 s76, s2, 3
        s_and_b32 s76, s76, 3
        s_mul_i32 s76, s76, 96
        v_lshrrev_b32 v1, 6, v0
        v_lshlrev_b32 v1, 3, v1
        v_and_b32 v2, 7, v0
        v_add_u32 v1, v1, v2
        v_add_u32 v1, s76, v1
        v_lshlrev_b32 v1, 6, v1
        v_and_b32 v2, 63, v0
        v_cmp_gt_u32 vcc, 8, v2
        s_and_saveexec_b64 s[76:77], vcc
        global_load_dword v166, v1, s[74:75]
        s_mov_b64 exec, s[76:77]
        """)
    a(f"""
    v_lshrrev_b32 v1, 6, v0
    v_and_b32 v0, 63, v0
    s_and_b32 s7, s2, 7
    v_readfirstlane_b32 s{S_WAVE}, v1
    s_lshr_b32 s24, s2, 3
    s_and_b32 s25, s7, 1
    s_lshl_b32 s25, s25, 3
    s_and_b32 s26, s24, 7
    s_add_u32 s{S_RB}, s25, s26
    s_lshr_b32 s25, s7, 1
    s_lshl_b32 s25, s25, 2
    s_lshr_b32 s26, s24, 3
    s_add_u32 s{S_CT}, s25, s26
    s_lshl_b32 s25, s{S_CT}, 1
    s_add_u32 s25, s25, s{S_RB}
    s_and_b32 s{S_ROT}, s25, {opts.get('rotmask', 7)}
    """)

def loader_A(a, opts):
    SJ, SXB, SWB, SLX, SLW, ST, SXO, SWO, SCC, SSTG = 68, 25, 26, 27, 28, 29, 30, 31, 32, 33
    a(f"""
    s_sub_u32 s{SJ}, s{S_WAVE}, 4
    v_lshrrev_b32 v6, 3, v0
    v_lshlrev_b32 v2, 10, v6
    v_and_b32 v6, 7, v0
    v_lshrrev_b32 v7, 4, v0
    v_xor_b32 v6, v6, v7
    v_lshlrev_b32 v6, 4, v6
    v_add_u32 v2, v2, v6
    v_xor_b32 v3, 64, v2
    v_lshrrev_b32 v6, 2, v0
    s_movk_i32 s{ST}, 2752
    v_mul_lo_u32 v4, v6, s{ST}
    v_and_b32 v6, 3, v0
    v_lshlrev_b32 v7, 4, v6
    v_xor_b32 v6, 2, v6
    v_lshlrev_b32 v6, 4, v6
    v_add_u32 v5, v4, v6
    v_add_u32 v4, v4, v7
    s_lshl_b32 s{SXB}, s{S_RB}, 17
    s_lshl_b32 s{ST}, s{SJ}, 15
    s_add_u32 s{SXB}, s{SXB}, s{ST}
    s_mul_i32 s{SWB}, s{SJ}, {16*2752}
    s_mul_i32 s{ST}, s{S_CT}, 192
    s_add_u32 s{SWB}, s{SWB}, s{ST}
    s_lshl_b32 s{SLX}, s{SJ}, 12
    s_lshl_b32 s{SLW}, s{SJ}, 10
    s_add_u32 s{SLW}, s{SLW}, 16384
    s_mov_b32 s{SCC}, s{S_ROT}
    s_waitcnt lgkmcnt(0)
    """)
    srd(a, SRD_X, SP['x'], 2097152)
    srd(a, SRD_WG, SP['wg'], 1409024)
    srd(a, SRD_WU, SP['wu'], 1409024)
    def setup(stage_off):
        a(f"""
        s_lshl_b32 s{SXO}, s{SCC}, 7
        s_add_u32 s{SXO}, s{SXO}, s{SXB}
        s_mul_i32 s{SWO}, s{SCC}, {64*2752}
        s_add_u32 s{SWO}, s{SWO}, s{SWB}
        s_add_u32 s34, s{SLX}, {stage_off}
        s_add_u32 s35, s{SLW}, {stage_off}
        s_add_u32 s{SCC}, s{SCC}, 1
        s_and_b32 s{SCC}, s{SCC}, 7
        """)
    def dma(k):
        if opts.get('nodma') and dma.n >= 13:
            return
        dma.n += 1
        order = [('x',0),('g',0),('u',0),('x',1),('g',1),('u',1),('x',2),('g',2),('u',2),('x',3)]
        t, i = order[k]
        if t == 'x':
            a(f"s_add_u32 m0, s34, {i*1024}")
            a(f"s_add_u32 s{ST}, s{SXO}, {i*8192}")
            a(f"buffer_load_dwordx4 v{2+(i&1)}, s[{SRD_X}:{SRD_X+3}], s{ST} offen lds")
        elif t == 'g':
            a(f"s_add_u32 m0, s35, {i*4096}")
            a(f"s_add_u32 s{ST}, s{SWO}, {i*64}")
            a(f"buffer_load_dwordx4 v4, s[{SRD_WG}:{SRD_WG+3}], s{ST} offen lds")
        else:
            a(f"s_add_u32 m0, s35, {i*4096+12288}")
            a(f"s_add_u32 s{ST}, s{SWO}, {i*64}")
            a(f"buffer_load_dwordx4 v5, s[{SRD_WU}:{SRD_WU+3}], s{ST} offen lds")
    dma.n = 0
    H = opts.get('half', 3)
    for _ in range(opts.get('ldelay', 0)): a("s_sleep 2")
    stamp(a, opts, 1)
    setup(0)
    for k in range(10): dma(k)
    setup(STAGE)
    for k in range(H): dma(k)
    stamp(a, opts, 2)
    a(f"s_waitcnt vmcnt({H})")
    stamp(a, opts, 3)
    a("s_barrier")
    lp = a.label('ldloop')
    a(f"s_mov_b32 s{SSTG}, {2*STAGE}")
    a(f"s_mov_b32 s7, 0")
    a(f"{lp}:")
    for k in range(H, 10): dma(k)
    setup(f"s{SSTG}")
    for k in range(H): dma(k)
    if opts.get('tsl'):
        a("s_add_u32 s90, s7, 16"); stamp(a, opts, "s90")
    a(f"s_waitcnt vmcnt({H})")
    if opts.get('tsl'):
        a("s_add_u32 s90, s7, 24"); stamp(a, opts, "s90")
    if opts.get('tsb'):
        a("s_add_u32 s90, s7, 33"); stamp(a, opts, "s90")
    a("s_barrier")
    a(f"""
    s_add_u32 s{SSTG}, s{SSTG}, {STAGE}
    s_cmp_eq_u32 s{SSTG}, {3*STAGE}
    s_cselect_b32 s{SSTG}, 0, s{SSTG}
    s_add_u32 s7, s7, 1
    s_cmp_lt_u32 s7, {5 if opts.get('lastfull', 1) and opts.get('fused') else 6}
    s_cbranch_scc1 {lp}
    """)
    if opts.get('lastfull', 1) and opts.get('fused'):
        from kerF import lds_inc, F_DMAD
        for k in range(H, 10): dma(k)
        setup(f"s{SSTG}")
        for k in range(10): dma(k)
        from kerA_help import cs_gather_early
        cs_gather_early(a, opts, SJ)
    else:
        for k in range(H, 10): dma(k)
    stamp(a, opts, 4)
    from kerA_help import loader_tail_A
    loader_tail_A(a, opts, SJ, 10-H)

def stats_produce(a, opts):
    X = 8
    a(f"""
    s_setprio 3
    v_lshrrev_b32 v1, 5, v0
    v_lshlrev_b32 v1, 10, v1
    v_and_b32 v2, 31, v0
    v_lshlrev_b32 v2, 4, v2
    v_add_u32 v1, v1, v2
    s_lshl_b32 s7, s{S_RB}, 4
    s_add_u32 s7, s7, s{S_CT}
    s_lshl_b32 s7, s7, 3
    s_lshl_b32 s33, s{S_WAVE}, 1
    s_add_u32 s7, s7, s33           ; row0
    s_lshl_b32 s33, s7, 10
    v_add_u32 v1, s33, v1
    s_waitcnt lgkmcnt(0)
    global_load_dwordx4 {v(X,4)}, v1, s[{SP['x']}:{SP['x']+1}]
    global_load_dwordx4 {v(X+4,4)}, v1, s[{SP['x']}:{SP['x']+1}] offset:512
    s_setprio 0
    """)
    stamp(a, opts, 1)

def stats_finish(a, opts):
    from kerA_help import A_PUB as A_PUB_
    X = 8; U = 16
    a("s_waitcnt vmcnt(0)")
    for j in range(8):
        a(f"v_lshlrev_b32 v{U+2*j}, 16, v{X+j}")
        a(f"v_and_b32 v{U+2*j+1}, 0xffff0000, v{X+j}")
    a(f"v_add_f32 v2, v{U}, v{U+1}")
    a(f"v_add_f32 v3, v{U+2}, v{U+3}")
    for j in range(2, 8):
        a(f"v_add_f32 v{2+(j&1)}, v{2+(j&1)}, v{U+2*j}")
        a(f"v_add_f32 v{2+(j&1)}, v{2+(j&1)}, v{U+2*j+1}")
    def red32(r):
        a("s_nop 1")
        a(f"v_add_f32_dpp v{r}, v{r}, v{r} quad_perm:[1,0,3,2] row_mask:0xf bank_mask:0xf")
        a("s_nop 1")
        a(f"v_add_f32_dpp v{r}, v{r}, v{r} quad_perm:[2,3,0,1] row_mask:0xf bank_mask:0xf")
        a("s_nop 1")
        a(f"v_add_f32_dpp v{r}, v{r}, v{r} row_half_mirror row_mask:0xf bank_mask:0xf")
        a("s_nop 1")
        a(f"v_add_f32_dpp v{r}, v{r}, v{r} row_mirror row_mask:0xf bank_mask:0xf")
        a(f"v_mov_b32 v5, v{r}")
        a("s_nop 1")
        a(f"v_permlane16_swap_b32 v{r}, v5")
        a("s_nop 1")
        a(f"v_add_f32 v{r}, v{r}, v5")
    a("v_add_f32 v2, v2, v3")
    red32(2)
    a("v_mul_f32 v2, 0x3b000000, v2        ; mean")
    a("v_mov_b32 v3, 0")
    a("v_mov_b32 v4, 0")
    for i in range(16):
        a(f"v_sub_f32 v{U+i}, v{U+i}, v2")
    for i in range(16):
        a(f"v_fmac_f32 v{3+(i&1)}, v{U+i}, v{U+i}")
    a("v_add_f32 v4, v4, v3")
    red32(4)
    a(f"""
    v_mul_f32 v4, 0x3b000000, v4          ; var
    v_cvt_pk_bf16_f32 v2, v2, v4
    v_and_b32 v4, 0xffff0000, v2
    v_add_f32 v4, {hx(1e-5)}, v4
    v_cvt_pk_bf16_f32 v4, v4, v4
    v_and_b32 v4, 0xffff0000, v4
    v_sqrt_f32 v4, v4
    v_and_b32 v2, 0xffff, v2
    v_cvt_pk_bf16_f32 v4, v4, v4
    v_and_b32 v4, 0xffff0000, v4
    v_or_b32 v2, v2, v4
    v_lshrrev_b32 v1, 5, v0
    s_lshl_b32 s33, s{S_WAVE}, 1
    v_add_u32 v1, s33, v1
    v_lshlrev_b32 v1, 2, v1
    v_add_u32 v1, {A_PUB_}, v1
    ds_write_b32 v1, v2
    s_waitcnt lgkmcnt(0)
    """)

V_WF = 8
V_XF = 32
V_XA = 48
V_WA = 52
V_ACC = 64
def wf(st, mi): return V_WF + st*12 + mi*4
def xf(st, n): return V_XF + st*8 + n*4
def acc(mi, n): return V_ACC + (mi*2+n)*16

def gemm_A(a, opts):
    S_DELTA, S_STG, S_CNT, S_TW, S_FW = 25, 26, 27, 68, 69
    stats_produce(a, opts)
    a("s_mov_b32 s88, s7")
    if opts.get('aend') and not opts.get('earlypf', 1):
        pc = a.label('pc')
        a(f"""
        s_getpc_b64 s[74:75]
        {pc}:
        s_add_u32 s74, s74, {opts['abeg']}-{pc}
        s_addc_u32 s75, s75, -1
        s_lshr_b32 s76, s2, 3
        s_and_b32 s76, s76, 1
        s_lshl_b32 s76, s76, 2
        s_add_u32 s76, s76, s{S_WAVE}
        s_min_u32 s76, s76, {6 if opts.get('fused') else 5}
        s_lshl_b32 s76, s76, 12
        v_lshlrev_b32 v6, 6, v0
        v_add_u32 v6, s76, v6
        global_load_dword v7, v6, s[74:75]
        """)
    srd(a, SRD_T0, SP['ws'], WS_H_SZ, WS_H)
    a(f"""
    s_and_b32 s{S_TW}, s{S_WAVE}, 1
    s_lshr_b32 s{S_FW}, s{S_WAVE}, 1
    s_mov_b32 s30, {-2*STAGE & 0xffffffff}
    s_mov_b32 s31, {STAGE}
    v_and_b32 v1, 31, v0
    v_lshrrev_b32 v2, 5, v0
    v_lshrrev_b32 v3, 1, v1
    v_and_b32 v3, 7, v3
    s_lshl_b32 s7, s{S_TW}, 6
    v_add_u32 v4, s7, v1
    v_lshlrev_b32 v4, 7, v4
    """)
    for s_ in range(4):
        a(f"v_add_u32 v5, {2*s_}, v2")
        a(f"v_xor_b32 v5, v5, v3")
        a(f"v_lshlrev_b32 v5, 4, v5")
        a(f"v_add_u32 v{V_XA+s_}, v4, v5")
    a(f"""
    v_lshrrev_b32 v3, 4, v0
    v_and_b32 v3, 1, v3                    ; gu
    v_mul_u32_u24 v4, 12288, v3
    v_lshlrev_b32 v5, 9, v2
    v_add_u32 v4, v4, v5
    v_and_b32 v5, 15, v0
    v_lshrrev_b32 v6, 2, v5
    v_lshlrev_b32 v6, 6, v6
    v_add_u32 v4, v4, v6
    v_and_b32 v5, 3, v5
    v_lshlrev_b32 v5, 3, v5
    v_add_u32 v4, v4, v5
    v_add_u32 v4, 16384, v4
    s_mul_i32 s7, s{S_FW}, 3
    """)
    for mi in range(3):
        a(f"""
        s_add_u32 s32, s7, {mi}
        s_lshr_b32 s33, s32, 1
        s_lshl_b32 s33, s33, 12            ; P*4096
        s_and_b32 s32, s32, 1              ; b
        v_xor_b32 v5, s32, v3
        v_lshlrev_b32 v5, 5, v5
        v_add_u32 v5, s33, v5
        v_add_u32 v{V_WA+mi}, v4, v5
        """)
    for i in range(96): a(f"v_mov_b32 v{V_ACC+i}, 0")
    if opts.get('fused'):
        from kerF import F_SY
        a(f"""
        v_lshlrev_b32 v5, 2, v0
        v_add_u32 v5, {F_SY}, v5
        v_mov_b32 v6, 0
        s_mov_b64 exec, 0xffffffff
        ds_write_b32 v5, v6
        s_mov_b64 exec, -1
        """)
    a("s_mov_b32 s7, s88")
    stats_finish(a, opts)
    stamp(a, opts, 5)
    def reads(st, s_):
        r = []
        r.append(f"ds_read_b128 {v(xf(st,0),4)}, v{V_XA+s_}")
        for mi in range(3):
            off = s_*1024
            r.append(f"ds_read_b64_tr_b16 {v(wf(st,mi),2)}, v{V_WA+mi} offset:{off}")
            r.append(f"ds_read_b64_tr_b16 {v(wf(st,mi)+2,2)}, v{V_WA+mi} offset:{off+256}")
            if mi == 0:
                r.append(f"ds_read_b128 {v(xf(st,1),4)}, v{V_XA+s_} offset:4096")
        return r
    def step(st, rd, extra=()):
        mf = []
        for mi in range(3):
            for n in range(2):
                mf.append(f"v_mfma_f32_32x32x16_bf16 {v(acc(mi,n),16)}, {v(wf(st,mi),4)}, {v(xf(st,n),4)}, {v(acc(mi,n),16)}")
        rd = list(extra) + list(rd)
        cnts = opts.get('rdsched', (2,2,2,2,0,0))
        if extra: cnts = (4,4,3,3,0,0)
        slots = [[] for _ in range(6)]
        ri = 0
        for k, cnt in enumerate(cnts):
            slots[k] += rd[ri:ri+cnt]; ri += cnt
        slots[5] += rd[ri:]
        for k in range(6):
            if not opts.get('nomfma'): a(mf[k])
            elif opts.get('nomfma') == 2 and k % 2 == 0: a(mf[k])
            for l in slots[k]: a(l)
    if opts.get('fused') and opts.get('skipidle', 1):
        from kerF import F_GDN
        busy = a.label('busy'); lidle = a.label('idle')
        opts['lgpub'] = a.label('gpub')
        a(f"""
        s_lshl_b32 s7, s{S_CT}, 1
        s_add_u32 s7, s7, s{S_FW}
        s_cmp_lt_u32 s7, 29
        s_cbranch_scc1 {busy}
        s_mov_b32 s7, 8
        {lidle}:
        s_barrier
        s_sub_u32 s7, s7, 1
        s_cmp_lg_u32 s7, 0
        s_cbranch_scc1 {lidle}
        v_mov_b32 v1, {F_GDN}
        v_mov_b32 v2, 1
        s_mov_b64 exec, 1
        ds_add_u32 v1, v2
        s_mov_b64 exec, -1
        s_branch {opts['lgpub']}
        {busy}:
        """)
    stamp(a, opts, 2)
    a("s_barrier")
    stamp(a, opts, 3)
    stamp(a, opts, 12, real=True)
    for l in reads(0, 0): a(l)
    lp = a.label('gloop'); lend = a.label('gend')
    a(f"s_mov_b32 s{S_CNT}, 0")
    a(f"s_mov_b32 s{S_STG}, 0")
    a(f"{lp}:")
    for s_ in range(3):
        a("s_waitcnt lgkmcnt(0)")
        step(s_ & 1, reads((s_+1) & 1, s_+1))
    a("s_waitcnt lgkmcnt(0)")
    a(f"s_cmp_eq_u32 s{S_CNT}, 7")
    a(f"s_cbranch_scc1 {lend}")
    if opts.get('tsg'):
        a(f"s_add_u32 s90, s{S_CNT}, 16"); stamp(a, opts, "s90")
    a("s_barrier")
    if opts.get('tsg'):
        a(f"s_add_u32 s90, s{S_CNT}, 24"); stamp(a, opts, "s90")
    a(f"""
    s_add_u32 s{S_STG}, s{S_STG}, {STAGE}
    s_cmp_eq_u32 s{S_STG}, {3*STAGE}
    s_cselect_b32 s{S_DELTA}, s30, s31
    s_cselect_b32 s{S_STG}, 0, s{S_STG}
    s_add_u32 s{S_CNT}, s{S_CNT}, 1
    """)
    adv = [f"v_add_u32 v{V_XA+k}, s{S_DELTA}, v{V_XA+k}" for k in range(4)] + [f"v_add_u32 v{V_WA+k}, s{S_DELTA}, v{V_WA+k}" for k in range(3)]
    adv = [adv[0], adv[4], adv[5], adv[6], adv[1], adv[2], adv[3]]
    for l in adv[:4]: a(l)
    step(1, reads(0, 0) + adv[4:])
    a(f"s_branch {lp}")
    a(f"{lend}:")
    step(1, [])
    stamp(a, opts, 4)
    stamp(a, opts, 13, real=True)
    if opts.get('fused'):
        from kerF import F_GDN, F_CSR, lds_spin
        a(f"""
        v_mov_b32 v1, {F_GDN}
        v_mov_b32 v2, 1
        s_mov_b64 exec, 1
        ds_add_u32 v1, v2
        s_mov_b64 exec, -1
        """)
        lds_spin(a, [F_CSR])
    else:
        a("s_barrier")
    if opts.get('eprio'): a(f"s_setprio {opts['eprio']}")
    stamp(a, opts, 9)
    stamp(a, opts, 43, real=True)
    if opts.get('epi2'):
        a("s_mov_b32 s87, 0")
        a("L_epi_again:")
    a(f"""
    v_and_b32 v1, 31, v0
    s_lshl_b32 s7, s{S_TW}, 6
    v_add_u32 v1, s7, v1
    v_lshlrev_b32 v2, 3, v1
    v_add_u32 v2, {A_STATS}, v2
    ds_read_b64 v[8:9], v2
    ds_read_b64 v[10:11], v2 offset:256
    v_lshrrev_b32 v3, 5, v0
    v_lshlrev_b32 v3, 4, v3
    s_mul_i32 s7, s{S_FW}, 384
    s_add_u32 s7, s7, {A_CS}
    v_add_u32 v3, s7, v3
    v_lshlrev_b32 v4, 4, v0
    """)
    CSR = 32
    def cs_read(mi):
        for g in range(4):
            a(f"ds_read_b128 {v(CSR+4*g,4)}, v3 offset:{mi*128+g*32}")
    cs_read(0)
    K1 = -2*0.7978845608028654*1.4426950408889634
    a("s_waitcnt lgkmcnt(4)")
    for n in range(2):
        b = 12 + 8*n
        m_, s_ = 8+2*n, 9+2*n
        a(f"""
        v_mov_b32 v{b}, v{m_}
        v_rcp_f32 v1, v{s_}
        v_mul_f32 v{b+6}, v{s_}, v{s_}
        v_mul_f32 v{b+2}, {hx(K1)}, v1
        v_mul_f32 v2, v1, v1
        v_mul_f32 v2, {hx(0.044715)}, v2
        v_mul_f32 v{b+4}, v{b+2}, v2
        """)
    S_T0, S_T1, S_TT = 28, 29, 32
    a(f"""
    s_lshl_b32 s{S_TT}, s{S_RB}, 2
    s_lshl_b32 s7, s{S_TW}, 1
    s_add_u32 s{S_TT}, s{S_TT}, s7
    s_mul_i32 s{S_TT}, s{S_TT}, 86          ; (4rb+2tw)*86
    s_mul_i32 s{S_T0}, s{S_CT}, 6
    s_mul_i32 s7, s{S_FW}, 3
    s_add_u32 s{S_T0}, s{S_T0}, s7
    """)
    T = 48
    OUTS = (28, 160)
    for mi in range(3):
        skip = a.label('skip')
        a("s_waitcnt lgkmcnt(0)")
        for n in range(2):
            b = 12 + 8*n
            A = acc(mi, n)
            for p in range(8):
                a(f"v_pk_fma_f32 {v(A+2*p,2)}, {v(CSR+2*p,2)}, {v(b,2)}, {v(A+2*p,2)} op_sel_hi:[1,0,1] neg_lo:[0,1,0] neg_hi:[0,1,0]")
        if mi < 2: cs_read(mi+1)
        for p in range(4):
            regs = []
            for n in range(2):
                A = acc(mi, n); b = 12 + 8*n
                regs.append((A+2*p, A+8+2*p, b, T+8*n))
            for (g_, u_, b, t) in regs: a(f"v_pk_mul_f32 {v(t,2)}, {v(g_,2)}, {v(g_,2)}")
            for (g_, u_, b, t) in regs: a(f"v_pk_fma_f32 {v(t,2)}, {v(t,2)}, {v(b+4,2)}, {v(b+2,2)} op_sel_hi:[1,0,0]")
            for (g_, u_, b, t) in regs: a(f"v_pk_mul_f32 {v(t,2)}, {v(t,2)}, {v(g_,2)}")
            for (g_, u_, b, t) in regs: a(f"v_pk_mul_f32 {v(t+2,2)}, {v(g_,2)}, {v(u_,2)}")
            for (g_, u_, b, t) in regs:
                a(f"v_exp_f32 v{t}, v{t}")
                a(f"v_exp_f32 v{t+1}, v{t+1}")
            for (g_, u_, b, t) in regs: a(f"v_pk_fma_f32 {v(t,2)}, {v(t,2)}, {v(b+6,2)}, {v(b+6,2)} op_sel_hi:[1,0,0]")
            for (g_, u_, b, t) in regs:
                a(f"v_rcp_f32 v{t}, v{t}")
                a(f"v_rcp_f32 v{t+1}, v{t+1}")
            for (g_, u_, b, t) in regs: a(f"v_pk_mul_f32 {v(t+2,2)}, {v(t+2,2)}, {v(t,2)}")
            for n, (g_, u_, b, t) in enumerate(regs): a(f"v_cvt_pk_bf16_f32 v{OUTS[n]+p}, v{t+2}, v{t+3}")
        a(f"s_add_u32 s7, s{S_T0}, {mi}")
        a(f"s_cmp_ge_u32 s7, 86")
        a(f"s_cbranch_scc1 {skip}")
        a(f"s_add_u32 s7, s7, s{S_TT}")
        a(f"s_lshl_b32 s7, s7, 10")
        sc = " sc1" if opts.get('fused') else ""
        a(f"buffer_store_dwordx4 {v(OUTS[0],4)}, v4, s[{SRD_T0}:{SRD_T0+3}], s7 offen{sc}")
        a(f"s_add_u32 s7, s7, {86*1024}")
        a(f"buffer_store_dwordx4 {v(OUTS[1],4)}, v4, s[{SRD_T0}:{SRD_T0+3}], s7 offen{sc}")
        a(f"{skip}:")
        a("s_nop 1")
    if opts.get('epi2'):
        a("s_add_u32 s90, s87, 14"); stamp(a, opts, "s90")
        a("s_add_u32 s87, s87, 1")
        a("s_cmp_lt_u32 s87, 2")
        a("s_cbranch_scc1 L_epi_again")
    stamp(a, opts, 6)
    stamp(a, opts, 44, real=True)
    if opts.get('fused'):
        from kerF import gpub_F
        if opts.get('lgpub'): a(f"{opts['lgpub']}:")
        gpub_F(a, opts)
        return
    if opts.get('ts'): a("s_waitcnt vmcnt(0)")
    stamp(a, opts, 8)
    stamp(a, opts, 7, real=True)
    stamp_flush(a, opts, 0)
    a("s_endpgm")

from kerA_help import helper_A, loader_tail_A, A_M, A_R, A_PUB, A_LDS as A_LDS2

def gen_A(a, name, opts):
    a(kernel_head(name))
    if opts.get('cpf', 1):
        opts = dict(opts); opts['abeg'] = name; opts['aend'] = 1
    lend = a.label('endA')
    prologue_A(a, lend, opts)
    lab = {k: a.label(k) for k in ('g','ld','h')}
    a(f"""
    s_cmp_lt_u32 s{S_WAVE}, 4
    s_cbranch_scc1 {lab['g']}
    s_cmp_ge_u32 s{S_WAVE}, 8
    s_cbranch_scc1 {lab['h']}
    """)
    loader_A(a, opts)
    a(f"{lab['h']}:"); helper_A(a, opts)
    a(f"{lab['g']}:"); gemm_A(a, opts)
    a(f"{lend}:")
    a("s_endpgm")
    a(kernel_desc(name, 168))
```

```python
from core import *
import struct
def f2u(x): return struct.unpack('<I', struct.pack('<f', x))[0]
def hx(x): return hex(f2u(x))
STAGE = 40960
A_KT = 3*STAGE; A_STATS = A_KT + 32768; A_CS = A_STATS + 1024
A_M = A_CS + 768; A_R = A_M + 512; A_PUB = A_R + 512; A_LDS = A_PUB + 64
S_WAVE, S_RB, S_CT, S_ROT = 3, 4, 5, 6
SRD_X, SRD_WG, SRD_WU, SRD_T0, SRD_T1, SRD_T2 = 8, 12, 16, 20, 24, 28
LOG2E = 1.4426950408889634
INV2PI = 0.15915494309189535

def cmul(a, dst, p, q, tmp):
    a(f"v_pk_mul_f32 {v(tmp,2)}, {v(p,2)}, {v(q,2)} op_sel:[0,0] op_sel_hi:[0,1]")
    a(f"v_pk_fma_f32 {v(dst,2)}, {v(p,2)}, {v(q,2)}, {v(tmp,2)} op_sel:[1,1,0] op_sel_hi:[1,0,1] neg_lo:[1,0,0]")

def kgen(a, opts):
    S_W, S_TB = 68, 69
    A2, B2, W, Z1, Z2, Z4, Z8, Z16, Z256 = 16, 17, 18, 20, 22, 24, 26, 28, 30
    C0, C1, T0, T1, BH = 32, 34, 36, 38, 40
    WA, RA, VF, UF, ACC = 44, 48, 56, 72, 80
    WB = 144
    PK = 112
    a(f"""
    s_setprio 3
    s_sub_u32 s{S_W}, s{S_WAVE}, 8
    s_lshr_b32 s7, s{S_W}, 1
    s_lshl_b32 s32, s2, 1
    s_add_u32 s32, s32, s7              ; channel d
    s_and_b32 s7, s{S_W}, 1
    s_lshl_b32 s7, s7, 7
    s_lshl_b32 s33, s32, 8              ; d*128*2
    s_add_u32 s33, s33, s7
    v_lshlrev_b32 v1, 1, v0
    v_add_u32 v1, s33, v1
    s_lshl_b32 s34, s32, 1              ; d*2
    v_mov_b32 v2, s34
    s_lshl_b32 s{S_TB}, s{S_W}, 13
    s_add_u32 s{S_TB}, s{S_TB}, {A_KT}
    s_waitcnt lgkmcnt(0)
    """)
    names = ['are','aim','bre','bim','cre','cim']
    for i, nme in enumerate(names):
        a(f"global_load_ushort v{8+i}, v1, s[{SP[nme]}:{SP[nme]+1}]")
    a(f"global_load_ushort v14, v2, s[{SP['logdt']}:{SP['logdt']+1}]")
    if opts.get('fused'): a(f"global_load_ushort v151, v2, s[{SP['dskip']}:{SP['dskip']+1}]")
    stamp(a, opts, 1)
    nn = a.label('nononce')
    a(f"""
    s_or_b32 s7, s2, s{S_W}
    s_cmp_lg_u32 s7, 0
    s_cbranch_scc1 {nn}
    s_memrealtime s[70:71]
    v_mov_b32 v2, 0
    s_waitcnt lgkmcnt(0)
    s_or_b32 s70, s70, 1
    v_mov_b32 v4, s70
    v_mov_b32 v5, s71
    s_mov_b64 exec, 1
    global_store_dwordx2 v2, v[4:5], s[{SP['dbg']}:{SP['dbg']+1}] sc1
    v_mov_b32 v2, {WS_NONCE}
    global_store_dwordx2 v2, v[4:5], s[{SP['ws']}:{SP['ws']+1}]
    s_mov_b64 exec, -1
    {nn}:
    """)
    stamp(a, opts, 9)
    grab_setup(a, opts)
    a("v_mov_b32 v150, 0")
    a(f"""
    v_lshrrev_b32 v3, 4, v0
    v_lshrrev_b32 v4, 2, v0
    v_and_b32 v4, 3, v4                  ; q (write)
    v_and_b32 v5, 3, v0                  ; e
    v_lshlrev_b32 v6, 10, v3
    v_lshlrev_b32 v5, 2, v5
    v_add_u32 v6, v6, v5
    v_add_u32 v6, s{S_TB}, v6
    """)
    for g in range(4):
        a(f"v_xor_b32 v5, {(4-g)&3}, v4")
        a(f"v_lshlrev_b32 v5, 4, v5")
        a(f"v_add_u32 v{WA+g}, v6, v5")
        a(f"v_add_u32 v{WB+g}, 4096, v{WA+g}")
    a("v_and_b32 v4, 15, v0               ; c")
    def raddr(dst, shift, base):
        if shift == 0:
            a(f"v_mov_b32 v5, v4")
        else:
            a(f"v_lshrrev_b32 v5, {shift}, v4")
            a(f"v_and_b32 v5, 1, v5")
            a(f"v_add_u32 v5, v5, v4")
            if shift > 1: a(f"v_add_u32 v5, {(1<<(shift-1))-1}, v5")
            a(f"v_lshrrev_b32 v5, {shift}, v5")
        if base: a(f"v_add_u32 v5, {base}, v5")
        a(f"v_lshrrev_b32 v6, 2, v5")
        a(f"v_sub_u32 v6, 4, v6")
        a(f"v_and_b32 v6, 3, v6")
        a(f"v_xor_b32 v6, v6, v3")
        a(f"v_lshlrev_b32 v6, 4, v6")
        a(f"v_lshlrev_b32 v5, 6, v5")
        a(f"v_add_u32 v5, v5, v6")
        a(f"v_add_u32 v{dst}, s{S_TB}, v5")
    cfg = [(0,0),(1,0),(2,9),(2,0),(3,5),(3,8),(3,11),(3,0)]
    for T,(sh,b) in enumerate(cfg): raddr(RA+T, sh, b)
    for i in range(32): a(f"v_mov_b32 v{ACC+i}, 0")
    stamp(a, opts, 11)
    a("s_waitcnt vmcnt(0)")
    stamp(a, opts, 2)
    for i in range(7): a(f"v_lshlrev_b32 v{8+i}, 16, v{8+i}")
    a(f"""
    v_mul_f32 v14, {hx(LOG2E)}, v14
    v_exp_f32 v14, v14
    s_nop 0
    v_cvt_pk_bf16_f32 v14, v14, v14
    v_and_b32 v14, 0xffff0000, v14
    v_mul_f32 v8, v14, v8
    v_mul_f32 v9, v14, v9
    v_mul_f32 v10, v14, v10               ; dB_re
    v_mul_f32 v11, v14, v11               ; dB_im
    v_mul_f32 v{A2}, {hx(LOG2E)}, v8
    v_mul_f32 v{B2}, {hx(INV2PI)}, v9
    v_mul_f32 v{W}, v12, v10
    v_mul_f32 v{W+1}, v12, v11
    v_fma_f32 v{W}, -v13, v11, v{W}
    v_fma_f32 v{W+1}, v13, v10, v{W+1}
    """)
    def zpow(dst, c):
        cf = hx(float(c))
        a(f"""
        v_mul_f32 v1, {cf}, v{A2}
        v_mul_f32 v2, {cf}, v{B2}
        v_exp_f32 v1, v1
        v_fract_f32 v2, v2
        v_cos_f32 v5, v2
        v_sin_f32 v6, v2
        s_nop 0
        v_mul_f32 v{dst}, v1, v5
        v_mul_f32 v{dst+1}, v1, v6
        """)
    zpow(Z1, 1); zpow(Z16, 16); zpow(Z256, 256)
    cmul(a, Z2, Z1, Z1, T0); cmul(a, Z4, Z2, Z2, T0); cmul(a, Z8, Z4, Z4, T0)
    if opts.get('tsk'): stamp(a, opts, 11)
    pkc = [0]
    pend = {}
    def put(row, buf, reg, conj=False, last=False):
        r = PK + (pkc[0] & 7); pkc[0] += 1
        if conj: a(f"v_cvt_pk_bf16_f32 v{r}, v{reg}, -v{reg+1}")
        else:    a(f"v_cvt_pk_bf16_f32 v{r}, v{reg}, v{reg+1}")
        wa = (WA if buf == 0 else WB) + (row >> 2)
        if (row & 1) and (buf, row-1) in pend:
            r0 = pend.pop((buf, row-1))
            a(f"ds_write2_b32 v{wa}, v{r0}, v{r} offset0:{(row-1)*16} offset1:{row*16}")
        elif (row & 1) or last:
            a(f"ds_write_b32 v{wa}, v{r} offset:{row*64}")
        else:
            pend[(buf, row)] = r
    def flush():
        assert not pend
    def rd(dst, T, buf, kap):
        a(f"ds_read_b128 {v(dst,4)}, v{RA+T} offset:{buf*4096 + kap*1024}")
    a(f"v_mov_b32 v{C0}, 1.0")
    a(f"v_mov_b32 v{C0+1}, 0")
    a(f"v_mov_b32 v{C1}, v{W}")
    a(f"v_mov_b32 v{C1+1}, v{W+1}")
    for j in range(16):
        put(j, 0, C0, conj=True)
        put(j, 1, C1)
        if j < 15:
            a(f"v_pk_mul_f32 {v(T0,2)}, {v(C0,2)}, {v(Z16,2)} op_sel:[0,0] op_sel_hi:[0,1]")
            a(f"v_pk_mul_f32 {v(T1,2)}, {v(C1,2)}, {v(Z1,2)} op_sel:[0,0] op_sel_hi:[0,1]")
            a(f"v_pk_fma_f32 {v(C0,2)}, {v(C0,2)}, {v(Z16,2)}, {v(T0,2)} op_sel:[1,1,0] op_sel_hi:[1,0,1] neg_lo:[1,0,0]")
            a(f"v_pk_fma_f32 {v(C1,2)}, {v(C1,2)}, {v(Z1,2)}, {v(T1,2)} op_sel:[1,1,0] op_sel_hi:[1,0,1] neg_lo:[1,0,0]")
    if opts.get('tsk'): stamp(a, opts, 12)
    for kap in range(4): rd(VF+4*kap, 0, 0, kap)
    def chain(rows, buf, start, mult, n):
        a(f"v_mov_b32 v{C0}, v{start}")
        a(f"v_mov_b32 v{C0+1}, v{start+1}")
        for i in range(n):
            put(rows+i, buf, C0, last=(i == n-1))
            if i < n-1: cmul(a, C0, C0, mult, T0)
    def two_chains(specs):
        regs = [(C0,T0),(C1,T1)]
        for (r0,b,st,m,n),(c,t) in zip(specs, regs):
            a(f"v_mov_b32 v{c}, v{st}")
            a(f"v_mov_b32 v{c+1}, v{st+1}")
        nmax = max(sp[4] for sp in specs)
        for i in range(nmax):
            for (r0,b,st,m,n),(c,t) in zip(specs, regs):
                if i < n: put(r0+i, b, c, last=(i == n-1))
            for (r0,b,st,m,n),(c,t) in zip(specs, regs):
                if i < n-1: a(f"v_pk_mul_f32 {v(t,2)}, {v(c,2)}, {v(m,2)} op_sel:[0,0] op_sel_hi:[0,1]")
            for (r0,b,st,m,n),(c,t) in zip(specs, regs):
                if i < n-1: a(f"v_pk_fma_f32 {v(c,2)}, {v(c,2)}, {v(m,2)}, {v(t,2)} op_sel:[1,1,0] op_sel_hi:[1,0,1] neg_lo:[1,0,0]")
    def mm(T, buf):
        for kap in range(4): rd(UF + 0, T, buf, kap) if False else None
    BH2 = 42
    cmul(a, BH, W, Z256, T0)
    cmul(a, BH2, BH, Z256, T0)
    two_chains([(0,0,BH,Z2,9),(9,0,BH2,Z4,5)])
    flush()
    UFS = [[72, 76, 120, 124], [128, 132, 136, 140]]
    def rdtile(T, buf, st):
        for kap in range(4): rd(UFS[st][kap], T, buf, kap)
    def mmt(T, st, later):
        a(f"s_waitcnt lgkmcnt({min(later,15)})")
        for kap in range(4):
            a(f"v_mfma_f32_16x16x32_bf16 {v(ACC+4*T,4)}, {v(UFS[st][kap],4)}, {v(VF+4*kap,4)}, {v(ACC+4*T,4)}")
    if opts.get('tsk'): stamp(a, opts, 13)
    rdtile(0, 1, 0)
    rdtile(1, 0, 1)
    mmt(0, 0, 4)
    rdtile(2, 0, 0)
    cmul(a, BH, BH2, Z256, T0)
    cmul(a, BH2, BH, Z256, T0)
    two_chains([(0,1,BH,Z4,5),(5,1,BH2,Z8,3)])
    cmul(a, BH, BH2, Z256, T0)
    cmul(a, BH2, BH, Z256, T0)
    two_chains([(8,1,BH,Z8,3),(11,1,BH2,Z8,3)])
    flush()
    def seg0():
        a("s_waitcnt lgkmcnt(0)")
        for T, st in ((1,1),(2,0)):
            for kap in range(4):
                a(f"v_mfma_f32_16x16x32_bf16 {v(ACC+4*T,4)}, {v(UFS[st][kap],4)}, {v(VF+4*kap,4)}, {v(ACC+4*T,4)}")
        rdtile(3, 1, 0)
        rdtile(4, 1, 1)
        cmul(a, BH, BH2, Z256, T0)
        chain(0, 0, BH, Z8, 3)
        flush()
        mmt(3, 0, 6)
    def seg1():
        rdtile(5, 1, 0)
        mmt(4, 1, 4)
        rdtile(6, 1, 1)
        mmt(5, 0, 4)
        rdtile(7, 0, 0)
        mmt(6, 1, 4)
    def seg2():
        mmt(7, 0, 0)
    return seg0, seg1, seg2

V_SL = 154
def grab(a, opts, c):
    if opts.get('hk',0) & 64: return
    skip = a.label('ng')
    a(f"s_cmp_lg_u32 s77, {c}")
    a(f"s_cbranch_scc1 {skip}")
    stg = (c % 3)*STAGE
    for r in range(2):
        for e in range(2):
            a(f"ds_read_b64_tr_b16 {v(V_SL+4*r+2*e,2)}, v{162+e} offset:{r*4096 + e*512 + (stg if stg < 49152 else 0)}") if stg < 49152 else None
    if stg >= 49152:
        a(f"v_add_u32 v162, {stg}, v162")
        a(f"v_add_u32 v163, {stg}, v163")
        for r in range(2):
            for e in range(2):
                a(f"ds_read_b64_tr_b16 {v(V_SL+4*r+2*e,2)}, v{162+e} offset:{r*4096 + e*512}")
    a("s_waitcnt lgkmcnt(0)")
    a(f"{skip}:")

def grab_setup(a, opts):
    S_W = 68
    a(f"""
    s_lshr_b32 s77, s{S_CT}, 3
    v_and_b32 v1, 15, v0
    v_lshrrev_b32 v2, 2, v1              ; r'
    v_and_b32 v1, 3, v1                  ; c'
    v_lshrrev_b32 v3, 4, v0              ; G
    s_bfe_u32 s7, s{S_CT}, 0x10002
    s_lshl_b32 s7, s7, 1
    s_and_b32 s33, s{S_W}, 1
    s_add_u32 s7, s7, s33
    s_lshl_b32 s7, s7, 1
    v_lshrrev_b32 v6, 1, v1
    v_add_u32 v5, s7, v6                 ; granule
    v_and_b32 v6, 1, v3
    v_lshlrev_b32 v6, 2, v6              ; 4 (G&1)
    v_lshrrev_b32 v7, 1, v2
    v_add_u32 v6, v6, v7                 ; + (r'>>1)   (e=0)
    v_lshlrev_b32 v7, 3, v3              ; 8 G
    v_add_u32 v7, v7, v2                 ; + r'
    s_lshr_b32 s7, s{S_W}, 1
    s_lshl_b32 s7, s7, 6                 ; 64 th
    v_add_u32 v7, s7, v7
    v_lshlrev_b32 v7, 7, v7              ; row*128
    v_and_b32 v1, 1, v1
    v_lshlrev_b32 v1, 3, v1              ; (c'&1)*8
    v_add_u32 v7, v7, v1
    v_xor_b32 v1, v5, v6
    v_lshlrev_b32 v1, 4, v1
    v_add_u32 v162, v7, v1
    v_add_u32 v6, 2, v6                  ; e=1 : +2
    v_xor_b32 v1, v5, v6
    v_lshlrev_b32 v1, 4, v1
    v_add_u32 v163, v7, v1
    """)

def helper_A(a, opts):
    S_W, S_TB = 68, 69
    ACC = 80
    seg0, seg1, seg2 = kgen(a, opts)
    lab = {k: a.label('h'+k) for k in ('0','1','2','3','odd','even','nf','rest','fin')}
    a(f"""
    s_cmp_lg_u32 s{S_W}, 1
    s_cbranch_scc1 {lab['0']}
    global_load_dwordx2 v[152:153], v150, s[{SP['dbg']}:{SP['dbg']+1}] sc1
    {lab['0']}:
    """)
    a("s_setprio 0")
    stamp(a, opts, 3)
    bar(a, opts, 0)
    stamp(a, opts, 4)
    grab(a, opts, 0)
    a("s_setprio 2")
    seg0()
    a("s_setprio 0")
    a(f"""
    s_cmp_lg_u32 s{S_W}, 1
    s_cbranch_scc1 {lab['nf']}
    v_lshlrev_b32 v1, 2, v0
    v_add_u32 v1, {A_PUB}, v1
    ds_read_b32 v4, v1
    s_waitcnt vmcnt(0)
    """)
    nonce_check(a, 152)
    srd(a, SRD_T1, SP['ws'], 2048*8, WS_STAT)
    a(f"""
    s_lshl_b32 s32, s{S_RB}, 4
    s_add_u32 s32, s32, s{S_CT}
    s_lshl_b32 s32, s32, 6
    v_lshlrev_b32 v1, 3, v0
    v_mov_b32 v5, s70
    s_waitcnt lgkmcnt(0)
    s_mov_b64 exec, 0xff
    s_setprio 3
    buffer_store_dwordx2 v[4:5], v1, s[{SRD_T1}:{SRD_T1+3}], s32 offen sc1
    s_setprio 0
    s_mov_b64 exec, -1
    {lab['nf']}:
    """)
    bar(a, opts, 1)
    grab(a, opts, 1)
    a("s_setprio 2")
    seg1()
    a("s_setprio 0")
    a("s_waitcnt lgkmcnt(0)")
    bar(a, opts, 2)
    grab(a, opts, 2)
    a("s_setprio 2")
    seg2()
    a(f"s_cmp_lg_u32 s{S_W}, 1")
    a(f"s_cbranch_scc1 {lab['rest']}")
    if not opts.get('hk',0) & 16: colsum_A(a, opts)
    a(f"{lab['rest']}:")
    a("s_setprio 0")
    for c in range(3, 8):
        bar(a, opts, c)
        grab(a, opts, c)
    a(f"""
    s_and_b32 s7, s{S_W}, 1
    s_cmp_eq_u32 s7, 0
    s_cbranch_scc1 {lab['even']}
    v_lshlrev_b32 v1, 4, v0
    v_add_u32 v1, s{S_TB}, v1
    """)
    for T in range(8):
        a(f"ds_write_b128 v1, {v(ACC+4*T,4)} offset:{T*1024}")
    a("s_waitcnt lgkmcnt(0)")
    a(f"{lab['even']}:")
    xnt_setup(a, opts)
    bar(a, opts, 8)
    if opts.get('fused'):
        from kerF import conv_F
        conv_F(a, opts)
        return
    a(f"""
    s_and_b32 s7, s{S_W}, 1
    s_cmp_eq_u32 s7, 1
    s_cbranch_scc1 {lab['fin']}
    """)
    srd(a, SRD_T1, SP['ws'], WS_K_SZ, WS_K)
    a(f"""
    v_lshlrev_b32 v1, 4, v0
    v_add_u32 v1, s{S_TB}, v1
    """)
    for T in range(8):
        a(f"ds_read_b128 {v(16+4*T,4)}, v1 offset:{8192 + T*1024}")
    a(f"""
    v_and_b32 v2, 15, v0
    v_lshlrev_b32 v2, 5, v2               ; 32*j
    v_lshrrev_b32 v3, 4, v0
    v_lshlrev_b32 v3, 3, v3               ; 8*q
    v_add_u32 v2, v2, v3
    v_sub_u32 v2, 4088, v2
    s_lshr_b32 s7, s{S_W}, 1
    s_lshl_b32 s34, s2, 1
    s_add_u32 s34, s34, s7
    s_mul_i32 s34, s34, {K_STRIDE}
    v_mov_b32 v4, 0
    v_mov_b32 v5, 0
    v_lshlrev_b32 v6, 3, v0
    v_add_u32 v6, 4096, v6
    s_mov_b64 exec, 0xff
    buffer_store_dwordx2 v[4:5], v6, s[{SRD_T1}:{SRD_T1+3}], s34 offen
    s_mov_b64 exec, -1
    """)
    for T in range(8):
        a(f"s_waitcnt lgkmcnt({7-T})")
        for i in range(4):
            a(f"v_add_f32 v{ACC+4*T+i}, v{ACC+4*T+i}, v{16+4*T+i}")
        a(f"v_cvt_pk_bf16_f32 v{48+2*T}, v{ACC+4*T+3}, v{ACC+4*T+2}")
        a(f"v_cvt_pk_bf16_f32 v{49+2*T}, v{ACC+4*T+1}, v{ACC+4*T}")
    for T in range(8):
        if T: a(f"v_subrev_u32 v2, 512, v2")
        a(f"buffer_store_dwordx2 {v(48+2*T,2)}, v2, s[{SRD_T1}:{SRD_T1+3}], s34 offen")
    stamp(a, opts, 5)
    a(f"{lab['fin']}:")
    xnt_A(a, opts)

def nonce_check(a, vreg):
    lp = a.label('npoll'); ok = a.label('nok')
    a(f"""
    s_mov_b32 s7, 0
    {lp}:
    v_readfirstlane_b32 s70, v{vreg}
    v_readfirstlane_b32 s71, v{vreg+1}
    s_add_u32 s7, s7, 1
    s_cmp_lg_u32 s70, 0
    s_cbranch_scc1 {ok}
    s_cmp_gt_u32 s7, 200000
    s_cbranch_scc1 {ok}
    global_load_dwordx2 v[{vreg}:{vreg+1}], v150, s[{SP['dbg']}:{SP['dbg']+1}] sc1
    s_waitcnt vmcnt(0)
    s_branch {lp}
    {ok}:
    """)

def colsum_A(a, opts):
    WA0, SEL, FR, AC, G = 8, 12, 16, 112, 16
    a("s_setprio 3")
    a(f"""
    v_lshrrev_b32 v2, 5, v0                ; h
    v_lshrrev_b32 v3, 4, v0
    v_and_b32 v3, 1, v3                    ; gu
    v_mul_u32_u24 v4, 12288, v3
    v_lshlrev_b32 v5, 9, v2
    v_add_u32 v4, v4, v5
    v_and_b32 v5, 15, v0
    v_lshrrev_b32 v6, 2, v5
    v_lshlrev_b32 v6, 6, v6
    v_add_u32 v4, v4, v6
    v_and_b32 v5, 3, v5
    v_lshlrev_b32 v5, 3, v5
    v_add_u32 v4, v4, v5
    s_lshr_b32 s7, s{S_RB}, 3
    s_lshl_b32 s7, s7, 11
    s_add_u32 s7, s7, {16384 + 2*STAGE}
    v_add_u32 v4, s7, v4
    v_lshlrev_b32 v5, 5, v3
    v_add_u32 v{WA0}, v4, v5               ; b=0
    v_xor_b32 v5, 32, v5
    v_add_u32 v{WA0+1}, v4, v5             ; b=1
    """)
    for m in range(6):
        P, b = m >> 1, m & 1
        for s_ in range(2):
            f = FR + (m*2+s_)*4
            a(f"ds_read_b64_tr_b16 {v(f,2)}, v{WA0+b} offset:{P*4096 + s_*1024}")
            a(f"ds_read_b64_tr_b16 {v(f+2,2)}, v{WA0+b} offset:{P*4096 + s_*1024 + 256}")
    a(f"""
    v_and_b32 v5, 15, v0
    v_cmp_eq_u32 vcc, v5, v3
    v_mov_b32 v6, 0x3f803f80
    v_mov_b32 v7, 0
    v_cndmask_b32 v{SEL}, v7, v6, vcc
    v_mov_b32 v{SEL+1}, v{SEL}
    v_mov_b32 v{SEL+2}, v{SEL}
    v_mov_b32 v{SEL+3}, v{SEL}
    """)
    for i in range(24): a(f"v_mov_b32 v{AC+i}, 0")
    srd(a, SRD_T0, SP['ws'], 16*16*1024, WS_CSP)
    a("s_waitcnt lgkmcnt(0)")
    for s_ in range(2):
        for m in range(6):
            f = FR + (m*2+s_)*4
            a(f"v_mfma_f32_16x16x32_bf16 {v(AC+4*m,4)}, {v(f,4)}, {v(SEL,4)}, {v(AC+4*m,4)}")
    a(f"""
    v_and_b32 v5, 15, v0
    v_lshlrev_b32 v1, 6, v5                ; col*64
    v_lshrrev_b32 v2, 4, v0
    v_lshlrev_b32 v2, 4, v2                ; q*16
    v_add_u32 v1, v1, v2
    s_lshl_b32 s7, s{S_CT}, 4
    s_add_u32 s7, s7, s{S_RB}
    s_lshl_b32 s33, s7, 10
    v_cmp_gt_u32 vcc, 2, v5
    s_nop 3
    """)
    for g in range(8): a(f"v_mov_b32 v{G+4*g+3}, s70")
    for e in range(24): a(f"v_mov_b32 v{G+4*(e//3)+(e%3)}, v{AC+e}")
    a("s_and_saveexec_b64 s[34:35], vcc")
    for g in range(8):
        a(f"buffer_store_dwordx4 {v(G+4*g,4)}, v1, s[{SRD_T0}:{SRD_T0+3}], s33 offen offset:{g*128} sc1")
    a("s_mov_b64 exec, s[34:35]")
    stamp(a, opts, 6)

def xnt_setup(a, opts):
    S_W = 68
    srd(a, SRD_T0, SP['ws'], WS_XT_SZ, WS_XT)
    a(f"""
    v_lshrrev_b32 v3, 4, v0              ; G
    v_and_b32 v1, 15, v0
    s_and_b32 s7, s{S_W}, 1
    s_lshl_b32 s7, s7, 4
    v_add_u32 v1, s7, v1
    v_lshlrev_b32 v1, 12, v1
    v_lshlrev_b32 v5, 4, v3
    v_add_u32 v8, v1, v5
    s_lshl_b32 s32, s{S_CT}, 17
    s_lshl_b32 s33, s{S_RB}, 8
    s_add_u32 s32, s32, s33
    s_lshr_b32 s7, s{S_W}, 1
    s_lshl_b32 s33, s7, 7
    s_add_u32 s32, s32, s33
    v_lshlrev_b32 v9, 5, v3              ; 8 G * 4B
    s_lshl_b32 s33, s7, 8                ; 64 th * 4B
    s_add_u32 s33, s33, {A_M}
    v_add_u32 v9, s33, v9
    """)

def xnt_A(a, opts):
    xnt_body(a, opts, "")
    stamp(a, opts, 8)
    stamp(a, opts, 7, real=True)
    if opts.get('ts'): a("s_waitcnt vmcnt(0)")
    stamp_flush(a, opts, 0)
    a("s_endpgm")

def xnt_body(a, opts, sc):
    S_W = 68
    for r in range(2):
        M, R_ = 16 + 16*r, 24 + 16*r
        a(f"ds_read_b128 {v(M,4)}, v9 offset:{r*128}")
        a(f"ds_read_b128 {v(M+4,4)}, v9 offset:{r*128+16}")
        a(f"ds_read_b128 {v(R_,4)}, v9 offset:{512 + r*128}")
        a(f"ds_read_b128 {v(R_+4,4)}, v9 offset:{512 + r*128+16}")
    for r in range(2):
        M, R_ = 16 + 16*r, 24 + 16*r
        U = 48 + 16*r
        X = V_SL + 4*r
        for j in range(4):
            a(f"v_lshlrev_b32 v{U+2*j}, 16, v{X+j}")
            a(f"v_and_b32 v{U+2*j+1}, 0xffff0000, v{X+j}")
        a(f"s_waitcnt lgkmcnt({4*(1-r)})")
        for j in range(4): a(f"v_pk_add_f32 {v(U+2*j,2)}, {v(U+2*j,2)}, {v(M+2*j,2)} neg_lo:[0,1] neg_hi:[0,1]")
        for j in range(4): a(f"v_cvt_pk_bf16_f32 v{U+8+j}, v{U+2*j}, v{U+2*j+1}")
        for j in range(4):
            a(f"v_lshlrev_b32 v{U+2*j}, 16, v{U+8+j}")
            a(f"v_and_b32 v{U+2*j+1}, 0xffff0000, v{U+8+j}")
        for j in range(4): a(f"v_pk_mul_f32 {v(U+2*j,2)}, {v(U+2*j,2)}, {v(R_+2*j,2)}")
        for j in range(4): a(f"v_cvt_pk_bf16_f32 v{U+8+j}, v{U+2*j}, v{U+2*j+1}")
        a(f"buffer_store_dwordx4 {v(U+8,4)}, v8, s[{SRD_T0}:{SRD_T0+3}], s32 offen offset:{r*64}{sc}")

def cs_issue(a):
    for p in range(16):
        if p*1024 < 4096:
            a(f"buffer_load_dwordx4 {v(16+4*p,4)}, v8, s[{SRD_T1}:{SRD_T1+3}], s73 offen offset:{p*1024} sc1")
        else:
            a(f"s_add_u32 s74, s73, {p*1024}")
            a(f"buffer_load_dwordx4 {v(16+4*p,4)}, v8, s[{SRD_T1}:{SRD_T1+3}], s74 offen sc1")

def cs_gather_early(a, opts, SJ):
    from kerF import lds_inc, F_DMAD, F_NON
    oth = a.label('cge'); done = a.label('cgd')
    a(f"s_cmp_lg_u32 s{SJ}, {opts.get('lgather', 3)}")
    a(f"s_cbranch_scc1 {oth}")
    srd(a, SRD_T1, SP['ws'], 16*16*1024, WS_CSP)
    a(f"""
    v_mov_b32 v1, {F_NON}
    ds_read_b64 v[152:153], v1
    v_lshlrev_b32 v8, 4, v0
    s_lshl_b32 s73, s{S_CT}, 14            ; 16 parts * 1024
    """)
    cs_issue(a)
    lds_inc(a, F_DMAD)
    a("s_waitcnt vmcnt(26)")
    a(f"s_branch {done}")
    a(f"{oth}:")
    lds_inc(a, F_DMAD)
    a("s_waitcnt vmcnt(10)")
    a(f"{done}:")
    if opts.get('tsb'): stamp(a, opts, 38)
    a("s_barrier")

def loader_tail_A(a, opts, SJ, nrem):
    l0 = a.label('l0')
    if opts.get('fused'):
        pass
    a(f"s_cmp_eq_u32 s{SJ}, {opts.get('lgather', 3)}")
    a(f"s_cbranch_scc1 {l0}")
    a("s_waitcnt vmcnt(0)")
    bar(a, opts, 7)
    if opts.get('fused'):
        a(f"s_branch {opts['lg2']}")
    else:
        stamp(a, opts, 7, real=True)
        stamp_flush(a, opts, 0)
        a("s_endpgm")
    from kerF import F_NON
    a(f"{l0}:")
    early = opts.get('lastfull', 1) and opts.get('fused')
    def issue(): cs_issue(a)
    if not early:
        srd(a, SRD_T1, SP['ws'], 16*16*1024, WS_CSP)
        a(f"""
        v_mov_b32 v1, {F_NON}
        ds_read_b64 v[152:153], v1
        v_lshlrev_b32 v8, 4, v0
        s_lshl_b32 s73, s{S_CT}, 14            ; 16 parts * 1024
        """)
        if opts.get('lgprio'): a("s_setprio 3")
        issue()
    npf = 0
    if not opts.get('nopf') and opts.get('pfmode',0) == 0:
        if opts.get('map2', 1) == 0:
            a(f"""
            s_lshr_b32 s74, s2, 3
            s_mul_i32 s74, s74, {43*1024}
            v_lshlrev_b32 v9, 7, v0
            v_add_u32 v9, s74, v9
            """)
            npf = opts.get('npf', 6); step = 8192
        else:
            a(f"""
            s_lshr_b32 s74, s2, 3
            s_mul_i32 s74, s74, {43*1024}
            s_and_b32 s75, s2, 1
            s_lshl_b32 s75, s75, 9
            s_add_u32 s74, s74, s75
            v_lshrrev_b32 v9, 2, v0
            v_lshlrev_b32 v9, 10, v9
            v_and_b32 v10, 3, v0
            v_lshlrev_b32 v10, 7, v10
            v_add_u32 v9, v9, v10
            v_add_u32 v9, s74, v9
            """)
            npf = 3; step = 16384
        srd(a, SRD_X, SP['wd'], 1409024)
        for i in range(npf):
            a(f"s_mov_b32 s74, {i*step}")
            a(f"buffer_load_dword v{84+i}, v9, s[{SRD_X}:{SRD_X+3}], s74 offen")
        if opts.get('bcode') and not opts.get('fused'):
            pc = a.label('pc')
            a(f"""
            s_getpc_b64 s[74:75]
            {pc}:
            s_add_u32 s74, s74, {opts['bcode']}-{pc}
            s_addc_u32 s75, s75, 0
            s_lshr_b32 s76, s2, 3
            s_and_b32 s76, s76, 1
            s_lshl_b32 s76, s76, 12
            v_lshlrev_b32 v9, 6, v0
            v_add_u32 v9, s76, v9
            global_load_dword v95, v9, s[74:75]
            """)
            npf += 1
    a(f"s_waitcnt vmcnt({16+npf})")
    bar(a, opts, 7)
    lp = a.label('gchk'); ok = a.label('gok')
    a(f"""
    s_setprio 3
    s_mov_b32 s75, 0
    s_waitcnt vmcnt({npf})
    s_waitcnt lgkmcnt(0)
    {lp}:
    s_mov_b64 vcc, 0
    """)
    for p in range(16):
        a(f"v_cmp_ne_u32 s[32:33], v152, v{16+4*p+3}")
        a(f"s_or_b64 vcc, vcc, s[32:33]")
    a(f"""
    s_add_u32 s75, s75, 1
    s_cmp_eq_u64 vcc, 0
    s_cbranch_scc1 {ok}
    s_cmp_gt_u32 s75, {0 if opts.get('hk',0) else 100000}
    s_cbranch_scc1 {ok}
    """)
    issue()
    a("s_waitcnt vmcnt(0)")
    a(f"s_branch {lp}")
    a(f"{ok}:")
    stamp(a, opts, 5)
    for st in (8, 4, 2, 1):
        for p in range(st):
            for i in range(3):
                a(f"v_add_f32 v{16+4*p+i}, v{16+4*p+i}, v{16+4*(p+st)+i}")
    a(f"""
    v_lshrrev_b32 v1, 3, v0              ; g
    v_mul_u32_u24 v1, 3, v1              ; 3g
    v_bfe_u32 v2, v0, 2, 1               ; col
    v_lshlrev_b32 v2, 4, v2
    v_and_b32 v3, 3, v0                  ; q
    v_lshlrev_b32 v3, 2, v3
    v_add_u32 v2, v2, v3                 ; col*16 + 4q
    """)
    for k in range(3):
        a(f"""
        v_add_u32 v4, {k}, v1
        v_lshrrev_b32 v5, 2, v4
        v_lshlrev_b32 v5, 5, v5
        v_and_b32 v4, 3, v4
        v_add_u32 v4, v4, v5
        v_add_u32 v4, v4, v2
        v_lshlrev_b32 v4, 2, v4
        v_add_u32 v4, {A_CS}, v4
        ds_write_b32 v4, v{16+k}
        """)
    a("s_waitcnt lgkmcnt(0)")
    stamp(a, opts, 6)
    if opts.get('fused'):
        from kerF import F_CSR, lds_set
        lds_set(a, F_CSR)
        a("s_setprio 0")
        return
    bar(a, opts, 8)
    stamp(a, opts, 7, real=True)
    stamp_flush(a, opts, 0)
    a("s_endpgm")
```

```python
from core import *
import struct
def f2u(x): return struct.unpack('<I', struct.pack('<f', x))[0]
def hx(x): return hex(f2u(x))
STAGE = 40960
A_KT = 3*STAGE
DEPTH = 4
CT_U, CT_V0, CT_V1, CT_SZ = 0, 4608, 4608+4160, 4608+4160+4160
F_CT = 0
F_EX = F_CT + 2*CT_SZ
F_WR = F_EX + 4*4096
F_YT = F_WR + 4*DEPTH*2048
F_P  = F_YT + 10240
PROW = 272
F_SY = 158528
F_NON, F_CNTH, F_CNTX, F_HRDY, F_KRDY, F_URDY, F_XFL, F_ORD = F_SY, F_SY+8, F_SY+12, F_SY+16, F_SY+20, F_SY+28, F_SY+36, F_SY+52
F_CSR, F_GDN, F_PRDY, F_DMAD, F_XST = F_SY+56, F_SY+60, F_SY+64, F_SY+72, F_SY+76
F_LDS = F_SY + 128
S_WAVE, S_RB, S_CT = 3, 4, 5
S_RT, S_C2, S_WP = 78, 79, 80
SRD_WS, SRD_WD, SRD_O = 8, 12, 16
V_XT, V_NON, V_OFF = 160, 164, 166
SPIN = 200000

MAP2 = [1]
def map_tile(a, srt, sc2):
    if MAP2[0] == 0:
        a(f"""
        s_and_b32 s7, s2, 7
        s_lshr_b32 s33, s2, 3
        s_lshl_b32 s7, s7, 2
        s_and_b32 s{sc2}, s33, 3
        s_add_u32 s{srt}, s7, s{sc2}
        s_lshr_b32 s{sc2}, s33, 2
        """)
    else:
        a(f"""
        s_and_b32 s7, s2, 7
        s_lshr_b32 s33, s2, 3
        s_lshr_b32 s{srt}, s7, 1
        s_lshl_b32 s{srt}, s{srt}, 3
        s_and_b32 s{sc2}, s33, 7
        s_add_u32 s{srt}, s{srt}, s{sc2}
        s_and_b32 s7, s7, 1
        s_lshl_b32 s7, s7, 2
        s_lshr_b32 s{sc2}, s33, 3
        s_add_u32 s{sc2}, s{sc2}, s7
        """)
def map_B(a):
    map_tile(a, S_RT, S_C2)
    a(f"""
    s_and_b32 s32, s{S_WP}, 3
    s_lshl_b32 s32, s32, 4
    s_lshl_b32 s33, s{S_RT}, 6
    s_add_u32 s32, s32, s33               ; 64 rt + 16 (w&3)
    v_and_b32 v2, 15, v0
    v_add_u32 v2, s32, v2
    v_lshlrev_b32 v2, 10, v2              ; row*1024
    s_lshr_b32 s32, s{S_WP}, 2
    s_lshl_b32 s32, s32, 6
    s_lshl_b32 s33, s{S_C2}, 7
    s_add_u32 s32, s32, s33
    v_lshrrev_b32 v3, 4, v0
    v_lshlrev_b32 v3, 4, v3
    v_add_u32 v2, v2, v3
    v_add_u32 v{V_OFF}, s32, v2
    """)

def lds_count_last(a, addr, n, lab_skip):
    a(f"""
    v_mov_b32 v1, {addr}
    v_mov_b32 v2, 1
    s_mov_b64 exec, 1
    ds_add_rtn_u32 v3, v1, v2
    s_mov_b64 exec, -1
    s_waitcnt lgkmcnt(0)
    v_readfirstlane_b32 s7, v3
    s_cmp_lg_u32 s7, {n-1}
    s_cbranch_scc1 {lab_skip}
    """)
def lds_set(a, addr_expr_sgpr_or_int):
    if isinstance(addr_expr_sgpr_or_int, int): a(f"v_mov_b32 v1, {addr_expr_sgpr_or_int}")
    else: a(f"v_mov_b32 v1, {addr_expr_sgpr_or_int}")
    a("v_mov_b32 v2, 1")
    a("ds_write_b32 v1, v2")
def lds_spin(a, addrs):
    lp = a.label('spin')
    for i, ad in enumerate(addrs): a(f"v_mov_b32 v{1+i}, {ad}")
    a("s_mov_b32 s99, 0")
    a(f"{lp}:")
    for i in range(len(addrs)): a(f"ds_read_b32 v{3+i}, v{1+i}")
    a("s_add_u32 s99, s99, 1")
    a("s_waitcnt lgkmcnt(0)")
    if len(addrs) == 2: a("v_min_u32 v3, v3, v4"); a("s_nop 0")
    a(f"""
    v_readfirstlane_b32 s24, v3
    s_cmp_gt_u32 s99, {5*SPIN}
    s_cselect_b32 s24, 1, s24
    s_cmp_eq_u32 s24, 0
    s_cbranch_scc1 {lp}
    """)
def lds_inc(a, addr):
    a(f"""
    v_mov_b32 v1, {addr}
    v_mov_b32 v2, 1
    s_mov_b64 exec, 1
    ds_add_u32 v1, v2
    s_mov_b64 exec, -1
    """)
def lds_spin_eq(a, addr, val):
    lp = a.label('spinq')
    a(f"""
    v_mov_b32 v1, {addr}
    s_mov_b32 s99, 0
    {lp}:
    ds_read_b32 v3, v1
    s_add_u32 s99, s99, 1
    s_waitcnt lgkmcnt(0)
    v_readfirstlane_b32 s7, v3
    s_cmp_gt_u32 s99, {5*SPIN}
    s_cselect_b32 s7, {val}, s7
    s_cmp_lg_u32 s7, {val}
    s_cbranch_scc1 {lp}
    """)
def flag_store(a, base, idx_sgpr):
    a(f"""
    s_lshl_b32 s7, {idx_sgpr}, 7
    s_add_u32 s7, s7, {base}
    v_mov_b32 v1, s7
    s_mov_b64 exec, 1
    global_store_dwordx2 v1, v[{V_NON}:{V_NON+1}], s[{SP['ws']}:{SP['ws']+1}] sc1
    s_mov_b64 exec, -1
    """)
def flag_poll(a, vaddr, vdst, nosleep=False):
    lp = a.label('poll'); ok = a.label('pok')
    a(f"""
    s_mov_b32 s99, 0
    {lp}:
    global_load_dwordx2 v[{vdst}:{vdst+1}], v{vaddr}, s[{SP['ws']}:{SP['ws']+1}] sc1
    s_add_u32 s99, s99, 1
    s_waitcnt vmcnt(0)
    v_cmp_ne_u32 vcc, v{V_NON}, v{vdst}
    v_cmp_ne_u32 s[30:31], v{V_NON+1}, v{vdst+1}
    s_or_b64 vcc, vcc, s[30:31]
    s_cmp_eq_u64 vcc, 0
    s_cbranch_scc1 {ok}
    s_cmp_gt_u32 s99, {SPIN}
    s_cbranch_scc1 {ok}
    {"s_nop 0" if nosleep else "s_sleep 1"}
    s_branch {lp}
    {ok}:
    """)


def touch_group(a, sg, srt, sc2, vdst):
    a(f"""
    s_cmp_eq_u32 s{sg}, 3
    s_cselect_b32 s30, 14, 24
    s_lshl_b32 s31, s30, 1
    s_mul_i32 s33, s{sc2}, s31
    v_add_u32 v1, s33, v0
    s_lshl_b32 s33, s30, 3
    v_cmp_le_u32 vcc, s33, v1
    v_mov_b32 v2, s33
    v_mov_b32 v3, 0
    v_cndmask_b32 v2, v3, v2, vcc
    v_sub_u32 v1, v1, v2
    v_mov_b32 v2, {86*1024}
    v_cndmask_b32 v2, v3, v2, vcc
    v_lshlrev_b32 v1, 7, v1
    v_add_u32 v1, v1, v2
    s_mul_i32 s33, s{srt}, {2*86*1024}
    s_mul_i32 s7, s{sg}, {24*1024}
    s_add_u32 s33, s33, s7
    s_add_u32 s33, s33, {WS_H}
    v_add_u32 v1, s33, v1
    v_cmp_gt_u32 vcc, s31, v0
    s_and_saveexec_b64 s[30:31], vcc
    global_load_dword v{vdst}, v1, s[{SP['ws']}:{SP['ws']+1}] sc1
    s_mov_b64 exec, s[30:31]
    """)

def gpub_F(a, opts):
    nf = a.label('nfh'); end = a.label('gpe')
    a(f"""
    v_mov_b32 v1, {F_NON}
    ds_read_b64 v[{V_NON}:{V_NON+1}], v1
    s_waitcnt vmcnt(0) lgkmcnt(0)
    """)
    stamp(a, opts, 14)
    stamp(a, opts, 40, real=True)
    lds_count_last(a, F_CNTH, 4, nf)
    a(f"s_lshl_b32 s30, s{S_RB}, 4")
    a(f"s_add_u32 s30, s30, s{S_CT}")
    flag_store(a, WS_FLAGH, "s30")
    a(f"{nf}:")
    a(f"s_cmp_lg_u32 s{S_WAVE}, 0")
    a(f"s_cbranch_scc1 {end}")
    map_tile(a, 34, 35)
    a(f"""
    s_lshr_b32 s7, s34, 1
    s_lshl_b32 s7, s7, 4
    v_min_u32 v2, 14, v0
    v_add_u32 v2, s7, v2
    v_lshlrev_b32 v2, 7, v2
    v_add_u32 v2, {WS_FLAGH}, v2
    """)
    flag_poll(a, 2, 4)
    if opts.get('touch'):
        a(f"""
        s_and_b32 s7, s2, 7
        s_lshl_b32 s7, s7, 2
        s_lshr_b32 s33, s2, 3
        s_and_b32 s34, s33, 3
        s_add_u32 s34, s7, s34
        s_lshr_b32 s35, s33, 2
        """)
        for g in range(4):
            a(f"s_mov_b32 s86, {g}")
            touch_group(a, 86, 34, 35, 8+g)
    lds_set(a, F_HRDY)
    a("s_waitcnt lgkmcnt(0)")
    a(f"{end}:")
    stamp(a, opts, 15)
    stamp(a, opts, 7, real=True)
    if opts.get('ts'): a("s_waitcnt vmcnt(0)")
    stamp_flush(a, opts, 0)
    a("s_endpgm")

def gemm2_F(a, opts):
    D = DEPTH
    ACC, HF, WF, YG = 16, 80, 112, 128
    VH0, VH1, VWD, VA0, VA1, VY = 8, 9, 10, 11, 13, 12
    S_N, S_OFF, S_RING, S_WC = 81, 27, 28, 29
    S_GB, S_GL, S_STEP, S_CNT, S_ROT, S_GD = 70, 74, 82, 83, 84, 85
    def acc(m, n): return ACC + (m*2+n)*16
    def hf(st, n): return HF + st*8 + n*4
    def wf(st, m): return WF + st*8 + m*4
    vm = VmTrack(a)
    a(f"s_mov_b32 s{S_WP}, s68")
    srd(a, SRD_WD, SP['wd'], 1409024)
    if opts.get('pfmode',0) == 1:
        npf = a.label('nopf')
        a(f"s_cmp_lg_u32 s{S_WP}, 1")
        a(f"s_cbranch_scc1 {npf}")
        if opts.get('pfwait'): lds_spin(a, [F_URDY, F_URDY+4])
        a(f"""
        s_lshr_b32 s30, s2, 3
        s_mul_i32 s30, s30, {43*1024}
        v_lshlrev_b32 v1, 7, v0
        v_add_u32 v1, s30, v1
        """)
        for i in range(6):
            a(f"s_mov_b32 s30, {i*8192}")
            a(f"buffer_load_dword v{144+i}, v1, s[{SRD_WD}:{SRD_WD+3}], s30 offen")
        a(f"{npf}:")
    map_B(a)
    a(f"""
    s_mov_b32 s{S_N}, 22
    s_cmp_ge_u32 s{S_WP}, 2
    s_cselect_b32 s{S_N}, 21, s{S_N}
    v_lshlrev_b32 v1, 4, v0
    s_mul_i32 s7, s{S_RT}, {2*86*1024}
    s_add_u32 s7, s7, {WS_H}
    v_add_u32 v{VH0}, s7, v1
    v_add_u32 v{VH1}, {86*1024}, v{VH0}
    v_lshrrev_b32 v2, 3, v0
    v_lshlrev_b32 v2, 10, v2
    v_and_b32 v3, 7, v0
    v_bfe_u32 v4, v0, 4, 1
    v_lshlrev_b32 v4, 2, v4
    v_xor_b32 v3, v3, v4
    v_lshlrev_b32 v3, 4, v3
    v_add_u32 v{VWD}, v2, v3
    s_lshl_b32 s{S_WC}, s{S_C2}, 7
    s_mul_i32 s{S_RING}, s{S_WP}, {D*2048}
    s_add_u32 s{S_RING}, s{S_RING}, {F_WR}
    v_lshrrev_b32 v2, 5, v0
    v_lshlrev_b32 v2, 2, v2                 ; 4h
    v_bfe_u32 v3, v0, 2, 2                  ; r'
    v_add_u32 v2, v2, v3
    v_lshlrev_b32 v2, 7, v2
    v_lshrrev_b32 v3, 1, v3
    v_lshlrev_b32 v3, 6, v3
    v_add_u32 v2, v2, v3
    v_bfe_u32 v3, v0, 4, 1
    v_lshlrev_b32 v3, 5, v3
    v_add_u32 v2, v2, v3
    v_and_b32 v3, 3, v0
    v_lshlrev_b32 v3, 3, v3
    v_add_u32 v2, v2, v3
    v_add_u32 v{VA0}, s{S_RING}, v2
    v_xor_b32 v2, 64, v2
    v_add_u32 v{VA1}, s{S_RING}, v2
    v_lshrrev_b32 v2, 4, v0
    s_lshl_b32 s7, s{S_WP}, 4
    s_lshl_b32 s30, s{S_C2}, 6
    s_add_u32 s7, s7, s30                  ; 64 ct + 16 w
    v_add_u32 v2, s7, v2
    v_lshlrev_b32 v2, 13, v2               ; ch*8192
    v_and_b32 v3, 15, v0
    v_lshlrev_b32 v3, 4, v3
    v_add_u32 v2, v2, v3
    s_lshl_b32 s7, s{S_RT}, 8
    s_add_u32 s7, s7, {WS_Y}
    v_add_u32 v{VY}, s7, v2                ; y address
    v_mov_b32 v1, {F_NON}
    ds_read_b64 v[{V_NON}:{V_NON+1}], v1
    """)
    srd(a, SRD_WS, SP['ws'], 19*MB)
    srd(a, SRD_WD, SP['wd'], 1409024)
    for i in range(64): a(f"v_mov_b32 v{ACC+i}, 0")
    a("s_waitcnt lgkmcnt(0)")
    stamp(a, opts, 14)
    a(f"""
    s_mov_b32 s24, {0 | (1 << 2) | (3 << 4) | (2 << 6)}
    s_mov_b32 s25, {1 | (0 << 2) | (2 << 4) | (3 << 6)}
    s_bitcmp1_b32 s{S_C2}, 0
    s_cselect_b32 s24, s25, s24
    """)
    a(f"""
    s_mul_i32 s30, s{S_WP}, 6
    s_lshl_b32 s31, s{S_WP}, 2
    s_cmp_eq_u32 s{S_WP}, 3
    s_cselect_b32 s31, 11, s31
    s_cmp_ge_u32 s{S_WP}, 2
    s_cselect_b32 s32, 3, 4
    """)
    for k in range(4):
        a(f"""
        s_lshr_b32 s7, s24, {2*k}
        s_and_b32 s7, s7, 3
        s_mul_i32 s33, s7, 24
        s_cmp_eq_u32 s7, 3
        s_cselect_b32 s25, s31, s30
        s_add_u32 s{S_GB+k}, s33, s25
        s_cselect_b32 s{S_GL+k}, s32, 6
        """.replace("        s_add_u32 s%d, s33, s25\n        s_cselect_b32" % (S_GB+k), "        s_add_u32 s%d, s33, s25\n        s_cmp_eq_u32 s7, 3\n        s_cselect_b32" % (S_GB+k)))
    S_OW, S_OH, S_REM = 82, 83, 84
    S_OE, S_RO = 88, 94
    def load_group():
        a(f"""
        s_lshr_b32 s7, s{S_GL}, 1
        s_bitcmp1_b32 s{S_C2}, 1
        s_cselect_b32 s{S_RO}, s7, 0
        s_add_u32 s7, s{S_GB}, s{S_RO}
        s_lshl_b32 s{S_OW}, s7, 14
        s_add_u32 s{S_OW}, s{S_OW}, s{S_WC}
        s_lshl_b32 s{S_OH}, s7, 10
        s_add_u32 s7, s{S_GB}, s{S_GL}
        s_lshl_b32 s{S_OE}, s7, 10
        s_mov_b32 s{S_REM}, s{S_GL}
        """)
    a(f"s_mov_b32 s{S_GD}, 0")
    load_group()
    lds_spin_eq(a, F_GDN, 4)
    a(f"s_setprio {opts.get('gprio', 1)}")
    def advance(pos):
        adv = a.label('noadv'); nw = a.label('nowrap')
        a(f"""
        s_add_u32 s{S_OW}, s{S_OW}, 16384
        s_add_u32 s{S_OH}, s{S_OH}, 1024
        s_cmp_lg_u32 s{S_OH}, s{S_OE}
        s_cbranch_scc1 {nw}
        s_lshl_b32 s7, s{S_GL}, 14
        s_sub_u32 s{S_OW}, s{S_OW}, s7
        s_lshl_b32 s7, s{S_GL}, 10
        s_sub_u32 s{S_OH}, s{S_OH}, s7
        {nw}:
        s_sub_u32 s{S_REM}, s{S_REM}, 1
        s_cmp_lg_u32 s{S_REM}, 0
        s_cbranch_scc1 {adv}
        s_mov_b32 s{S_GB}, s{S_GB+1}
        s_mov_b32 s{S_GB+1}, s{S_GB+2}
        s_mov_b32 s{S_GB+2}, s{S_GB+3}
        s_mov_b32 s{S_GL}, s{S_GL+1}
        s_mov_b32 s{S_GL+1}, s{S_GL+2}
        s_mov_b32 s{S_GL+2}, s{S_GL+3}
        s_add_u32 s{S_GD}, s{S_GD}, 1
        """)
        load_group()
        if pos + 1 in (9, 10, 12):
            a(f"s_cmp_lg_u32 s{S_GD}, 2")
            a(f"s_cbranch_scc1 {adv}")
            lds_spin(a, [F_HRDY])
        a(f"{adv}:")
    def ops(st, step):
        g = []
        g.append((f"s_add_u32 m0, s{S_RING}, {st*2048}\ns_add_u32 s31, s{S_OW}, 8192\nbuffer_load_dwordx4 v{VWD}, s[{SRD_WD}:{SRD_WD+3}], s{S_OW} offen lds"))
        g.append((f"buffer_load_dwordx4 {v(hf(st,0),4)}, v{VH0}, s[{SRD_WS}:{SRD_WS+3}], s{S_OH} offen sc1"))
        g.append((f"s_add_u32 m0, s{S_RING}, {st*2048+1024}\ns_nop 0\nbuffer_load_dwordx4 v{VWD}, s[{SRD_WD}:{SRD_WD+3}], s31 offen lds"))
        g.append((f"buffer_load_dwordx4 {v(hf(st,1),4)}, v{VH1}, s[{SRD_WS}:{SRD_WS+3}], s{S_OH} offen sc1"))
        return g
    S_PH = 95
    for st in range(D):
        g = ops(st, st)
        a(g[0]); vm.op(('w', st)); a(g[2]); vm.op(('w', st))
        a(f"s_mov_b32 s{S_PH+st}, s{S_OH}")
        advance(st)
    oth = a.label('hoth'); go = a.label('hgo'); lp = a.label('opoll'); ok = a.label('ook')
    a(f"s_cmp_lg_u32 s{S_WP}, 0")
    a(f"s_cbranch_scc1 {oth}")
    a(f"""
    v_min_u32 v2, {7 if opts.get('gfirst', 3) == 3 else 14}, v0
    s_lshr_b32 s7, s{S_RT}, 1
    s_lshl_b32 s7, s7, 4
    v_add_u32 v2, s7, v2
    v_lshlrev_b32 v2, 7, v2
    v_add_u32 v2, {WS_FLAGH}, v2
    """)
    flag_poll(a, 2, 4, nosleep=True)
    lds_set(a, F_ORD)
    a(f"s_branch {go}")
    a(f"{oth}:")
    lds_spin(a, [F_ORD])
    a(f"{go}:")
    stamp(a, opts, 15)
    stamp(a, opts, 41, real=True)
    a("s_waitcnt vmcnt(0)")
    vm.ops = []
    for st in range(D):
        a(f"buffer_load_dwordx4 {v(hf(st,0),4)}, v{VH0}, s[{SRD_WS}:{SRD_WS+3}], s{S_PH+st} offen sc1"); vm.op(('s', st))
        a(f"buffer_load_dwordx4 {v(hf(st,1),4)}, v{VH1}, s[{SRD_WS}:{SRD_WS+3}], s{S_PH+st} offen sc1"); vm.op(('s', st))
    def wreads(i):
        st, ws_ = i % D, i & 1
        for m, va in ((0, VA0), (1, VA1)):
            a(f"ds_read_b64_tr_b16 {v(wf(ws_,m),2)}, v{va} offset:{st*2048}")
            a(f"ds_read_b64_tr_b16 {v(wf(ws_,m)+2,2)}, v{va} offset:{st*2048+1024}")
    def yissue(first=False):
        if first:
            a(f"global_load_dwordx4 {v(V_XT,4)}, v{V_OFF}, s[{SP['x']}:{SP['x']+1}]"); vm.op('x')
        for i in range(4):
            if i == 0: a(f"buffer_load_dwordx4 {v(YG,4)}, v{VY}, s[{SRD_WS}:{SRD_WS+3}], 0 offen sc1")
            else:
                a(f"s_mov_b32 s{S_OFF}, {i*4*8192}")
                a(f"buffer_load_dwordx4 {v(YG+4*i,4)}, v{VY}, s[{SRD_WS}:{SRD_WS+3}], s{S_OFF} offen sc1")
            vm.op('y')
    NS = 22
    vm.wait(('s', 0))
    wreads(0)
    lskip = a.label('gskip')
    for i in range(NS):
        st = i % D
        if i == NS - 1:
            a(f"s_cmp_eq_u32 s{S_N}, 21")
            a(f"s_cbranch_scc1 {lskip}")
        if i + 1 < NS:
            vm.wait(('s', i+1), ' lgkmcnt(0)')
            wreads(i+1)
        else:
            a("s_waitcnt lgkmcnt(0)")
        if opts.get('tsg2') and i % 4 == 0: stamp(a, opts, 48 + i//4)
        nx = ops(st, i+D) if i + D < NS else [None]*4
        for k, (m, n_) in enumerate(((0,0),(1,0),(0,1),(1,1))):
            a(f"v_mfma_f32_32x32x16_bf16 {v(acc(m,n_),16)}, {v(wf(i&1,m),4)}, {v(hf(st,n_),4)}, {v(acc(m,n_),16)}")
            kk = (0, 1, 2, 3)[k]
            if nx[kk] is not None:
                a(nx[kk]); vm.op(('s', i+D))
        if i + D < NS: advance(i+D)
        if i + D == NS: yissue(True)
    a(f"{lskip}:")
    stamp(a, opts, 16+8)
    stamp(a, opts, 42, real=True)
    a(f"""
    v_and_b32 v1, 31, v0
    v_mul_u32_u24 v1, {PROW}, v1
    v_lshrrev_b32 v2, 5, v0
    v_lshlrev_b32 v2, 4, v2
    v_add_u32 v1, v1, v2
    s_mul_i32 s7, s{S_WP}, {64*PROW}
    s_add_u32 s7, s7, {F_P}
    v_add_u32 v1, s7, v1
    v_lshrrev_b32 v2, 4, v0
    s_lshl_b32 s7, s{S_WP}, 4
    v_add_u32 v2, s7, v2
    v_mul_u32_u24 v2, 160, v2
    v_and_b32 v3, 15, v0
    v_lshlrev_b32 v3, 3, v3
    v_add_u32 v2, v2, v3
    v_add_u32 v2, {F_YT}, v2
    """)
    for m in range(2):
        for n_ in range(2):
            for g in range(4):
                a(f"ds_write_b128 v1, {v(acc(m,n_)+4*g,4)} offset:{n_*32*PROW + m*128 + g*32}")
    lp = a.label('ychk'); ok = a.label('yok')
    a(f"""
    s_mov_b32 s28, 0
    {lp}:
    s_waitcnt vmcnt(0)
    v_cmp_ne_u32 vcc, v{V_NON}, v{YG+2}
    """)
    for i in range(1, 4):
        a(f"v_cmp_ne_u32 s[30:31], v{V_NON}, v{YG+4*i+2}"); a("s_or_b64 vcc, vcc, s[30:31]")
    for i in range(4):
        a(f"v_cmp_ne_u32 s[30:31], v{V_NON+1}, v{YG+4*i+3}"); a("s_or_b64 vcc, vcc, s[30:31]")
    a(f"""
    s_add_u32 s28, s28, 1
    s_cmp_eq_u64 vcc, 0
    s_cbranch_scc1 {ok}
    s_cmp_gt_u32 s28, {0 if opts.get('noconv') else SPIN}
    s_cbranch_scc1 {ok}
    """)
    yissue()
    a(f"s_branch {lp}")
    a(f"{ok}:")
    stamp(a, opts, 16+9)
    for i in range(4):
        a(f"ds_write_b64 v2, {v(YG+4*i,2)} offset:{i*4*160}")
    a(f"s_branch {opts['lfinal']}")


S_SL = 87
def helper_F(a, opts):
    import kerA_help as H
    from kerA_help import kgen, grab, nonce_check, colsum_A, A_PUB, A_STATS, A_M, V_SL
    S_W, S_TB, S_ROT = 68, 69, 6
    SRD_T0, SRD_T1 = 20, 24
    ACC = 80
    a(f"""
    s_lshr_b32 s7, s{S_CT}, 3
    s_add_u32 s7, s7, s{S_ROT}
    s_and_b32 s7, s7, 7
    s_lshl_b32 s7, s7, 1
    s_bfe_u32 s33, s{S_CT}, 0x10002
    s_add_u32 s{S_SL}, s7, s33
    """)
    seg0, seg1, seg2 = kgen(a, opts)
    lab = {k: a.label('h'+k) for k in ('0','nf','rest','even','g1','g2')}
    a(f"""
    s_cmp_lg_u32 s{S_W}, 1
    s_cbranch_scc1 {lab['0']}
    global_load_dwordx2 v[152:153], v150, s[{SP['dbg']}:{SP['dbg']+1}] sc1
    {lab['0']}:
    s_setprio 0
    """)
    stamp(a, opts, 3)
    bar(a, opts, 0)
    stamp(a, opts, 4)
    grab(a, opts, 0)
    a("s_setprio 2")
    seg0()
    a("s_setprio 0")
    a(f"""
    s_cmp_lg_u32 s{S_W}, 1
    s_cbranch_scc1 {lab['nf']}
    v_lshlrev_b32 v1, 2, v0
    v_add_u32 v1, {A_PUB}, v1
    ds_read_b32 v4, v1
    s_waitcnt vmcnt(0)
    """)
    nonce_check(a, 152)
    srd(a, SRD_T1, SP['ws'], 2048*8, WS_STAT)
    a(f"""
    s_lshl_b32 s32, s{S_RB}, 4
    s_add_u32 s32, s32, s{S_CT}
    s_lshl_b32 s32, s32, 6
    v_lshlrev_b32 v1, 3, v0
    v_mov_b32 v5, s70
    s_waitcnt lgkmcnt(0)
    s_mov_b64 exec, 0xff
    s_setprio 3
    buffer_store_dwordx2 v[4:5], v1, s[{SRD_T1}:{SRD_T1+3}], s32 offen sc1
    s_setprio 0
    s_mov_b64 exec, 1
    v_mov_b32 v1, {F_NON}
    ds_write_b64 v1, v[152:153]
    s_mov_b64 exec, -1
    s_waitcnt lgkmcnt(0)
    {lab['nf']}:
    """)
    bar(a, opts, 1)
    grab(a, opts, 1)
    a("s_setprio 2")
    seg1()
    a("s_setprio 0")
    a("s_waitcnt lgkmcnt(0)")
    bar(a, opts, 2)
    a("s_setprio 2")
    seg2()
    a(f"s_cmp_lg_u32 s{S_W}, 1")
    a(f"s_cbranch_scc1 {lab['rest']}")
    colsum_A(a, opts)
    a(f"{lab['rest']}:")
    a("s_setprio 0")
    bar(a, opts, 3)
    srd(a, SRD_T1, SP['ws'], 2048*8, WS_STAT)
    a(f"""
    v_mov_b32 v1, {F_NON}
    ds_read_b64 v[{V_NON}:{V_NON+1}], v1
    v_lshlrev_b32 v8, 4, v0
    s_lshl_b32 s72, s{S_RB}, 10            ; 128 rows * 8 B
    s_cmp_lg_u32 s{S_W}, 0
    s_cbranch_scc1 {lab['g1']}
    s_setprio 3
    buffer_load_dwordx4 v[12:15], v8, s[{SRD_T1}:{SRD_T1+3}], s72 offen sc1
    s_setprio 0
    {lab['g1']}:
    s_waitcnt lgkmcnt(0)
    """)
    bar(a, opts, 4)
    lp = a.label('schk'); ok = a.label('sok')
    a(f"""
    s_cmp_lg_u32 s{S_W}, 0
    s_cbranch_scc1 {lab['g2']}
    s_mov_b32 s75, 0
    {lp}:
    s_waitcnt vmcnt(0)
    v_cmp_ne_u32 vcc, v{V_NON}, v13
    v_cmp_ne_u32 s[32:33], v{V_NON}, v15
    s_or_b64 vcc, vcc, s[32:33]
    s_add_u32 s75, s75, 1
    s_cmp_eq_u64 vcc, 0
    s_cbranch_scc1 {ok}
    s_cmp_gt_u32 s75, {SPIN}
    s_cbranch_scc1 {ok}
    buffer_load_dwordx4 v[12:15], v8, s[{SRD_T1}:{SRD_T1+3}], s72 offen sc1
    s_branch {lp}
    {ok}:
    v_lshlrev_b32 v4, 16, v12
    v_and_b32 v5, 0xffff0000, v12
    v_lshlrev_b32 v6, 16, v14
    v_and_b32 v7, 0xffff0000, v14
    v_lshlrev_b32 v1, 4, v0
    v_add_u32 v1, {A_STATS}, v1
    ds_write_b128 v1, v[4:7]
    v_rcp_f32 v10, v5
    v_rcp_f32 v11, v7
    v_mov_b32 v5, v6
    v_lshlrev_b32 v1, 3, v0
    v_add_u32 v1, {A_M}, v1
    ds_write_b64 v1, v[4:5]
    ds_write_b64 v1, v[10:11] offset:512
    s_waitcnt lgkmcnt(0)
    {lab['g2']}:
    """)
    stamp(a, opts, 5)
    bar(a, opts, 5)
    srd(a, SRD_T0, SP['ws'], WS_XT_SZ, WS_XT)
    a(f"""
    v_lshrrev_b32 v3, 4, v0              ; G
    v_and_b32 v1, 15, v0
    s_and_b32 s7, s{S_W}, 1
    s_lshl_b32 s7, s7, 4
    v_add_u32 v1, s7, v1
    v_lshlrev_b32 v1, 12, v1
    v_lshlrev_b32 v5, 4, v3
    v_add_u32 v8, v1, v5
    s_lshl_b32 s32, s{S_SL}, 17
    s_lshl_b32 s33, s{S_RB}, 8
    s_add_u32 s32, s32, s33
    s_lshr_b32 s7, s{S_W}, 1
    s_lshl_b32 s33, s7, 7
    s_add_u32 s32, s32, s33
    v_lshlrev_b32 v9, 5, v3
    s_lshl_b32 s33, s7, 8
    s_add_u32 s33, s33, {A_M}
    v_add_u32 v9, s33, v9
    """)
    for r in range(2):
        M, R_ = 16 + 16*r, 24 + 16*r
        a(f"ds_read_b128 {v(M,4)}, v9 offset:{r*128}")
        a(f"ds_read_b128 {v(M+4,4)}, v9 offset:{r*128+16}")
        a(f"ds_read_b128 {v(R_,4)}, v9 offset:{512 + r*128}")
        a(f"ds_read_b128 {v(R_+4,4)}, v9 offset:{512 + r*128+16}")
    for r in range(2):
        M, R_ = 16 + 16*r, 24 + 16*r
        U = 48 + 12*r
        X = V_SL + 4*r
        for j in range(4):
            a(f"v_lshlrev_b32 v{U+2*j}, 16, v{X+j}")
            a(f"v_and_b32 v{U+2*j+1}, 0xffff0000, v{X+j}")
        a(f"s_waitcnt lgkmcnt({4*(1-r)})")
        for j in range(8): a(f"v_sub_f32 v{U+j}, v{U+j}, v{M+j}")
        for j in range(4): a(f"v_cvt_pk_bf16_f32 v{U+8+j}, v{U+2*j}, v{U+2*j+1}")
        for j in range(4):
            a(f"v_lshlrev_b32 v{U+2*j}, 16, v{U+8+j}")
            a(f"v_and_b32 v{U+2*j+1}, 0xffff0000, v{U+8+j}")
        for j in range(8): a(f"v_mul_f32 v{U+j}, v{U+j}, v{R_+j}")
        for j in range(4): a(f"v_cvt_pk_bf16_f32 v{U+8+j}, v{U+2*j}, v{U+2*j+1}")
        if not opts.get('lastfull', 1):
            a("s_setprio 3")
            a(f"buffer_store_dwordx4 {v(U+8,4)}, v8, s[{SRD_T0}:{SRD_T0+3}], s32 offen offset:{r*64} sc1")
            a("s_setprio 0")
    if opts.get('lastfull', 1):
        lds_spin_eq(a, F_DMAD, 4)
        a("s_setprio 3")
        for r in range(2):
            a(f"buffer_store_dwordx4 {v(48+12*r+8,4)}, v8, s[{SRD_T0}:{SRD_T0+3}], s32 offen offset:{r*64} sc1")
        a("s_setprio 0")
    bar(a, opts, 6)
    bar(a, opts, 7)
    nf = a.label('nfx')
    a("s_waitcnt vmcnt(0)")
    stamp(a, opts, 14)
    stamp(a, opts, 40, real=True)
    lds_count_last(a, F_CNTX, 4, nf)
    a(f"s_lshl_b32 s30, s{S_RB}, 4")
    a(f"s_add_u32 s30, s30, s{S_SL}")
    flag_store(a, WS_FLAGX, "s30")
    a(f"{nf}:")
    a(f"""
    s_and_b32 s7, s{S_W}, 1
    s_cmp_eq_u32 s7, 0
    s_cbranch_scc1 {lab['even']}
    v_lshlrev_b32 v1, 4, v0
    v_add_u32 v1, s{S_TB}, v1
    """)
    for T in range(8):
        a(f"ds_write_b128 v1, {v(ACC+4*T,4)} offset:{T*1024}")
    a("s_waitcnt lgkmcnt(0)")
    a(f"s_lshr_b32 s7, s{S_W}, 1")
    a(f"s_lshl_b32 s7, s7, 2")
    a(f"s_add_u32 s7, s7, {F_PRDY}")
    lds_set(a, "s7")
    a(f"{lab['even']}:")
    conv_F(a, opts)

def conv_F(a, opts):
    S_W, S_TBK = 68, 69
    S_TB, S_CH, S_RH, S_C = 70, 71, 72, 73
    ACC, AF, BF = 16, 48, 112
    VA, VB = 8, 12
    KACC = 80
    a(f"s_setprio {opts.get('kprio',0)}")
    a(f"""
    v_mov_b32 v1, {F_NON}
    ds_read_b64 v[{V_NON}:{V_NON+1}], v1
    s_sub_u32 s{S_WP}, s{S_WAVE}, 4
    s_lshr_b32 s{S_C}, s{S_W}, 1
    s_and_b32 s{S_RH}, s{S_W}, 1
    s_lshl_b32 s{S_CH}, s2, 1
    s_add_u32 s{S_CH}, s{S_CH}, s{S_C}      ; channel
    s_mul_i32 s{S_TB}, s{S_C}, {CT_SZ}
    s_add_u32 s{S_TB}, s{S_TB}, {F_CT}
    """)
    map_B(a)
    srd(a, SRD_WS, SP['ws'], 19*MB)
    odd = a.label('codd'); join = a.label('cjoin')
    a(f"s_cmp_eq_u32 s{S_RH}, 1")
    a(f"s_cbranch_scc1 {odd}")
    a(f"s_lshl_b32 s26, s{S_C}, 2")
    a(f"s_add_u32 s26, s26, {F_PRDY}")
    lds_spin(a, ["s26"])
    a(f"""
    v_lshlrev_b32 v1, 4, v0
    v_add_u32 v2, s{S_TBK}, v1
    """)
    for T in range(8):
        a(f"ds_read_b128 {v(16+4*T,4)}, v2 offset:{8192 + T*1024}")
    a(f"""
    v_and_b32 v2, 15, v0
    v_lshlrev_b32 v2, 5, v2               ; 32*j
    v_lshrrev_b32 v3, 4, v0
    v_lshlrev_b32 v3, 3, v3               ; 8*q
    v_add_u32 v2, v2, v3
    v_sub_u32 v2, {504}, v2               ; 4088 - 512*7 - (32 j + 8 q)
    s_add_u32 s7, s{S_TB}, {CT_V0}
    v_add_u32 v2, s7, v2
    """)
    for T in range(8):
        a(f"s_waitcnt lgkmcnt({7-T})")
        for i in range(4):
            a(f"v_add_f32 v{KACC+4*T+i}, v{KACC+4*T+i}, v{16+4*T+i}")
        a(f"v_cvt_pk_bf16_f32 v{48+2*T}, v{KACC+4*T+3}, v{KACC+4*T+2}")
        a(f"v_cvt_pk_bf16_f32 v{49+2*T}, v{KACC+4*T+1}, v{KACC+4*T}")
    for T in range(8):
        a(f"ds_write_b64 v2, {v(48+2*T,2)} offset:{(7-T)*512}")
    a(f"""
    v_mov_b32 v6, 0
    v_mov_b32 v7, 0
    v_lshlrev_b32 v3, 3, v0
    s_add_u32 s7, s{S_TB}, {CT_V0+4096}
    v_add_u32 v2, s7, v3
    s_mov_b64 exec, 0xff
    ds_write_b64 v2, v[6:7]
    ds_write_b64 v2, v[6:7] offset:{CT_V1-CT_V0}
    s_mov_b64 exec, -1
    s_add_u32 s7, s{S_TB}, {CT_V0}
    v_add_u32 v2, s7, v1
    """)
    for i in range(4):
        a(f"ds_read_b128 {v(16+8*i,4)}, v2 offset:{i*1024}")
        a(f"ds_read_b32 v{20+8*i}, v2 offset:{i*1024+16}")
    for i in range(4):
        a(f"s_waitcnt lgkmcnt({6-2*i})")
        for j in range(4):
            a(f"v_alignbit_b32 v{48+4*i+j}, v{16+8*i+j+1}, v{16+8*i+j}, 16")
    for i in range(4):
        a(f"ds_write_b128 v2, {v(48+4*i,4)} offset:{CT_V1-CT_V0 + i*1024}")
    a("s_waitcnt lgkmcnt(0)")
    a(f"s_lshl_b32 s7, s{S_C}, 2")
    a(f"s_add_u32 s7, s7, {F_KRDY}")
    lds_set(a, "s7")
    a(f"s_branch {join}")
    a(f"{odd}:")
    a(f"""
    v_lshlrev_b32 v1, 4, v0
    v_mov_b32 v16, 0
    v_mov_b32 v17, 0
    v_mov_b32 v18, 0
    v_mov_b32 v19, 0
    v_add_u32 v3, s{S_TB}, v1
    s_mov_b64 exec, 0x3fffffff
    ds_write_b128 v3, v[16:19] offset:{CT_U}
    s_mov_b64 exec, -1
    """)
    a(f"{join}:")
    a("s_waitcnt lgkmcnt(0)")
    if opts.get('noconv'):
        a("s_waitcnt vmcnt(0)")
        a(f"s_branch {opts['lfinal']}")
    ev = a.label('cev')
    a(f"s_cmp_eq_u32 s{S_RH}, 0")
    a(f"s_cbranch_scc1 {ev}")
    a(f"""
    v_and_b32 v2, 15, v0
    v_lshlrev_b32 v2, 4, v2
    s_lshr_b32 s7, s2, 4
    v_add_u32 v2, s7, v2
    v_lshlrev_b32 v2, 7, v2
    v_add_u32 v2, {WS_FLAGX}, v2
    """)
    flag_poll(a, 2, 6)
    stamp(a, opts, 15)
    stamp(a, opts, 41, real=True)
    a(f"""
    s_lshl_b32 s26, s{S_CH}, 12
    s_add_u32 s26, s26, {WS_XT}
    v_lshlrev_b32 v1, 4, v0
    """)
    for i in range(4):
        a(f"buffer_load_dwordx4 {v(16+4*i,4)}, v1, s[{SRD_WS}:{SRD_WS+3}], s26 offen offset:{i*1024} sc1")
    a(f"v_add_u32 v3, s{S_TB}, v1")
    for i in range(4):
        a(f"s_waitcnt vmcnt({3-i})")
        a(f"ds_write_b128 v3, {v(16+4*i,4)} offset:{CT_U + 480 + i*1024}")
    a("s_waitcnt lgkmcnt(0)")
    a(f"s_lshl_b32 s7, s{S_C}, 2")
    a(f"s_add_u32 s7, s7, {F_URDY}")
    lds_set(a, "s7")
    a(f"{ev}:")
    a(f"""
    v_and_b32 v1, 15, v0                   ; b / a
    v_lshrrev_b32 v2, 4, v0                ; q
    v_lshrrev_b32 v3, 1, v1                ; beta
    v_lshlrev_b32 v6, 2, v2
    v_sub_u32 v6, v6, v3                   ; 4q - beta
    s_lshl_b32 s7, s{S_RH}, 6
    s_sub_u32 s7, {1015-128-48}, s7
    v_add_u32 v6, s7, v6
    v_lshlrev_b32 v6, 2, v6
    v_and_b32 v3, 1, v1
    v_xor_b32 v3, 1, v3
    v_mul_u32_u24 v3, {CT_V1-CT_V0}, v3
    v_add_u32 v6, v6, v3
    s_add_u32 s7, s{S_TB}, {CT_V0}
    v_add_u32 v{VA}, s7, v6
    v_subrev_u32 v{VA+1}, 1024, v{VA}
    v_subrev_u32 v{VA+2}, 2048, v{VA}
    v_subrev_u32 v{VA+3}, 3072, v{VA}
    v_lshlrev_b32 v3, 5, v1
    v_lshlrev_b32 v6, 4, v2
    v_add_u32 v3, v3, v6
    s_lshl_b32 s7, s{S_RH}, 8
    s_sub_u32 s7, {448-192}, s7
    s_add_u32 s7, s7, s{S_TB}
    v_add_u32 v{VB}, s7, v3
    """)
    for i in range(32): a(f"v_mov_b32 v{ACC+i}, 0")
    a(f"s_lshl_b32 s7, s{S_C}, 2")
    a(f"s_add_u32 s26, s7, {F_KRDY}")
    a(f"s_add_u32 s27, s7, {F_URDY}")
    lds_spin(a, ["s26", "s27"])
    a("s_waitcnt vmcnt(0)")
    stamp(a, opts, 16)
    a("v_lshlrev_b32 v5, 16, v151           ; Dskip")
    a(f"s_setprio {opts.get('cprio', 0)}")
    lg = LgTrack(a)
    def rdA(st, dl, rp):
        Dd, e = dl >> 1, dl & 1
        o = (1-e)*128 + (3-rp)*16
        r = AF + st*32 + dl*4
        return [(f"ds_read2_b32 {v(r,2)}, v{VA+Dd} offset0:{o} offset1:{o+1}", ('A', rp, dl)),
                (f"ds_read2_b32 {v(r+2,2)}, v{VA+Dd} offset0:{o+2} offset1:{o+3}", ('A', rp, dl))]
    def rdB(p, rp):
        return (f"ds_read_b128 {v(BF+p*4,4)}, v{VB} offset:{CT_U + 512*p + (3-rp)*64}", ('B', rp, p))
    def emit(x): a(x[0]); lg.op(x[1])
    emit(rdB(0, 0))
    for dl in range(8):
        for x in rdA(0, dl, 0): emit(x)
    for p in range(1, 8): emit(rdB(p, 0))
    for rp in range(4):
        st = rp & 1
        nxtA = []
        if rp < 3:
            for dl in range(8): nxtA += rdA(1-st, dl, rp+1)
        ni = 0
        for p in range(8):
            for dl in range(8-p):
                lg.wait([('A', rp, dl), ('B', rp, p)])
                a(f"v_mfma_f32_16x16x32_bf16 {v(ACC+4*(dl+p),4)}, {v(AF+st*32+dl*4,4)}, {v(BF+p*4,4)}, {v(ACC+4*(dl+p),4)}")
                if ni < len(nxtA): emit(nxtA[ni]); ni += 1
            if rp < 3: emit(rdB(p, rp+1))
    a(f"s_setprio {opts.get('pprio', 2)}")
    stamp(a, opts, 17)
    ex0 = a.label('ex0'); exd = a.label('exd')
    a(f"""
    v_lshlrev_b32 v13, 4, v0
    s_lshl_b32 s7, s{S_W}, 12
    s_add_u32 s7, s7, {F_EX}
    v_add_u32 v3, s7, v13
    s_cmp_eq_u32 s{S_RH}, 0
    s_nop 4
    s_cbranch_scc1 {ex0}
    """)
    for T in range(4): a(f"ds_write_b128 v3, {v(ACC+4*T,4)} offset:{T*1024}")
    for i in range(16): a(f"v_mov_b32 v{ACC+i}, v{ACC+16+i}")
    a(f"s_branch {exd}")
    a(f"{ex0}:")
    for T in range(4): a(f"ds_write_b128 v3, {v(ACC+16+4*T,4)} offset:{T*1024}")
    a(f"{exd}:")
    a("s_waitcnt lgkmcnt(0)")
    a(f"s_lshl_b32 s7, s{S_W}, 2")
    a(f"s_add_u32 s7, s7, {F_XFL}")
    lds_set(a, "s7")
    a(f"""
    s_xor_b32 s7, s{S_W}, 1
    s_lshl_b32 s26, s7, 2
    s_add_u32 s26, s26, {F_XFL}
    s_lshl_b32 s27, s7, 12
    s_add_u32 s27, s27, {F_EX}
    v_add_u32 v14, s27, v13
    """)
    lds_spin(a, ["s26"])
    for T in range(4): a(f"ds_read_b128 {v(32+4*T,4)}, v14 offset:{T*1024}")
    a(f"""
    v_and_b32 v1, 15, v0
    v_lshlrev_b32 v1, 5, v1
    v_lshrrev_b32 v2, 4, v0
    v_lshlrev_b32 v2, 3, v2
    v_add_u32 v1, v1, v2                   ; 2*(16a + 4q)
    s_lshl_b32 s7, s{S_RH}, 11
    s_add_u32 s24, s7, s{S_TB}
    v_add_u32 v2, s24, v1
    """)
    for k in range(4): a(f"ds_read_b64 {v(48+2*k,2)}, v2 offset:{CT_U + 480 + k*512}")
    a(f"""
    v_and_b32 v1, 15, v0
    v_lshlrev_b32 v1, 6, v1
    v_lshrrev_b32 v2, 4, v0
    v_lshlrev_b32 v2, 4, v2
    v_add_u32 v1, v1, v2
    s_lshl_b32 s24, s{S_CH}, 13
    s_add_u32 s24, s24, {WS_Y}
    s_lshl_b32 s7, s{S_RH}, 12
    s_add_u32 s24, s24, s7
    s_waitcnt lgkmcnt(0)
    """)
    for k in range(4):
        A = ACC + 4*k
        for i in range(4): a(f"v_add_f32 v{A+i}, v{A+i}, v{32+4*k+i}")
        U = 64
        a(f"v_cvt_pk_bf16_f32 v{U}, v{A}, v{A+1}")
        a(f"v_cvt_pk_bf16_f32 v{U+1}, v{A+2}, v{A+3}")
        for j in range(2):
            a(f"v_lshlrev_b32 v{U+2+2*j}, 16, v{48+2*k+j}")
            a(f"v_and_b32 v{U+3+2*j}, 0xffff0000, v{48+2*k+j}")
        for i in range(4): a(f"v_mul_f32 v{U+2+i}, v{U+2+i}, v5")
        a(f"v_cvt_pk_bf16_f32 v{U+6}, v{U+2}, v{U+3}")
        a(f"v_cvt_pk_bf16_f32 v{U+7}, v{U+4}, v{U+5}")
        for j in range(2):
            a(f"v_lshlrev_b32 v{U+2+2*j}, 16, v{U+6+j}")
            a(f"v_and_b32 v{U+3+2*j}, 0xffff0000, v{U+6+j}")
            a(f"v_lshlrev_b32 v{U+8+2*j}, 16, v{U+j}")
            a(f"v_and_b32 v{U+9+2*j}, 0xffff0000, v{U+j}")
        for i in range(4): a(f"v_add_f32 v{U+2+i}, v{U+2+i}, v{U+8+i}")
        O = 80 + 4*k
        a(f"v_cvt_pk_bf16_f32 v{O}, v{U+2}, v{U+3}")
        a(f"v_cvt_pk_bf16_f32 v{O+1}, v{U+4}, v{U+5}")
        a(f"v_mov_b32 v{O+2}, v{V_NON}")
        a(f"v_mov_b32 v{O+3}, v{V_NON+1}")
        a(f"buffer_store_dwordx4 {v(O,4)}, v1, s[{SRD_WS}:{SRD_WS+3}], s24 offen offset:{k*1024} sc1")
    a(f"global_load_dwordx4 {v(V_XT,4)}, v{V_OFF}, s[{SP['x']}:{SP['x']+1}]")
    stamp(a, opts, 18)
    a("s_waitcnt vmcnt(0)")
    a(f"s_branch {opts['lfinal']}")

def final_F(a, opts):
    srd(a, SRD_O, SP['out'], 2097152)
    a(f"""
    s_and_b32 s7, s{S_WP}, 3
    s_lshl_b32 s7, s7, 4
    v_and_b32 v1, 15, v0
    v_add_u32 v2, s7, v1                  ; t
    v_mul_u32_u24 v2, {PROW}, v2
    s_lshr_b32 s24, s{S_WP}, 2
    s_lshl_b32 s24, s24, 2
    v_lshrrev_b32 v3, 4, v0
    v_add_u32 v3, s24, v3                 ; octet
    v_lshlrev_b32 v4, 5, v3
    v_add_u32 v2, v2, v4
    v_add_u32 v2, {F_P}, v2
    v_lshlrev_b32 v4, 3, v3
    v_lshrrev_b32 v5, 2, v1
    v_add_u32 v4, v4, v5
    v_mul_u32_u24 v4, 160, v4
    v_and_b32 v5, 3, v1
    v_lshlrev_b32 v5, 3, v5
    v_add_u32 v4, v4, v5
    s_lshl_b32 s7, s7, 1
    s_add_u32 s7, s7, {F_YT}
    v_add_u32 v4, s7, v4
    """)
    U = 56
    a("s_waitcnt vmcnt(4)") if False else None
    a("s_waitcnt lgkmcnt(0)")
    stamp(a, opts, 26)
    a("s_barrier")
    stamp(a, opts, 27)
    P = 16
    for pw in range(4):
        a(f"ds_read_b128 {v(P+8*pw,4)}, v2 offset:{pw*64*PROW}")
        a(f"ds_read_b128 {v(P+8*pw+4,4)}, v2 offset:{pw*64*PROW+16}")
    a(f"ds_read_b64_tr_b16 v[8:9], v4")
    a(f"ds_read_b64_tr_b16 v[10:11], v4 offset:{4*160}")
    for j in range(4):
        a(f"v_lshlrev_b32 v{U+2*j}, 16, v{V_XT+j}")
        a(f"v_and_b32 v{U+2*j+1}, 0xffff0000, v{V_XT+j}")
    a("s_waitcnt lgkmcnt(6)")
    for i in range(8): a(f"v_add_f32 v{P+i}, v{P+i}, v{P+8+i}")
    a("s_waitcnt lgkmcnt(2)")
    for i in range(8): a(f"v_add_f32 v{P+16+i}, v{P+16+i}, v{P+24+i}")
    for i in range(8): a(f"v_add_f32 v{P+i}, v{P+i}, v{P+16+i}")
    for j in range(4): a(f"v_cvt_pk_bf16_f32 v{48+j}, v{P+2*j}, v{P+2*j+1}")
    a("s_waitcnt lgkmcnt(0)")
    for j in range(4):
        a(f"v_lshlrev_b32 v{U+8+2*j}, 16, v{8+j}")
        a(f"v_and_b32 v{U+8+2*j+1}, 0xffff0000, v{8+j}")
    for i in range(8): a(f"v_add_f32 v{U+i}, v{U+i}, v{U+8+i}")
    for j in range(4): a(f"v_cvt_pk_bf16_f32 v{72+j}, v{U+2*j}, v{U+2*j+1}")
    for j in range(4):
        a(f"v_lshlrev_b32 v{U+2*j}, 16, v{72+j}")
        a(f"v_and_b32 v{U+2*j+1}, 0xffff0000, v{72+j}")
        a(f"v_lshlrev_b32 v{U+8+2*j}, 16, v{48+j}")
        a(f"v_and_b32 v{U+8+2*j+1}, 0xffff0000, v{48+j}")
    for i in range(8): a(f"v_add_f32 v{U+i}, v{U+i}, v{U+8+i}")
    for j in range(4): a(f"v_cvt_pk_bf16_f32 v{76+j}, v{U+2*j}, v{U+2*j+1}")
    a(f"buffer_store_dwordx4 v[76:79], v{V_OFF}, s[{SRD_O}:{SRD_O+3}], 0 offen {('', 'sc1', 'nt', 'sc0 sc1')[opts.get('osc', 0)]}")
    stamp(a, opts, 28)
    if opts.get('ts'): a("s_waitcnt vmcnt(0)")
    stamp(a, opts, 8)
    stamp(a, opts, 7, real=True)
    stamp_flush(a, opts, 0)
    a("s_endpgm")

def gen_F(a, name, opts):
    import kerA
    MAP2[0] = opts.get('map2', 1)
    opts = dict(opts); opts['fused'] = 1
    opts['lfinal'] = a.label('final')
    if opts.get('cpf', 1):
        opts['abeg'] = name; opts['aend'] = 1
    a(kernel_head(name))
    lend = a.label('endF')
    kerA.prologue_A(a, lend, opts)
    lab = {k: a.label(k) for k in ('g','ld','h')}
    opts['lg2'] = a.label('gemm2')
    a(f"""
    s_cmp_lt_u32 s{S_WAVE}, 4
    s_cbranch_scc1 {lab['g']}
    s_cmp_lt_u32 s{S_WAVE}, 8
    s_cbranch_scc1 {lab['ld']}
    """)
    helper_F(a, opts)
    a(f"{lab['ld']}:"); kerA.loader_A(a, opts)
    a(f"s_branch {opts['lg2']}")
    a(f"{lab['g']}:"); kerA.gemm_A(a, opts)
    a(f"{opts['lg2']}:"); gemm2_F(a, opts)
    a(f"{opts['lfinal']}:"); final_F(a, opts)
    a(f"{lend}:")
    a("s_endpgm")
    a(".fill 3072, 4, 0xbf800000")
    a(kernel_desc(name, 168))
```

```python
from core import *
import struct
def f2u(x): return struct.unpack('<I', struct.pack('<f', x))[0]
def hx(x): return hex(f2u(x))

STAGE = 40960
A_KT   = 3*STAGE
A_STATS = A_KT + 32768
A_CS   = A_STATS + 1024
A_LDS  = A_CS + 768

S_WAVE, S_RB, S_CT, S_ROT = 3, 4, 5, 6
SRD_X, SRD_WG, SRD_WU, SRD_T0, SRD_T1, SRD_T2 = 8, 12, 16, 20, 24, 28

def prologue_A(a, lend, opts):
    a(f"""
    s_cmp_ge_u32 s2, 256
    s_cbranch_scc1 {lend}
    """)
    stamp_init(a, opts)
    stamp(a, opts, 10, real=True)
    stamp(a, opts, 0)
    a(f"""
    s_load_dwordx16 s[36:51], s[0:1], 0
    s_load_dwordx16 s[52:67], s[0:1], 64
    """)
    if opts.get('aend') and opts.get('earlypf', 1):
        pc = a.label('pc0')
        a(f"""
        s_getpc_b64 s[74:75]
        {pc}:
        s_add_u32 s74, s74, {opts['abeg']}-{pc}
        s_addc_u32 s75, s75, -1
        s_lshr_b32 s76, s2, 3
        s_and_b32 s76, s76, 3
        s_mul_i32 s76, s76, 96
        v_lshrrev_b32 v1, 6, v0
        v_lshlrev_b32 v1, 3, v1
        v_and_b32 v2, 7, v0
        v_add_u32 v1, v1, v2
        v_add_u32 v1, s76, v1
        v_lshlrev_b32 v1, 6, v1
        v_and_b32 v2, 63, v0
        v_cmp_gt_u32 vcc, 8, v2
        s_and_saveexec_b64 s[76:77], vcc
        global_load_dword v166, v1, s[74:75]
        s_mov_b64 exec, s[76:77]
        """)
    a(f"""
    v_lshrrev_b32 v1, 6, v0
    v_and_b32 v0, 63, v0
    s_and_b32 s7, s2, 7
    v_readfirstlane_b32 s{S_WAVE}, v1
    s_lshr_b32 s24, s2, 3
    s_and_b32 s25, s7, 1
    s_lshl_b32 s25, s25, 3
    s_and_b32 s26, s24, 7
    s_add_u32 s{S_RB}, s25, s26
    s_lshr_b32 s25, s7, 1
    s_lshl_b32 s25, s25, 2
    s_lshr_b32 s26, s24, 3
    s_add_u32 s{S_CT}, s25, s26
    s_lshl_b32 s25, s{S_CT}, 1
    s_add_u32 s25, s25, s{S_RB}
    s_and_b32 s{S_ROT}, s25, {opts.get('rotmask', 7)}
    """)

def loader_A(a, opts):
    SJ, SXB, SWB, SLX, SLW, ST, SXO, SWO, SCC, SSTG = 68, 25, 26, 27, 28, 29, 30, 31, 32, 33
    a(f"""
    s_sub_u32 s{SJ}, s{S_WAVE}, 4
    v_lshrrev_b32 v6, 3, v0
    v_lshlrev_b32 v2, 10, v6
    v_and_b32 v6, 7, v0
    v_lshrrev_b32 v7, 4, v0
    v_xor_b32 v6, v6, v7
    v_lshlrev_b32 v6, 4, v6
    v_add_u32 v2, v2, v6
    v_xor_b32 v3, 64, v2
    v_lshrrev_b32 v6, 2, v0
    s_movk_i32 s{ST}, 2752
    v_mul_lo_u32 v4, v6, s{ST}
    v_and_b32 v6, 3, v0
    v_lshlrev_b32 v7, 4, v6
    v_xor_b32 v6, 2, v6
    v_lshlrev_b32 v6, 4, v6
    v_add_u32 v5, v4, v6
    v_add_u32 v4, v4, v7
    s_lshl_b32 s{SXB}, s{S_RB}, 17
    s_lshl_b32 s{ST}, s{SJ}, 15
    s_add_u32 s{SXB}, s{SXB}, s{ST}
    s_mul_i32 s{SWB}, s{SJ}, {16*2752}
    s_mul_i32 s{ST}, s{S_CT}, 192
    s_add_u32 s{SWB}, s{SWB}, s{ST}
    s_lshl_b32 s{SLX}, s{SJ}, 12
    s_lshl_b32 s{SLW}, s{SJ}, 10
    s_add_u32 s{SLW}, s{SLW}, 16384
    s_mov_b32 s{SCC}, s{S_ROT}
    s_waitcnt lgkmcnt(0)
    """)
    srd(a, SRD_X, SP['x'], 2097152)
    srd(a, SRD_WG, SP['wg'], 1409024)
    srd(a, SRD_WU, SP['wu'], 1409024)
    def setup(stage_off):
        a(f"""
        s_lshl_b32 s{SXO}, s{SCC}, 7
        s_add_u32 s{SXO}, s{SXO}, s{SXB}
        s_mul_i32 s{SWO}, s{SCC}, {64*2752}
        s_add_u32 s{SWO}, s{SWO}, s{SWB}
        s_add_u32 s34, s{SLX}, {stage_off}
        s_add_u32 s35, s{SLW}, {stage_off}
        s_add_u32 s{SCC}, s{SCC}, 1
        s_and_b32 s{SCC}, s{SCC}, 7
        """)
    def dma(k):
        if opts.get('nodma') and dma.n >= 13:
            return
        dma.n += 1
        order = [('x',0),('g',0),('u',0),('x',1),('g',1),('u',1),('x',2),('g',2),('u',2),('x',3)]
        t, i = order[k]
        if t == 'x':
            a(f"s_add_u32 m0, s34, {i*1024}")
            a(f"s_add_u32 s{ST}, s{SXO}, {i*8192}")
            a(f"buffer_load_dwordx4 v{2+(i&1)}, s[{SRD_X}:{SRD_X+3}], s{ST} offen lds")
        elif t == 'g':
            a(f"s_add_u32 m0, s35, {i*4096}")
            a(f"s_add_u32 s{ST}, s{SWO}, {i*64}")
            a(f"buffer_load_dwordx4 v4, s[{SRD_WG}:{SRD_WG+3}], s{ST} offen lds")
        else:
            a(f"s_add_u32 m0, s35, {i*4096+12288}")
            a(f"s_add_u32 s{ST}, s{SWO}, {i*64}")
            a(f"buffer_load_dwordx4 v5, s[{SRD_WU}:{SRD_WU+3}], s{ST} offen lds")
    dma.n = 0
    H = opts.get('half', 3)
    for _ in range(opts.get('ldelay', 0)): a("s_sleep 2")
    stamp(a, opts, 1)
    setup(0)
    for k in range(10): dma(k)
    setup(STAGE)
    for k in range(H): dma(k)
    stamp(a, opts, 2)
    a(f"s_waitcnt vmcnt({H})")
    stamp(a, opts, 3)
    a("s_barrier")
    lp = a.label('ldloop')
    a(f"s_mov_b32 s{SSTG}, {2*STAGE}")
    a(f"s_mov_b32 s7, 0")
    a(f"{lp}:")
    for k in range(H, 10): dma(k)
    setup(f"s{SSTG}")
    for k in range(H): dma(k)
    if opts.get('tsl'):
        a("s_add_u32 s90, s7, 16"); stamp(a, opts, "s90")
    a(f"s_waitcnt vmcnt({H})")
    if opts.get('tsl'):
        a("s_add_u32 s90, s7, 24"); stamp(a, opts, "s90")
    if opts.get('tsb'):
        a("s_add_u32 s90, s7, 33"); stamp(a, opts, "s90")
    a("s_barrier")
    a(f"""
    s_add_u32 s{SSTG}, s{SSTG}, {STAGE}
    s_cmp_eq_u32 s{SSTG}, {3*STAGE}
    s_cselect_b32 s{SSTG}, 0, s{SSTG}
    s_add_u32 s7, s7, 1
    s_cmp_lt_u32 s7, {5 if opts.get('lastfull', 0) and opts.get('fused') else 6}
    s_cbranch_scc1 {lp}
    """)
    if opts.get('lastfull', 0) and opts.get('fused'):
        from kerF import lds_inc, F_DMAD
        for k in range(H, 10): dma(k)
        setup(f"s{SSTG}")
        for k in range(10): dma(k)
        from kerA_help import cs_gather_early
        cs_gather_early(a, opts, SJ)
    else:
        for k in range(H, 10): dma(k)
    stamp(a, opts, 4)
    from kerA_help import loader_tail_A
    loader_tail_A(a, opts, SJ, 10-H)

def stats_produce(a, opts):
    X = 8
    a(f"""
    s_setprio 3
    v_lshrrev_b32 v1, 5, v0
    v_lshlrev_b32 v1, 10, v1
    v_and_b32 v2, 31, v0
    v_lshlrev_b32 v2, 4, v2
    v_add_u32 v1, v1, v2
    s_lshl_b32 s7, s{S_RB}, 4
    s_add_u32 s7, s7, s{S_CT}
    s_lshl_b32 s7, s7, 3
    s_lshl_b32 s33, s{S_WAVE}, 1
    s_add_u32 s7, s7, s33           ; row0
    s_lshl_b32 s33, s7, 10
    v_add_u32 v1, s33, v1
    s_waitcnt lgkmcnt(0)
    global_load_dwordx4 {v(X,4)}, v1, s[{SP['x']}:{SP['x']+1}]
    global_load_dwordx4 {v(X+4,4)}, v1, s[{SP['x']}:{SP['x']+1}] offset:512
    s_setprio 0
    """)
    stamp(a, opts, 1)

def stats_finish(a, opts):
    from kerA_help import A_PUB as A_PUB_
    X = 8; U = 16
    a("s_waitcnt vmcnt(0)")
    for j in range(8):
        a(f"v_lshlrev_b32 v{U+2*j}, 16, v{X+j}")
        a(f"v_and_b32 v{U+2*j+1}, 0xffff0000, v{X+j}")
    a(f"v_add_f32 v2, v{U}, v{U+1}")
    a(f"v_add_f32 v3, v{U+2}, v{U+3}")
    for j in range(2, 8):
        a(f"v_add_f32 v{2+(j&1)}, v{2+(j&1)}, v{U+2*j}")
        a(f"v_add_f32 v{2+(j&1)}, v{2+(j&1)}, v{U+2*j+1}")
    def red32(r):
        a("s_nop 1")
        a(f"v_add_f32_dpp v{r}, v{r}, v{r} quad_perm:[1,0,3,2] row_mask:0xf bank_mask:0xf")
        a("s_nop 1")
        a(f"v_add_f32_dpp v{r}, v{r}, v{r} quad_perm:[2,3,0,1] row_mask:0xf bank_mask:0xf")
        a("s_nop 1")
        a(f"v_add_f32_dpp v{r}, v{r}, v{r} row_half_mirror row_mask:0xf bank_mask:0xf")
        a("s_nop 1")
        a(f"v_add_f32_dpp v{r}, v{r}, v{r} row_mirror row_mask:0xf bank_mask:0xf")
        a(f"v_mov_b32 v5, v{r}")
        a("s_nop 1")
        a(f"v_permlane16_swap_b32 v{r}, v5")
        a("s_nop 1")
        a(f"v_add_f32 v{r}, v{r}, v5")
    a("v_add_f32 v2, v2, v3")
    red32(2)
    a("v_mul_f32 v2, 0x3b000000, v2        ; mean")
    a("v_mov_b32 v3, 0")
    a("v_mov_b32 v4, 0")
    for i in range(16):
        a(f"v_sub_f32 v{U+i}, v{U+i}, v2")
    for i in range(16):
        a(f"v_fmac_f32 v{3+(i&1)}, v{U+i}, v{U+i}")
    a("v_add_f32 v4, v4, v3")
    red32(4)
    a(f"""
    v_mul_f32 v4, 0x3b000000, v4          ; var
    v_cvt_pk_bf16_f32 v2, v2, v4
    v_and_b32 v4, 0xffff0000, v2
    v_add_f32 v4, {hx(1e-5)}, v4
    v_cvt_pk_bf16_f32 v4, v4, v4
    v_and_b32 v4, 0xffff0000, v4
    v_sqrt_f32 v4, v4
    v_and_b32 v2, 0xffff, v2
    v_cvt_pk_bf16_f32 v4, v4, v4
    v_and_b32 v4, 0xffff0000, v4
    v_or_b32 v2, v2, v4
    v_lshrrev_b32 v1, 5, v0
    s_lshl_b32 s33, s{S_WAVE}, 1
    v_add_u32 v1, s33, v1
    v_lshlrev_b32 v1, 2, v1
    v_add_u32 v1, {A_PUB_}, v1
    ds_write_b32 v1, v2
    s_waitcnt lgkmcnt(0)
    """)

V_WF = 8
V_XF = 32
V_XA = 48
V_WA = 52
V_ACC = 64
def wf(st, mi): return V_WF + st*12 + mi*4
def xf(st, n): return V_XF + st*8 + n*4
def acc(mi, n): return V_ACC + (mi*2+n)*16

def gemm_A(a, opts):
    S_DELTA, S_STG, S_CNT, S_TW, S_FW = 25, 26, 27, 68, 69
    stats_produce(a, opts)
    a("s_mov_b32 s88, s7")
    if opts.get('aend') and not opts.get('earlypf', 1):
        pc = a.label('pc')
        a(f"""
        s_getpc_b64 s[74:75]
        {pc}:
        s_add_u32 s74, s74, {opts['abeg']}-{pc}
        s_addc_u32 s75, s75, -1
        s_lshr_b32 s76, s2, 3
        s_and_b32 s76, s76, 1
        s_lshl_b32 s76, s76, 2
        s_add_u32 s76, s76, s{S_WAVE}
        s_min_u32 s76, s76, {6 if opts.get('fused') else 5}
        s_lshl_b32 s76, s76, 12
        v_lshlrev_b32 v6, 6, v0
        v_add_u32 v6, s76, v6
        global_load_dword v7, v6, s[74:75]
        """)
    srd(a, SRD_T0, SP['ws'], WS_H_SZ, WS_H)
    a(f"""
    s_and_b32 s{S_TW}, s{S_WAVE}, 1
    s_lshr_b32 s{S_FW}, s{S_WAVE}, 1
    s_mov_b32 s30, {-2*STAGE & 0xffffffff}
    s_mov_b32 s31, {STAGE}
    v_and_b32 v1, 31, v0
    v_lshrrev_b32 v2, 5, v0
    v_lshrrev_b32 v3, 1, v1
    v_and_b32 v3, 7, v3
    s_lshl_b32 s7, s{S_TW}, 6
    v_add_u32 v4, s7, v1
    v_lshlrev_b32 v4, 7, v4
    """)
    for s_ in range(4):
        a(f"v_add_u32 v5, {2*s_}, v2")
        a(f"v_xor_b32 v5, v5, v3")
        a(f"v_lshlrev_b32 v5, 4, v5")
        a(f"v_add_u32 v{V_XA+s_}, v4, v5")
    a(f"""
    v_lshrrev_b32 v3, 4, v0
    v_and_b32 v3, 1, v3                    ; gu
    v_mul_u32_u24 v4, 12288, v3
    v_lshlrev_b32 v5, 9, v2
    v_add_u32 v4, v4, v5
    v_and_b32 v5, 15, v0
    v_lshrrev_b32 v6, 2, v5
    v_lshlrev_b32 v6, 6, v6
    v_add_u32 v4, v4, v6
    v_and_b32 v5, 3, v5
    v_lshlrev_b32 v5, 3, v5
    v_add_u32 v4, v4, v5
    v_add_u32 v4, 16384, v4
    s_mul_i32 s7, s{S_FW}, 3
    """)
    for mi in range(3):
        a(f"""
        s_add_u32 s32, s7, {mi}
        s_lshr_b32 s33, s32, 1
        s_lshl_b32 s33, s33, 12            ; P*4096
        s_and_b32 s32, s32, 1              ; b
        v_xor_b32 v5, s32, v3
        v_lshlrev_b32 v5, 5, v5
        v_add_u32 v5, s33, v5
        v_add_u32 v{V_WA+mi}, v4, v5
        """)
    for i in range(96): a(f"v_mov_b32 v{V_ACC+i}, 0")
    if opts.get('fused'):
        from kerF import F_SY
        a(f"""
        v_lshlrev_b32 v5, 2, v0
        v_add_u32 v5, {F_SY}, v5
        v_mov_b32 v6, 0
        s_mov_b64 exec, 0xffffffff
        ds_write_b32 v5, v6
        s_mov_b64 exec, -1
        """)
    a("s_mov_b32 s7, s88")
    stats_finish(a, opts)
    stamp(a, opts, 5)
    def reads(st, s_):
        r = []
        r.append(f"ds_read_b128 {v(xf(st,0),4)}, v{V_XA+s_}")
        for mi in range(3):
            off = s_*1024
            r.append(f"ds_read_b64_tr_b16 {v(wf(st,mi),2)}, v{V_WA+mi} offset:{off}")
            r.append(f"ds_read_b64_tr_b16 {v(wf(st,mi)+2,2)}, v{V_WA+mi} offset:{off+256}")
            if mi == 0:
                r.append(f"ds_read_b128 {v(xf(st,1),4)}, v{V_XA+s_} offset:4096")
        return r
    def step(st, rd, extra=()):
        mf = []
        for mi in range(3):
            for n in range(2):
                if opts.get('fake16'):
                    A_ = acc(mi,n)
                    mf.append(f"v_mfma_f32_16x16x32_bf16 {v(A_,4)}, {v(wf(st,mi),4)}, {v(xf(st,n),4)}, {v(A_,4)}\nv_mfma_f32_16x16x32_bf16 {v(A_+8,4)}, {v(xf(st,n),4)}, {v(wf(st,mi),4)}, {v(A_+8,4)}")
                else:
                    mf.append(f"v_mfma_f32_32x32x16_bf16 {v(acc(mi,n),16)}, {v(wf(st,mi),4)}, {v(xf(st,n),4)}, {v(acc(mi,n),16)}")
        rd = list(extra) + list(rd)
        cnts = opts.get('rdsched', (2,2,2,2,0,0))
        if extra: cnts = (4,4,3,3,0,0)
        slots = [[] for _ in range(6)]
        ri = 0
        for k, cnt in enumerate(cnts):
            slots[k] += rd[ri:ri+cnt]; ri += cnt
        slots[5] += rd[ri:]
        for k in range(6):
            if not opts.get('nomfma'): a(mf[k])
            elif opts.get('nomfma') == 2 and k % 2 == 0: a(mf[k])
            for l in slots[k]: a(l)
    if opts.get('fused') and opts.get('skipidle', 1):
        from kerF import F_GDN
        busy = a.label('busy'); lidle = a.label('idle')
        opts['lgpub'] = a.label('gpub')
        a(f"""
        s_lshl_b32 s7, s{S_CT}, 1
        s_add_u32 s7, s7, s{S_FW}
        s_cmp_lt_u32 s7, 29
        s_cbranch_scc1 {busy}
        s_mov_b32 s7, 8
        {lidle}:
        s_barrier
        s_sub_u32 s7, s7, 1
        s_cmp_lg_u32 s7, 0
        s_cbranch_scc1 {lidle}
        v_mov_b32 v1, {F_GDN}
        v_mov_b32 v2, 1
        s_mov_b64 exec, 1
        ds_add_u32 v1, v2
        s_mov_b64 exec, -1
        s_branch {opts['lgpub']}
        {busy}:
        """)
    stamp(a, opts, 2)
    a("s_barrier")
    stamp(a, opts, 3)
    stamp(a, opts, 12, real=True)
    for l in reads(0, 0): a(l)
    lp = a.label('gloop'); lend = a.label('gend')
    a(f"s_mov_b32 s{S_CNT}, 0")
    a(f"s_mov_b32 s{S_STG}, 0")
    a(f"{lp}:")
    for s_ in range(3):
        a("s_waitcnt lgkmcnt(0)")
        step(s_ & 1, reads((s_+1) & 1, s_+1))
    a("s_waitcnt lgkmcnt(0)")
    a(f"s_cmp_eq_u32 s{S_CNT}, 7")
    a(f"s_cbranch_scc1 {lend}")
    if opts.get('tsg'):
        a(f"s_add_u32 s90, s{S_CNT}, 16"); stamp(a, opts, "s90")
    a("s_barrier")
    if opts.get('tsg'):
        a(f"s_add_u32 s90, s{S_CNT}, 24"); stamp(a, opts, "s90")
    a(f"""
    s_add_u32 s{S_STG}, s{S_STG}, {STAGE}
    s_cmp_eq_u32 s{S_STG}, {3*STAGE}
    s_cselect_b32 s{S_DELTA}, s30, s31
    s_cselect_b32 s{S_STG}, 0, s{S_STG}
    s_add_u32 s{S_CNT}, s{S_CNT}, 1
    """)
    adv = [f"v_add_u32 v{V_XA+k}, s{S_DELTA}, v{V_XA+k}" for k in range(4)] + [f"v_add_u32 v{V_WA+k}, s{S_DELTA}, v{V_WA+k}" for k in range(3)]
    adv = [adv[0], adv[4], adv[5], adv[6], adv[1], adv[2], adv[3]]
    for l in adv[:4]: a(l)
    step(1, reads(0, 0) + adv[4:])
    a(f"s_branch {lp}")
    a(f"{lend}:")
    step(1, [])
    stamp(a, opts, 4)
    stamp(a, opts, 13, real=True)
    if opts.get('fused'):
        from kerF import F_GDN, F_CSR, lds_spin
        a(f"""
        v_mov_b32 v1, {F_GDN}
        v_mov_b32 v2, 1
        s_mov_b64 exec, 1
        ds_add_u32 v1, v2
        s_mov_b64 exec, -1
        """)
        lds_spin(a, [F_CSR])
    else:
        a("s_barrier")
    if opts.get('eprio'): a(f"s_setprio {opts['eprio']}")
    stamp(a, opts, 9)
    stamp(a, opts, 43, real=True)
    if opts.get('epi2'):
        a("s_mov_b32 s87, 0")
        a("L_epi_again:")
    a(f"""
    v_and_b32 v1, 31, v0
    s_lshl_b32 s7, s{S_TW}, 6
    v_add_u32 v1, s7, v1
    v_lshlrev_b32 v2, 3, v1
    v_add_u32 v2, {A_STATS}, v2
    ds_read_b64 v[8:9], v2
    ds_read_b64 v[10:11], v2 offset:256
    v_lshrrev_b32 v3, 5, v0
    v_lshlrev_b32 v3, 4, v3
    s_mul_i32 s7, s{S_FW}, 384
    s_add_u32 s7, s7, {A_CS}
    v_add_u32 v3, s7, v3
    v_lshlrev_b32 v4, 4, v0
    """)
    CSR = 32
    def cs_read(mi):
        for g in range(4):
            a(f"ds_read_b128 {v(CSR+4*g,4)}, v3 offset:{mi*128+g*32}")
    cs_read(0)
    K1 = -2*0.7978845608028654*1.4426950408889634
    a("s_waitcnt lgkmcnt(4)")
    for n in range(2):
        b = 12 + 8*n
        m_, s_ = 8+2*n, 9+2*n
        a(f"""
        v_mov_b32 v{b}, v{m_}
        v_rcp_f32 v1, v{s_}
        v_mul_f32 v{b+6}, v{s_}, v{s_}
        v_mul_f32 v{b+2}, {hx(K1)}, v1
        v_mul_f32 v2, v1, v1
        v_mul_f32 v2, {hx(0.044715)}, v2
        v_mul_f32 v{b+4}, v{b+2}, v2
        """)
    S_T0, S_T1, S_TT = 28, 29, 32
    a(f"""
    s_lshl_b32 s{S_TT}, s{S_RB}, 2
    s_lshl_b32 s7, s{S_TW}, 1
    s_add_u32 s{S_TT}, s{S_TT}, s7
    s_mul_i32 s{S_TT}, s{S_TT}, 86          ; (4rb+2tw)*86
    s_mul_i32 s{S_T0}, s{S_CT}, 6
    s_mul_i32 s7, s{S_FW}, 3
    s_add_u32 s{S_T0}, s{S_T0}, s7
    """)
    T = 48
    OUTS = (28, 160)
    for mi in range(3):
        skip = a.label('skip')
        a("s_waitcnt lgkmcnt(0)")
        for n in range(2):
            b = 12 + 8*n
            A = acc(mi, n)
            for p in range(8):
                a(f"v_pk_fma_f32 {v(A+2*p,2)}, {v(CSR+2*p,2)}, {v(b,2)}, {v(A+2*p,2)} op_sel_hi:[1,0,1] neg_lo:[0,1,0] neg_hi:[0,1,0]")
        if mi < 2: cs_read(mi+1)
        for p in range(4):
            regs = []
            for n in range(2):
                A = acc(mi, n); b = 12 + 8*n
                regs.append((A+2*p, A+8+2*p, b, T+8*n))
            for (g_, u_, b, t) in regs: a(f"v_pk_mul_f32 {v(t,2)}, {v(g_,2)}, {v(g_,2)}")
            for (g_, u_, b, t) in regs: a(f"v_pk_fma_f32 {v(t,2)}, {v(t,2)}, {v(b+4,2)}, {v(b+2,2)} op_sel_hi:[1,0,0]")
            for (g_, u_, b, t) in regs: a(f"v_pk_mul_f32 {v(t,2)}, {v(t,2)}, {v(g_,2)}")
            for (g_, u_, b, t) in regs: a(f"v_pk_mul_f32 {v(t+2,2)}, {v(g_,2)}, {v(u_,2)}")
            for (g_, u_, b, t) in regs:
                a(f"v_exp_f32 v{t}, v{t}")
                a(f"v_exp_f32 v{t+1}, v{t+1}")
            for (g_, u_, b, t) in regs: a(f"v_pk_fma_f32 {v(t,2)}, {v(t,2)}, {v(b+6,2)}, {v(b+6,2)} op_sel_hi:[1,0,0]")
            for (g_, u_, b, t) in regs:
                a(f"v_rcp_f32 v{t}, v{t}")
                a(f"v_rcp_f32 v{t+1}, v{t+1}")
            for (g_, u_, b, t) in regs: a(f"v_pk_mul_f32 {v(t+2,2)}, {v(t+2,2)}, {v(t,2)}")
            for n, (g_, u_, b, t) in enumerate(regs): a(f"v_cvt_pk_bf16_f32 v{OUTS[n]+p}, v{t+2}, v{t+3}")
        a(f"s_add_u32 s7, s{S_T0}, {mi}")
        a(f"s_cmp_ge_u32 s7, 86")
        a(f"s_cbranch_scc1 {skip}")
        a(f"s_add_u32 s7, s7, s{S_TT}")
        a(f"s_lshl_b32 s7, s7, 10")
        sc = " sc1" if opts.get('fused') else ""
        a(f"buffer_store_dwordx4 {v(OUTS[0],4)}, v4, s[{SRD_T0}:{SRD_T0+3}], s7 offen{sc}")
        a(f"s_add_u32 s7, s7, {86*1024}")
        a(f"buffer_store_dwordx4 {v(OUTS[1],4)}, v4, s[{SRD_T0}:{SRD_T0+3}], s7 offen{sc}")
        a(f"{skip}:")
        a("s_nop 1")
    if opts.get('epi2'):
        a("s_add_u32 s90, s87, 14"); stamp(a, opts, "s90")
        a("s_add_u32 s87, s87, 1")
        a("s_cmp_lt_u32 s87, 2")
        a("s_cbranch_scc1 L_epi_again")
    stamp(a, opts, 6)
    stamp(a, opts, 44, real=True)
    if opts.get('fused'):
        from kerF import gpub_F
        if opts.get('lgpub'): a(f"{opts['lgpub']}:")
        gpub_F(a, opts)
        return
    if opts.get('ts'): a("s_waitcnt vmcnt(0)")
    stamp(a, opts, 8)
    stamp(a, opts, 7, real=True)
    stamp_flush(a, opts, 0)
    a("s_endpgm")

from kerA_help import helper_A, loader_tail_A, A_M, A_R, A_PUB, A_LDS as A_LDS2

def gen_A(a, name, opts):
    a(kernel_head(name))
    if opts.get('cpf', 1):
        opts = dict(opts); opts['abeg'] = name; opts['aend'] = 1
    lend = a.label('endA')
    prologue_A(a, lend, opts)
    lab = {k: a.label(k) for k in ('g','ld','h')}
    a(f"""
    s_cmp_lt_u32 s{S_WAVE}, 4
    s_cbranch_scc1 {lab['g']}
    s_cmp_ge_u32 s{S_WAVE}, 8
    s_cbranch_scc1 {lab['h']}
    """)
    loader_A(a, opts)
    a(f"{lab['h']}:"); helper_A(a, opts)
    a(f"{lab['g']}:"); gemm_A(a, opts)
    a(f"{lend}:")
    a("s_endpgm")
    a(kernel_desc(name, 168))
```

```python
from core import *
import struct
def f2u(x): return struct.unpack('<I', struct.pack('<f', x))[0]
def hx(x): return hex(f2u(x))
STAGE = 40960
A_KT = 3*STAGE; A_STATS = A_KT + 32768; A_CS = A_STATS + 1024
A_M = A_CS + 768; A_R = A_M + 512; A_PUB = A_R + 512; A_LDS = A_PUB + 64
S_WAVE, S_RB, S_CT, S_ROT = 3, 4, 5, 6
SRD_X, SRD_WG, SRD_WU, SRD_T0, SRD_T1, SRD_T2 = 8, 12, 16, 20, 24, 28
LOG2E = 1.4426950408889634
INV2PI = 0.15915494309189535

def cmul(a, dst, p, q, tmp):
    a(f"v_pk_mul_f32 {v(tmp,2)}, {v(p,2)}, {v(q,2)} op_sel:[0,0] op_sel_hi:[0,1]")
    a(f"v_pk_fma_f32 {v(dst,2)}, {v(p,2)}, {v(q,2)}, {v(tmp,2)} op_sel:[1,1,0] op_sel_hi:[1,0,1] neg_lo:[1,0,0]")

def kgen(a, opts):
    S_W, S_TB = 68, 69
    A2, B2, W, Z1, Z2, Z4, Z8, Z16, Z256 = 16, 17, 18, 20, 22, 24, 26, 28, 30
    C0, C1, T0, T1, BH = 32, 34, 36, 38, 40
    WA, RA, VF, UF, ACC = 44, 48, 56, 72, 80
    WB = 144
    PK = 112
    a(f"""
    s_setprio 3
    s_sub_u32 s{S_W}, s{S_WAVE}, 8
    s_lshr_b32 s7, s{S_W}, 1
    s_lshl_b32 s32, s2, 1
    s_add_u32 s32, s32, s7              ; channel d
    s_and_b32 s7, s{S_W}, 1
    s_lshl_b32 s7, s7, 7
    s_lshl_b32 s33, s32, 8              ; d*128*2
    s_add_u32 s33, s33, s7
    v_lshlrev_b32 v1, 1, v0
    v_add_u32 v1, s33, v1
    s_lshl_b32 s34, s32, 1              ; d*2
    v_mov_b32 v2, s34
    s_lshl_b32 s{S_TB}, s{S_W}, 13
    s_add_u32 s{S_TB}, s{S_TB}, {A_KT}
    s_waitcnt lgkmcnt(0)
    """)
    names = ['are','aim','bre','bim','cre','cim']
    for i, nme in enumerate(names):
        a(f"global_load_ushort v{8+i}, v1, s[{SP[nme]}:{SP[nme]+1}]")
    a(f"global_load_ushort v14, v2, s[{SP['logdt']}:{SP['logdt']+1}]")
    if opts.get('fused'): a(f"global_load_ushort v151, v2, s[{SP['dskip']}:{SP['dskip']+1}]")
    stamp(a, opts, 1)
    nn = a.label('nononce')
    a(f"""
    s_or_b32 s7, s2, s{S_W}
    s_cmp_lg_u32 s7, 0
    s_cbranch_scc1 {nn}
    s_memrealtime s[70:71]
    v_mov_b32 v2, 0
    s_waitcnt lgkmcnt(0)
    s_or_b32 s70, s70, 1
    v_mov_b32 v4, s70
    v_mov_b32 v5, s71
    s_mov_b64 exec, 1
    global_store_dwordx2 v2, v[4:5], s[{SP['dbg']}:{SP['dbg']+1}] sc1
    v_mov_b32 v2, {WS_NONCE}
    global_store_dwordx2 v2, v[4:5], s[{SP['ws']}:{SP['ws']+1}]
    s_mov_b64 exec, -1
    {nn}:
    """)
    stamp(a, opts, 9)
    grab_setup(a, opts)
    a("v_mov_b32 v150, 0")
    a(f"""
    v_lshrrev_b32 v3, 4, v0
    v_lshrrev_b32 v4, 2, v0
    v_and_b32 v4, 3, v4                  ; q (write)
    v_and_b32 v5, 3, v0                  ; e
    v_lshlrev_b32 v6, 10, v3
    v_lshlrev_b32 v5, 2, v5
    v_add_u32 v6, v6, v5
    v_add_u32 v6, s{S_TB}, v6
    """)
    for g in range(4):
        a(f"v_xor_b32 v5, {(4-g)&3}, v4")
        a(f"v_lshlrev_b32 v5, 4, v5")
        a(f"v_add_u32 v{WA+g}, v6, v5")
        a(f"v_add_u32 v{WB+g}, 4096, v{WA+g}")
    a("v_and_b32 v4, 15, v0               ; c")
    def raddr(dst, shift, base):
        if shift == 0:
            a(f"v_mov_b32 v5, v4")
        else:
            a(f"v_lshrrev_b32 v5, {shift}, v4")
            a(f"v_and_b32 v5, 1, v5")
            a(f"v_add_u32 v5, v5, v4")
            if shift > 1: a(f"v_add_u32 v5, {(1<<(shift-1))-1}, v5")
            a(f"v_lshrrev_b32 v5, {shift}, v5")
        if base: a(f"v_add_u32 v5, {base}, v5")
        a(f"v_lshrrev_b32 v6, 2, v5")
        a(f"v_sub_u32 v6, 4, v6")
        a(f"v_and_b32 v6, 3, v6")
        a(f"v_xor_b32 v6, v6, v3")
        a(f"v_lshlrev_b32 v6, 4, v6")
        a(f"v_lshlrev_b32 v5, 6, v5")
        a(f"v_add_u32 v5, v5, v6")
        a(f"v_add_u32 v{dst}, s{S_TB}, v5")
    cfg = [(0,0),(1,0),(2,9),(2,0),(3,5),(3,8),(3,11),(3,0)]
    for T,(sh,b) in enumerate(cfg): raddr(RA+T, sh, b)
    for i in range(32): a(f"v_mov_b32 v{ACC+i}, 0")
    stamp(a, opts, 11)
    a("s_waitcnt vmcnt(0)")
    stamp(a, opts, 2)
    for i in range(7): a(f"v_lshlrev_b32 v{8+i}, 16, v{8+i}")
    a(f"""
    v_mul_f32 v14, {hx(LOG2E)}, v14
    v_exp_f32 v14, v14
    s_nop 0
    v_cvt_pk_bf16_f32 v14, v14, v14
    v_and_b32 v14, 0xffff0000, v14
    v_mul_f32 v8, v14, v8
    v_mul_f32 v9, v14, v9
    v_mul_f32 v10, v14, v10               ; dB_re
    v_mul_f32 v11, v14, v11               ; dB_im
    v_mul_f32 v{A2}, {hx(LOG2E)}, v8
    v_mul_f32 v{B2}, {hx(INV2PI)}, v9
    v_mul_f32 v{W}, v12, v10
    v_mul_f32 v{W+1}, v12, v11
    v_fma_f32 v{W}, -v13, v11, v{W}
    v_fma_f32 v{W+1}, v13, v10, v{W+1}
    """)
    def zpow(dst, c):
        cf = hx(float(c))
        a(f"""
        v_mul_f32 v1, {cf}, v{A2}
        v_mul_f32 v2, {cf}, v{B2}
        v_exp_f32 v1, v1
        v_fract_f32 v2, v2
        v_cos_f32 v5, v2
        v_sin_f32 v6, v2
        s_nop 0
        v_mul_f32 v{dst}, v1, v5
        v_mul_f32 v{dst+1}, v1, v6
        """)
    zpow(Z1, 1); zpow(Z16, 16); zpow(Z256, 256)
    cmul(a, Z2, Z1, Z1, T0); cmul(a, Z4, Z2, Z2, T0); cmul(a, Z8, Z4, Z4, T0)
    if opts.get('tsk'): stamp(a, opts, 11)
    pkc = [0]
    pend = {}
    def put(row, buf, reg, conj=False, last=False):
        r = PK + (pkc[0] & 7); pkc[0] += 1
        if conj: a(f"v_cvt_pk_bf16_f32 v{r}, v{reg}, -v{reg+1}")
        else:    a(f"v_cvt_pk_bf16_f32 v{r}, v{reg}, v{reg+1}")
        wa = (WA if buf == 0 else WB) + (row >> 2)
        if (row & 1) and (buf, row-1) in pend:
            r0 = pend.pop((buf, row-1))
            a(f"ds_write2_b32 v{wa}, v{r0}, v{r} offset0:{(row-1)*16} offset1:{row*16}")
        elif (row & 1) or last:
            a(f"ds_write_b32 v{wa}, v{r} offset:{row*64}")
        else:
            pend[(buf, row)] = r
    def flush():
        assert not pend
    def rd(dst, T, buf, kap):
        a(f"ds_read_b128 {v(dst,4)}, v{RA+T} offset:{buf*4096 + kap*1024}")
    a(f"v_mov_b32 v{C0}, 1.0")
    a(f"v_mov_b32 v{C0+1}, 0")
    a(f"v_mov_b32 v{C1}, v{W}")
    a(f"v_mov_b32 v{C1+1}, v{W+1}")
    for j in range(16):
        put(j, 0, C0, conj=True)
        put(j, 1, C1)
        if j < 15:
            a(f"v_pk_mul_f32 {v(T0,2)}, {v(C0,2)}, {v(Z16,2)} op_sel:[0,0] op_sel_hi:[0,1]")
            a(f"v_pk_mul_f32 {v(T1,2)}, {v(C1,2)}, {v(Z1,2)} op_sel:[0,0] op_sel_hi:[0,1]")
            a(f"v_pk_fma_f32 {v(C0,2)}, {v(C0,2)}, {v(Z16,2)}, {v(T0,2)} op_sel:[1,1,0] op_sel_hi:[1,0,1] neg_lo:[1,0,0]")
            a(f"v_pk_fma_f32 {v(C1,2)}, {v(C1,2)}, {v(Z1,2)}, {v(T1,2)} op_sel:[1,1,0] op_sel_hi:[1,0,1] neg_lo:[1,0,0]")
    if opts.get('tsk'): stamp(a, opts, 12)
    for kap in range(4): rd(VF+4*kap, 0, 0, kap)
    def chain(rows, buf, start, mult, n):
        a(f"v_mov_b32 v{C0}, v{start}")
        a(f"v_mov_b32 v{C0+1}, v{start+1}")
        for i in range(n):
            put(rows+i, buf, C0, last=(i == n-1))
            if i < n-1: cmul(a, C0, C0, mult, T0)
    def two_chains(specs):
        regs = [(C0,T0),(C1,T1)]
        for (r0,b,st,m,n),(c,t) in zip(specs, regs):
            a(f"v_mov_b32 v{c}, v{st}")
            a(f"v_mov_b32 v{c+1}, v{st+1}")
        nmax = max(sp[4] for sp in specs)
        for i in range(nmax):
            for (r0,b,st,m,n),(c,t) in zip(specs, regs):
                if i < n: put(r0+i, b, c, last=(i == n-1))
            for (r0,b,st,m,n),(c,t) in zip(specs, regs):
                if i < n-1: a(f"v_pk_mul_f32 {v(t,2)}, {v(c,2)}, {v(m,2)} op_sel:[0,0] op_sel_hi:[0,1]")
            for (r0,b,st,m,n),(c,t) in zip(specs, regs):
                if i < n-1: a(f"v_pk_fma_f32 {v(c,2)}, {v(c,2)}, {v(m,2)}, {v(t,2)} op_sel:[1,1,0] op_sel_hi:[1,0,1] neg_lo:[1,0,0]")
    def mm(T, buf):
        for kap in range(4): rd(UF + 0, T, buf, kap) if False else None
    BH2 = 42
    cmul(a, BH, W, Z256, T0)
    cmul(a, BH2, BH, Z256, T0)
    two_chains([(0,0,BH,Z2,9),(9,0,BH2,Z4,5)])
    flush()
    UFS = [[72, 76, 120, 124], [128, 132, 136, 140]]
    def rdtile(T, buf, st):
        for kap in range(4): rd(UFS[st][kap], T, buf, kap)
    def mmt(T, st, later):
        a(f"s_waitcnt lgkmcnt({min(later,15)})")
        for kap in range(4):
            a(f"v_mfma_f32_16x16x32_bf16 {v(ACC+4*T,4)}, {v(UFS[st][kap],4)}, {v(VF+4*kap,4)}, {v(ACC+4*T,4)}")
    if opts.get('tsk'): stamp(a, opts, 13)
    rdtile(0, 1, 0)
    rdtile(1, 0, 1)
    mmt(0, 0, 4)
    rdtile(2, 0, 0)
    cmul(a, BH, BH2, Z256, T0)
    cmul(a, BH2, BH, Z256, T0)
    two_chains([(0,1,BH,Z4,5),(5,1,BH2,Z8,3)])
    cmul(a, BH, BH2, Z256, T0)
    cmul(a, BH2, BH, Z256, T0)
    two_chains([(8,1,BH,Z8,3),(11,1,BH2,Z8,3)])
    flush()
    def seg0():
        a("s_waitcnt lgkmcnt(0)")
        for T, st in ((1,1),(2,0)):
            for kap in range(4):
                a(f"v_mfma_f32_16x16x32_bf16 {v(ACC+4*T,4)}, {v(UFS[st][kap],4)}, {v(VF+4*kap,4)}, {v(ACC+4*T,4)}")
        rdtile(3, 1, 0)
        rdtile(4, 1, 1)
        cmul(a, BH, BH2, Z256, T0)
        chain(0, 0, BH, Z8, 3)
        flush()
        mmt(3, 0, 6)
    def seg1():
        rdtile(5, 1, 0)
        mmt(4, 1, 4)
        rdtile(6, 1, 1)
        mmt(5, 0, 4)
        rdtile(7, 0, 0)
        mmt(6, 1, 4)
    def seg2():
        mmt(7, 0, 0)
    return seg0, seg1, seg2

V_SL = 154
def grab(a, opts, c):
    if opts.get('hk',0) & 64: return
    skip = a.label('ng')
    a(f"s_cmp_lg_u32 s77, {c}")
    a(f"s_cbranch_scc1 {skip}")
    stg = (c % 3)*STAGE
    for r in range(2):
        for e in range(2):
            a(f"ds_read_b64_tr_b16 {v(V_SL+4*r+2*e,2)}, v{162+e} offset:{r*4096 + e*512 + (stg if stg < 49152 else 0)}") if stg < 49152 else None
    if stg >= 49152:
        a(f"v_add_u32 v162, {stg}, v162")
        a(f"v_add_u32 v163, {stg}, v163")
        for r in range(2):
            for e in range(2):
                a(f"ds_read_b64_tr_b16 {v(V_SL+4*r+2*e,2)}, v{162+e} offset:{r*4096 + e*512}")
    a("s_waitcnt lgkmcnt(0)")
    a(f"{skip}:")

def grab_setup(a, opts):
    S_W = 68
    a(f"""
    s_lshr_b32 s77, s{S_CT}, 3
    v_and_b32 v1, 15, v0
    v_lshrrev_b32 v2, 2, v1              ; r'
    v_and_b32 v1, 3, v1                  ; c'
    v_lshrrev_b32 v3, 4, v0              ; G
    s_bfe_u32 s7, s{S_CT}, 0x10002
    s_lshl_b32 s7, s7, 1
    s_and_b32 s33, s{S_W}, 1
    s_add_u32 s7, s7, s33
    s_lshl_b32 s7, s7, 1
    v_lshrrev_b32 v6, 1, v1
    v_add_u32 v5, s7, v6                 ; granule
    v_and_b32 v6, 1, v3
    v_lshlrev_b32 v6, 2, v6              ; 4 (G&1)
    v_lshrrev_b32 v7, 1, v2
    v_add_u32 v6, v6, v7                 ; + (r'>>1)   (e=0)
    v_lshlrev_b32 v7, 3, v3              ; 8 G
    v_add_u32 v7, v7, v2                 ; + r'
    s_lshr_b32 s7, s{S_W}, 1
    s_lshl_b32 s7, s7, 6                 ; 64 th
    v_add_u32 v7, s7, v7
    v_lshlrev_b32 v7, 7, v7              ; row*128
    v_and_b32 v1, 1, v1
    v_lshlrev_b32 v1, 3, v1              ; (c'&1)*8
    v_add_u32 v7, v7, v1
    v_xor_b32 v1, v5, v6
    v_lshlrev_b32 v1, 4, v1
    v_add_u32 v162, v7, v1
    v_add_u32 v6, 2, v6                  ; e=1 : +2
    v_xor_b32 v1, v5, v6
    v_lshlrev_b32 v1, 4, v1
    v_add_u32 v163, v7, v1
    """)

def helper_A(a, opts):
    S_W, S_TB = 68, 69
    ACC = 80
    seg0, seg1, seg2 = kgen(a, opts)
    lab = {k: a.label('h'+k) for k in ('0','1','2','3','odd','even','nf','rest','fin')}
    a(f"""
    s_cmp_lg_u32 s{S_W}, 1
    s_cbranch_scc1 {lab['0']}
    global_load_dwordx2 v[152:153], v150, s[{SP['dbg']}:{SP['dbg']+1}] sc1
    {lab['0']}:
    """)
    a("s_setprio 0")
    stamp(a, opts, 3)
    bar(a, opts, 0)
    stamp(a, opts, 4)
    grab(a, opts, 0)
    a("s_setprio 2")
    seg0()
    a("s_setprio 0")
    a(f"""
    s_cmp_lg_u32 s{S_W}, 1
    s_cbranch_scc1 {lab['nf']}
    v_lshlrev_b32 v1, 2, v0
    v_add_u32 v1, {A_PUB}, v1
    ds_read_b32 v4, v1
    s_waitcnt vmcnt(0)
    """)
    nonce_check(a, 152)
    srd(a, SRD_T1, SP['ws'], 2048*8, WS_STAT)
    a(f"""
    s_lshl_b32 s32, s{S_RB}, 4
    s_add_u32 s32, s32, s{S_CT}
    s_lshl_b32 s32, s32, 6
    v_lshlrev_b32 v1, 3, v0
    v_mov_b32 v5, s70
    s_waitcnt lgkmcnt(0)
    s_mov_b64 exec, 0xff
    s_setprio 3
    buffer_store_dwordx2 v[4:5], v1, s[{SRD_T1}:{SRD_T1+3}], s32 offen sc1
    s_setprio 0
    s_mov_b64 exec, -1
    {lab['nf']}:
    """)
    bar(a, opts, 1)
    grab(a, opts, 1)
    a("s_setprio 2")
    seg1()
    a("s_setprio 0")
    a("s_waitcnt lgkmcnt(0)")
    bar(a, opts, 2)
    grab(a, opts, 2)
    a("s_setprio 2")
    seg2()
    a(f"s_cmp_lg_u32 s{S_W}, 1")
    a(f"s_cbranch_scc1 {lab['rest']}")
    if not opts.get('hk',0) & 16: colsum_A(a, opts)
    a(f"{lab['rest']}:")
    a("s_setprio 0")
    for c in range(3, 8):
        bar(a, opts, c)
        grab(a, opts, c)
    a(f"""
    s_and_b32 s7, s{S_W}, 1
    s_cmp_eq_u32 s7, 0
    s_cbranch_scc1 {lab['even']}
    v_lshlrev_b32 v1, 4, v0
    v_add_u32 v1, s{S_TB}, v1
    """)
    for T in range(8):
        a(f"ds_write_b128 v1, {v(ACC+4*T,4)} offset:{T*1024}")
    a("s_waitcnt lgkmcnt(0)")
    a(f"{lab['even']}:")
    xnt_setup(a, opts)
    bar(a, opts, 8)
    if opts.get('fused'):
        from kerF import conv_F
        conv_F(a, opts)
        return
    a(f"""
    s_and_b32 s7, s{S_W}, 1
    s_cmp_eq_u32 s7, 1
    s_cbranch_scc1 {lab['fin']}
    """)
    srd(a, SRD_T1, SP['ws'], WS_K_SZ, WS_K)
    a(f"""
    v_lshlrev_b32 v1, 4, v0
    v_add_u32 v1, s{S_TB}, v1
    """)
    for T in range(8):
        a(f"ds_read_b128 {v(16+4*T,4)}, v1 offset:{8192 + T*1024}")
    a(f"""
    v_and_b32 v2, 15, v0
    v_lshlrev_b32 v2, 5, v2               ; 32*j
    v_lshrrev_b32 v3, 4, v0
    v_lshlrev_b32 v3, 3, v3               ; 8*q
    v_add_u32 v2, v2, v3
    v_sub_u32 v2, 4088, v2
    s_lshr_b32 s7, s{S_W}, 1
    s_lshl_b32 s34, s2, 1
    s_add_u32 s34, s34, s7
    s_mul_i32 s34, s34, {K_STRIDE}
    v_mov_b32 v4, 0
    v_mov_b32 v5, 0
    v_lshlrev_b32 v6, 3, v0
    v_add_u32 v6, 4096, v6
    s_mov_b64 exec, 0xff
    buffer_store_dwordx2 v[4:5], v6, s[{SRD_T1}:{SRD_T1+3}], s34 offen
    s_mov_b64 exec, -1
    """)
    for T in range(8):
        a(f"s_waitcnt lgkmcnt({7-T})")
        for i in range(4):
            a(f"v_add_f32 v{ACC+4*T+i}, v{ACC+4*T+i}, v{16+4*T+i}")
        a(f"v_cvt_pk_bf16_f32 v{48+2*T}, v{ACC+4*T+3}, v{ACC+4*T+2}")
        a(f"v_cvt_pk_bf16_f32 v{49+2*T}, v{ACC+4*T+1}, v{ACC+4*T}")
    for T in range(8):
        if T: a(f"v_subrev_u32 v2, 512, v2")
        a(f"buffer_store_dwordx2 {v(48+2*T,2)}, v2, s[{SRD_T1}:{SRD_T1+3}], s34 offen")
    stamp(a, opts, 5)
    a(f"{lab['fin']}:")
    xnt_A(a, opts)

def nonce_check(a, vreg):
    lp = a.label('npoll'); ok = a.label('nok')
    a(f"""
    s_mov_b32 s7, 0
    {lp}:
    v_readfirstlane_b32 s70, v{vreg}
    v_readfirstlane_b32 s71, v{vreg+1}
    s_add_u32 s7, s7, 1
    s_cmp_lg_u32 s70, 0
    s_cbranch_scc1 {ok}
    s_cmp_gt_u32 s7, 200000
    s_cbranch_scc1 {ok}
    global_load_dwordx2 v[{vreg}:{vreg+1}], v150, s[{SP['dbg']}:{SP['dbg']+1}] sc1
    s_waitcnt vmcnt(0)
    s_branch {lp}
    {ok}:
    """)

def colsum_A(a, opts):
    WA0, SEL, FR, AC, G = 8, 12, 16, 112, 16
    a("s_setprio 3")
    a(f"""
    v_lshrrev_b32 v2, 5, v0                ; h
    v_lshrrev_b32 v3, 4, v0
    v_and_b32 v3, 1, v3                    ; gu
    v_mul_u32_u24 v4, 12288, v3
    v_lshlrev_b32 v5, 9, v2
    v_add_u32 v4, v4, v5
    v_and_b32 v5, 15, v0
    v_lshrrev_b32 v6, 2, v5
    v_lshlrev_b32 v6, 6, v6
    v_add_u32 v4, v4, v6
    v_and_b32 v5, 3, v5
    v_lshlrev_b32 v5, 3, v5
    v_add_u32 v4, v4, v5
    s_lshr_b32 s7, s{S_RB}, 3
    s_lshl_b32 s7, s7, 11
    s_add_u32 s7, s7, {16384 + 2*STAGE}
    v_add_u32 v4, s7, v4
    v_lshlrev_b32 v5, 5, v3
    v_add_u32 v{WA0}, v4, v5               ; b=0
    v_xor_b32 v5, 32, v5
    v_add_u32 v{WA0+1}, v4, v5             ; b=1
    """)
    for m in range(6):
        P, b = m >> 1, m & 1
        for s_ in range(2):
            f = FR + (m*2+s_)*4
            a(f"ds_read_b64_tr_b16 {v(f,2)}, v{WA0+b} offset:{P*4096 + s_*1024}")
            a(f"ds_read_b64_tr_b16 {v(f+2,2)}, v{WA0+b} offset:{P*4096 + s_*1024 + 256}")
    a(f"""
    v_and_b32 v5, 15, v0
    v_cmp_eq_u32 vcc, v5, v3
    v_mov_b32 v6, 0x3f803f80
    v_mov_b32 v7, 0
    v_cndmask_b32 v{SEL}, v7, v6, vcc
    v_mov_b32 v{SEL+1}, v{SEL}
    v_mov_b32 v{SEL+2}, v{SEL}
    v_mov_b32 v{SEL+3}, v{SEL}
    """)
    for i in range(24): a(f"v_mov_b32 v{AC+i}, 0")
    srd(a, SRD_T0, SP['ws'], 16*16*1024, WS_CSP)
    a("s_waitcnt lgkmcnt(0)")
    for s_ in range(2):
        for m in range(6):
            f = FR + (m*2+s_)*4
            a(f"v_mfma_f32_16x16x32_bf16 {v(AC+4*m,4)}, {v(f,4)}, {v(SEL,4)}, {v(AC+4*m,4)}")
    a(f"""
    v_and_b32 v5, 15, v0
    v_lshlrev_b32 v1, 6, v5                ; col*64
    v_lshrrev_b32 v2, 4, v0
    v_lshlrev_b32 v2, 4, v2                ; q*16
    v_add_u32 v1, v1, v2
    s_lshl_b32 s7, s{S_CT}, 4
    s_add_u32 s7, s7, s{S_RB}
    s_lshl_b32 s33, s7, 10
    v_cmp_gt_u32 vcc, 2, v5
    s_nop 3
    """)
    for g in range(8): a(f"v_mov_b32 v{G+4*g+3}, s70")
    for e in range(24): a(f"v_mov_b32 v{G+4*(e//3)+(e%3)}, v{AC+e}")
    a("s_and_saveexec_b64 s[34:35], vcc")
    for g in range(8):
        a(f"buffer_store_dwordx4 {v(G+4*g,4)}, v1, s[{SRD_T0}:{SRD_T0+3}], s33 offen offset:{g*128} sc1")
    a("s_mov_b64 exec, s[34:35]")
    stamp(a, opts, 6)

def xnt_setup(a, opts):
    S_W = 68
    srd(a, SRD_T0, SP['ws'], WS_XT_SZ, WS_XT)
    a(f"""
    v_lshrrev_b32 v3, 4, v0              ; G
    v_and_b32 v1, 15, v0
    s_and_b32 s7, s{S_W}, 1
    s_lshl_b32 s7, s7, 4
    v_add_u32 v1, s7, v1
    v_lshlrev_b32 v1, 12, v1
    v_lshlrev_b32 v5, 4, v3
    v_add_u32 v8, v1, v5
    s_lshl_b32 s32, s{S_CT}, 17
    s_lshl_b32 s33, s{S_RB}, 8
    s_add_u32 s32, s32, s33
    s_lshr_b32 s7, s{S_W}, 1
    s_lshl_b32 s33, s7, 7
    s_add_u32 s32, s32, s33
    v_lshlrev_b32 v9, 5, v3              ; 8 G * 4B
    s_lshl_b32 s33, s7, 8                ; 64 th * 4B
    s_add_u32 s33, s33, {A_M}
    v_add_u32 v9, s33, v9
    """)

def xnt_A(a, opts):
    xnt_body(a, opts, "")
    stamp(a, opts, 8)
    stamp(a, opts, 7, real=True)
    if opts.get('ts'): a("s_waitcnt vmcnt(0)")
    stamp_flush(a, opts, 0)
    a("s_endpgm")

def xnt_body(a, opts, sc):
    S_W = 68
    for r in range(2):
        M, R_ = 16 + 16*r, 24 + 16*r
        a(f"ds_read_b128 {v(M,4)}, v9 offset:{r*128}")
        a(f"ds_read_b128 {v(M+4,4)}, v9 offset:{r*128+16}")
        a(f"ds_read_b128 {v(R_,4)}, v9 offset:{512 + r*128}")
        a(f"ds_read_b128 {v(R_+4,4)}, v9 offset:{512 + r*128+16}")
    for r in range(2):
        M, R_ = 16 + 16*r, 24 + 16*r
        U = 48 + 16*r
        X = V_SL + 4*r
        for j in range(4):
            a(f"v_lshlrev_b32 v{U+2*j}, 16, v{X+j}")
            a(f"v_and_b32 v{U+2*j+1}, 0xffff0000, v{X+j}")
        a(f"s_waitcnt lgkmcnt({4*(1-r)})")
        for j in range(4): a(f"v_pk_add_f32 {v(U+2*j,2)}, {v(U+2*j,2)}, {v(M+2*j,2)} neg_lo:[0,1] neg_hi:[0,1]")
        for j in range(4): a(f"v_cvt_pk_bf16_f32 v{U+8+j}, v{U+2*j}, v{U+2*j+1}")
        for j in range(4):
            a(f"v_lshlrev_b32 v{U+2*j}, 16, v{U+8+j}")
            a(f"v_and_b32 v{U+2*j+1}, 0xffff0000, v{U+8+j}")
        for j in range(4): a(f"v_pk_mul_f32 {v(U+2*j,2)}, {v(U+2*j,2)}, {v(R_+2*j,2)}")
        for j in range(4): a(f"v_cvt_pk_bf16_f32 v{U+8+j}, v{U+2*j}, v{U+2*j+1}")
        a(f"buffer_store_dwordx4 {v(U+8,4)}, v8, s[{SRD_T0}:{SRD_T0+3}], s32 offen offset:{r*64}{sc}")

def cs_issue(a):
    for p in range(16):
        if p*1024 < 4096:
            a(f"buffer_load_dwordx4 {v(16+4*p,4)}, v8, s[{SRD_T1}:{SRD_T1+3}], s73 offen offset:{p*1024} sc1")
        else:
            a(f"s_add_u32 s74, s73, {p*1024}")
            a(f"buffer_load_dwordx4 {v(16+4*p,4)}, v8, s[{SRD_T1}:{SRD_T1+3}], s74 offen sc1")

def cs_gather_early(a, opts, SJ):
    from kerF import lds_inc, F_DMAD, F_NON
    oth = a.label('cge'); done = a.label('cgd')
    a(f"s_cmp_lg_u32 s{SJ}, {opts.get('lgather', 3)}")
    a(f"s_cbranch_scc1 {oth}")
    srd(a, SRD_T1, SP['ws'], 16*16*1024, WS_CSP)
    a(f"""
    v_mov_b32 v1, {F_NON}
    ds_read_b64 v[152:153], v1
    v_lshlrev_b32 v8, 4, v0
    s_lshl_b32 s73, s{S_CT}, 14            ; 16 parts * 1024
    """)
    cs_issue(a)
    lds_inc(a, F_DMAD)
    a("s_waitcnt vmcnt(26)")
    a(f"s_branch {done}")
    a(f"{oth}:")
    lds_inc(a, F_DMAD)
    a("s_waitcnt vmcnt(10)")
    a(f"{done}:")
    if opts.get('tsb'): stamp(a, opts, 38)
    a("s_barrier")

def loader_tail_A(a, opts, SJ, nrem):
    l0 = a.label('l0')
    if opts.get('fused'):
        pass
    a(f"s_cmp_eq_u32 s{SJ}, {opts.get('lgather', 3)}")
    a(f"s_cbranch_scc1 {l0}")
    a("s_waitcnt vmcnt(0)")
    bar(a, opts, 7)
    if opts.get('fused'):
        a(f"s_branch {opts['lg2']}")
    else:
        stamp(a, opts, 7, real=True)
        stamp_flush(a, opts, 0)
        a("s_endpgm")
    from kerF import F_NON
    a(f"{l0}:")
    early = opts.get('lastfull', 0) and opts.get('fused')
    def issue(): cs_issue(a)
    if not early:
        srd(a, SRD_T1, SP['ws'], 16*16*1024, WS_CSP)
        a(f"""
        v_mov_b32 v1, {F_NON}
        ds_read_b64 v[152:153], v1
        v_lshlrev_b32 v8, 4, v0
        s_lshl_b32 s73, s{S_CT}, 14            ; 16 parts * 1024
        """)
        if opts.get('lgprio'): a("s_setprio 3")
        issue()
        if opts.get('xlate'):
            from kerF import lds_inc, lds_spin_eq, F_DMAD, F_XST
            lds_inc(a, F_DMAD)
            lds_spin_eq(a, F_XST, 4)
    npf = 0
    if not opts.get('nopf') and opts.get('pfmode',0) == 0:
        if opts.get('map2', 1) == 0:
            a(f"""
            s_lshr_b32 s74, s2, 3
            s_mul_i32 s74, s74, {43*1024}
            v_lshlrev_b32 v9, 7, v0
            v_add_u32 v9, s74, v9
            """)
            npf = opts.get('npf', 6); step = 8192
        else:
            a(f"""
            s_lshr_b32 s74, s2, 3
            s_mul_i32 s74, s74, {43*1024}
            s_and_b32 s75, s2, 1
            s_lshl_b32 s75, s75, 9
            s_add_u32 s74, s74, s75
            v_lshrrev_b32 v9, 2, v0
            v_lshlrev_b32 v9, 10, v9
            v_and_b32 v10, 3, v0
            v_lshlrev_b32 v10, 7, v10
            v_add_u32 v9, v9, v10
            v_add_u32 v9, s74, v9
            """)
            npf = 3; step = 16384
        srd(a, SRD_X, SP['wd'], 1409024)
        for i in range(npf):
            a(f"s_mov_b32 s74, {i*step}")
            a(f"buffer_load_dword v{84+i}, v9, s[{SRD_X}:{SRD_X+3}], s74 offen")
        if opts.get('bcode') and not opts.get('fused'):
            pc = a.label('pc')
            a(f"""
            s_getpc_b64 s[74:75]
            {pc}:
            s_add_u32 s74, s74, {opts['bcode']}-{pc}
            s_addc_u32 s75, s75, 0
            s_lshr_b32 s76, s2, 3
            s_and_b32 s76, s76, 1
            s_lshl_b32 s76, s76, 12
            v_lshlrev_b32 v9, 6, v0
            v_add_u32 v9, s76, v9
            global_load_dword v95, v9, s[74:75]
            """)
            npf += 1
    a(f"s_waitcnt vmcnt({16+npf})")
    bar(a, opts, 7)
    lp = a.label('gchk'); ok = a.label('gok')
    a(f"""
    s_setprio 3
    s_mov_b32 s75, 0
    s_waitcnt vmcnt({npf})
    s_waitcnt lgkmcnt(0)
    {lp}:
    s_mov_b64 vcc, 0
    """)
    for p in range(16):
        a(f"v_cmp_ne_u32 s[32:33], v152, v{16+4*p+3}")
        a(f"s_or_b64 vcc, vcc, s[32:33]")
    a(f"""
    s_add_u32 s75, s75, 1
    s_cmp_eq_u64 vcc, 0
    s_cbranch_scc1 {ok}
    s_cmp_gt_u32 s75, {0 if opts.get('hk',0) else 100000}
    s_cbranch_scc1 {ok}
    """)
    issue()
    a("s_waitcnt vmcnt(0)")
    a(f"s_branch {lp}")
    a(f"{ok}:")
    stamp(a, opts, 5)
    for st in (8, 4, 2, 1):
        for p in range(st):
            for i in range(3):
                a(f"v_add_f32 v{16+4*p+i}, v{16+4*p+i}, v{16+4*(p+st)+i}")
    a(f"""
    v_lshrrev_b32 v1, 3, v0              ; g
    v_mul_u32_u24 v1, 3, v1              ; 3g
    v_bfe_u32 v2, v0, 2, 1               ; col
    v_lshlrev_b32 v2, 4, v2
    v_and_b32 v3, 3, v0                  ; q
    v_lshlrev_b32 v3, 2, v3
    v_add_u32 v2, v2, v3                 ; col*16 + 4q
    """)
    for k in range(3):
        a(f"""
        v_add_u32 v4, {k}, v1
        v_lshrrev_b32 v5, 2, v4
        v_lshlrev_b32 v5, 5, v5
        v_and_b32 v4, 3, v4
        v_add_u32 v4, v4, v5
        v_add_u32 v4, v4, v2
        v_lshlrev_b32 v4, 2, v4
        v_add_u32 v4, {A_CS}, v4
        ds_write_b32 v4, v{16+k}
        """)
    a("s_waitcnt lgkmcnt(0)")
    stamp(a, opts, 6)
    if opts.get('fused'):
        from kerF import F_CSR, lds_set
        lds_set(a, F_CSR)
        a("s_setprio 0")
        return
    bar(a, opts, 8)
    stamp(a, opts, 7, real=True)
    stamp_flush(a, opts, 0)
    a("s_endpgm")
```

```python
from core import *
import struct
def f2u(x): return struct.unpack('<I', struct.pack('<f', x))[0]
def hx(x): return hex(f2u(x))
STAGE = 40960
A_KT = 3*STAGE
DEPTH = 4
CT_U, CT_V0, CT_V1, CT_SZ = 0, 4608, 4608+4160, 4608+4160+4160
F_CT = 0
F_EX = F_CT + 2*CT_SZ
F_WR = F_EX + 4*4096
F_YT = F_WR + 4*DEPTH*2048
F_P  = F_YT + 10240
PROW = 272
F_SY = 158528
F_NON, F_CNTH, F_CNTX, F_HRDY, F_KRDY, F_URDY, F_XFL, F_ORD = F_SY, F_SY+8, F_SY+12, F_SY+16, F_SY+20, F_SY+28, F_SY+36, F_SY+52
F_CSR, F_GDN, F_PRDY, F_DMAD, F_XST = F_SY+56, F_SY+60, F_SY+64, F_SY+72, F_SY+76
F_LDS = F_SY + 128
S_WAVE, S_RB, S_CT = 3, 4, 5
S_RT, S_C2, S_WP = 78, 79, 80
SRD_WS, SRD_WD, SRD_O = 8, 12, 16
V_XT, V_NON, V_OFF = 160, 164, 166
SPIN = 200000

MAP2 = [1]
def map_tile(a, srt, sc2):
    if MAP2[0] == 0:
        a(f"""
        s_and_b32 s7, s2, 7
        s_lshr_b32 s33, s2, 3
        s_lshl_b32 s7, s7, 2
        s_and_b32 s{sc2}, s33, 3
        s_add_u32 s{srt}, s7, s{sc2}
        s_lshr_b32 s{sc2}, s33, 2
        """)
    else:
        a(f"""
        s_and_b32 s7, s2, 7
        s_lshr_b32 s33, s2, 3
        s_lshr_b32 s{srt}, s7, 1
        s_lshl_b32 s{srt}, s{srt}, 3
        s_and_b32 s{sc2}, s33, 7
        s_add_u32 s{srt}, s{srt}, s{sc2}
        s_and_b32 s7, s7, 1
        s_lshl_b32 s7, s7, 2
        s_lshr_b32 s{sc2}, s33, 3
        s_add_u32 s{sc2}, s{sc2}, s7
        """)
def map_B(a):
    map_tile(a, S_RT, S_C2)
    a(f"""
    s_and_b32 s32, s{S_WP}, 3
    s_lshl_b32 s32, s32, 4
    s_lshl_b32 s33, s{S_RT}, 6
    s_add_u32 s32, s32, s33               ; 64 rt + 16 (w&3)
    v_and_b32 v2, 15, v0
    v_add_u32 v2, s32, v2
    v_lshlrev_b32 v2, 10, v2              ; row*1024
    s_lshr_b32 s32, s{S_WP}, 2
    s_lshl_b32 s32, s32, 6
    s_lshl_b32 s33, s{S_C2}, 7
    s_add_u32 s32, s32, s33
    v_lshrrev_b32 v3, 4, v0
    v_lshlrev_b32 v3, 4, v3
    v_add_u32 v2, v2, v3
    v_add_u32 v{V_OFF}, s32, v2
    """)

def lds_count_last(a, addr, n, lab_skip):
    a(f"""
    v_mov_b32 v1, {addr}
    v_mov_b32 v2, 1
    s_mov_b64 exec, 1
    ds_add_rtn_u32 v3, v1, v2
    s_mov_b64 exec, -1
    s_waitcnt lgkmcnt(0)
    v_readfirstlane_b32 s7, v3
    s_cmp_lg_u32 s7, {n-1}
    s_cbranch_scc1 {lab_skip}
    """)
def lds_set(a, addr_expr_sgpr_or_int):
    if isinstance(addr_expr_sgpr_or_int, int): a(f"v_mov_b32 v1, {addr_expr_sgpr_or_int}")
    else: a(f"v_mov_b32 v1, {addr_expr_sgpr_or_int}")
    a("v_mov_b32 v2, 1")
    a("ds_write_b32 v1, v2")
def lds_spin(a, addrs):
    lp = a.label('spin')
    for i, ad in enumerate(addrs): a(f"v_mov_b32 v{1+i}, {ad}")
    a("s_mov_b32 s99, 0")
    a(f"{lp}:")
    for i in range(len(addrs)): a(f"ds_read_b32 v{3+i}, v{1+i}")
    a("s_add_u32 s99, s99, 1")
    a("s_waitcnt lgkmcnt(0)")
    if len(addrs) == 2: a("v_min_u32 v3, v3, v4"); a("s_nop 0")
    a(f"""
    v_readfirstlane_b32 s24, v3
    s_cmp_gt_u32 s99, {5*SPIN}
    s_cselect_b32 s24, 1, s24
    s_cmp_eq_u32 s24, 0
    s_cbranch_scc1 {lp}
    """)
def lds_inc(a, addr):
    a(f"""
    v_mov_b32 v1, {addr}
    v_mov_b32 v2, 1
    s_mov_b64 exec, 1
    ds_add_u32 v1, v2
    s_mov_b64 exec, -1
    """)
def lds_spin_eq(a, addr, val):
    lp = a.label('spinq')
    a(f"""
    v_mov_b32 v1, {addr}
    s_mov_b32 s99, 0
    {lp}:
    ds_read_b32 v3, v1
    s_add_u32 s99, s99, 1
    s_waitcnt lgkmcnt(0)
    v_readfirstlane_b32 s7, v3
    s_cmp_gt_u32 s99, {5*SPIN}
    s_cselect_b32 s7, {val}, s7
    s_cmp_lg_u32 s7, {val}
    s_cbranch_scc1 {lp}
    """)
def flag_store(a, base, idx_sgpr):
    a(f"""
    s_lshl_b32 s7, {idx_sgpr}, 7
    s_add_u32 s7, s7, {base}
    v_mov_b32 v1, s7
    s_mov_b64 exec, 1
    global_store_dwordx2 v1, v[{V_NON}:{V_NON+1}], s[{SP['ws']}:{SP['ws']+1}] sc1
    s_mov_b64 exec, -1
    """)
def flag_poll(a, vaddr, vdst, nosleep=False):
    lp = a.label('poll'); ok = a.label('pok')
    a(f"""
    s_mov_b32 s99, 0
    {lp}:
    global_load_dwordx2 v[{vdst}:{vdst+1}], v{vaddr}, s[{SP['ws']}:{SP['ws']+1}] sc1
    s_add_u32 s99, s99, 1
    s_waitcnt vmcnt(0)
    v_cmp_ne_u32 vcc, v{V_NON}, v{vdst}
    v_cmp_ne_u32 s[30:31], v{V_NON+1}, v{vdst+1}
    s_or_b64 vcc, vcc, s[30:31]
    s_cmp_eq_u64 vcc, 0
    s_cbranch_scc1 {ok}
    s_cmp_gt_u32 s99, {SPIN}
    s_cbranch_scc1 {ok}
    {"s_nop 0" if nosleep else "s_sleep 1"}
    s_branch {lp}
    {ok}:
    """)


def touch_group(a, sg, srt, sc2, vdst):
    a(f"""
    s_cmp_eq_u32 s{sg}, 3
    s_cselect_b32 s30, 14, 24
    s_lshl_b32 s31, s30, 1
    s_mul_i32 s33, s{sc2}, s31
    v_add_u32 v1, s33, v0
    s_lshl_b32 s33, s30, 3
    v_cmp_le_u32 vcc, s33, v1
    v_mov_b32 v2, s33
    v_mov_b32 v3, 0
    v_cndmask_b32 v2, v3, v2, vcc
    v_sub_u32 v1, v1, v2
    v_mov_b32 v2, {86*1024}
    v_cndmask_b32 v2, v3, v2, vcc
    v_lshlrev_b32 v1, 7, v1
    v_add_u32 v1, v1, v2
    s_mul_i32 s33, s{srt}, {2*86*1024}
    s_mul_i32 s7, s{sg}, {24*1024}
    s_add_u32 s33, s33, s7
    s_add_u32 s33, s33, {WS_H}
    v_add_u32 v1, s33, v1
    v_cmp_gt_u32 vcc, s31, v0
    s_and_saveexec_b64 s[30:31], vcc
    global_load_dword v{vdst}, v1, s[{SP['ws']}:{SP['ws']+1}] sc1
    s_mov_b64 exec, s[30:31]
    """)

def gpub_F(a, opts):
    nf = a.label('nfh'); end = a.label('gpe')
    a(f"""
    v_mov_b32 v1, {F_NON}
    ds_read_b64 v[{V_NON}:{V_NON+1}], v1
    s_waitcnt vmcnt(0) lgkmcnt(0)
    """)
    stamp(a, opts, 14)
    stamp(a, opts, 40, real=True)
    lds_count_last(a, F_CNTH, 4, nf)
    a(f"s_lshl_b32 s30, s{S_RB}, 4")
    a(f"s_add_u32 s30, s30, s{S_CT}")
    flag_store(a, WS_FLAGH, "s30")
    a(f"{nf}:")
    a(f"s_cmp_lg_u32 s{S_WAVE}, 0")
    a(f"s_cbranch_scc1 {end}")
    map_tile(a, 34, 35)
    a(f"""
    s_lshr_b32 s7, s34, 1
    s_lshl_b32 s7, s7, 4
    v_min_u32 v2, 14, v0
    v_add_u32 v2, s7, v2
    v_lshlrev_b32 v2, 7, v2
    v_add_u32 v2, {WS_FLAGH}, v2
    """)
    flag_poll(a, 2, 4)
    if opts.get('touch'):
        a(f"""
        s_and_b32 s7, s2, 7
        s_lshl_b32 s7, s7, 2
        s_lshr_b32 s33, s2, 3
        s_and_b32 s34, s33, 3
        s_add_u32 s34, s7, s34
        s_lshr_b32 s35, s33, 2
        """)
        for g in range(4):
            a(f"s_mov_b32 s86, {g}")
            touch_group(a, 86, 34, 35, 8+g)
    lds_set(a, F_HRDY)
    a("s_waitcnt lgkmcnt(0)")
    a(f"{end}:")
    stamp(a, opts, 15)
    stamp(a, opts, 7, real=True)
    if opts.get('ts'): a("s_waitcnt vmcnt(0)")
    stamp_flush(a, opts, 0)
    a("s_endpgm")

def gemm2_F(a, opts):
    D = DEPTH
    ACC, HF, WF, YG = 16, 80, 112, 128
    VH0, VH1, VWD, VA0, VA1, VY = 8, 9, 10, 11, 13, 12
    S_N, S_OFF, S_RING, S_WC = 81, 27, 28, 29
    S_GB, S_GL, S_STEP, S_CNT, S_ROT, S_GD = 70, 74, 82, 83, 84, 85
    def acc(m, n): return ACC + (m*2+n)*16
    def hf(st, n): return HF + st*8 + n*4
    def wf(st, m): return WF + st*8 + m*4
    vm = VmTrack(a)
    a(f"s_mov_b32 s{S_WP}, s68")
    srd(a, SRD_WD, SP['wd'], 1409024)
    if opts.get('pfmode',0) == 1:
        npf = a.label('nopf')
        a(f"s_cmp_lg_u32 s{S_WP}, 1")
        a(f"s_cbranch_scc1 {npf}")
        if opts.get('pfwait'): lds_spin(a, [F_URDY, F_URDY+4])
        a(f"""
        s_lshr_b32 s30, s2, 3
        s_mul_i32 s30, s30, {43*1024}
        v_lshlrev_b32 v1, 7, v0
        v_add_u32 v1, s30, v1
        """)
        for i in range(6):
            a(f"s_mov_b32 s30, {i*8192}")
            a(f"buffer_load_dword v{144+i}, v1, s[{SRD_WD}:{SRD_WD+3}], s30 offen")
        a(f"{npf}:")
    map_B(a)
    a(f"""
    s_mov_b32 s{S_N}, 22
    s_cmp_ge_u32 s{S_WP}, 2
    s_cselect_b32 s{S_N}, 21, s{S_N}
    v_lshlrev_b32 v1, 4, v0
    s_mul_i32 s7, s{S_RT}, {2*86*1024}
    s_add_u32 s7, s7, {WS_H}
    v_add_u32 v{VH0}, s7, v1
    v_add_u32 v{VH1}, {86*1024}, v{VH0}
    v_lshrrev_b32 v2, 3, v0
    v_lshlrev_b32 v2, 10, v2
    v_and_b32 v3, 7, v0
    v_bfe_u32 v4, v0, 4, 1
    v_lshlrev_b32 v4, 2, v4
    v_xor_b32 v3, v3, v4
    v_lshlrev_b32 v3, 4, v3
    v_add_u32 v{VWD}, v2, v3
    s_lshl_b32 s{S_WC}, s{S_C2}, 7
    s_mul_i32 s{S_RING}, s{S_WP}, {D*2048}
    s_add_u32 s{S_RING}, s{S_RING}, {F_WR}
    v_lshrrev_b32 v2, 5, v0
    v_lshlrev_b32 v2, 2, v2                 ; 4h
    v_bfe_u32 v3, v0, 2, 2                  ; r'
    v_add_u32 v2, v2, v3
    v_lshlrev_b32 v2, 7, v2
    v_lshrrev_b32 v3, 1, v3
    v_lshlrev_b32 v3, 6, v3
    v_add_u32 v2, v2, v3
    v_bfe_u32 v3, v0, 4, 1
    v_lshlrev_b32 v3, 5, v3
    v_add_u32 v2, v2, v3
    v_and_b32 v3, 3, v0
    v_lshlrev_b32 v3, 3, v3
    v_add_u32 v2, v2, v3
    v_add_u32 v{VA0}, s{S_RING}, v2
    v_xor_b32 v2, 64, v2
    v_add_u32 v{VA1}, s{S_RING}, v2
    v_lshrrev_b32 v2, 4, v0
    s_lshl_b32 s7, s{S_WP}, 4
    s_lshl_b32 s30, s{S_C2}, 6
    s_add_u32 s7, s7, s30                  ; 64 ct + 16 w
    v_add_u32 v2, s7, v2
    v_lshlrev_b32 v2, 13, v2               ; ch*8192
    v_and_b32 v3, 15, v0
    v_lshlrev_b32 v3, 4, v3
    v_add_u32 v2, v2, v3
    s_lshl_b32 s7, s{S_RT}, 8
    s_add_u32 s7, s7, {WS_Y}
    v_add_u32 v{VY}, s7, v2                ; y address
    v_mov_b32 v1, {F_NON}
    ds_read_b64 v[{V_NON}:{V_NON+1}], v1
    """)
    srd(a, SRD_WS, SP['ws'], 19*MB)
    srd(a, SRD_WD, SP['wd'], 1409024)
    for i in range(64): a(f"v_mov_b32 v{ACC+i}, 0")
    a("s_waitcnt lgkmcnt(0)")
    stamp(a, opts, 14)
    a(f"""
    s_mov_b32 s24, {0 | (1 << 2) | (3 << 4) | (2 << 6)}
    s_mov_b32 s25, {1 | (0 << 2) | (2 << 4) | (3 << 6)}
    s_bitcmp1_b32 s{S_C2}, 0
    s_cselect_b32 s24, s25, s24
    """)
    a(f"""
    s_mul_i32 s30, s{S_WP}, 6
    s_lshl_b32 s31, s{S_WP}, 2
    s_cmp_eq_u32 s{S_WP}, 3
    s_cselect_b32 s31, 11, s31
    s_cmp_ge_u32 s{S_WP}, 2
    s_cselect_b32 s32, 3, 4
    """)
    for k in range(4):
        a(f"""
        s_lshr_b32 s7, s24, {2*k}
        s_and_b32 s7, s7, 3
        s_mul_i32 s33, s7, 24
        s_cmp_eq_u32 s7, 3
        s_cselect_b32 s25, s31, s30
        s_add_u32 s{S_GB+k}, s33, s25
        s_cselect_b32 s{S_GL+k}, s32, 6
        """.replace("        s_add_u32 s%d, s33, s25\n        s_cselect_b32" % (S_GB+k), "        s_add_u32 s%d, s33, s25\n        s_cmp_eq_u32 s7, 3\n        s_cselect_b32" % (S_GB+k)))
    S_OW, S_OH, S_REM = 82, 83, 84
    S_OE, S_RO = 88, 94
    def load_group():
        a(f"""
        s_lshr_b32 s7, s{S_GL}, 1
        s_bitcmp1_b32 s{S_C2}, 1
        s_cselect_b32 s{S_RO}, s7, 0
        s_add_u32 s7, s{S_GB}, s{S_RO}
        s_lshl_b32 s{S_OW}, s7, 14
        s_add_u32 s{S_OW}, s{S_OW}, s{S_WC}
        s_lshl_b32 s{S_OH}, s7, 10
        s_add_u32 s7, s{S_GB}, s{S_GL}
        s_lshl_b32 s{S_OE}, s7, 10
        s_mov_b32 s{S_REM}, s{S_GL}
        """)
    a(f"s_mov_b32 s{S_GD}, 0")
    load_group()
    lds_spin_eq(a, F_GDN, 4)
    a(f"s_setprio {opts.get('gprio', 1)}")
    def advance(pos):
        adv = a.label('noadv'); nw = a.label('nowrap')
        a(f"""
        s_add_u32 s{S_OW}, s{S_OW}, 16384
        s_add_u32 s{S_OH}, s{S_OH}, 1024
        s_cmp_lg_u32 s{S_OH}, s{S_OE}
        s_cbranch_scc1 {nw}
        s_lshl_b32 s7, s{S_GL}, 14
        s_sub_u32 s{S_OW}, s{S_OW}, s7
        s_lshl_b32 s7, s{S_GL}, 10
        s_sub_u32 s{S_OH}, s{S_OH}, s7
        {nw}:
        s_sub_u32 s{S_REM}, s{S_REM}, 1
        s_cmp_lg_u32 s{S_REM}, 0
        s_cbranch_scc1 {adv}
        s_mov_b32 s{S_GB}, s{S_GB+1}
        s_mov_b32 s{S_GB+1}, s{S_GB+2}
        s_mov_b32 s{S_GB+2}, s{S_GB+3}
        s_mov_b32 s{S_GL}, s{S_GL+1}
        s_mov_b32 s{S_GL+1}, s{S_GL+2}
        s_mov_b32 s{S_GL+2}, s{S_GL+3}
        s_add_u32 s{S_GD}, s{S_GD}, 1
        """)
        load_group()
        if pos + 1 in (9, 10, 12):
            a(f"s_cmp_lg_u32 s{S_GD}, 2")
            a(f"s_cbranch_scc1 {adv}")
            lds_spin(a, [F_HRDY])
        a(f"{adv}:")
    def ops(st, step):
        g = []
        g.append((f"s_add_u32 m0, s{S_RING}, {st*2048}\ns_add_u32 s31, s{S_OW}, 8192\nbuffer_load_dwordx4 v{VWD}, s[{SRD_WD}:{SRD_WD+3}], s{S_OW} offen lds"))
        g.append((f"buffer_load_dwordx4 {v(hf(st,0),4)}, v{VH0}, s[{SRD_WS}:{SRD_WS+3}], s{S_OH} offen sc1"))
        g.append((f"s_add_u32 m0, s{S_RING}, {st*2048+1024}\ns_nop 0\nbuffer_load_dwordx4 v{VWD}, s[{SRD_WD}:{SRD_WD+3}], s31 offen lds"))
        g.append((f"buffer_load_dwordx4 {v(hf(st,1),4)}, v{VH1}, s[{SRD_WS}:{SRD_WS+3}], s{S_OH} offen sc1"))
        return g
    S_PH = 95
    for st in range(D):
        g = ops(st, st)
        a(g[0]); vm.op(('w', st)); a(g[2]); vm.op(('w', st))
        a(f"s_mov_b32 s{S_PH+st}, s{S_OH}")
        advance(st)
    oth = a.label('hoth'); go = a.label('hgo'); lp = a.label('opoll'); ok = a.label('ook')
    a(f"s_cmp_lg_u32 s{S_WP}, 0")
    a(f"s_cbranch_scc1 {oth}")
    a(f"""
    v_min_u32 v2, {7 if opts.get('gfirst', 3) == 3 else 14}, v0
    s_lshr_b32 s7, s{S_RT}, 1
    s_lshl_b32 s7, s7, 4
    v_add_u32 v2, s7, v2
    v_lshlrev_b32 v2, 7, v2
    v_add_u32 v2, {WS_FLAGH}, v2
    """)
    flag_poll(a, 2, 4, nosleep=True)
    lds_set(a, F_ORD)
    a(f"s_branch {go}")
    a(f"{oth}:")
    lds_spin(a, [F_ORD])
    a(f"{go}:")
    stamp(a, opts, 15)
    stamp(a, opts, 41, real=True)
    a("s_waitcnt vmcnt(0)")
    vm.ops = []
    for st in range(D):
        a(f"buffer_load_dwordx4 {v(hf(st,0),4)}, v{VH0}, s[{SRD_WS}:{SRD_WS+3}], s{S_PH+st} offen sc1"); vm.op(('s', st))
        a(f"buffer_load_dwordx4 {v(hf(st,1),4)}, v{VH1}, s[{SRD_WS}:{SRD_WS+3}], s{S_PH+st} offen sc1"); vm.op(('s', st))
    def wreads(i):
        st, ws_ = i % D, i & 1
        for m, va in ((0, VA0), (1, VA1)):
            a(f"ds_read_b64_tr_b16 {v(wf(ws_,m),2)}, v{va} offset:{st*2048}")
            a(f"ds_read_b64_tr_b16 {v(wf(ws_,m)+2,2)}, v{va} offset:{st*2048+1024}")
    def yissue(first=False):
        if first:
            a(f"global_load_dwordx4 {v(V_XT,4)}, v{V_OFF}, s[{SP['x']}:{SP['x']+1}]"); vm.op('x')
        for i in range(4):
            if i == 0: a(f"buffer_load_dwordx4 {v(YG,4)}, v{VY}, s[{SRD_WS}:{SRD_WS+3}], 0 offen sc1")
            else:
                a(f"s_mov_b32 s{S_OFF}, {i*4*8192}")
                a(f"buffer_load_dwordx4 {v(YG+4*i,4)}, v{VY}, s[{SRD_WS}:{SRD_WS+3}], s{S_OFF} offen sc1")
            vm.op('y')
    NS = 22
    vm.wait(('s', 0))
    wreads(0)
    lskip = a.label('gskip')
    for i in range(NS):
        st = i % D
        if i == NS - 1:
            a(f"s_cmp_eq_u32 s{S_N}, 21")
            a(f"s_cbranch_scc1 {lskip}")
        if i + 1 < NS:
            vm.wait(('s', i+1), ' lgkmcnt(0)')
            wreads(i+1)
        else:
            a("s_waitcnt lgkmcnt(0)")
        if opts.get('tsg2') and i % 4 == 0: stamp(a, opts, 48 + i//4)
        nx = ops(st, i+D) if i + D < NS else [None]*4
        for k, (m, n_) in enumerate(((0,0),(1,0),(0,1),(1,1))):
            if opts.get('fake16'):
                A_ = acc(m,n_)
                a(f"v_mfma_f32_16x16x32_bf16 {v(A_,4)}, {v(wf(i&1,m),4)}, {v(hf(st,n_),4)}, {v(A_,4)}")
                a(f"v_mfma_f32_16x16x32_bf16 {v(A_+8,4)}, {v(hf(st,n_),4)}, {v(wf(i&1,m),4)}, {v(A_+8,4)}")
            else:
                a(f"v_mfma_f32_32x32x16_bf16 {v(acc(m,n_),16)}, {v(wf(i&1,m),4)}, {v(hf(st,n_),4)}, {v(acc(m,n_),16)}")
            kk = (0, 1, 2, 3)[k]
            if nx[kk] is not None:
                a(nx[kk]); vm.op(('s', i+D))
        if i + D < NS: advance(i+D)
        if i + D == NS: yissue(True)
    a(f"{lskip}:")
    stamp(a, opts, 16+8)
    stamp(a, opts, 42, real=True)
    a(f"""
    v_and_b32 v1, 31, v0
    v_mul_u32_u24 v1, {PROW}, v1
    v_lshrrev_b32 v2, 5, v0
    v_lshlrev_b32 v2, 4, v2
    v_add_u32 v1, v1, v2
    s_mul_i32 s7, s{S_WP}, {64*PROW}
    s_add_u32 s7, s7, {F_P}
    v_add_u32 v1, s7, v1
    v_lshrrev_b32 v2, 4, v0
    s_lshl_b32 s7, s{S_WP}, 4
    v_add_u32 v2, s7, v2
    v_mul_u32_u24 v2, 160, v2
    v_and_b32 v3, 15, v0
    v_lshlrev_b32 v3, 3, v3
    v_add_u32 v2, v2, v3
    v_add_u32 v2, {F_YT}, v2
    """)
    for m in range(2):
        for n_ in range(2):
            for g in range(4):
                a(f"ds_write_b128 v1, {v(acc(m,n_)+4*g,4)} offset:{n_*32*PROW + m*128 + g*32}")
    lp = a.label('ychk'); ok = a.label('yok')
    a(f"""
    s_mov_b32 s28, 0
    {lp}:
    s_waitcnt vmcnt(0)
    v_cmp_ne_u32 vcc, v{V_NON}, v{YG+2}
    """)
    for i in range(1, 4):
        a(f"v_cmp_ne_u32 s[30:31], v{V_NON}, v{YG+4*i+2}"); a("s_or_b64 vcc, vcc, s[30:31]")
    for i in range(4):
        a(f"v_cmp_ne_u32 s[30:31], v{V_NON+1}, v{YG+4*i+3}"); a("s_or_b64 vcc, vcc, s[30:31]")
    a(f"""
    s_add_u32 s28, s28, 1
    s_cmp_eq_u64 vcc, 0
    s_cbranch_scc1 {ok}
    s_cmp_gt_u32 s28, {0 if opts.get('noconv') else SPIN}
    s_cbranch_scc1 {ok}
    """)
    yissue()
    a(f"s_branch {lp}")
    a(f"{ok}:")
    stamp(a, opts, 16+9)
    for i in range(4):
        a(f"ds_write_b64 v2, {v(YG+4*i,2)} offset:{i*4*160}")
    a(f"s_branch {opts['lfinal']}")


S_SL = 87
def xnt_flag(a, opts):
    nf = a.label('nfx')
    a("s_waitcnt vmcnt(0)")
    stamp(a, opts, 14)
    stamp(a, opts, 40, real=True)
    lds_count_last(a, F_CNTX, 4, nf)
    a(f"s_lshl_b32 s30, s{S_RB}, 4")
    a(f"s_add_u32 s30, s30, s{S_SL}")
    flag_store(a, WS_FLAGX, "s30")
    a(f"{nf}:")

def helper_F(a, opts):
    import kerA_help as H
    from kerA_help import kgen, grab, nonce_check, colsum_A, A_PUB, A_STATS, A_M, V_SL
    S_W, S_TB, S_ROT = 68, 69, 6
    SRD_T0, SRD_T1 = 20, 24
    ACC = 80
    a(f"""
    s_lshr_b32 s7, s{S_CT}, 3
    s_add_u32 s7, s7, s{S_ROT}
    s_and_b32 s7, s7, 7
    s_lshl_b32 s7, s7, 1
    s_bfe_u32 s33, s{S_CT}, 0x10002
    s_add_u32 s{S_SL}, s7, s33
    """)
    seg0, seg1, seg2 = kgen(a, opts)
    lab = {k: a.label('h'+k) for k in ('0','nf','rest','even','g1','g2')}
    a(f"""
    s_cmp_lg_u32 s{S_W}, 1
    s_cbranch_scc1 {lab['0']}
    global_load_dwordx2 v[152:153], v150, s[{SP['dbg']}:{SP['dbg']+1}] sc1
    {lab['0']}:
    s_setprio 0
    """)
    stamp(a, opts, 3)
    bar(a, opts, 0)
    stamp(a, opts, 4)
    grab(a, opts, 0)
    a("s_setprio 2")
    seg0()
    a("s_setprio 0")
    a(f"""
    s_cmp_lg_u32 s{S_W}, 1
    s_cbranch_scc1 {lab['nf']}
    v_lshlrev_b32 v1, 2, v0
    v_add_u32 v1, {A_PUB}, v1
    ds_read_b32 v4, v1
    s_waitcnt vmcnt(0)
    """)
    nonce_check(a, 152)
    srd(a, SRD_T1, SP['ws'], 2048*8, WS_STAT)
    a(f"""
    s_lshl_b32 s32, s{S_RB}, 4
    s_add_u32 s32, s32, s{S_CT}
    s_lshl_b32 s32, s32, 6
    v_lshlrev_b32 v1, 3, v0
    v_mov_b32 v5, s70
    s_waitcnt lgkmcnt(0)
    s_mov_b64 exec, 0xff
    s_setprio 3
    buffer_store_dwordx2 v[4:5], v1, s[{SRD_T1}:{SRD_T1+3}], s32 offen sc1
    s_setprio 0
    s_mov_b64 exec, 1
    v_mov_b32 v1, {F_NON}
    ds_write_b64 v1, v[152:153]
    s_mov_b64 exec, -1
    s_waitcnt lgkmcnt(0)
    {lab['nf']}:
    """)
    bar(a, opts, 1)
    grab(a, opts, 1)
    a("s_setprio 2")
    seg1()
    a("s_setprio 0")
    a("s_waitcnt lgkmcnt(0)")
    bar(a, opts, 2)
    a("s_setprio 2")
    seg2()
    a(f"s_cmp_lg_u32 s{S_W}, 1")
    a(f"s_cbranch_scc1 {lab['rest']}")
    colsum_A(a, opts)
    a(f"{lab['rest']}:")
    a("s_setprio 0")
    bar(a, opts, 3)
    srd(a, SRD_T1, SP['ws'], 2048*8, WS_STAT)
    a(f"""
    v_mov_b32 v1, {F_NON}
    ds_read_b64 v[{V_NON}:{V_NON+1}], v1
    v_lshlrev_b32 v8, 4, v0
    s_lshl_b32 s72, s{S_RB}, 10            ; 128 rows * 8 B
    s_cmp_lg_u32 s{S_W}, 0
    s_cbranch_scc1 {lab['g1']}
    s_setprio 3
    buffer_load_dwordx4 v[12:15], v8, s[{SRD_T1}:{SRD_T1+3}], s72 offen sc1
    s_setprio 0
    {lab['g1']}:
    s_waitcnt lgkmcnt(0)
    """)
    bar(a, opts, 4)
    lp = a.label('schk'); ok = a.label('sok')
    a(f"""
    s_cmp_lg_u32 s{S_W}, 0
    s_cbranch_scc1 {lab['g2']}
    s_mov_b32 s75, 0
    {lp}:
    s_waitcnt vmcnt(0)
    v_cmp_ne_u32 vcc, v{V_NON}, v13
    v_cmp_ne_u32 s[32:33], v{V_NON}, v15
    s_or_b64 vcc, vcc, s[32:33]
    s_add_u32 s75, s75, 1
    s_cmp_eq_u64 vcc, 0
    s_cbranch_scc1 {ok}
    s_cmp_gt_u32 s75, {SPIN}
    s_cbranch_scc1 {ok}
    buffer_load_dwordx4 v[12:15], v8, s[{SRD_T1}:{SRD_T1+3}], s72 offen sc1
    s_branch {lp}
    {ok}:
    v_lshlrev_b32 v4, 16, v12
    v_and_b32 v5, 0xffff0000, v12
    v_lshlrev_b32 v6, 16, v14
    v_and_b32 v7, 0xffff0000, v14
    v_lshlrev_b32 v1, 4, v0
    v_add_u32 v1, {A_STATS}, v1
    ds_write_b128 v1, v[4:7]
    v_rcp_f32 v10, v5
    v_rcp_f32 v11, v7
    v_mov_b32 v5, v6
    v_lshlrev_b32 v1, 3, v0
    v_add_u32 v1, {A_M}, v1
    ds_write_b64 v1, v[4:5]
    ds_write_b64 v1, v[10:11] offset:512
    s_waitcnt lgkmcnt(0)
    {lab['g2']}:
    """)
    stamp(a, opts, 5)
    bar(a, opts, 5)
    srd(a, SRD_T0, SP['ws'], WS_XT_SZ, WS_XT)
    a(f"""
    v_lshrrev_b32 v3, 4, v0              ; G
    v_and_b32 v1, 15, v0
    s_and_b32 s7, s{S_W}, 1
    s_lshl_b32 s7, s7, 4
    v_add_u32 v1, s7, v1
    v_lshlrev_b32 v1, 12, v1
    v_lshlrev_b32 v5, 4, v3
    v_add_u32 v8, v1, v5
    s_lshl_b32 s32, s{S_SL}, 17
    s_lshl_b32 s33, s{S_RB}, 8
    s_add_u32 s32, s32, s33
    s_lshr_b32 s7, s{S_W}, 1
    s_lshl_b32 s33, s7, 7
    s_add_u32 s32, s32, s33
    v_lshlrev_b32 v9, 5, v3
    s_lshl_b32 s33, s7, 8
    s_add_u32 s33, s33, {A_M}
    v_add_u32 v9, s33, v9
    """)
    for r in range(2):
        M, R_ = 16 + 16*r, 24 + 16*r
        a(f"ds_read_b128 {v(M,4)}, v9 offset:{r*128}")
        a(f"ds_read_b128 {v(M+4,4)}, v9 offset:{r*128+16}")
        a(f"ds_read_b128 {v(R_,4)}, v9 offset:{512 + r*128}")
        a(f"ds_read_b128 {v(R_+4,4)}, v9 offset:{512 + r*128+16}")
    for r in range(2):
        M, R_ = 16 + 16*r, 24 + 16*r
        U = 48 + 12*r
        X = V_SL + 4*r
        for j in range(4):
            a(f"v_lshlrev_b32 v{U+2*j}, 16, v{X+j}")
            a(f"v_and_b32 v{U+2*j+1}, 0xffff0000, v{X+j}")
        a(f"s_waitcnt lgkmcnt({4*(1-r)})")
        for j in range(8): a(f"v_sub_f32 v{U+j}, v{U+j}, v{M+j}")
        for j in range(4): a(f"v_cvt_pk_bf16_f32 v{U+8+j}, v{U+2*j}, v{U+2*j+1}")
        for j in range(4):
            a(f"v_lshlrev_b32 v{U+2*j}, 16, v{U+8+j}")
            a(f"v_and_b32 v{U+2*j+1}, 0xffff0000, v{U+8+j}")
        for j in range(8): a(f"v_mul_f32 v{U+j}, v{U+j}, v{R_+j}")
        for j in range(4): a(f"v_cvt_pk_bf16_f32 v{U+8+j}, v{U+2*j}, v{U+2*j+1}")
        if not opts.get('lastfull', 0) and not opts.get('xlate'):
            a("s_setprio 3")
            a(f"buffer_store_dwordx4 {v(U+8,4)}, v8, s[{SRD_T0}:{SRD_T0+3}], s32 offen offset:{r*64} sc1")
            a("s_setprio 0")
    if opts.get('lastfull', 0):
        lds_spin_eq(a, F_DMAD, 4)
        a("s_setprio 3")
        for r in range(2):
            a(f"buffer_store_dwordx4 {v(48+12*r+8,4)}, v8, s[{SRD_T0}:{SRD_T0+3}], s32 offen offset:{r*64} sc1")
        a("s_setprio 0")
    bar(a, opts, 6)
    if opts.get('xlate'):
        lds_spin_eq(a, F_DMAD, 1)
        a("s_setprio 3")
        for r in range(2):
            a(f"buffer_store_dwordx4 {v(48+12*r+8,4)}, v8, s[{SRD_T0}:{SRD_T0+3}], s32 offen offset:{r*64} sc1")
        a("s_setprio 0")
        lds_inc(a, F_XST)
    bar(a, opts, 7)
    if not opts.get('xlate'): xnt_flag(a, opts)
    a(f"""
    s_and_b32 s7, s{S_W}, 1
    s_cmp_eq_u32 s7, 0
    s_cbranch_scc1 {lab['even']}
    v_lshlrev_b32 v1, 4, v0
    v_add_u32 v1, s{S_TB}, v1
    """)
    for T in range(8):
        a(f"ds_write_b128 v1, {v(ACC+4*T,4)} offset:{T*1024}")
    a("s_waitcnt lgkmcnt(0)")
    a(f"s_lshr_b32 s7, s{S_W}, 1")
    a(f"s_lshl_b32 s7, s7, 2")
    a(f"s_add_u32 s7, s7, {F_PRDY}")
    lds_set(a, "s7")
    a(f"{lab['even']}:")
    conv_F(a, opts)

def conv_F(a, opts):
    S_W, S_TBK = 68, 69
    S_TB, S_CH, S_RH, S_C = 70, 71, 72, 73
    ACC, AF, BF = 16, 48, 112
    VA, VB = 8, 12
    KACC = 80
    a(f"s_setprio {opts.get('kprio',0)}")
    a(f"""
    v_mov_b32 v1, {F_NON}
    ds_read_b64 v[{V_NON}:{V_NON+1}], v1
    s_sub_u32 s{S_WP}, s{S_WAVE}, 4
    s_lshr_b32 s{S_C}, s{S_W}, 1
    s_and_b32 s{S_RH}, s{S_W}, 1
    s_lshl_b32 s{S_CH}, s2, 1
    s_add_u32 s{S_CH}, s{S_CH}, s{S_C}      ; channel
    s_mul_i32 s{S_TB}, s{S_C}, {CT_SZ}
    s_add_u32 s{S_TB}, s{S_TB}, {F_CT}
    """)
    map_B(a)
    srd(a, SRD_WS, SP['ws'], 19*MB)
    odd = a.label('codd'); join = a.label('cjoin')
    a(f"s_cmp_eq_u32 s{S_RH}, 1")
    a(f"s_cbranch_scc1 {odd}")
    a(f"s_lshl_b32 s26, s{S_C}, 2")
    a(f"s_add_u32 s26, s26, {F_PRDY}")
    lds_spin(a, ["s26"])
    a(f"""
    v_lshlrev_b32 v1, 4, v0
    v_add_u32 v2, s{S_TBK}, v1
    """)
    for T in range(8):
        a(f"ds_read_b128 {v(16+4*T,4)}, v2 offset:{8192 + T*1024}")
    a(f"""
    v_and_b32 v2, 15, v0
    v_lshlrev_b32 v2, 5, v2               ; 32*j
    v_lshrrev_b32 v3, 4, v0
    v_lshlrev_b32 v3, 3, v3               ; 8*q
    v_add_u32 v2, v2, v3
    v_sub_u32 v2, {504}, v2               ; 4088 - 512*7 - (32 j + 8 q)
    s_add_u32 s7, s{S_TB}, {CT_V0}
    v_add_u32 v2, s7, v2
    """)
    for T in range(8):
        a(f"s_waitcnt lgkmcnt({7-T})")
        for i in range(4):
            a(f"v_add_f32 v{KACC+4*T+i}, v{KACC+4*T+i}, v{16+4*T+i}")
        a(f"v_cvt_pk_bf16_f32 v{48+2*T}, v{KACC+4*T+3}, v{KACC+4*T+2}")
        a(f"v_cvt_pk_bf16_f32 v{49+2*T}, v{KACC+4*T+1}, v{KACC+4*T}")
    for T in range(8):
        a(f"ds_write_b64 v2, {v(48+2*T,2)} offset:{(7-T)*512}")
    a(f"""
    v_mov_b32 v6, 0
    v_mov_b32 v7, 0
    v_lshlrev_b32 v3, 3, v0
    s_add_u32 s7, s{S_TB}, {CT_V0+4096}
    v_add_u32 v2, s7, v3
    s_mov_b64 exec, 0xff
    ds_write_b64 v2, v[6:7]
    ds_write_b64 v2, v[6:7] offset:{CT_V1-CT_V0}
    s_mov_b64 exec, -1
    s_add_u32 s7, s{S_TB}, {CT_V0}
    v_add_u32 v2, s7, v1
    """)
    for i in range(4):
        a(f"ds_read_b128 {v(16+8*i,4)}, v2 offset:{i*1024}")
        a(f"ds_read_b32 v{20+8*i}, v2 offset:{i*1024+16}")
    for i in range(4):
        a(f"s_waitcnt lgkmcnt({6-2*i})")
        for j in range(4):
            a(f"v_alignbit_b32 v{48+4*i+j}, v{16+8*i+j+1}, v{16+8*i+j}, 16")
    for i in range(4):
        a(f"ds_write_b128 v2, {v(48+4*i,4)} offset:{CT_V1-CT_V0 + i*1024}")
    a("s_waitcnt lgkmcnt(0)")
    a(f"s_lshl_b32 s7, s{S_C}, 2")
    a(f"s_add_u32 s7, s7, {F_KRDY}")
    lds_set(a, "s7")
    a(f"s_branch {join}")
    a(f"{odd}:")
    a(f"""
    v_lshlrev_b32 v1, 4, v0
    v_mov_b32 v16, 0
    v_mov_b32 v17, 0
    v_mov_b32 v18, 0
    v_mov_b32 v19, 0
    v_add_u32 v3, s{S_TB}, v1
    s_mov_b64 exec, 0x3fffffff
    ds_write_b128 v3, v[16:19] offset:{CT_U}
    s_mov_b64 exec, -1
    """)
    a(f"{join}:")
    a("s_waitcnt lgkmcnt(0)")
    if opts.get('xlate'): xnt_flag(a, opts)
    if opts.get('noconv'):
        a("s_waitcnt vmcnt(0)")
        a(f"s_branch {opts['lfinal']}")
    ev = a.label('cev')
    a(f"s_cmp_eq_u32 s{S_RH}, 0")
    a(f"s_cbranch_scc1 {ev}")
    a(f"""
    v_and_b32 v2, 15, v0
    v_lshlrev_b32 v2, 4, v2
    s_lshr_b32 s7, s2, 4
    v_add_u32 v2, s7, v2
    v_lshlrev_b32 v2, 7, v2
    v_add_u32 v2, {WS_FLAGX}, v2
    """)
    flag_poll(a, 2, 6)
    stamp(a, opts, 15)
    stamp(a, opts, 41, real=True)
    a(f"""
    s_lshl_b32 s26, s{S_CH}, 12
    s_add_u32 s26, s26, {WS_XT}
    v_lshlrev_b32 v1, 4, v0
    """)
    for i in range(4):
        a(f"buffer_load_dwordx4 {v(16+4*i,4)}, v1, s[{SRD_WS}:{SRD_WS+3}], s26 offen offset:{i*1024} sc1")
    a(f"v_add_u32 v3, s{S_TB}, v1")
    for i in range(4):
        a(f"s_waitcnt vmcnt({3-i})")
        a(f"ds_write_b128 v3, {v(16+4*i,4)} offset:{CT_U + 480 + i*1024}")
    a("s_waitcnt lgkmcnt(0)")
    a(f"s_lshl_b32 s7, s{S_C}, 2")
    a(f"s_add_u32 s7, s7, {F_URDY}")
    lds_set(a, "s7")
    a(f"{ev}:")
    a(f"""
    v_and_b32 v1, 15, v0                   ; b / a
    v_lshrrev_b32 v2, 4, v0                ; q
    v_lshrrev_b32 v3, 1, v1                ; beta
    v_lshlrev_b32 v6, 2, v2
    v_sub_u32 v6, v6, v3                   ; 4q - beta
    s_lshl_b32 s7, s{S_RH}, 6
    s_sub_u32 s7, {1015-128-48}, s7
    v_add_u32 v6, s7, v6
    v_lshlrev_b32 v6, 2, v6
    v_and_b32 v3, 1, v1
    v_xor_b32 v3, 1, v3
    v_mul_u32_u24 v3, {CT_V1-CT_V0}, v3
    v_add_u32 v6, v6, v3
    s_add_u32 s7, s{S_TB}, {CT_V0}
    v_add_u32 v{VA}, s7, v6
    v_subrev_u32 v{VA+1}, 1024, v{VA}
    v_subrev_u32 v{VA+2}, 2048, v{VA}
    v_subrev_u32 v{VA+3}, 3072, v{VA}
    v_lshlrev_b32 v3, 5, v1
    v_lshlrev_b32 v6, 4, v2
    v_add_u32 v3, v3, v6
    s_lshl_b32 s7, s{S_RH}, 8
    s_sub_u32 s7, {448-192}, s7
    s_add_u32 s7, s7, s{S_TB}
    v_add_u32 v{VB}, s7, v3
    """)
    for i in range(32): a(f"v_mov_b32 v{ACC+i}, 0")
    a(f"s_lshl_b32 s7, s{S_C}, 2")
    a(f"s_add_u32 s26, s7, {F_KRDY}")
    a(f"s_add_u32 s27, s7, {F_URDY}")
    lds_spin(a, ["s26", "s27"])
    a("s_waitcnt vmcnt(0)")
    stamp(a, opts, 16)
    a("v_lshlrev_b32 v5, 16, v151           ; Dskip")
    a(f"s_setprio {opts.get('cprio', 0)}")
    lg = LgTrack(a)
    def rdA(st, dl, rp):
        Dd, e = dl >> 1, dl & 1
        o = (1-e)*128 + (3-rp)*16
        r = AF + st*32 + dl*4
        return [(f"ds_read2_b32 {v(r,2)}, v{VA+Dd} offset0:{o} offset1:{o+1}", ('A', rp, dl)),
                (f"ds_read2_b32 {v(r+2,2)}, v{VA+Dd} offset0:{o+2} offset1:{o+3}", ('A', rp, dl))]
    def rdB(p, rp):
        return (f"ds_read_b128 {v(BF+p*4,4)}, v{VB} offset:{CT_U + 512*p + (3-rp)*64}", ('B', rp, p))
    def emit(x): a(x[0]); lg.op(x[1])
    emit(rdB(0, 0))
    for dl in range(8):
        for x in rdA(0, dl, 0): emit(x)
    for p in range(1, 8): emit(rdB(p, 0))
    for rp in range(4):
        st = rp & 1
        nxtA = []
        if rp < 3:
            for dl in range(8): nxtA += rdA(1-st, dl, rp+1)
        ni = 0
        for p in range(8):
            for dl in range(8-p):
                lg.wait([('A', rp, dl), ('B', rp, p)])
                a(f"v_mfma_f32_16x16x32_bf16 {v(ACC+4*(dl+p),4)}, {v(AF+st*32+dl*4,4)}, {v(BF+p*4,4)}, {v(ACC+4*(dl+p),4)}")
                if ni < len(nxtA): emit(nxtA[ni]); ni += 1
            if rp < 3: emit(rdB(p, rp+1))
    a(f"s_setprio {opts.get('pprio', 2)}")
    stamp(a, opts, 17)
    ex0 = a.label('ex0'); exd = a.label('exd')
    a(f"""
    v_lshlrev_b32 v13, 4, v0
    s_lshl_b32 s7, s{S_W}, 12
    s_add_u32 s7, s7, {F_EX}
    v_add_u32 v3, s7, v13
    s_cmp_eq_u32 s{S_RH}, 0
    s_nop 4
    s_cbranch_scc1 {ex0}
    """)
    for T in range(4): a(f"ds_write_b128 v3, {v(ACC+4*T,4)} offset:{T*1024}")
    for i in range(16): a(f"v_mov_b32 v{ACC+i}, v{ACC+16+i}")
    a(f"s_branch {exd}")
    a(f"{ex0}:")
    for T in range(4): a(f"ds_write_b128 v3, {v(ACC+16+4*T,4)} offset:{T*1024}")
    a(f"{exd}:")
    a("s_waitcnt lgkmcnt(0)")
    a(f"s_lshl_b32 s7, s{S_W}, 2")
    a(f"s_add_u32 s7, s7, {F_XFL}")
    lds_set(a, "s7")
    a(f"""
    s_xor_b32 s7, s{S_W}, 1
    s_lshl_b32 s26, s7, 2
    s_add_u32 s26, s26, {F_XFL}
    s_lshl_b32 s27, s7, 12
    s_add_u32 s27, s27, {F_EX}
    v_add_u32 v14, s27, v13
    """)
    lds_spin(a, ["s26"])
    for T in range(4): a(f"ds_read_b128 {v(32+4*T,4)}, v14 offset:{T*1024}")
    a(f"""
    v_and_b32 v1, 15, v0
    v_lshlrev_b32 v1, 5, v1
    v_lshrrev_b32 v2, 4, v0
    v_lshlrev_b32 v2, 3, v2
    v_add_u32 v1, v1, v2                   ; 2*(16a + 4q)
    s_lshl_b32 s7, s{S_RH}, 11
    s_add_u32 s24, s7, s{S_TB}
    v_add_u32 v2, s24, v1
    """)
    for k in range(4): a(f"ds_read_b64 {v(48+2*k,2)}, v2 offset:{CT_U + 480 + k*512}")
    a(f"""
    v_and_b32 v1, 15, v0
    v_lshlrev_b32 v1, 6, v1
    v_lshrrev_b32 v2, 4, v0
    v_lshlrev_b32 v2, 4, v2
    v_add_u32 v1, v1, v2
    s_lshl_b32 s24, s{S_CH}, 13
    s_add_u32 s24, s24, {WS_Y}
    s_lshl_b32 s7, s{S_RH}, 12
    s_add_u32 s24, s24, s7
    s_waitcnt lgkmcnt(0)
    """)
    for k in range(4):
        A = ACC + 4*k
        for i in range(4): a(f"v_add_f32 v{A+i}, v{A+i}, v{32+4*k+i}")
        U = 64
        a(f"v_cvt_pk_bf16_f32 v{U}, v{A}, v{A+1}")
        a(f"v_cvt_pk_bf16_f32 v{U+1}, v{A+2}, v{A+3}")
        for j in range(2):
            a(f"v_lshlrev_b32 v{U+2+2*j}, 16, v{48+2*k+j}")
            a(f"v_and_b32 v{U+3+2*j}, 0xffff0000, v{48+2*k+j}")
        for i in range(4): a(f"v_mul_f32 v{U+2+i}, v{U+2+i}, v5")
        a(f"v_cvt_pk_bf16_f32 v{U+6}, v{U+2}, v{U+3}")
        a(f"v_cvt_pk_bf16_f32 v{U+7}, v{U+4}, v{U+5}")
        for j in range(2):
            a(f"v_lshlrev_b32 v{U+2+2*j}, 16, v{U+6+j}")
            a(f"v_and_b32 v{U+3+2*j}, 0xffff0000, v{U+6+j}")
            a(f"v_lshlrev_b32 v{U+8+2*j}, 16, v{U+j}")
            a(f"v_and_b32 v{U+9+2*j}, 0xffff0000, v{U+j}")
        for i in range(4): a(f"v_add_f32 v{U+2+i}, v{U+2+i}, v{U+8+i}")
        O = 80 + 4*k
        a(f"v_cvt_pk_bf16_f32 v{O}, v{U+2}, v{U+3}")
        a(f"v_cvt_pk_bf16_f32 v{O+1}, v{U+4}, v{U+5}")
        a(f"v_mov_b32 v{O+2}, v{V_NON}")
        a(f"v_mov_b32 v{O+3}, v{V_NON+1}")
        a(f"buffer_store_dwordx4 {v(O,4)}, v1, s[{SRD_WS}:{SRD_WS+3}], s24 offen offset:{k*1024} sc1")
    a(f"global_load_dwordx4 {v(V_XT,4)}, v{V_OFF}, s[{SP['x']}:{SP['x']+1}]")
    stamp(a, opts, 18)
    a("s_waitcnt vmcnt(0)")
    a(f"s_branch {opts['lfinal']}")

def final_F(a, opts):
    srd(a, SRD_O, SP['out'], 2097152)
    a(f"""
    s_and_b32 s7, s{S_WP}, 3
    s_lshl_b32 s7, s7, 4
    v_and_b32 v1, 15, v0
    v_add_u32 v2, s7, v1                  ; t
    v_mul_u32_u24 v2, {PROW}, v2
    s_lshr_b32 s24, s{S_WP}, 2
    s_lshl_b32 s24, s24, 2
    v_lshrrev_b32 v3, 4, v0
    v_add_u32 v3, s24, v3                 ; octet
    v_lshlrev_b32 v4, 5, v3
    v_add_u32 v2, v2, v4
    v_add_u32 v2, {F_P}, v2
    v_lshlrev_b32 v4, 3, v3
    v_lshrrev_b32 v5, 2, v1
    v_add_u32 v4, v4, v5
    v_mul_u32_u24 v4, 160, v4
    v_and_b32 v5, 3, v1
    v_lshlrev_b32 v5, 3, v5
    v_add_u32 v4, v4, v5
    s_lshl_b32 s7, s7, 1
    s_add_u32 s7, s7, {F_YT}
    v_add_u32 v4, s7, v4
    """)
    U = 56
    a("s_waitcnt vmcnt(4)") if False else None
    a("s_waitcnt lgkmcnt(0)")
    stamp(a, opts, 26)
    a("s_barrier")
    stamp(a, opts, 27)
    P = 16
    for pw in range(4):
        a(f"ds_read_b128 {v(P+8*pw,4)}, v2 offset:{pw*64*PROW}")
        a(f"ds_read_b128 {v(P+8*pw+4,4)}, v2 offset:{pw*64*PROW+16}")
    a(f"ds_read_b64_tr_b16 v[8:9], v4")
    a(f"ds_read_b64_tr_b16 v[10:11], v4 offset:{4*160}")
    for j in range(4):
        a(f"v_lshlrev_b32 v{U+2*j}, 16, v{V_XT+j}")
        a(f"v_and_b32 v{U+2*j+1}, 0xffff0000, v{V_XT+j}")
    a("s_waitcnt lgkmcnt(6)")
    for i in range(8): a(f"v_add_f32 v{P+i}, v{P+i}, v{P+8+i}")
    a("s_waitcnt lgkmcnt(2)")
    for i in range(8): a(f"v_add_f32 v{P+16+i}, v{P+16+i}, v{P+24+i}")
    for i in range(8): a(f"v_add_f32 v{P+i}, v{P+i}, v{P+16+i}")
    for j in range(4): a(f"v_cvt_pk_bf16_f32 v{48+j}, v{P+2*j}, v{P+2*j+1}")
    a("s_waitcnt lgkmcnt(0)")
    for j in range(4):
        a(f"v_lshlrev_b32 v{U+8+2*j}, 16, v{8+j}")
        a(f"v_and_b32 v{U+8+2*j+1}, 0xffff0000, v{8+j}")
    for i in range(8): a(f"v_add_f32 v{U+i}, v{U+i}, v{U+8+i}")
    for j in range(4): a(f"v_cvt_pk_bf16_f32 v{72+j}, v{U+2*j}, v{U+2*j+1}")
    for j in range(4):
        a(f"v_lshlrev_b32 v{U+2*j}, 16, v{72+j}")
        a(f"v_and_b32 v{U+2*j+1}, 0xffff0000, v{72+j}")
        a(f"v_lshlrev_b32 v{U+8+2*j}, 16, v{48+j}")
        a(f"v_and_b32 v{U+8+2*j+1}, 0xffff0000, v{48+j}")
    for i in range(8): a(f"v_add_f32 v{U+i}, v{U+i}, v{U+8+i}")
    for j in range(4): a(f"v_cvt_pk_bf16_f32 v{76+j}, v{U+2*j}, v{U+2*j+1}")
    a(f"buffer_store_dwordx4 v[76:79], v{V_OFF}, s[{SRD_O}:{SRD_O+3}], 0 offen {('', 'sc1', 'nt', 'sc0 sc1')[opts.get('osc', 0)]}")
    stamp(a, opts, 28)
    if opts.get('ts'): a("s_waitcnt vmcnt(0)")
    stamp(a, opts, 8)
    stamp(a, opts, 7, real=True)
    stamp_flush(a, opts, 0)
    a("s_endpgm")

def gen_F(a, name, opts):
    import kerA
    MAP2[0] = opts.get('map2', 1)
    opts = dict(opts); opts['fused'] = 1
    opts['lfinal'] = a.label('final')
    if opts.get('cpf', 1):
        opts['abeg'] = name; opts['aend'] = 1
    a(kernel_head(name))
    lend = a.label('endF')
    kerA.prologue_A(a, lend, opts)
    lab = {k: a.label(k) for k in ('g','ld','h')}
    opts['lg2'] = a.label('gemm2')
    a(f"""
    s_cmp_lt_u32 s{S_WAVE}, 4
    s_cbranch_scc1 {lab['g']}
    s_cmp_lt_u32 s{S_WAVE}, 8
    s_cbranch_scc1 {lab['ld']}
    """)
    helper_F(a, opts)
    a(f"{lab['ld']}:"); kerA.loader_A(a, opts)
    a(f"s_branch {opts['lg2']}")
    a(f"{lab['g']}:"); kerA.gemm_A(a, opts)
    a(f"{opts['lg2']}:"); gemm2_F(a, opts)
    a(f"{opts['lfinal']}:"); final_F(a, opts)
    a(f"{lend}:")
    a("s_endpgm")
    a(".fill 3072, 4, 0xbf800000")
    a(kernel_desc(name, 168))
```

```python
import sys, os
sys.path.insert(0, os.path.dirname(__file__)); sys.path.insert(0,'work')
from core import *
import core, kerF
from asmutil import meta, assemble
opts = {}
out = 'kF'
for x in sys.argv[1:]:
    k,_,val = x.partition('=')
    if k == 'out': out = val; continue
    opts[k] = int(val) if val else 1
a = Asm()
a('.amdgcn_target "amdgcn-amd-amdhsa--gfx950"')
core.set_vts(167)
kerF.gen_F(a, 'fused_kernel', opts)
src = a.text() + meta([('fused_kernel',102,168,1024)],16)
assemble(src, out)
print('ok', len(src), 'lds', kerF.F_LDS)
```

```python
from core import *
import struct
def f2u(x): return struct.unpack('<I', struct.pack('<f', x))[0]
def hx(x): return hex(f2u(x))
STAGE = 40960
A_KT = 3*STAGE
DEPTH = 4
CT_U, CT_V0, CT_V1, CT_SZ = 0, 4608, 4608+4160, 4608+4160+4160
F_CT = 0
F_EX = F_CT + 2*CT_SZ
F_WR = F_EX + 4*4096
F_YT = F_WR + 4*DEPTH*2048
F_P  = F_YT + 10240
PROW = 272
F_SY = 158528
F_NON, F_CNTH, F_CNTX, F_HRDY, F_KRDY, F_URDY, F_XFL, F_ORD = F_SY, F_SY+8, F_SY+12, F_SY+16, F_SY+20, F_SY+28, F_SY+36, F_SY+52
F_CSR, F_GDN, F_PRDY, F_DMAD, F_XST, F_CNTY = F_SY+56, F_SY+60, F_SY+64, F_SY+72, F_SY+76, F_SY+80
F_LDS = F_SY + 128
S_WAVE, S_RB, S_CT = 3, 4, 5
S_RT, S_C2, S_WP = 78, 79, 80
SRD_WS, SRD_WD, SRD_O = 8, 12, 16
V_XT, V_NON, V_OFF = 160, 164, 166
SPIN = 200000

MAP2 = [1]
def map_tile(a, srt, sc2):
    if MAP2[0] == 0:
        a(f"""
        s_and_b32 s7, s2, 7
        s_lshr_b32 s33, s2, 3
        s_lshl_b32 s7, s7, 2
        s_and_b32 s{sc2}, s33, 3
        s_add_u32 s{srt}, s7, s{sc2}
        s_lshr_b32 s{sc2}, s33, 2
        """)
    else:
        a(f"""
        s_and_b32 s7, s2, 7
        s_lshr_b32 s33, s2, 3
        s_lshr_b32 s{srt}, s7, 1
        s_lshl_b32 s{srt}, s{srt}, 3
        s_and_b32 s{sc2}, s33, 7
        s_add_u32 s{srt}, s{srt}, s{sc2}
        s_and_b32 s7, s7, 1
        s_lshl_b32 s7, s7, 2
        s_lshr_b32 s{sc2}, s33, 3
        s_add_u32 s{sc2}, s{sc2}, s7
        """)
def map_B(a):
    map_tile(a, S_RT, S_C2)
    a(f"""
    s_and_b32 s32, s{S_WP}, 3
    s_lshl_b32 s32, s32, 4
    s_lshl_b32 s33, s{S_RT}, 6
    s_add_u32 s32, s32, s33               ; 64 rt + 16 (w&3)
    v_and_b32 v2, 15, v0
    v_add_u32 v2, s32, v2
    v_lshlrev_b32 v2, 10, v2              ; row*1024
    s_lshr_b32 s32, s{S_WP}, 2
    s_lshl_b32 s32, s32, 6
    s_lshl_b32 s33, s{S_C2}, 7
    s_add_u32 s32, s32, s33
    v_lshrrev_b32 v3, 4, v0
    v_lshlrev_b32 v3, 4, v3
    v_add_u32 v2, v2, v3
    v_add_u32 v{V_OFF}, s32, v2
    """)

def lds_count_last(a, addr, n, lab_skip):
    a(f"""
    v_mov_b32 v1, {addr}
    v_mov_b32 v2, 1
    s_mov_b64 exec, 1
    ds_add_rtn_u32 v3, v1, v2
    s_mov_b64 exec, -1
    s_waitcnt lgkmcnt(0)
    v_readfirstlane_b32 s7, v3
    s_cmp_lg_u32 s7, {n-1}
    s_cbranch_scc1 {lab_skip}
    """)
def lds_set(a, addr_expr_sgpr_or_int):
    if isinstance(addr_expr_sgpr_or_int, int): a(f"v_mov_b32 v1, {addr_expr_sgpr_or_int}")
    else: a(f"v_mov_b32 v1, {addr_expr_sgpr_or_int}")
    a("v_mov_b32 v2, 1")
    a("ds_write_b32 v1, v2")
def lds_spin(a, addrs):
    lp = a.label('spin')
    for i, ad in enumerate(addrs): a(f"v_mov_b32 v{1+i}, {ad}")
    a("s_mov_b32 s99, 0")
    a(f"{lp}:")
    for i in range(len(addrs)): a(f"ds_read_b32 v{3+i}, v{1+i}")
    a("s_add_u32 s99, s99, 1")
    a("s_waitcnt lgkmcnt(0)")
    if len(addrs) == 2: a("v_min_u32 v3, v3, v4"); a("s_nop 0")
    a(f"""
    v_readfirstlane_b32 s24, v3
    s_cmp_gt_u32 s99, {5*SPIN}
    s_cselect_b32 s24, 1, s24
    s_cmp_eq_u32 s24, 0
    s_cbranch_scc1 {lp}
    """)
def lds_inc(a, addr):
    a(f"""
    v_mov_b32 v1, {addr}
    v_mov_b32 v2, 1
    s_mov_b64 exec, 1
    ds_add_u32 v1, v2
    s_mov_b64 exec, -1
    """)
def lds_spin_eq(a, addr, val):
    lp = a.label('spinq')
    a(f"""
    v_mov_b32 v1, {addr}
    s_mov_b32 s99, 0
    {lp}:
    ds_read_b32 v3, v1
    s_add_u32 s99, s99, 1
    s_waitcnt lgkmcnt(0)
    v_readfirstlane_b32 s7, v3
    s_cmp_gt_u32 s99, {5*SPIN}
    s_cselect_b32 s7, {val}, s7
    s_cmp_lg_u32 s7, {val}
    s_cbranch_scc1 {lp}
    """)
def flag_store(a, base, idx_sgpr):
    a(f"""
    s_lshl_b32 s7, {idx_sgpr}, 7
    s_add_u32 s7, s7, {base}
    v_mov_b32 v1, s7
    s_mov_b64 exec, 1
    global_store_dwordx2 v1, v[{V_NON}:{V_NON+1}], s[{SP['ws']}:{SP['ws']+1}] sc1
    s_mov_b64 exec, -1
    """)
def flag_poll(a, vaddr, vdst, nosleep=False):
    lp = a.label('poll'); ok = a.label('pok')
    a(f"""
    s_mov_b32 s99, 0
    {lp}:
    global_load_dwordx2 v[{vdst}:{vdst+1}], v{vaddr}, s[{SP['ws']}:{SP['ws']+1}] sc1
    s_add_u32 s99, s99, 1
    s_waitcnt vmcnt(0)
    v_cmp_ne_u32 vcc, v{V_NON}, v{vdst}
    v_cmp_ne_u32 s[30:31], v{V_NON+1}, v{vdst+1}
    s_or_b64 vcc, vcc, s[30:31]
    s_cmp_eq_u64 vcc, 0
    s_cbranch_scc1 {ok}
    s_cmp_gt_u32 s99, {SPIN}
    s_cbranch_scc1 {ok}
    {"s_nop 0" if nosleep else "s_sleep 1"}
    s_branch {lp}
    {ok}:
    """)


def touch_group(a, sg, srt, sc2, vdst):
    a(f"""
    s_cmp_eq_u32 s{sg}, 3
    s_cselect_b32 s30, 14, 24
    s_lshl_b32 s31, s30, 1
    s_mul_i32 s33, s{sc2}, s31
    v_add_u32 v1, s33, v0
    s_lshl_b32 s33, s30, 3
    v_cmp_le_u32 vcc, s33, v1
    v_mov_b32 v2, s33
    v_mov_b32 v3, 0
    v_cndmask_b32 v2, v3, v2, vcc
    v_sub_u32 v1, v1, v2
    v_mov_b32 v2, {86*1024}
    v_cndmask_b32 v2, v3, v2, vcc
    v_lshlrev_b32 v1, 7, v1
    v_add_u32 v1, v1, v2
    s_mul_i32 s33, s{srt}, {2*86*1024}
    s_mul_i32 s7, s{sg}, {24*1024}
    s_add_u32 s33, s33, s7
    s_add_u32 s33, s33, {WS_H}
    v_add_u32 v1, s33, v1
    v_cmp_gt_u32 vcc, s31, v0
    s_and_saveexec_b64 s[30:31], vcc
    global_load_dword v{vdst}, v1, s[{SP['ws']}:{SP['ws']+1}] sc1
    s_mov_b64 exec, s[30:31]
    """)

def gpub_F(a, opts):
    nf = a.label('nfh'); end = a.label('gpe')
    a(f"""
    v_mov_b32 v1, {F_NON}
    ds_read_b64 v[{V_NON}:{V_NON+1}], v1
    s_waitcnt vmcnt(0) lgkmcnt(0)
    """)
    stamp(a, opts, 14)
    stamp(a, opts, 40, real=True)
    lds_count_last(a, F_CNTH, 4, nf)
    a(f"s_lshl_b32 s30, s{S_RB}, 4")
    a(f"s_add_u32 s30, s30, s{S_CT}")
    flag_store(a, WS_FLAGH, "s30")
    a(f"{nf}:")
    a(f"s_cmp_lg_u32 s{S_WAVE}, 0")
    a(f"s_cbranch_scc1 {end}")
    map_tile(a, 34, 35)
    a(f"""
    s_lshr_b32 s7, s34, 1
    s_lshl_b32 s7, s7, 4
    v_min_u32 v2, 14, v0
    v_add_u32 v2, s7, v2
    v_lshlrev_b32 v2, 7, v2
    v_add_u32 v2, {WS_FLAGH}, v2
    """)
    flag_poll(a, 2, 4)
    if opts.get('touch'):
        a(f"""
        s_and_b32 s7, s2, 7
        s_lshl_b32 s7, s7, 2
        s_lshr_b32 s33, s2, 3
        s_and_b32 s34, s33, 3
        s_add_u32 s34, s7, s34
        s_lshr_b32 s35, s33, 2
        """)
        for g in range(4):
            a(f"s_mov_b32 s86, {g}")
            touch_group(a, 86, 34, 35, 8+g)
    lds_set(a, F_HRDY)
    a("s_waitcnt lgkmcnt(0)")
    a(f"{end}:")
    stamp(a, opts, 15)
    stamp(a, opts, 7, real=True)
    if opts.get('ts'): a("s_waitcnt vmcnt(0)")
    stamp_flush(a, opts, 0)
    a("s_endpgm")

def gemm2_F(a, opts):
    D = DEPTH
    ACC, HF, WF, YG = 16, 80, 112, 128
    VH0, VH1, VWD, VA0, VA1, VY = 8, 9, 10, 11, 13, 12
    S_N, S_OFF, S_RING, S_WC = 81, 27, 28, 29
    S_GB, S_GL, S_STEP, S_CNT, S_ROT, S_GD = 70, 74, 82, 83, 84, 85
    def acc(m, n): return ACC + (m*2+n)*16
    def hf(st, n): return HF + st*8 + n*4
    def wf(st, m): return WF + st*8 + m*4
    vm = VmTrack(a)
    a(f"s_mov_b32 s{S_WP}, s68")
    srd(a, SRD_WD, SP['wd'], 1409024)
    if opts.get('pfmode',0) == 1:
        npf = a.label('nopf')
        a(f"s_cmp_lg_u32 s{S_WP}, 1")
        a(f"s_cbranch_scc1 {npf}")
        if opts.get('pfwait'): lds_spin(a, [F_URDY, F_URDY+4])
        a(f"""
        s_lshr_b32 s30, s2, 3
        s_mul_i32 s30, s30, {43*1024}
        v_lshlrev_b32 v1, 7, v0
        v_add_u32 v1, s30, v1
        """)
        for i in range(6):
            a(f"s_mov_b32 s30, {i*8192}")
            a(f"buffer_load_dword v{144+i}, v1, s[{SRD_WD}:{SRD_WD+3}], s30 offen")
        a(f"{npf}:")
    map_B(a)
    a(f"""
    s_mov_b32 s{S_N}, 22
    s_cmp_ge_u32 s{S_WP}, 2
    s_cselect_b32 s{S_N}, 21, s{S_N}
    v_lshlrev_b32 v1, 4, v0
    s_mul_i32 s7, s{S_RT}, {2*86*1024}
    s_add_u32 s7, s7, {WS_H}
    v_add_u32 v{VH0}, s7, v1
    v_add_u32 v{VH1}, {86*1024}, v{VH0}
    v_lshrrev_b32 v2, 3, v0
    v_lshlrev_b32 v2, 10, v2
    v_and_b32 v3, 7, v0
    v_bfe_u32 v4, v0, 4, 1
    v_lshlrev_b32 v4, 2, v4
    v_xor_b32 v3, v3, v4
    v_lshlrev_b32 v3, 4, v3
    v_add_u32 v{VWD}, v2, v3
    s_lshl_b32 s{S_WC}, s{S_C2}, 7
    s_mul_i32 s{S_RING}, s{S_WP}, {D*2048}
    s_add_u32 s{S_RING}, s{S_RING}, {F_WR}
    v_lshrrev_b32 v2, 5, v0
    v_lshlrev_b32 v2, 2, v2                 ; 4h
    v_bfe_u32 v3, v0, 2, 2                  ; r'
    v_add_u32 v2, v2, v3
    v_lshlrev_b32 v2, 7, v2
    v_lshrrev_b32 v3, 1, v3
    v_lshlrev_b32 v3, 6, v3
    v_add_u32 v2, v2, v3
    v_bfe_u32 v3, v0, 4, 1
    v_lshlrev_b32 v3, 5, v3
    v_add_u32 v2, v2, v3
    v_and_b32 v3, 3, v0
    v_lshlrev_b32 v3, 3, v3
    v_add_u32 v2, v2, v3
    v_add_u32 v{VA0}, s{S_RING}, v2
    v_xor_b32 v2, 64, v2
    v_add_u32 v{VA1}, s{S_RING}, v2
    """)
    if opts.get('ycomp', 1):
        a(f"""
        v_lshrrev_b32 v2, 3, v0
        s_lshl_b32 s7, s{S_WP}, 4
        s_lshl_b32 s30, s{S_C2}, 6
        s_add_u32 s7, s7, s30                  ; 64 ct + 16 w
        v_add_u32 v2, s7, v2
        v_lshlrev_b32 v2, 12, v2               ; ch*4096
        v_and_b32 v3, 7, v0
        v_lshlrev_b32 v3, 4, v3
        v_add_u32 v2, v2, v3
        s_lshl_b32 s30, s{S_RT}, 7             ; 64 t * 2 B
        s_add_u32 s30, s30, {WS_Y}
        v_add_u32 v{VY}, s30, v2               ; y address
        s_lshr_b32 s7, s7, 1
        v_min_u32 v2, 7, v0
        v_add_u32 v2, s7, v2
        v_lshlrev_b32 v2, 7, v2
        v_add_u32 v14, {WS_FLAGY}, v2
        """)
    else:
        a(f"""
        v_lshrrev_b32 v2, 4, v0
        s_lshl_b32 s7, s{S_WP}, 4
        s_lshl_b32 s30, s{S_C2}, 6
        s_add_u32 s7, s7, s30                  ; 64 ct + 16 w
        v_add_u32 v2, s7, v2
        v_lshlrev_b32 v2, 13, v2               ; ch*8192
        v_and_b32 v3, 15, v0
        v_lshlrev_b32 v3, 4, v3
        v_add_u32 v2, v2, v3
        s_lshl_b32 s7, s{S_RT}, 8
        s_add_u32 s7, s7, {WS_Y}
        v_add_u32 v{VY}, s7, v2                ; y address
        """)
    a(f"""
    v_mov_b32 v1, {F_NON}
    ds_read_b64 v[{V_NON}:{V_NON+1}], v1
    """)
    srd(a, SRD_WS, SP['ws'], 19*MB)
    srd(a, SRD_WD, SP['wd'], 1409024)
    for i in range(64): a(f"v_mov_b32 v{ACC+i}, 0")
    a("s_waitcnt lgkmcnt(0)")
    stamp(a, opts, 14)
    a(f"""
    s_mov_b32 s24, {0 | (1 << 2) | (3 << 4) | (2 << 6)}
    s_mov_b32 s25, {1 | (0 << 2) | (2 << 4) | (3 << 6)}
    s_bitcmp1_b32 s{S_C2}, 0
    s_cselect_b32 s24, s25, s24
    """)
    a(f"""
    s_mul_i32 s30, s{S_WP}, 6
    s_lshl_b32 s31, s{S_WP}, 2
    s_cmp_eq_u32 s{S_WP}, 3
    s_cselect_b32 s31, 11, s31
    s_cmp_ge_u32 s{S_WP}, 2
    s_cselect_b32 s32, 3, 4
    """)
    for k in range(4):
        a(f"""
        s_lshr_b32 s7, s24, {2*k}
        s_and_b32 s7, s7, 3
        s_mul_i32 s33, s7, 24
        s_cmp_eq_u32 s7, 3
        s_cselect_b32 s25, s31, s30
        s_add_u32 s{S_GB+k}, s33, s25
        s_cselect_b32 s{S_GL+k}, s32, 6
        """.replace("        s_add_u32 s%d, s33, s25\n        s_cselect_b32" % (S_GB+k), "        s_add_u32 s%d, s33, s25\n        s_cmp_eq_u32 s7, 3\n        s_cselect_b32" % (S_GB+k)))
    S_OW, S_OH, S_REM = 82, 83, 84
    S_OE, S_RO = 88, 94
    def load_group():
        a(f"""
        s_lshr_b32 s7, s{S_GL}, 1
        s_bitcmp1_b32 s{S_C2}, 1
        s_cselect_b32 s{S_RO}, s7, 0
        s_add_u32 s7, s{S_GB}, s{S_RO}
        s_lshl_b32 s{S_OW}, s7, 14
        s_add_u32 s{S_OW}, s{S_OW}, s{S_WC}
        s_lshl_b32 s{S_OH}, s7, 10
        s_add_u32 s7, s{S_GB}, s{S_GL}
        s_lshl_b32 s{S_OE}, s7, 10
        s_mov_b32 s{S_REM}, s{S_GL}
        """)
    a(f"s_mov_b32 s{S_GD}, 0")
    load_group()
    lds_spin_eq(a, F_GDN, 4)
    a(f"s_setprio {opts.get('gprio', 1)}")
    def advance(pos):
        adv = a.label('noadv'); nw = a.label('nowrap')
        a(f"""
        s_add_u32 s{S_OW}, s{S_OW}, 16384
        s_add_u32 s{S_OH}, s{S_OH}, 1024
        s_cmp_lg_u32 s{S_OH}, s{S_OE}
        s_cbranch_scc1 {nw}
        s_lshl_b32 s7, s{S_GL}, 14
        s_sub_u32 s{S_OW}, s{S_OW}, s7
        s_lshl_b32 s7, s{S_GL}, 10
        s_sub_u32 s{S_OH}, s{S_OH}, s7
        {nw}:
        s_sub_u32 s{S_REM}, s{S_REM}, 1
        s_cmp_lg_u32 s{S_REM}, 0
        s_cbranch_scc1 {adv}
        s_mov_b32 s{S_GB}, s{S_GB+1}
        s_mov_b32 s{S_GB+1}, s{S_GB+2}
        s_mov_b32 s{S_GB+2}, s{S_GB+3}
        s_mov_b32 s{S_GL}, s{S_GL+1}
        s_mov_b32 s{S_GL+1}, s{S_GL+2}
        s_mov_b32 s{S_GL+2}, s{S_GL+3}
        s_add_u32 s{S_GD}, s{S_GD}, 1
        """)
        load_group()
        if pos + 1 in (9, 10, 12):
            a(f"s_cmp_lg_u32 s{S_GD}, 2")
            a(f"s_cbranch_scc1 {adv}")
            lds_spin(a, [F_HRDY])
        a(f"{adv}:")
    def ops(st, step):
        g = []
        g.append((f"s_add_u32 m0, s{S_RING}, {st*2048}\ns_add_u32 s31, s{S_OW}, 8192\nbuffer_load_dwordx4 v{VWD}, s[{SRD_WD}:{SRD_WD+3}], s{S_OW} offen lds"))
        g.append((f"buffer_load_dwordx4 {v(hf(st,0),4)}, v{VH0}, s[{SRD_WS}:{SRD_WS+3}], s{S_OH} offen sc1"))
        g.append((f"s_add_u32 m0, s{S_RING}, {st*2048+1024}\ns_nop 0\nbuffer_load_dwordx4 v{VWD}, s[{SRD_WD}:{SRD_WD+3}], s31 offen lds"))
        g.append((f"buffer_load_dwordx4 {v(hf(st,1),4)}, v{VH1}, s[{SRD_WS}:{SRD_WS+3}], s{S_OH} offen sc1"))
        return g
    S_PH = 95
    for st in range(D):
        g = ops(st, st)
        a(g[0]); vm.op(('w', st)); a(g[2]); vm.op(('w', st))
        a(f"s_mov_b32 s{S_PH+st}, s{S_OH}")
        advance(st)
    oth = a.label('hoth'); go = a.label('hgo'); lp = a.label('opoll'); ok = a.label('ook')
    a(f"s_cmp_lg_u32 s{S_WP}, 0")
    a(f"s_cbranch_scc1 {oth}")
    a(f"""
    v_min_u32 v2, {7 if opts.get('gfirst', 3) == 3 else 14}, v0
    s_lshr_b32 s7, s{S_RT}, 1
    s_lshl_b32 s7, s7, 4
    v_add_u32 v2, s7, v2
    v_lshlrev_b32 v2, 7, v2
    v_add_u32 v2, {WS_FLAGH}, v2
    """)
    flag_poll(a, 2, 4, nosleep=True)
    lds_set(a, F_ORD)
    a(f"s_branch {go}")
    a(f"{oth}:")
    lds_spin(a, [F_ORD])
    a(f"{go}:")
    stamp(a, opts, 15)
    stamp(a, opts, 41, real=True)
    a("s_waitcnt vmcnt(0)")
    vm.ops = []
    for st in range(D):
        a(f"buffer_load_dwordx4 {v(hf(st,0),4)}, v{VH0}, s[{SRD_WS}:{SRD_WS+3}], s{S_PH+st} offen sc1"); vm.op(('s', st))
        a(f"buffer_load_dwordx4 {v(hf(st,1),4)}, v{VH1}, s[{SRD_WS}:{SRD_WS+3}], s{S_PH+st} offen sc1"); vm.op(('s', st))
    def wreads(i):
        st, ws_ = i % D, i & 1
        for m, va in ((0, VA0), (1, VA1)):
            a(f"ds_read_b64_tr_b16 {v(wf(ws_,m),2)}, v{va} offset:{st*2048}")
            a(f"ds_read_b64_tr_b16 {v(wf(ws_,m)+2,2)}, v{va} offset:{st*2048+1024}")
    YC = opts.get('ycomp', 1)
    def yissue(first=False):
        if first:
            if YC:
                okf = a.label('yfok')
                vm.wait('yf')
                a(f"""
                v_cmp_ne_u32 vcc, v{V_NON}, v142
                v_cmp_ne_u32 s[30:31], v{V_NON+1}, v143
                s_or_b64 vcc, vcc, s[30:31]
                s_cmp_eq_u64 vcc, 0
                s_cbranch_scc1 {okf}
                """)
                if not opts.get('noconv'): flag_poll(a, 14, 142)
                a(f"{okf}:")
            a(f"global_load_dwordx4 {v(V_XT,4)}, v{V_OFF}, s[{SP['x']}:{SP['x']+1}]"); vm.op('x')
        if YC:
            a(f"buffer_load_dwordx4 {v(YG,4)}, v{VY}, s[{SRD_WS}:{SRD_WS+3}], 0 offen sc1"); vm.op('y')
            a(f"s_mov_b32 s{S_OFF}, {8*4096}")
            a(f"buffer_load_dwordx4 {v(YG+4,4)}, v{VY}, s[{SRD_WS}:{SRD_WS+3}], s{S_OFF} offen sc1"); vm.op('y')
            return
        for i in range(4):
            if i == 0: a(f"buffer_load_dwordx4 {v(YG,4)}, v{VY}, s[{SRD_WS}:{SRD_WS+3}], 0 offen sc1")
            else:
                a(f"s_mov_b32 s{S_OFF}, {i*4*8192}")
                a(f"buffer_load_dwordx4 {v(YG+4*i,4)}, v{VY}, s[{SRD_WS}:{SRD_WS+3}], s{S_OFF} offen sc1")
            vm.op('y')
    NS = 22
    vm.wait(('s', 0))
    wreads(0)
    lskip = a.label('gskip')
    for i in range(NS):
        st = i % D
        if i == NS - 1:
            a(f"s_cmp_eq_u32 s{S_N}, 21")
            a(f"s_cbranch_scc1 {lskip}")
        if i + 1 < NS:
            vm.wait(('s', i+1), ' lgkmcnt(0)')
            wreads(i+1)
        else:
            a("s_waitcnt lgkmcnt(0)")
        if opts.get('tsg2') and i % 4 == 0: stamp(a, opts, 48 + i//4)
        nx = ops(st, i+D) if i + D < NS else [None]*4
        for k, (m, n_) in enumerate(((0,0),(1,0),(0,1),(1,1))):
            if opts.get('fake16'):
                A_ = acc(m,n_)
                a(f"v_mfma_f32_16x16x32_bf16 {v(A_,4)}, {v(wf(i&1,m),4)}, {v(hf(st,n_),4)}, {v(A_,4)}")
                a(f"v_mfma_f32_16x16x32_bf16 {v(A_+8,4)}, {v(hf(st,n_),4)}, {v(wf(i&1,m),4)}, {v(A_+8,4)}")
            else:
                a(f"v_mfma_f32_32x32x16_bf16 {v(acc(m,n_),16)}, {v(wf(i&1,m),4)}, {v(hf(st,n_),4)}, {v(acc(m,n_),16)}")
            kk = (0, 1, 2, 3)[k]
            if nx[kk] is not None:
                a(nx[kk]); vm.op(('s', i+D))
        if i + D < NS: advance(i+D)
        if YC and i == opts.get('yfi', 14):
            a(f"global_load_dwordx2 v[142:143], v14, s[{SP['ws']}:{SP['ws']+1}] sc1"); vm.op('yf')
        if i + D == NS: yissue(True)
    a(f"{lskip}:")
    stamp(a, opts, 16+8)
    stamp(a, opts, 42, real=True)
    a(f"""
    v_and_b32 v1, 31, v0
    v_mul_u32_u24 v1, {PROW}, v1
    v_lshrrev_b32 v2, 5, v0
    v_lshlrev_b32 v2, 4, v2
    v_add_u32 v1, v1, v2
    s_mul_i32 s7, s{S_WP}, {64*PROW}
    s_add_u32 s7, s7, {F_P}
    v_add_u32 v1, s7, v1
    """)
    if YC:
        a(f"""
        v_lshrrev_b32 v2, 3, v0
        s_lshl_b32 s7, s{S_WP}, 4
        v_add_u32 v2, s7, v2
        v_mul_u32_u24 v2, 160, v2
        v_and_b32 v3, 7, v0
        v_lshlrev_b32 v3, 4, v3
        v_add_u32 v2, v2, v3
        v_add_u32 v2, {F_YT}, v2
        """)
    else:
        a(f"""
        v_lshrrev_b32 v2, 4, v0
        s_lshl_b32 s7, s{S_WP}, 4
        v_add_u32 v2, s7, v2
        v_mul_u32_u24 v2, 160, v2
        v_and_b32 v3, 15, v0
        v_lshlrev_b32 v3, 3, v3
        v_add_u32 v2, v2, v3
        v_add_u32 v2, {F_YT}, v2
        """)
    for m in range(2):
        for n_ in range(2):
            for g in range(4):
                a(f"ds_write_b128 v1, {v(acc(m,n_)+4*g,4)} offset:{n_*32*PROW + m*128 + g*32}")
    if YC:
        a("s_waitcnt vmcnt(0)")
        stamp(a, opts, 16+9)
        for j in range(2):
            a(f"ds_write_b128 v2, {v(YG+4*j,4)} offset:{j*8*160}")
        a(f"s_branch {opts['lfinal']}")
        return
    lp = a.label('ychk'); ok = a.label('yok')
    a(f"""
    s_mov_b32 s28, 0
    {lp}:
    s_waitcnt vmcnt(0)
    v_cmp_ne_u32 vcc, v{V_NON}, v{YG+2}
    """)
    for i in range(1, 4):
        a(f"v_cmp_ne_u32 s[30:31], v{V_NON}, v{YG+4*i+2}"); a("s_or_b64 vcc, vcc, s[30:31]")
    for i in range(4):
        a(f"v_cmp_ne_u32 s[30:31], v{V_NON+1}, v{YG+4*i+3}"); a("s_or_b64 vcc, vcc, s[30:31]")
    a(f"""
    s_add_u32 s28, s28, 1
    s_cmp_eq_u64 vcc, 0
    s_cbranch_scc1 {ok}
    s_cmp_gt_u32 s28, {0 if opts.get('noconv') else SPIN}
    s_cbranch_scc1 {ok}
    """)
    yissue()
    a(f"s_branch {lp}")
    a(f"{ok}:")
    stamp(a, opts, 16+9)
    for i in range(4):
        a(f"ds_write_b64 v2, {v(YG+4*i,2)} offset:{i*4*160}")
    a(f"s_branch {opts['lfinal']}")

S_SL = 87
def xnt_flag(a, opts):
    nf = a.label('nfx')
    a("s_waitcnt vmcnt(0)")
    stamp(a, opts, 14)
    stamp(a, opts, 40, real=True)
    lds_count_last(a, F_CNTX, 4, nf)
    a(f"s_lshl_b32 s30, s{S_RB}, 4")
    a(f"s_add_u32 s30, s30, s{S_SL}")
    flag_store(a, WS_FLAGX, "s30")
    a(f"{nf}:")

def helper_F(a, opts):
    import kerA_help as H
    from kerA_help import kgen, grab, nonce_check, colsum_A, A_PUB, A_STATS, A_M, V_SL
    S_W, S_TB, S_ROT = 68, 69, 6
    SRD_T0, SRD_T1 = 20, 24
    ACC = 80
    a(f"""
    s_lshr_b32 s7, s{S_CT}, 3
    s_add_u32 s7, s7, s{S_ROT}
    s_and_b32 s7, s7, 7
    s_lshl_b32 s7, s7, 1
    s_bfe_u32 s33, s{S_CT}, 0x10002
    s_add_u32 s{S_SL}, s7, s33
    """)
    seg0, seg1, seg2 = kgen(a, opts)
    lab = {k: a.label('h'+k) for k in ('0','nf','rest','even','g1','g2')}
    a(f"""
    s_cmp_lg_u32 s{S_W}, 1
    s_cbranch_scc1 {lab['0']}
    global_load_dwordx2 v[152:153], v150, s[{SP['dbg']}:{SP['dbg']+1}] sc1
    {lab['0']}:
    s_setprio 0
    """)
    stamp(a, opts, 3)
    bar(a, opts, 0)
    stamp(a, opts, 4)
    grab(a, opts, 0)
    a("s_setprio 2")
    seg0()
    a("s_setprio 0")
    a(f"""
    s_cmp_lg_u32 s{S_W}, 1
    s_cbranch_scc1 {lab['nf']}
    v_lshlrev_b32 v1, 2, v0
    v_add_u32 v1, {A_PUB}, v1
    ds_read_b32 v4, v1
    s_waitcnt vmcnt(0)
    """)
    nonce_check(a, 152)
    srd(a, SRD_T1, SP['ws'], 2048*8, WS_STAT)
    a(f"""
    s_lshl_b32 s32, s{S_RB}, 4
    s_add_u32 s32, s32, s{S_CT}
    s_lshl_b32 s32, s32, 6
    v_lshlrev_b32 v1, 3, v0
    v_mov_b32 v5, s70
    s_waitcnt lgkmcnt(0)
    s_mov_b64 exec, 0xff
    s_setprio 3
    buffer_store_dwordx2 v[4:5], v1, s[{SRD_T1}:{SRD_T1+3}], s32 offen sc1
    s_setprio 0
    s_mov_b64 exec, 1
    v_mov_b32 v1, {F_NON}
    ds_write_b64 v1, v[152:153]
    s_mov_b64 exec, -1
    s_waitcnt lgkmcnt(0)
    {lab['nf']}:
    """)
    bar(a, opts, 1)
    grab(a, opts, 1)
    a("s_setprio 2")
    seg1()
    a("s_setprio 0")
    a("s_waitcnt lgkmcnt(0)")
    bar(a, opts, 2)
    a("s_setprio 2")
    seg2()
    a(f"s_cmp_lg_u32 s{S_W}, 1")
    a(f"s_cbranch_scc1 {lab['rest']}")
    colsum_A(a, opts)
    a(f"{lab['rest']}:")
    a("s_setprio 0")
    bar(a, opts, 3)
    srd(a, SRD_T1, SP['ws'], 2048*8, WS_STAT)
    a(f"""
    v_mov_b32 v1, {F_NON}
    ds_read_b64 v[{V_NON}:{V_NON+1}], v1
    v_lshlrev_b32 v8, 4, v0
    s_lshl_b32 s72, s{S_RB}, 10            ; 128 rows * 8 B
    s_cmp_lg_u32 s{S_W}, 0
    s_cbranch_scc1 {lab['g1']}
    s_setprio 3
    buffer_load_dwordx4 v[12:15], v8, s[{SRD_T1}:{SRD_T1+3}], s72 offen sc1
    s_setprio 0
    {lab['g1']}:
    s_waitcnt lgkmcnt(0)
    """)
    bar(a, opts, 4)
    lp = a.label('schk'); ok = a.label('sok')
    a(f"""
    s_cmp_lg_u32 s{S_W}, 0
    s_cbranch_scc1 {lab['g2']}
    s_mov_b32 s75, 0
    {lp}:
    s_waitcnt vmcnt(0)
    v_cmp_ne_u32 vcc, v{V_NON}, v13
    v_cmp_ne_u32 s[32:33], v{V_NON}, v15
    s_or_b64 vcc, vcc, s[32:33]
    s_add_u32 s75, s75, 1
    s_cmp_eq_u64 vcc, 0
    s_cbranch_scc1 {ok}
    s_cmp_gt_u32 s75, {SPIN}
    s_cbranch_scc1 {ok}
    buffer_load_dwordx4 v[12:15], v8, s[{SRD_T1}:{SRD_T1+3}], s72 offen sc1
    s_branch {lp}
    {ok}:
    v_lshlrev_b32 v4, 16, v12
    v_and_b32 v5, 0xffff0000, v12
    v_lshlrev_b32 v6, 16, v14
    v_and_b32 v7, 0xffff0000, v14
    v_lshlrev_b32 v1, 4, v0
    v_add_u32 v1, {A_STATS}, v1
    ds_write_b128 v1, v[4:7]
    v_rcp_f32 v10, v5
    v_rcp_f32 v11, v7
    v_mov_b32 v5, v6
    v_lshlrev_b32 v1, 3, v0
    v_add_u32 v1, {A_M}, v1
    ds_write_b64 v1, v[4:5]
    ds_write_b64 v1, v[10:11] offset:512
    s_waitcnt lgkmcnt(0)
    {lab['g2']}:
    """)
    stamp(a, opts, 5)
    bar(a, opts, 5)
    srd(a, SRD_T0, SP['ws'], WS_XT_SZ, WS_XT)
    a(f"""
    v_lshrrev_b32 v3, 4, v0              ; G
    v_and_b32 v1, 15, v0
    s_and_b32 s7, s{S_W}, 1
    s_lshl_b32 s7, s7, 4
    v_add_u32 v1, s7, v1
    v_lshlrev_b32 v1, 12, v1
    v_lshlrev_b32 v5, 4, v3
    v_add_u32 v8, v1, v5
    s_lshl_b32 s32, s{S_SL}, 17
    s_lshl_b32 s33, s{S_RB}, 8
    s_add_u32 s32, s32, s33
    s_lshr_b32 s7, s{S_W}, 1
    s_lshl_b32 s33, s7, 7
    s_add_u32 s32, s32, s33
    v_lshlrev_b32 v9, 5, v3
    s_lshl_b32 s33, s7, 8
    s_add_u32 s33, s33, {A_M}
    v_add_u32 v9, s33, v9
    """)
    for r in range(2):
        M, R_ = 16 + 16*r, 24 + 16*r
        a(f"ds_read_b128 {v(M,4)}, v9 offset:{r*128}")
        a(f"ds_read_b128 {v(M+4,4)}, v9 offset:{r*128+16}")
        a(f"ds_read_b128 {v(R_,4)}, v9 offset:{512 + r*128}")
        a(f"ds_read_b128 {v(R_+4,4)}, v9 offset:{512 + r*128+16}")
    for r in range(2):
        M, R_ = 16 + 16*r, 24 + 16*r
        U = 48 + 12*r
        X = V_SL + 4*r
        for j in range(4):
            a(f"v_lshlrev_b32 v{U+2*j}, 16, v{X+j}")
            a(f"v_and_b32 v{U+2*j+1}, 0xffff0000, v{X+j}")
        a(f"s_waitcnt lgkmcnt({4*(1-r)})")
        for j in range(8): a(f"v_sub_f32 v{U+j}, v{U+j}, v{M+j}")
        for j in range(4): a(f"v_cvt_pk_bf16_f32 v{U+8+j}, v{U+2*j}, v{U+2*j+1}")
        for j in range(4):
            a(f"v_lshlrev_b32 v{U+2*j}, 16, v{U+8+j}")
            a(f"v_and_b32 v{U+2*j+1}, 0xffff0000, v{U+8+j}")
        for j in range(8): a(f"v_mul_f32 v{U+j}, v{U+j}, v{R_+j}")
        for j in range(4): a(f"v_cvt_pk_bf16_f32 v{U+8+j}, v{U+2*j}, v{U+2*j+1}")
        if not opts.get('lastfull', 0) and not opts.get('xlate'):
            a("s_setprio 3")
            a(f"buffer_store_dwordx4 {v(U+8,4)}, v8, s[{SRD_T0}:{SRD_T0+3}], s32 offen offset:{r*64} sc1")
            a("s_setprio 0")
    if opts.get('lastfull', 0):
        lds_spin_eq(a, F_DMAD, 4)
        a("s_setprio 3")
        for r in range(2):
            a(f"buffer_store_dwordx4 {v(48+12*r+8,4)}, v8, s[{SRD_T0}:{SRD_T0+3}], s32 offen offset:{r*64} sc1")
        a("s_setprio 0")
    bar(a, opts, 6)
    if opts.get('xlate'):
        lds_spin_eq(a, F_DMAD, 1)
        a("s_setprio 3")
        for r in range(2):
            a(f"buffer_store_dwordx4 {v(48+12*r+8,4)}, v8, s[{SRD_T0}:{SRD_T0+3}], s32 offen offset:{r*64} sc1")
        a("s_setprio 0")
        lds_inc(a, F_XST)
    bar(a, opts, 7)
    if not opts.get('xlate'): xnt_flag(a, opts)
    a(f"""
    s_and_b32 s7, s{S_W}, 1
    s_cmp_eq_u32 s7, 0
    s_cbranch_scc1 {lab['even']}
    v_lshlrev_b32 v1, 4, v0
    v_add_u32 v1, s{S_TB}, v1
    """)
    for T in range(8):
        a(f"ds_write_b128 v1, {v(ACC+4*T,4)} offset:{T*1024}")
    a("s_waitcnt lgkmcnt(0)")
    a(f"s_lshr_b32 s7, s{S_W}, 1")
    a(f"s_lshl_b32 s7, s7, 2")
    a(f"s_add_u32 s7, s7, {F_PRDY}")
    lds_set(a, "s7")
    a(f"{lab['even']}:")
    conv_F(a, opts)

def conv_F(a, opts):
    S_W, S_TBK = 68, 69
    S_TB, S_CH, S_RH, S_C = 70, 71, 72, 73
    ACC, AF, BF = 16, 48, 112
    VA, VB = 8, 12
    KACC = 80
    a(f"s_setprio {opts.get('kprio',0)}")
    a(f"""
    v_mov_b32 v1, {F_NON}
    ds_read_b64 v[{V_NON}:{V_NON+1}], v1
    s_sub_u32 s{S_WP}, s{S_WAVE}, 4
    s_lshr_b32 s{S_C}, s{S_W}, 1
    s_and_b32 s{S_RH}, s{S_W}, 1
    s_lshl_b32 s{S_CH}, s2, 1
    s_add_u32 s{S_CH}, s{S_CH}, s{S_C}      ; channel
    s_mul_i32 s{S_TB}, s{S_C}, {CT_SZ}
    s_add_u32 s{S_TB}, s{S_TB}, {F_CT}
    """)
    map_B(a)
    srd(a, SRD_WS, SP['ws'], 19*MB)
    odd = a.label('codd'); join = a.label('cjoin')
    a(f"s_cmp_eq_u32 s{S_RH}, 1")
    a(f"s_cbranch_scc1 {odd}")
    a(f"s_lshl_b32 s26, s{S_C}, 2")
    a(f"s_add_u32 s26, s26, {F_PRDY}")
    lds_spin(a, ["s26"])
    a(f"""
    v_lshlrev_b32 v1, 4, v0
    v_add_u32 v2, s{S_TBK}, v1
    """)
    for T in range(8):
        a(f"ds_read_b128 {v(16+4*T,4)}, v2 offset:{8192 + T*1024}")
    a(f"""
    v_and_b32 v2, 15, v0
    v_lshlrev_b32 v2, 5, v2               ; 32*j
    v_lshrrev_b32 v3, 4, v0
    v_lshlrev_b32 v3, 3, v3               ; 8*q
    v_add_u32 v2, v2, v3
    v_sub_u32 v2, {504}, v2               ; 4088 - 512*7 - (32 j + 8 q)
    s_add_u32 s7, s{S_TB}, {CT_V0}
    v_add_u32 v2, s7, v2
    """)
    for T in range(8):
        a(f"s_waitcnt lgkmcnt({7-T})")
        for i in range(4):
            a(f"v_add_f32 v{KACC+4*T+i}, v{KACC+4*T+i}, v{16+4*T+i}")
        a(f"v_cvt_pk_bf16_f32 v{48+2*T}, v{KACC+4*T+3}, v{KACC+4*T+2}")
        a(f"v_cvt_pk_bf16_f32 v{49+2*T}, v{KACC+4*T+1}, v{KACC+4*T}")
    for T in range(8):
        a(f"ds_write_b64 v2, {v(48+2*T,2)} offset:{(7-T)*512}")
    a(f"""
    v_mov_b32 v6, 0
    v_mov_b32 v7, 0
    v_lshlrev_b32 v3, 3, v0
    s_add_u32 s7, s{S_TB}, {CT_V0+4096}
    v_add_u32 v2, s7, v3
    s_mov_b64 exec, 0xff
    ds_write_b64 v2, v[6:7]
    ds_write_b64 v2, v[6:7] offset:{CT_V1-CT_V0}
    s_mov_b64 exec, -1
    s_add_u32 s7, s{S_TB}, {CT_V0}
    v_add_u32 v2, s7, v1
    """)
    for i in range(4):
        a(f"ds_read_b128 {v(16+8*i,4)}, v2 offset:{i*1024}")
        a(f"ds_read_b32 v{20+8*i}, v2 offset:{i*1024+16}")
    for i in range(4):
        a(f"s_waitcnt lgkmcnt({6-2*i})")
        for j in range(4):
            a(f"v_alignbit_b32 v{48+4*i+j}, v{16+8*i+j+1}, v{16+8*i+j}, 16")
    for i in range(4):
        a(f"ds_write_b128 v2, {v(48+4*i,4)} offset:{CT_V1-CT_V0 + i*1024}")
    a("s_waitcnt lgkmcnt(0)")
    a(f"s_lshl_b32 s7, s{S_C}, 2")
    a(f"s_add_u32 s7, s7, {F_KRDY}")
    lds_set(a, "s7")
    a(f"s_branch {join}")
    a(f"{odd}:")
    a(f"""
    v_lshlrev_b32 v1, 4, v0
    v_mov_b32 v16, 0
    v_mov_b32 v17, 0
    v_mov_b32 v18, 0
    v_mov_b32 v19, 0
    v_add_u32 v3, s{S_TB}, v1
    s_mov_b64 exec, 0x3fffffff
    ds_write_b128 v3, v[16:19] offset:{CT_U}
    s_mov_b64 exec, -1
    """)
    a(f"{join}:")
    a("s_waitcnt lgkmcnt(0)")
    if opts.get('xlate'): xnt_flag(a, opts)
    if opts.get('noconv'):
        a("s_waitcnt vmcnt(0)")
        a(f"s_branch {opts['lfinal']}")
    ev = a.label('cev')
    a(f"s_cmp_eq_u32 s{S_RH}, 0")
    a(f"s_cbranch_scc1 {ev}")
    a(f"""
    v_and_b32 v2, 15, v0
    v_lshlrev_b32 v2, 4, v2
    s_lshr_b32 s7, s2, 4
    v_add_u32 v2, s7, v2
    v_lshlrev_b32 v2, 7, v2
    v_add_u32 v2, {WS_FLAGX}, v2
    """)
    flag_poll(a, 2, 6)
    stamp(a, opts, 15)
    stamp(a, opts, 41, real=True)
    a(f"""
    s_lshl_b32 s26, s{S_CH}, 12
    s_add_u32 s26, s26, {WS_XT}
    v_lshlrev_b32 v1, 4, v0
    """)
    for i in range(4):
        a(f"buffer_load_dwordx4 {v(16+4*i,4)}, v1, s[{SRD_WS}:{SRD_WS+3}], s26 offen offset:{i*1024} sc1")
    a(f"v_add_u32 v3, s{S_TB}, v1")
    for i in range(4):
        a(f"s_waitcnt vmcnt({3-i})")
        a(f"ds_write_b128 v3, {v(16+4*i,4)} offset:{CT_U + 480 + i*1024}")
    a("s_waitcnt lgkmcnt(0)")
    a(f"s_lshl_b32 s7, s{S_C}, 2")
    a(f"s_add_u32 s7, s7, {F_URDY}")
    lds_set(a, "s7")
    a(f"{ev}:")
    a(f"""
    v_and_b32 v1, 15, v0                   ; b / a
    v_lshrrev_b32 v2, 4, v0                ; q
    v_lshrrev_b32 v3, 1, v1                ; beta
    v_lshlrev_b32 v6, 2, v2
    v_sub_u32 v6, v6, v3                   ; 4q - beta
    s_lshl_b32 s7, s{S_RH}, 6
    s_sub_u32 s7, {1015-128-48}, s7
    v_add_u32 v6, s7, v6
    v_lshlrev_b32 v6, 2, v6
    v_and_b32 v3, 1, v1
    v_xor_b32 v3, 1, v3
    v_mul_u32_u24 v3, {CT_V1-CT_V0}, v3
    v_add_u32 v6, v6, v3
    s_add_u32 s7, s{S_TB}, {CT_V0}
    v_add_u32 v{VA}, s7, v6
    v_subrev_u32 v{VA+1}, 1024, v{VA}
    v_subrev_u32 v{VA+2}, 2048, v{VA}
    v_subrev_u32 v{VA+3}, 3072, v{VA}
    v_lshlrev_b32 v3, 5, v1
    v_lshlrev_b32 v6, 4, v2
    v_add_u32 v3, v3, v6
    s_lshl_b32 s7, s{S_RH}, 8
    s_sub_u32 s7, {448-192}, s7
    s_add_u32 s7, s7, s{S_TB}
    v_add_u32 v{VB}, s7, v3
    """)
    for i in range(32): a(f"v_mov_b32 v{ACC+i}, 0")
    a(f"s_lshl_b32 s7, s{S_C}, 2")
    a(f"s_add_u32 s26, s7, {F_KRDY}")
    a(f"s_add_u32 s27, s7, {F_URDY}")
    lds_spin(a, ["s26", "s27"])
    a("s_waitcnt vmcnt(0)")
    stamp(a, opts, 16)
    a("v_lshlrev_b32 v5, 16, v151           ; Dskip")
    a(f"s_setprio {opts.get('cprio', 0)}")
    lg = LgTrack(a)
    def rdA(st, dl, rp):
        Dd, e = dl >> 1, dl & 1
        o = (1-e)*128 + (3-rp)*16
        r = AF + st*32 + dl*4
        return [(f"ds_read2_b32 {v(r,2)}, v{VA+Dd} offset0:{o} offset1:{o+1}", ('A', rp, dl)),
                (f"ds_read2_b32 {v(r+2,2)}, v{VA+Dd} offset0:{o+2} offset1:{o+3}", ('A', rp, dl))]
    def rdB(p, rp):
        return (f"ds_read_b128 {v(BF+p*4,4)}, v{VB} offset:{CT_U + 512*p + (3-rp)*64}", ('B', rp, p))
    def emit(x): a(x[0]); lg.op(x[1])
    emit(rdB(0, 0))
    for dl in range(8):
        for x in rdA(0, dl, 0): emit(x)
    for p in range(1, 8): emit(rdB(p, 0))
    for rp in range(4):
        st = rp & 1
        nxtA = []
        if rp < 3:
            for dl in range(8): nxtA += rdA(1-st, dl, rp+1)
        ni = 0
        for p in range(8):
            for dl in range(8-p):
                lg.wait([('A', rp, dl), ('B', rp, p)])
                a(f"v_mfma_f32_16x16x32_bf16 {v(ACC+4*(dl+p),4)}, {v(AF+st*32+dl*4,4)}, {v(BF+p*4,4)}, {v(ACC+4*(dl+p),4)}")
                if ni < len(nxtA): emit(nxtA[ni]); ni += 1
            if rp < 3: emit(rdB(p, rp+1))
    a(f"s_setprio {opts.get('pprio', 2)}")
    stamp(a, opts, 17)
    ex0 = a.label('ex0'); exd = a.label('exd')
    a(f"""
    v_lshlrev_b32 v13, 4, v0
    s_lshl_b32 s7, s{S_W}, 12
    s_add_u32 s7, s7, {F_EX}
    v_add_u32 v3, s7, v13
    s_cmp_eq_u32 s{S_RH}, 0
    s_nop 4
    s_cbranch_scc1 {ex0}
    """)
    for T in range(4): a(f"ds_write_b128 v3, {v(ACC+4*T,4)} offset:{T*1024}")
    for i in range(16): a(f"v_mov_b32 v{ACC+i}, v{ACC+16+i}")
    a(f"s_branch {exd}")
    a(f"{ex0}:")
    for T in range(4): a(f"ds_write_b128 v3, {v(ACC+16+4*T,4)} offset:{T*1024}")
    a(f"{exd}:")
    a("s_waitcnt lgkmcnt(0)")
    a(f"s_lshl_b32 s7, s{S_W}, 2")
    a(f"s_add_u32 s7, s7, {F_XFL}")
    lds_set(a, "s7")
    a(f"""
    s_xor_b32 s7, s{S_W}, 1
    s_lshl_b32 s26, s7, 2
    s_add_u32 s26, s26, {F_XFL}
    s_lshl_b32 s27, s7, 12
    s_add_u32 s27, s27, {F_EX}
    v_add_u32 v14, s27, v13
    """)
    lds_spin(a, ["s26"])
    for T in range(4): a(f"ds_read_b128 {v(32+4*T,4)}, v14 offset:{T*1024}")
    a(f"""
    v_and_b32 v1, 15, v0
    v_lshlrev_b32 v1, 5, v1
    v_lshrrev_b32 v2, 4, v0
    v_lshlrev_b32 v2, 3, v2
    v_add_u32 v1, v1, v2                   ; 2*(16a + 4q)
    s_lshl_b32 s7, s{S_RH}, 11
    s_add_u32 s24, s7, s{S_TB}
    v_add_u32 v2, s24, v1
    """)
    for k in range(4): a(f"ds_read_b64 {v(48+2*k,2)}, v2 offset:{CT_U + 480 + k*512}")
    if opts.get('ycomp', 1):
        a(f"""
        s_lshl_b32 s24, s{S_CH}, 12
        s_add_u32 s24, s24, {WS_Y}
        s_lshl_b32 s7, s{S_RH}, 11             ; 4 rh * 512
        s_add_u32 s24, s24, s7
        s_waitcnt lgkmcnt(0)
        """)
    else:
        a(f"""
        v_and_b32 v1, 15, v0
        v_lshlrev_b32 v1, 6, v1
        v_lshrrev_b32 v2, 4, v0
        v_lshlrev_b32 v2, 4, v2
        v_add_u32 v1, v1, v2
        s_lshl_b32 s24, s{S_CH}, 13
        s_add_u32 s24, s24, {WS_Y}
        s_lshl_b32 s7, s{S_RH}, 12
        s_add_u32 s24, s24, s7
        s_waitcnt lgkmcnt(0)
        """)
    for k in range(4):
        A = ACC + 4*k
        for i in range(4): a(f"v_add_f32 v{A+i}, v{A+i}, v{32+4*k+i}")
        U = 64
        a(f"v_cvt_pk_bf16_f32 v{U}, v{A}, v{A+1}")
        a(f"v_cvt_pk_bf16_f32 v{U+1}, v{A+2}, v{A+3}")
        for j in range(2):
            a(f"v_lshlrev_b32 v{U+2+2*j}, 16, v{48+2*k+j}")
            a(f"v_and_b32 v{U+3+2*j}, 0xffff0000, v{48+2*k+j}")
        for i in range(4): a(f"v_mul_f32 v{U+2+i}, v{U+2+i}, v5")
        a(f"v_cvt_pk_bf16_f32 v{U+6}, v{U+2}, v{U+3}")
        a(f"v_cvt_pk_bf16_f32 v{U+7}, v{U+4}, v{U+5}")
        for j in range(2):
            a(f"v_lshlrev_b32 v{U+2+2*j}, 16, v{U+6+j}")
            a(f"v_and_b32 v{U+3+2*j}, 0xffff0000, v{U+6+j}")
            a(f"v_lshlrev_b32 v{U+8+2*j}, 16, v{U+j}")
            a(f"v_and_b32 v{U+9+2*j}, 0xffff0000, v{U+j}")
        for i in range(4): a(f"v_add_f32 v{U+2+i}, v{U+2+i}, v{U+8+i}")
        O = 80 + 4*k
        a(f"v_cvt_pk_bf16_f32 v{O}, v{U+2}, v{U+3}")
        a(f"v_cvt_pk_bf16_f32 v{O+1}, v{U+4}, v{U+5}")
        if opts.get('ycomp', 1):
            a(f"buffer_store_dwordx2 {v(O,2)}, v1, s[{SRD_WS}:{SRD_WS+3}], s24 offen offset:{k*512} sc1")
        else:
            a(f"v_mov_b32 v{O+2}, v{V_NON}")
            a(f"v_mov_b32 v{O+3}, v{V_NON+1}")
            a(f"buffer_store_dwordx4 {v(O,4)}, v1, s[{SRD_WS}:{SRD_WS+3}], s24 offen offset:{k*1024} sc1")
    if opts.get('ycomp', 1):
        nfy = a.label('nfy')
        a("s_waitcnt vmcnt(0)")
        lds_count_last(a, F_CNTY, 4, nfy)
        flag_store(a, WS_FLAGY, "s2")
        a(f"{nfy}:")
    a(f"global_load_dwordx4 {v(V_XT,4)}, v{V_OFF}, s[{SP['x']}:{SP['x']+1}]")
    stamp(a, opts, 18)
    a("s_waitcnt vmcnt(0)")
    a(f"s_branch {opts['lfinal']}")

def final_F(a, opts):
    srd(a, SRD_O, SP['out'], 2097152)
    a(f"""
    s_and_b32 s7, s{S_WP}, 3
    s_lshl_b32 s7, s7, 4
    v_and_b32 v1, 15, v0
    v_add_u32 v2, s7, v1                  ; t
    v_mul_u32_u24 v2, {PROW}, v2
    s_lshr_b32 s24, s{S_WP}, 2
    s_lshl_b32 s24, s24, 2
    v_lshrrev_b32 v3, 4, v0
    v_add_u32 v3, s24, v3                 ; octet
    v_lshlrev_b32 v4, 5, v3
    v_add_u32 v2, v2, v4
    v_add_u32 v2, {F_P}, v2
    v_lshlrev_b32 v4, 3, v3
    v_lshrrev_b32 v5, 2, v1
    v_add_u32 v4, v4, v5
    v_mul_u32_u24 v4, 160, v4
    v_and_b32 v5, 3, v1
    v_lshlrev_b32 v5, 3, v5
    v_add_u32 v4, v4, v5
    s_lshl_b32 s7, s7, 1
    s_add_u32 s7, s7, {F_YT}
    v_add_u32 v4, s7, v4
    """)
    U = 56
    a("s_waitcnt vmcnt(4)") if False else None
    a("s_waitcnt lgkmcnt(0)")
    stamp(a, opts, 26)
    a("s_barrier")
    stamp(a, opts, 27)
    P = 16
    for pw in range(4):
        a(f"ds_read_b128 {v(P+8*pw,4)}, v2 offset:{pw*64*PROW}")
        a(f"ds_read_b128 {v(P+8*pw+4,4)}, v2 offset:{pw*64*PROW+16}")
    a(f"ds_read_b64_tr_b16 v[8:9], v4")
    a(f"ds_read_b64_tr_b16 v[10:11], v4 offset:{4*160}")
    for j in range(4):
        a(f"v_lshlrev_b32 v{U+2*j}, 16, v{V_XT+j}")
        a(f"v_and_b32 v{U+2*j+1}, 0xffff0000, v{V_XT+j}")
    a("s_waitcnt lgkmcnt(6)")
    for i in range(8): a(f"v_add_f32 v{P+i}, v{P+i}, v{P+8+i}")
    a("s_waitcnt lgkmcnt(2)")
    for i in range(8): a(f"v_add_f32 v{P+16+i}, v{P+16+i}, v{P+24+i}")
    for i in range(8): a(f"v_add_f32 v{P+i}, v{P+i}, v{P+16+i}")
    for j in range(4): a(f"v_cvt_pk_bf16_f32 v{48+j}, v{P+2*j}, v{P+2*j+1}")
    a("s_waitcnt lgkmcnt(0)")
    for j in range(4):
        a(f"v_lshlrev_b32 v{U+8+2*j}, 16, v{8+j}")
        a(f"v_and_b32 v{U+8+2*j+1}, 0xffff0000, v{8+j}")
    for i in range(8): a(f"v_add_f32 v{U+i}, v{U+i}, v{U+8+i}")
    for j in range(4): a(f"v_cvt_pk_bf16_f32 v{72+j}, v{U+2*j}, v{U+2*j+1}")
    for j in range(4):
        a(f"v_lshlrev_b32 v{U+2*j}, 16, v{72+j}")
        a(f"v_and_b32 v{U+2*j+1}, 0xffff0000, v{72+j}")
        a(f"v_lshlrev_b32 v{U+8+2*j}, 16, v{48+j}")
        a(f"v_and_b32 v{U+8+2*j+1}, 0xffff0000, v{48+j}")
    for i in range(8): a(f"v_add_f32 v{U+i}, v{U+i}, v{U+8+i}")
    for j in range(4): a(f"v_cvt_pk_bf16_f32 v{76+j}, v{U+2*j}, v{U+2*j+1}")
    a(f"buffer_store_dwordx4 v[76:79], v{V_OFF}, s[{SRD_O}:{SRD_O+3}], 0 offen {('', 'sc1', 'nt', 'sc0 sc1')[opts.get('osc', 0)]}")
    if opts.get('padto'):
        lp = a.label('pad')
        a(f"""
        s_waitcnt vmcnt(0)
        v_readfirstlane_b32 s28, v{V_NON}
        {lp}:
        s_memrealtime s[30:31]
        s_waitcnt lgkmcnt(0)
        s_sub_u32 s30, s30, s28
        s_cmp_lt_u32 s30, {opts['padto']}
        s_cbranch_scc1 {lp}
        """)
    stamp(a, opts, 28)
    if opts.get('ts'): a("s_waitcnt vmcnt(0)")
    stamp(a, opts, 8)
    stamp(a, opts, 7, real=True)
    stamp_flush(a, opts, 0)
    a("s_endpgm")

def gen_F(a, name, opts):
    import kerA
    MAP2[0] = opts.get('map2', 1)
    opts = dict(opts); opts['fused'] = 1
    opts['lfinal'] = a.label('final')
    if opts.get('cpf', 1):
        opts['abeg'] = name; opts['aend'] = 1
    a(kernel_head(name))
    lend = a.label('endF')
    kerA.prologue_A(a, lend, opts)
    lab = {k: a.label(k) for k in ('g','ld','h')}
    opts['lg2'] = a.label('gemm2')
    a(f"""
    s_cmp_lt_u32 s{S_WAVE}, 4
    s_cbranch_scc1 {lab['g']}
    s_cmp_lt_u32 s{S_WAVE}, 8
    s_cbranch_scc1 {lab['ld']}
    """)
    helper_F(a, opts)
    a(f"{lab['ld']}:"); kerA.loader_A(a, opts)
    a(f"s_branch {opts['lg2']}")
    a(f"{lab['g']}:"); kerA.gemm_A(a, opts)
    a(f"{opts['lg2']}:"); gemm2_F(a, opts)
    a(f"{opts['lfinal']}:"); final_F(a, opts)
    a(f"{lend}:")
    a("s_endpgm")
    a(".fill 3072, 4, 0xbf800000")
    a(kernel_desc(name, 168))
```

```python
from core import *
import struct
def f2u(x): return struct.unpack('<I', struct.pack('<f', x))[0]
def hx(x): return hex(f2u(x))

STAGE = 40960
A_KT   = 3*STAGE
A_STATS = A_KT + 32768
A_CS   = A_STATS + 1024
A_LDS  = A_CS + 768

S_WAVE, S_RB, S_CT, S_ROT = 3, 4, 5, 6
SRD_X, SRD_WG, SRD_WU, SRD_T0, SRD_T1, SRD_T2 = 8, 12, 16, 20, 24, 28

def prologue_A(a, lend, opts):
    a(f"""
    s_cmp_ge_u32 s2, 256
    s_cbranch_scc1 {lend}
    """)
    stamp_init(a, opts)
    stamp(a, opts, 10, real=True)
    stamp(a, opts, 0)
    a(f"""
    s_load_dwordx16 s[36:51], s[0:1], 0
    s_load_dwordx16 s[52:67], s[0:1], 64
    """)
    if opts.get('aend') and opts.get('earlypf', 1):
        pc = a.label('pc0')
        a(f"""
        s_getpc_b64 s[74:75]
        {pc}:
        s_add_u32 s74, s74, {opts['abeg']}-{pc}
        s_addc_u32 s75, s75, -1
        s_lshr_b32 s76, s2, 3
        s_and_b32 s76, s76, 3
        s_mul_i32 s76, s76, 96
        v_lshrrev_b32 v1, 6, v0
        v_lshlrev_b32 v1, 3, v1
        v_and_b32 v2, 7, v0
        v_add_u32 v1, v1, v2
        v_add_u32 v1, s76, v1
        v_lshlrev_b32 v1, 6, v1
        v_and_b32 v2, 63, v0
        v_cmp_gt_u32 vcc, 8, v2
        s_and_saveexec_b64 s[76:77], vcc
        global_load_dword v166, v1, s[74:75]
        s_mov_b64 exec, s[76:77]
        """)
    a(f"""
    v_lshrrev_b32 v1, 6, v0
    v_and_b32 v0, 63, v0
    s_and_b32 s7, s2, 7
    v_readfirstlane_b32 s{S_WAVE}, v1
    s_lshr_b32 s24, s2, 3
    s_and_b32 s25, s7, 1
    s_lshl_b32 s25, s25, 3
    s_and_b32 s26, s24, 7
    s_add_u32 s{S_RB}, s25, s26
    s_lshr_b32 s25, s7, 1
    s_lshl_b32 s25, s25, 2
    s_lshr_b32 s26, s24, 3
    s_add_u32 s{S_CT}, s25, s26
    s_lshl_b32 s25, s{S_CT}, 1
    s_add_u32 s25, s25, s{S_RB}
    s_and_b32 s{S_ROT}, s25, {opts.get('rotmask', 7)}
    """)

def loader_A(a, opts):
    SJ, SXB, SWB, SLX, SLW, ST, SXO, SWO, SCC, SSTG = 68, 25, 26, 27, 28, 29, 30, 31, 32, 33
    a(f"""
    s_sub_u32 s{SJ}, s{S_WAVE}, 4
    v_lshrrev_b32 v6, 3, v0
    v_lshlrev_b32 v2, 10, v6
    v_and_b32 v6, 7, v0
    v_lshrrev_b32 v7, 4, v0
    v_xor_b32 v6, v6, v7
    v_lshlrev_b32 v6, 4, v6
    v_add_u32 v2, v2, v6
    v_xor_b32 v3, 64, v2
    v_lshrrev_b32 v6, 2, v0
    s_movk_i32 s{ST}, 2752
    v_mul_lo_u32 v4, v6, s{ST}
    v_and_b32 v6, 3, v0
    v_lshlrev_b32 v7, 4, v6
    v_xor_b32 v6, 2, v6
    v_lshlrev_b32 v6, 4, v6
    v_add_u32 v5, v4, v6
    v_add_u32 v4, v4, v7
    s_lshl_b32 s{SXB}, s{S_RB}, 17
    s_lshl_b32 s{ST}, s{SJ}, 15
    s_add_u32 s{SXB}, s{SXB}, s{ST}
    s_mul_i32 s{SWB}, s{SJ}, {16*2752}
    s_mul_i32 s{ST}, s{S_CT}, 192
    s_add_u32 s{SWB}, s{SWB}, s{ST}
    s_lshl_b32 s{SLX}, s{SJ}, 12
    s_lshl_b32 s{SLW}, s{SJ}, 10
    s_add_u32 s{SLW}, s{SLW}, 16384
    s_mov_b32 s{SCC}, s{S_ROT}
    s_waitcnt lgkmcnt(0)
    """)
    srd(a, SRD_X, SP['x'], 2097152)
    srd(a, SRD_WG, SP['wg'], 1409024)
    srd(a, SRD_WU, SP['wu'], 1409024)
    def setup(stage_off):
        a(f"""
        s_lshl_b32 s{SXO}, s{SCC}, 7
        s_add_u32 s{SXO}, s{SXO}, s{SXB}
        s_mul_i32 s{SWO}, s{SCC}, {64*2752}
        s_add_u32 s{SWO}, s{SWO}, s{SWB}
        s_add_u32 s34, s{SLX}, {stage_off}
        s_add_u32 s35, s{SLW}, {stage_off}
        s_add_u32 s{SCC}, s{SCC}, 1
        s_and_b32 s{SCC}, s{SCC}, 7
        """)
    def dma(k):
        if opts.get('nodma') and dma.n >= 13:
            return
        dma.n += 1
        order = [('x',0),('g',0),('u',0),('x',1),('g',1),('u',1),('x',2),('g',2),('u',2),('x',3)]
        t, i = order[k]
        if t == 'x':
            a(f"s_add_u32 m0, s34, {i*1024}")
            a(f"s_add_u32 s{ST}, s{SXO}, {i*8192}")
            a(f"buffer_load_dwordx4 v{2+(i&1)}, s[{SRD_X}:{SRD_X+3}], s{ST} offen lds")
        elif t == 'g':
            a(f"s_add_u32 m0, s35, {i*4096}")
            a(f"s_add_u32 s{ST}, s{SWO}, {i*64}")
            a(f"buffer_load_dwordx4 v4, s[{SRD_WG}:{SRD_WG+3}], s{ST} offen lds")
        else:
            a(f"s_add_u32 m0, s35, {i*4096+12288}")
            a(f"s_add_u32 s{ST}, s{SWO}, {i*64}")
            a(f"buffer_load_dwordx4 v5, s[{SRD_WU}:{SRD_WU+3}], s{ST} offen lds")
    dma.n = 0
    H = opts.get('half', 3)
    for _ in range(opts.get('ldelay', 0)): a("s_sleep 2")
    stamp(a, opts, 1)
    setup(0)
    for k in range(10): dma(k)
    setup(STAGE)
    for k in range(H): dma(k)
    stamp(a, opts, 2)
    a(f"s_waitcnt vmcnt({H})")
    stamp(a, opts, 3)
    a("s_barrier")
    lp = a.label('ldloop')
    a(f"s_mov_b32 s{SSTG}, {2*STAGE}")
    a(f"s_mov_b32 s7, 0")
    a(f"{lp}:")
    for k in range(H, 10): dma(k)
    setup(f"s{SSTG}")
    for k in range(H): dma(k)
    if opts.get('tsl'):
        a("s_add_u32 s90, s7, 16"); stamp(a, opts, "s90")
    a(f"s_waitcnt vmcnt({H})")
    if opts.get('tsl'):
        a("s_add_u32 s90, s7, 24"); stamp(a, opts, "s90")
    if opts.get('tsb'):
        a("s_add_u32 s90, s7, 33"); stamp(a, opts, "s90")
    a("s_barrier")
    a(f"""
    s_add_u32 s{SSTG}, s{SSTG}, {STAGE}
    s_cmp_eq_u32 s{SSTG}, {3*STAGE}
    s_cselect_b32 s{SSTG}, 0, s{SSTG}
    s_add_u32 s7, s7, 1
    s_cmp_lt_u32 s7, {5 if opts.get('lastfull', 0) and opts.get('fused') else 6}
    s_cbranch_scc1 {lp}
    """)
    if opts.get('lastfull', 0) and opts.get('fused'):
        from kerF import lds_inc, F_DMAD
        for k in range(H, 10): dma(k)
        setup(f"s{SSTG}")
        for k in range(10): dma(k)
        from kerA_help import cs_gather_early
        cs_gather_early(a, opts, SJ)
    else:
        for k in range(H, 10): dma(k)
    stamp(a, opts, 4)
    from kerA_help import loader_tail_A
    loader_tail_A(a, opts, SJ, 10-H)

def stats_produce(a, opts):
    X = 8
    a(f"""
    s_setprio 3
    v_lshrrev_b32 v1, 5, v0
    v_lshlrev_b32 v1, 10, v1
    v_and_b32 v2, 31, v0
    v_lshlrev_b32 v2, 4, v2
    v_add_u32 v1, v1, v2
    s_lshl_b32 s7, s{S_RB}, 4
    s_add_u32 s7, s7, s{S_CT}
    s_lshl_b32 s7, s7, 3
    s_lshl_b32 s33, s{S_WAVE}, 1
    s_add_u32 s7, s7, s33           ; row0
    s_lshl_b32 s33, s7, 10
    v_add_u32 v1, s33, v1
    s_waitcnt lgkmcnt(0)
    global_load_dwordx4 {v(X,4)}, v1, s[{SP['x']}:{SP['x']+1}]
    global_load_dwordx4 {v(X+4,4)}, v1, s[{SP['x']}:{SP['x']+1}] offset:512
    s_setprio 0
    """)
    stamp(a, opts, 1)

def stats_finish(a, opts):
    from kerA_help import A_PUB as A_PUB_
    X = 8; U = 16
    a("s_waitcnt vmcnt(0)")
    for j in range(8):
        a(f"v_lshlrev_b32 v{U+2*j}, 16, v{X+j}")
        a(f"v_and_b32 v{U+2*j+1}, 0xffff0000, v{X+j}")
    a(f"v_add_f32 v2, v{U}, v{U+1}")
    a(f"v_add_f32 v3, v{U+2}, v{U+3}")
    for j in range(2, 8):
        a(f"v_add_f32 v{2+(j&1)}, v{2+(j&1)}, v{U+2*j}")
        a(f"v_add_f32 v{2+(j&1)}, v{2+(j&1)}, v{U+2*j+1}")
    def red32(r):
        a("s_nop 1")
        a(f"v_add_f32_dpp v{r}, v{r}, v{r} quad_perm:[1,0,3,2] row_mask:0xf bank_mask:0xf")
        a("s_nop 1")
        a(f"v_add_f32_dpp v{r}, v{r}, v{r} quad_perm:[2,3,0,1] row_mask:0xf bank_mask:0xf")
        a("s_nop 1")
        a(f"v_add_f32_dpp v{r}, v{r}, v{r} row_half_mirror row_mask:0xf bank_mask:0xf")
        a("s_nop 1")
        a(f"v_add_f32_dpp v{r}, v{r}, v{r} row_mirror row_mask:0xf bank_mask:0xf")
        a(f"v_mov_b32 v5, v{r}")
        a("s_nop 1")
        a(f"v_permlane16_swap_b32 v{r}, v5")
        a("s_nop 1")
        a(f"v_add_f32 v{r}, v{r}, v5")
    a("v_add_f32 v2, v2, v3")
    red32(2)
    a("v_mul_f32 v2, 0x3b000000, v2        ; mean")
    a("v_mov_b32 v3, 0")
    a("v_mov_b32 v4, 0")
    for i in range(16):
        a(f"v_sub_f32 v{U+i}, v{U+i}, v2")
    for i in range(16):
        a(f"v_fmac_f32 v{3+(i&1)}, v{U+i}, v{U+i}")
    a("v_add_f32 v4, v4, v3")
    red32(4)
    a(f"""
    v_mul_f32 v4, 0x3b000000, v4          ; var
    v_cvt_pk_bf16_f32 v2, v2, v4
    v_and_b32 v4, 0xffff0000, v2
    v_add_f32 v4, {hx(1e-5)}, v4
    v_cvt_pk_bf16_f32 v4, v4, v4
    v_and_b32 v4, 0xffff0000, v4
    v_sqrt_f32 v4, v4
    v_and_b32 v2, 0xffff, v2
    v_cvt_pk_bf16_f32 v4, v4, v4
    v_and_b32 v4, 0xffff0000, v4
    v_or_b32 v2, v2, v4
    v_lshrrev_b32 v1, 5, v0
    s_lshl_b32 s33, s{S_WAVE}, 1
    v_add_u32 v1, s33, v1
    v_lshlrev_b32 v1, 2, v1
    v_add_u32 v1, {A_PUB_}, v1
    ds_write_b32 v1, v2
    s_waitcnt lgkmcnt(0)
    """)

V_WF = 8
V_XF = 32
V_XA = 48
V_WA = 52
V_ACC = 64
def wf(st, mi): return V_WF + st*12 + mi*4
def xf(st, n): return V_XF + st*8 + n*4
def acc(mi, n): return V_ACC + (mi*2+n)*16

def gemm_A(a, opts):
    S_DELTA, S_STG, S_CNT, S_TW, S_FW = 25, 26, 27, 68, 69
    stats_produce(a, opts)
    a("s_mov_b32 s88, s7")
    if opts.get('aend') and not opts.get('earlypf', 1):
        pc = a.label('pc')
        a(f"""
        s_getpc_b64 s[74:75]
        {pc}:
        s_add_u32 s74, s74, {opts['abeg']}-{pc}
        s_addc_u32 s75, s75, -1
        s_lshr_b32 s76, s2, 3
        s_and_b32 s76, s76, 1
        s_lshl_b32 s76, s76, 2
        s_add_u32 s76, s76, s{S_WAVE}
        s_min_u32 s76, s76, {6 if opts.get('fused') else 5}
        s_lshl_b32 s76, s76, 12
        v_lshlrev_b32 v6, 6, v0
        v_add_u32 v6, s76, v6
        global_load_dword v7, v6, s[74:75]
        """)
    srd(a, SRD_T0, SP['ws'], WS_H_SZ, WS_H)
    a(f"""
    s_and_b32 s{S_TW}, s{S_WAVE}, 1
    s_lshr_b32 s{S_FW}, s{S_WAVE}, 1
    s_mov_b32 s30, {-2*STAGE & 0xffffffff}
    s_mov_b32 s31, {STAGE}
    v_and_b32 v1, 31, v0
    v_lshrrev_b32 v2, 5, v0
    v_lshrrev_b32 v3, 1, v1
    v_and_b32 v3, 7, v3
    s_lshl_b32 s7, s{S_TW}, 6
    v_add_u32 v4, s7, v1
    v_lshlrev_b32 v4, 7, v4
    """)
    for s_ in range(4):
        a(f"v_add_u32 v5, {2*s_}, v2")
        a(f"v_xor_b32 v5, v5, v3")
        a(f"v_lshlrev_b32 v5, 4, v5")
        a(f"v_add_u32 v{V_XA+s_}, v4, v5")
    a(f"""
    v_lshrrev_b32 v3, 4, v0
    v_and_b32 v3, 1, v3                    ; gu
    v_mul_u32_u24 v4, 12288, v3
    v_lshlrev_b32 v5, 9, v2
    v_add_u32 v4, v4, v5
    v_and_b32 v5, 15, v0
    v_lshrrev_b32 v6, 2, v5
    v_lshlrev_b32 v6, 6, v6
    v_add_u32 v4, v4, v6
    v_and_b32 v5, 3, v5
    v_lshlrev_b32 v5, 3, v5
    v_add_u32 v4, v4, v5
    v_add_u32 v4, 16384, v4
    s_mul_i32 s7, s{S_FW}, 3
    """)
    for mi in range(3):
        a(f"""
        s_add_u32 s32, s7, {mi}
        s_lshr_b32 s33, s32, 1
        s_lshl_b32 s33, s33, 12            ; P*4096
        s_and_b32 s32, s32, 1              ; b
        v_xor_b32 v5, s32, v3
        v_lshlrev_b32 v5, 5, v5
        v_add_u32 v5, s33, v5
        v_add_u32 v{V_WA+mi}, v4, v5
        """)
    for i in range(96): a(f"v_mov_b32 v{V_ACC+i}, 0")
    if opts.get('fused'):
        from kerF import F_SY
        a(f"""
        v_lshlrev_b32 v5, 2, v0
        v_add_u32 v5, {F_SY}, v5
        v_mov_b32 v6, 0
        s_mov_b64 exec, 0xffffffff
        ds_write_b32 v5, v6
        s_mov_b64 exec, -1
        """)
    a("s_mov_b32 s7, s88")
    stats_finish(a, opts)
    stamp(a, opts, 5)
    def reads(st, s_):
        r = []
        r.append(f"ds_read_b128 {v(xf(st,0),4)}, v{V_XA+s_}")
        for mi in range(3):
            off = s_*1024
            r.append(f"ds_read_b64_tr_b16 {v(wf(st,mi),2)}, v{V_WA+mi} offset:{off}")
            r.append(f"ds_read_b64_tr_b16 {v(wf(st,mi)+2,2)}, v{V_WA+mi} offset:{off+256}")
            if mi == 0:
                r.append(f"ds_read_b128 {v(xf(st,1),4)}, v{V_XA+s_} offset:4096")
        return r
    def step(st, rd, extra=()):
        mf = []
        for mi in range(3):
            for n in range(2):
                if opts.get('fake16'):
                    A_ = acc(mi,n)
                    mf.append(f"v_mfma_f32_16x16x32_bf16 {v(A_,4)}, {v(wf(st,mi),4)}, {v(xf(st,n),4)}, {v(A_,4)}\nv_mfma_f32_16x16x32_bf16 {v(A_+8,4)}, {v(xf(st,n),4)}, {v(wf(st,mi),4)}, {v(A_+8,4)}")
                else:
                    mf.append(f"v_mfma_f32_32x32x16_bf16 {v(acc(mi,n),16)}, {v(wf(st,mi),4)}, {v(xf(st,n),4)}, {v(acc(mi,n),16)}")
        rd = list(extra) + list(rd)
        cnts = opts.get('rdsched', (2,2,2,2,0,0))
        if extra: cnts = (4,4,3,3,0,0)
        slots = [[] for _ in range(6)]
        ri = 0
        for k, cnt in enumerate(cnts):
            slots[k] += rd[ri:ri+cnt]; ri += cnt
        slots[5] += rd[ri:]
        for k in range(6):
            if not opts.get('nomfma'): a(mf[k])
            elif opts.get('nomfma') == 2 and k % 2 == 0: a(mf[k])
            for l in slots[k]: a(l)
    if opts.get('fused') and opts.get('skipidle', 1):
        from kerF import F_GDN
        busy = a.label('busy'); lidle = a.label('idle')
        opts['lgpub'] = a.label('gpub')
        a(f"""
        s_lshl_b32 s7, s{S_CT}, 1
        s_add_u32 s7, s7, s{S_FW}
        s_cmp_lt_u32 s7, 29
        s_cbranch_scc1 {busy}
        s_mov_b32 s7, 8
        {lidle}:
        s_barrier
        s_sub_u32 s7, s7, 1
        s_cmp_lg_u32 s7, 0
        s_cbranch_scc1 {lidle}
        v_mov_b32 v1, {F_GDN}
        v_mov_b32 v2, 1
        s_mov_b64 exec, 1
        ds_add_u32 v1, v2
        s_mov_b64 exec, -1
        s_branch {opts['lgpub']}
        {busy}:
        """)
    stamp(a, opts, 2)
    a("s_barrier")
    stamp(a, opts, 3)
    stamp(a, opts, 12, real=True)
    dbgstamp(a, opts, 2, wave=0)
    for l in reads(0, 0): a(l)
    lp = a.label('gloop'); lend = a.label('gend')
    a(f"s_mov_b32 s{S_CNT}, 0")
    a(f"s_mov_b32 s{S_STG}, 0")
    a(f"{lp}:")
    for s_ in range(3):
        a("s_waitcnt lgkmcnt(0)")
        step(s_ & 1, reads((s_+1) & 1, s_+1))
    a("s_waitcnt lgkmcnt(0)")
    a(f"s_cmp_eq_u32 s{S_CNT}, 7")
    a(f"s_cbranch_scc1 {lend}")
    if opts.get('tsg'):
        a(f"s_add_u32 s90, s{S_CNT}, 16"); stamp(a, opts, "s90")
    a("s_barrier")
    if opts.get('tsg'):
        a(f"s_add_u32 s90, s{S_CNT}, 24"); stamp(a, opts, "s90")
    a(f"""
    s_add_u32 s{S_STG}, s{S_STG}, {STAGE}
    s_cmp_eq_u32 s{S_STG}, {3*STAGE}
    s_cselect_b32 s{S_DELTA}, s30, s31
    s_cselect_b32 s{S_STG}, 0, s{S_STG}
    s_add_u32 s{S_CNT}, s{S_CNT}, 1
    """)
    adv = [f"v_add_u32 v{V_XA+k}, s{S_DELTA}, v{V_XA+k}" for k in range(4)] + [f"v_add_u32 v{V_WA+k}, s{S_DELTA}, v{V_WA+k}" for k in range(3)]
    adv = [adv[0], adv[4], adv[5], adv[6], adv[1], adv[2], adv[3]]
    for l in adv[:4]: a(l)
    step(1, reads(0, 0) + adv[4:])
    a(f"s_branch {lp}")
    a(f"{lend}:")
    early = opts.get('fused') and opts.get('escal', 1)
    if early:
        a(f"""
        v_and_b32 v1, 31, v0
        s_lshl_b32 s7, s{S_TW}, 6
        v_add_u32 v1, s7, v1
        v_lshlrev_b32 v2, 3, v1
        v_add_u32 v2, {A_STATS}, v2
        ds_read_b64 v[8:9], v2
        ds_read_b64 v[10:11], v2 offset:256
        """)
    step(1, [])
    K1 = -2*0.7978845608028654*1.4426950408889634
    def scalars():
        for n in range(2):
            b = 12 + 8*n
            m_, s_ = 8+2*n, 9+2*n
            a(f"""
            v_mov_b32 v{b}, v{m_}
            v_rcp_f32 v1, v{s_}
            v_mul_f32 v{b+6}, v{s_}, v{s_}
            v_mul_f32 v{b+2}, {hx(K1)}, v1
            v_mul_f32 v2, v1, v1
            v_mul_f32 v2, {hx(0.044715)}, v2
            v_mul_f32 v{b+4}, v{b+2}, v2
            """)
    if early:
        a("s_waitcnt lgkmcnt(0)")
        scalars()
    split = opts.get('fused') and opts.get('esplit', 0)
    if split:
        from kerF import F_EHB, F_EHF, lds_set
        a(f"""
        v_lshlrev_b32 v1, 4, v0
        s_lshl_b32 s7, s{S_WAVE}, 13
        s_add_u32 s7, s7, {F_EHB}
        v_add_u32 v3, s7, v1
        """)
        for n in range(2):
            for g in range(4):
                a(f"ds_write_b128 v3, {v(acc(2,n)+4*g,4)} offset:{(n*4+g)*1024}")
        a("s_waitcnt lgkmcnt(0)")
        a(f"s_lshl_b32 s7, s{S_WAVE}, 2")
        a(f"s_add_u32 s7, s7, {F_EHF}")
        lds_set(a, "s7")
    stamp(a, opts, 4)
    stamp(a, opts, 13, real=True)
    dbgstamp(a, opts, 3, wave=0)
    if opts.get('fused'):
        from kerF import F_GDN, F_CSR, lds_spin
        a(f"""
        v_mov_b32 v1, {F_GDN}
        v_mov_b32 v2, 1
        s_mov_b64 exec, 1
        ds_add_u32 v1, v2
        s_mov_b64 exec, -1
        """)
        lds_spin(a, [F_CSR])
    else:
        a("s_barrier")
    if opts.get('eprio'): a(f"s_setprio {opts['eprio']}")
    stamp(a, opts, 9)
    stamp(a, opts, 43, real=True)
    if opts.get('epi2'):
        a("s_mov_b32 s87, 0")
        a("L_epi_again:")
    if not early:
        a(f"""
        v_and_b32 v1, 31, v0
        s_lshl_b32 s7, s{S_TW}, 6
        v_add_u32 v1, s7, v1
        v_lshlrev_b32 v2, 3, v1
        v_add_u32 v2, {A_STATS}, v2
        ds_read_b64 v[8:9], v2
        ds_read_b64 v[10:11], v2 offset:256
        """)
    a(f"""
    v_lshrrev_b32 v3, 5, v0
    v_lshlrev_b32 v3, 4, v3
    s_mul_i32 s7, s{S_FW}, 384
    s_add_u32 s7, s7, {A_CS}
    v_add_u32 v3, s7, v3
    v_lshlrev_b32 v4, 4, v0
    """)
    CSR = 32
    def cs_read(mi):
        for g in range(4):
            a(f"ds_read_b128 {v(CSR+4*g,4)}, v3 offset:{mi*128+g*32}")
    cs_read(0)
    if not early:
        a("s_waitcnt lgkmcnt(4)")
        scalars()
    S_T0, S_T1, S_TT = 28, 29, 32
    a(f"""
    s_lshl_b32 s{S_TT}, s{S_RB}, 2
    s_lshl_b32 s7, s{S_TW}, 1
    s_add_u32 s{S_TT}, s{S_TT}, s7
    s_mul_i32 s{S_TT}, s{S_TT}, 86          ; (4rb+2tw)*86
    s_mul_i32 s{S_T0}, s{S_CT}, 6
    s_mul_i32 s7, s{S_FW}, 3
    s_add_u32 s{S_T0}, s{S_T0}, s7
    """)
    T = 48
    OUTS = (28, 160)
    NMI = 2 if split else 3
    for mi in range(NMI):
        skip = a.label('skip')
        a("s_waitcnt lgkmcnt(0)")
        for n in range(2):
            b = 12 + 8*n
            A = acc(mi, n)
            for p in range(8):
                a(f"v_pk_fma_f32 {v(A+2*p,2)}, {v(CSR+2*p,2)}, {v(b,2)}, {v(A+2*p,2)} op_sel_hi:[1,0,1] neg_lo:[0,1,0] neg_hi:[0,1,0]")
        if mi < NMI-1: cs_read(mi+1)
        for p in range(4):
            regs = []
            for n in range(2):
                A = acc(mi, n); b = 12 + 8*n
                regs.append((A+2*p, A+8+2*p, b, T+8*n))
            for (g_, u_, b, t) in regs: a(f"v_pk_mul_f32 {v(t,2)}, {v(g_,2)}, {v(g_,2)}")
            for (g_, u_, b, t) in regs: a(f"v_pk_fma_f32 {v(t,2)}, {v(t,2)}, {v(b+4,2)}, {v(b+2,2)} op_sel_hi:[1,0,0]")
            for (g_, u_, b, t) in regs: a(f"v_pk_mul_f32 {v(t,2)}, {v(t,2)}, {v(g_,2)}")
            for (g_, u_, b, t) in regs: a(f"v_pk_mul_f32 {v(t+2,2)}, {v(g_,2)}, {v(u_,2)}")
            for (g_, u_, b, t) in regs:
                a(f"v_exp_f32 v{t}, v{t}")
                a(f"v_exp_f32 v{t+1}, v{t+1}")
            for (g_, u_, b, t) in regs: a(f"v_pk_fma_f32 {v(t,2)}, {v(t,2)}, {v(b+6,2)}, {v(b+6,2)} op_sel_hi:[1,0,0]")
            for (g_, u_, b, t) in regs:
                a(f"v_rcp_f32 v{t}, v{t}")
                a(f"v_rcp_f32 v{t+1}, v{t+1}")
            for (g_, u_, b, t) in regs: a(f"v_pk_mul_f32 {v(t+2,2)}, {v(t+2,2)}, {v(t,2)}")
            for n, (g_, u_, b, t) in enumerate(regs): a(f"v_cvt_pk_bf16_f32 v{OUTS[n]+p}, v{t+2}, v{t+3}")
        a(f"s_add_u32 s7, s{S_T0}, {mi}")
        a(f"s_cmp_ge_u32 s7, 86")
        a(f"s_cbranch_scc1 {skip}")
        a(f"s_add_u32 s7, s7, s{S_TT}")
        a(f"s_lshl_b32 s7, s7, 10")
        sc = " sc1" if opts.get('fused') else ""
        a(f"buffer_store_dwordx4 {v(OUTS[0],4)}, v4, s[{SRD_T0}:{SRD_T0+3}], s7 offen{sc}")
        a(f"s_add_u32 s7, s7, {86*1024}")
        a(f"buffer_store_dwordx4 {v(OUTS[1],4)}, v4, s[{SRD_T0}:{SRD_T0+3}], s7 offen{sc}")
        a(f"{skip}:")
        a("s_nop 1")
    if opts.get('epi2'):
        a("s_add_u32 s90, s87, 14"); stamp(a, opts, "s90")
        a("s_add_u32 s87, s87, 1")
        a("s_cmp_lt_u32 s87, 2")
        a("s_cbranch_scc1 L_epi_again")
    stamp(a, opts, 6)
    stamp(a, opts, 44, real=True)
    dbgstamp(a, opts, 4, wave=0)
    if opts.get('fused'):
        from kerF import gpub_F
        if opts.get('lgpub'): a(f"{opts['lgpub']}:")
        gpub_F(a, opts)
        return
    if opts.get('ts'): a("s_waitcnt vmcnt(0)")
    stamp(a, opts, 8)
    stamp(a, opts, 7, real=True)
    stamp_flush(a, opts, 0)
    a("s_endpgm")

from kerA_help import helper_A, loader_tail_A, A_M, A_R, A_PUB, A_LDS as A_LDS2

def gen_A(a, name, opts):
    a(kernel_head(name))
    if opts.get('cpf', 1):
        opts = dict(opts); opts['abeg'] = name; opts['aend'] = 1
    lend = a.label('endA')
    prologue_A(a, lend, opts)
    lab = {k: a.label(k) for k in ('g','ld','h')}
    a(f"""
    s_cmp_lt_u32 s{S_WAVE}, 4
    s_cbranch_scc1 {lab['g']}
    s_cmp_ge_u32 s{S_WAVE}, 8
    s_cbranch_scc1 {lab['h']}
    """)
    loader_A(a, opts)
    a(f"{lab['h']}:"); helper_A(a, opts)
    a(f"{lab['g']}:"); gemm_A(a, opts)
    a(f"{lend}:")
    a("s_endpgm")
    a(kernel_desc(name, 168))
```

```python
from core import *
import struct
def f2u(x): return struct.unpack('<I', struct.pack('<f', x))[0]
def hx(x): return hex(f2u(x))
STAGE = 40960
A_KT = 3*STAGE; A_STATS = A_KT + 32768; A_CS = A_STATS + 1024
A_M = A_CS + 768; A_R = A_M + 512; A_PUB = A_R + 512; A_LDS = A_PUB + 64
S_WAVE, S_RB, S_CT, S_ROT = 3, 4, 5, 6
SRD_X, SRD_WG, SRD_WU, SRD_T0, SRD_T1, SRD_T2 = 8, 12, 16, 20, 24, 28
LOG2E = 1.4426950408889634
INV2PI = 0.15915494309189535

def cmul(a, dst, p, q, tmp):
    a(f"v_pk_mul_f32 {v(tmp,2)}, {v(p,2)}, {v(q,2)} op_sel:[0,0] op_sel_hi:[0,1]")
    a(f"v_pk_fma_f32 {v(dst,2)}, {v(p,2)}, {v(q,2)}, {v(tmp,2)} op_sel:[1,1,0] op_sel_hi:[1,0,1] neg_lo:[1,0,0]")

def kgen(a, opts):
    S_W, S_TB = 68, 69
    A2, B2, W, Z1, Z2, Z4, Z8, Z16, Z256 = 16, 17, 18, 20, 22, 24, 26, 28, 30
    C0, C1, T0, T1, BH = 32, 34, 36, 38, 40
    WA, RA, VF, UF, ACC = 44, 48, 56, 72, 80
    WB = 144
    PK = 112
    a(f"""
    s_setprio 3
    s_sub_u32 s{S_W}, s{S_WAVE}, 8
    s_lshr_b32 s7, s{S_W}, 1
    s_lshl_b32 s32, s2, 1
    s_add_u32 s32, s32, s7              ; channel d
    s_and_b32 s7, s{S_W}, 1
    s_lshl_b32 s7, s7, 7
    s_lshl_b32 s33, s32, 8              ; d*128*2
    s_add_u32 s33, s33, s7
    v_lshlrev_b32 v1, 1, v0
    v_add_u32 v1, s33, v1
    s_lshl_b32 s34, s32, 1              ; d*2
    v_mov_b32 v2, s34
    s_lshl_b32 s{S_TB}, s{S_W}, 13
    s_add_u32 s{S_TB}, s{S_TB}, {A_KT}
    s_waitcnt lgkmcnt(0)
    """)
    names = ['are','aim','bre','bim','cre','cim']
    for i, nme in enumerate(names):
        a(f"global_load_ushort v{8+i}, v1, s[{SP[nme]}:{SP[nme]+1}]")
    a(f"global_load_ushort v14, v2, s[{SP['logdt']}:{SP['logdt']+1}]")
    if opts.get('fused'): a(f"global_load_ushort v151, v2, s[{SP['dskip']}:{SP['dskip']+1}]")
    stamp(a, opts, 1)
    nn = a.label('nononce')
    a(f"""
    s_or_b32 s7, s2, s{S_W}
    s_cmp_lg_u32 s7, 0
    s_cbranch_scc1 {nn}
    s_memrealtime s[70:71]
    v_mov_b32 v2, 0
    s_waitcnt lgkmcnt(0)
    s_or_b32 s70, s70, 1
    v_mov_b32 v4, s70
    v_mov_b32 v5, s71
    s_mov_b64 exec, 1
    global_store_dwordx2 v2, v[4:5], s[{SP['dbg']}:{SP['dbg']+1}] sc1
    v_mov_b32 v2, {WS_NONCE}
    global_store_dwordx2 v2, v[4:5], s[{SP['ws']}:{SP['ws']+1}]
    s_mov_b64 exec, -1
    {nn}:
    """)
    stamp(a, opts, 9)
    grab_setup(a, opts)
    a("v_mov_b32 v150, 0")
    a(f"""
    v_lshrrev_b32 v3, 4, v0
    v_lshrrev_b32 v4, 2, v0
    v_and_b32 v4, 3, v4                  ; q (write)
    v_and_b32 v5, 3, v0                  ; e
    v_lshlrev_b32 v6, 10, v3
    v_lshlrev_b32 v5, 2, v5
    v_add_u32 v6, v6, v5
    v_add_u32 v6, s{S_TB}, v6
    """)
    for g in range(4):
        a(f"v_xor_b32 v5, {(4-g)&3}, v4")
        a(f"v_lshlrev_b32 v5, 4, v5")
        a(f"v_add_u32 v{WA+g}, v6, v5")
        a(f"v_add_u32 v{WB+g}, 4096, v{WA+g}")
    a("v_and_b32 v4, 15, v0               ; c")
    def raddr(dst, shift, base):
        if shift == 0:
            a(f"v_mov_b32 v5, v4")
        else:
            a(f"v_lshrrev_b32 v5, {shift}, v4")
            a(f"v_and_b32 v5, 1, v5")
            a(f"v_add_u32 v5, v5, v4")
            if shift > 1: a(f"v_add_u32 v5, {(1<<(shift-1))-1}, v5")
            a(f"v_lshrrev_b32 v5, {shift}, v5")
        if base: a(f"v_add_u32 v5, {base}, v5")
        a(f"v_lshrrev_b32 v6, 2, v5")
        a(f"v_sub_u32 v6, 4, v6")
        a(f"v_and_b32 v6, 3, v6")
        a(f"v_xor_b32 v6, v6, v3")
        a(f"v_lshlrev_b32 v6, 4, v6")
        a(f"v_lshlrev_b32 v5, 6, v5")
        a(f"v_add_u32 v5, v5, v6")
        a(f"v_add_u32 v{dst}, s{S_TB}, v5")
    cfg = [(0,0),(1,0),(2,9),(2,0),(3,5),(3,8),(3,11),(3,0)]
    for T,(sh,b) in enumerate(cfg): raddr(RA+T, sh, b)
    for i in range(32): a(f"v_mov_b32 v{ACC+i}, 0")
    stamp(a, opts, 11)
    a("s_waitcnt vmcnt(0)")
    stamp(a, opts, 2)
    for i in range(7): a(f"v_lshlrev_b32 v{8+i}, 16, v{8+i}")
    a(f"""
    v_mul_f32 v14, {hx(LOG2E)}, v14
    v_exp_f32 v14, v14
    s_nop 0
    v_cvt_pk_bf16_f32 v14, v14, v14
    v_and_b32 v14, 0xffff0000, v14
    v_mul_f32 v8, v14, v8
    v_mul_f32 v9, v14, v9
    v_mul_f32 v10, v14, v10               ; dB_re
    v_mul_f32 v11, v14, v11               ; dB_im
    v_mul_f32 v{A2}, {hx(LOG2E)}, v8
    v_mul_f32 v{B2}, {hx(INV2PI)}, v9
    v_mul_f32 v{W}, v12, v10
    v_mul_f32 v{W+1}, v12, v11
    v_fma_f32 v{W}, -v13, v11, v{W}
    v_fma_f32 v{W+1}, v13, v10, v{W+1}
    """)
    def zpow(dst, c):
        cf = hx(float(c))
        a(f"""
        v_mul_f32 v1, {cf}, v{A2}
        v_mul_f32 v2, {cf}, v{B2}
        v_exp_f32 v1, v1
        v_fract_f32 v2, v2
        v_cos_f32 v5, v2
        v_sin_f32 v6, v2
        s_nop 0
        v_mul_f32 v{dst}, v1, v5
        v_mul_f32 v{dst+1}, v1, v6
        """)
    zpow(Z1, 1); zpow(Z16, 16); zpow(Z256, 256)
    cmul(a, Z2, Z1, Z1, T0); cmul(a, Z4, Z2, Z2, T0); cmul(a, Z8, Z4, Z4, T0)
    if opts.get('tsk'): stamp(a, opts, 11)
    pkc = [0]
    pend = {}
    def put(row, buf, reg, conj=False, last=False):
        r = PK + (pkc[0] & 7); pkc[0] += 1
        if conj: a(f"v_cvt_pk_bf16_f32 v{r}, v{reg}, -v{reg+1}")
        else:    a(f"v_cvt_pk_bf16_f32 v{r}, v{reg}, v{reg+1}")
        wa = (WA if buf == 0 else WB) + (row >> 2)
        if (row & 1) and (buf, row-1) in pend:
            r0 = pend.pop((buf, row-1))
            a(f"ds_write2_b32 v{wa}, v{r0}, v{r} offset0:{(row-1)*16} offset1:{row*16}")
        elif (row & 1) or last:
            a(f"ds_write_b32 v{wa}, v{r} offset:{row*64}")
        else:
            pend[(buf, row)] = r
    def flush():
        assert not pend
    def rd(dst, T, buf, kap):
        a(f"ds_read_b128 {v(dst,4)}, v{RA+T} offset:{buf*4096 + kap*1024}")
    a(f"v_mov_b32 v{C0}, 1.0")
    a(f"v_mov_b32 v{C0+1}, 0")
    a(f"v_mov_b32 v{C1}, v{W}")
    a(f"v_mov_b32 v{C1+1}, v{W+1}")
    for j in range(16):
        put(j, 0, C0, conj=True)
        put(j, 1, C1)
        if j < 15:
            a(f"v_pk_mul_f32 {v(T0,2)}, {v(C0,2)}, {v(Z16,2)} op_sel:[0,0] op_sel_hi:[0,1]")
            a(f"v_pk_mul_f32 {v(T1,2)}, {v(C1,2)}, {v(Z1,2)} op_sel:[0,0] op_sel_hi:[0,1]")
            a(f"v_pk_fma_f32 {v(C0,2)}, {v(C0,2)}, {v(Z16,2)}, {v(T0,2)} op_sel:[1,1,0] op_sel_hi:[1,0,1] neg_lo:[1,0,0]")
            a(f"v_pk_fma_f32 {v(C1,2)}, {v(C1,2)}, {v(Z1,2)}, {v(T1,2)} op_sel:[1,1,0] op_sel_hi:[1,0,1] neg_lo:[1,0,0]")
    if opts.get('tsk'): stamp(a, opts, 12)
    for kap in range(4): rd(VF+4*kap, 0, 0, kap)
    def chain(rows, buf, start, mult, n):
        a(f"v_mov_b32 v{C0}, v{start}")
        a(f"v_mov_b32 v{C0+1}, v{start+1}")
        for i in range(n):
            put(rows+i, buf, C0, last=(i == n-1))
            if i < n-1: cmul(a, C0, C0, mult, T0)
    def two_chains(specs):
        regs = [(C0,T0),(C1,T1)]
        for (r0,b,st,m,n),(c,t) in zip(specs, regs):
            a(f"v_mov_b32 v{c}, v{st}")
            a(f"v_mov_b32 v{c+1}, v{st+1}")
        nmax = max(sp[4] for sp in specs)
        for i in range(nmax):
            for (r0,b,st,m,n),(c,t) in zip(specs, regs):
                if i < n: put(r0+i, b, c, last=(i == n-1))
            for (r0,b,st,m,n),(c,t) in zip(specs, regs):
                if i < n-1: a(f"v_pk_mul_f32 {v(t,2)}, {v(c,2)}, {v(m,2)} op_sel:[0,0] op_sel_hi:[0,1]")
            for (r0,b,st,m,n),(c,t) in zip(specs, regs):
                if i < n-1: a(f"v_pk_fma_f32 {v(c,2)}, {v(c,2)}, {v(m,2)}, {v(t,2)} op_sel:[1,1,0] op_sel_hi:[1,0,1] neg_lo:[1,0,0]")
    def mm(T, buf):
        for kap in range(4): rd(UF + 0, T, buf, kap) if False else None
    BH2 = 42
    cmul(a, BH, W, Z256, T0)
    cmul(a, BH2, BH, Z256, T0)
    two_chains([(0,0,BH,Z2,9),(9,0,BH2,Z4,5)])
    flush()
    UFS = [[72, 76, 120, 124], [128, 132, 136, 140]]
    def rdtile(T, buf, st):
        for kap in range(4): rd(UFS[st][kap], T, buf, kap)
    def mmt(T, st, later):
        a(f"s_waitcnt lgkmcnt({min(later,15)})")
        for kap in range(4):
            a(f"v_mfma_f32_16x16x32_bf16 {v(ACC+4*T,4)}, {v(UFS[st][kap],4)}, {v(VF+4*kap,4)}, {v(ACC+4*T,4)}")
    if opts.get('tsk'): stamp(a, opts, 13)
    rdtile(0, 1, 0)
    rdtile(1, 0, 1)
    mmt(0, 0, 4)
    rdtile(2, 0, 0)
    cmul(a, BH, BH2, Z256, T0)
    cmul(a, BH2, BH, Z256, T0)
    two_chains([(0,1,BH,Z4,5),(5,1,BH2,Z8,3)])
    cmul(a, BH, BH2, Z256, T0)
    cmul(a, BH2, BH, Z256, T0)
    two_chains([(8,1,BH,Z8,3),(11,1,BH2,Z8,3)])
    flush()
    def seg0():
        a("s_waitcnt lgkmcnt(0)")
        for T, st in ((1,1),(2,0)):
            for kap in range(4):
                a(f"v_mfma_f32_16x16x32_bf16 {v(ACC+4*T,4)}, {v(UFS[st][kap],4)}, {v(VF+4*kap,4)}, {v(ACC+4*T,4)}")
        rdtile(3, 1, 0)
        rdtile(4, 1, 1)
        cmul(a, BH, BH2, Z256, T0)
        chain(0, 0, BH, Z8, 3)
        flush()
        mmt(3, 0, 6)
    def seg1():
        rdtile(5, 1, 0)
        mmt(4, 1, 4)
        rdtile(6, 1, 1)
        mmt(5, 0, 4)
        rdtile(7, 0, 0)
        mmt(6, 1, 4)
    def seg2():
        mmt(7, 0, 0)
    return seg0, seg1, seg2

V_SL = 154
def grab(a, opts, c):
    if opts.get('hk',0) & 64: return
    skip = a.label('ng')
    a(f"s_cmp_lg_u32 s77, {c}")
    a(f"s_cbranch_scc1 {skip}")
    stg = (c % 3)*STAGE
    for r in range(2):
        for e in range(2):
            a(f"ds_read_b64_tr_b16 {v(V_SL+4*r+2*e,2)}, v{162+e} offset:{r*4096 + e*512 + (stg if stg < 49152 else 0)}") if stg < 49152 else None
    if stg >= 49152:
        a(f"v_add_u32 v162, {stg}, v162")
        a(f"v_add_u32 v163, {stg}, v163")
        for r in range(2):
            for e in range(2):
                a(f"ds_read_b64_tr_b16 {v(V_SL+4*r+2*e,2)}, v{162+e} offset:{r*4096 + e*512}")
    a("s_waitcnt lgkmcnt(0)")
    a(f"{skip}:")

def grab_setup(a, opts):
    S_W = 68
    a(f"""
    s_lshr_b32 s77, s{S_CT}, 3
    v_and_b32 v1, 15, v0
    v_lshrrev_b32 v2, 2, v1              ; r'
    v_and_b32 v1, 3, v1                  ; c'
    v_lshrrev_b32 v3, 4, v0              ; G
    s_bfe_u32 s7, s{S_CT}, 0x10002
    s_lshl_b32 s7, s7, 1
    s_and_b32 s33, s{S_W}, 1
    s_add_u32 s7, s7, s33
    s_lshl_b32 s7, s7, 1
    v_lshrrev_b32 v6, 1, v1
    v_add_u32 v5, s7, v6                 ; granule
    v_and_b32 v6, 1, v3
    v_lshlrev_b32 v6, 2, v6              ; 4 (G&1)
    v_lshrrev_b32 v7, 1, v2
    v_add_u32 v6, v6, v7                 ; + (r'>>1)   (e=0)
    v_lshlrev_b32 v7, 3, v3              ; 8 G
    v_add_u32 v7, v7, v2                 ; + r'
    s_lshr_b32 s7, s{S_W}, 1
    s_lshl_b32 s7, s7, 6                 ; 64 th
    v_add_u32 v7, s7, v7
    v_lshlrev_b32 v7, 7, v7              ; row*128
    v_and_b32 v1, 1, v1
    v_lshlrev_b32 v1, 3, v1              ; (c'&1)*8
    v_add_u32 v7, v7, v1
    v_xor_b32 v1, v5, v6
    v_lshlrev_b32 v1, 4, v1
    v_add_u32 v162, v7, v1
    v_add_u32 v6, 2, v6                  ; e=1 : +2
    v_xor_b32 v1, v5, v6
    v_lshlrev_b32 v1, 4, v1
    v_add_u32 v163, v7, v1
    """)

def helper_A(a, opts):
    S_W, S_TB = 68, 69
    ACC = 80
    seg0, seg1, seg2 = kgen(a, opts)
    lab = {k: a.label('h'+k) for k in ('0','1','2','3','odd','even','nf','rest','fin')}
    a(f"""
    s_cmp_lg_u32 s{S_W}, 1
    s_cbranch_scc1 {lab['0']}
    global_load_dwordx2 v[152:153], v150, s[{SP['dbg']}:{SP['dbg']+1}] sc1
    {lab['0']}:
    """)
    a("s_setprio 0")
    stamp(a, opts, 3)
    bar(a, opts, 0)
    stamp(a, opts, 4)
    grab(a, opts, 0)
    a("s_setprio 2")
    seg0()
    a("s_setprio 0")
    a(f"""
    s_cmp_lg_u32 s{S_W}, 1
    s_cbranch_scc1 {lab['nf']}
    v_lshlrev_b32 v1, 2, v0
    v_add_u32 v1, {A_PUB}, v1
    ds_read_b32 v4, v1
    s_waitcnt vmcnt(0)
    """)
    nonce_check(a, 152)
    srd(a, SRD_T1, SP['ws'], 2048*8, WS_STAT)
    a(f"""
    s_lshl_b32 s32, s{S_RB}, 4
    s_add_u32 s32, s32, s{S_CT}
    s_lshl_b32 s32, s32, 6
    v_lshlrev_b32 v1, 3, v0
    v_mov_b32 v5, s70
    s_waitcnt lgkmcnt(0)
    s_mov_b64 exec, 0xff
    s_setprio 3
    buffer_store_dwordx2 v[4:5], v1, s[{SRD_T1}:{SRD_T1+3}], s32 offen sc1
    s_setprio 0
    s_mov_b64 exec, -1
    {lab['nf']}:
    """)
    bar(a, opts, 1)
    grab(a, opts, 1)
    a("s_setprio 2")
    seg1()
    a("s_setprio 0")
    a("s_waitcnt lgkmcnt(0)")
    bar(a, opts, 2)
    grab(a, opts, 2)
    a("s_setprio 2")
    seg2()
    a(f"s_cmp_lg_u32 s{S_W}, 1")
    a(f"s_cbranch_scc1 {lab['rest']}")
    if not opts.get('hk',0) & 16: colsum_A(a, opts)
    a(f"{lab['rest']}:")
    a("s_setprio 0")
    for c in range(3, 8):
        bar(a, opts, c)
        grab(a, opts, c)
    a(f"""
    s_and_b32 s7, s{S_W}, 1
    s_cmp_eq_u32 s7, 0
    s_cbranch_scc1 {lab['even']}
    v_lshlrev_b32 v1, 4, v0
    v_add_u32 v1, s{S_TB}, v1
    """)
    for T in range(8):
        a(f"ds_write_b128 v1, {v(ACC+4*T,4)} offset:{T*1024}")
    a("s_waitcnt lgkmcnt(0)")
    a(f"{lab['even']}:")
    xnt_setup(a, opts)
    bar(a, opts, 8)
    if opts.get('fused'):
        from kerF import conv_F
        conv_F(a, opts)
        return
    a(f"""
    s_and_b32 s7, s{S_W}, 1
    s_cmp_eq_u32 s7, 1
    s_cbranch_scc1 {lab['fin']}
    """)
    srd(a, SRD_T1, SP['ws'], WS_K_SZ, WS_K)
    a(f"""
    v_lshlrev_b32 v1, 4, v0
    v_add_u32 v1, s{S_TB}, v1
    """)
    for T in range(8):
        a(f"ds_read_b128 {v(16+4*T,4)}, v1 offset:{8192 + T*1024}")
    a(f"""
    v_and_b32 v2, 15, v0
    v_lshlrev_b32 v2, 5, v2               ; 32*j
    v_lshrrev_b32 v3, 4, v0
    v_lshlrev_b32 v3, 3, v3               ; 8*q
    v_add_u32 v2, v2, v3
    v_sub_u32 v2, 4088, v2
    s_lshr_b32 s7, s{S_W}, 1
    s_lshl_b32 s34, s2, 1
    s_add_u32 s34, s34, s7
    s_mul_i32 s34, s34, {K_STRIDE}
    v_mov_b32 v4, 0
    v_mov_b32 v5, 0
    v_lshlrev_b32 v6, 3, v0
    v_add_u32 v6, 4096, v6
    s_mov_b64 exec, 0xff
    buffer_store_dwordx2 v[4:5], v6, s[{SRD_T1}:{SRD_T1+3}], s34 offen
    s_mov_b64 exec, -1
    """)
    for T in range(8):
        a(f"s_waitcnt lgkmcnt({7-T})")
        for i in range(4):
            a(f"v_add_f32 v{ACC+4*T+i}, v{ACC+4*T+i}, v{16+4*T+i}")
        a(f"v_cvt_pk_bf16_f32 v{48+2*T}, v{ACC+4*T+3}, v{ACC+4*T+2}")
        a(f"v_cvt_pk_bf16_f32 v{49+2*T}, v{ACC+4*T+1}, v{ACC+4*T}")
    for T in range(8):
        if T: a(f"v_subrev_u32 v2, 512, v2")
        a(f"buffer_store_dwordx2 {v(48+2*T,2)}, v2, s[{SRD_T1}:{SRD_T1+3}], s34 offen")
    stamp(a, opts, 5)
    a(f"{lab['fin']}:")
    xnt_A(a, opts)

def nonce_check(a, vreg):
    lp = a.label('npoll'); ok = a.label('nok')
    a(f"""
    s_mov_b32 s7, 0
    {lp}:
    v_readfirstlane_b32 s70, v{vreg}
    v_readfirstlane_b32 s71, v{vreg+1}
    s_add_u32 s7, s7, 1
    s_cmp_lg_u32 s70, 0
    s_cbranch_scc1 {ok}
    s_cmp_gt_u32 s7, 200000
    s_cbranch_scc1 {ok}
    global_load_dwordx2 v[{vreg}:{vreg+1}], v150, s[{SP['dbg']}:{SP['dbg']+1}] sc1
    s_waitcnt vmcnt(0)
    s_branch {lp}
    {ok}:
    """)

def colsum_A(a, opts):
    WA0, SEL, FR, AC, G = 8, 12, 16, 112, 16
    a("s_setprio 3")
    a(f"""
    v_lshrrev_b32 v2, 5, v0                ; h
    v_lshrrev_b32 v3, 4, v0
    v_and_b32 v3, 1, v3                    ; gu
    v_mul_u32_u24 v4, 12288, v3
    v_lshlrev_b32 v5, 9, v2
    v_add_u32 v4, v4, v5
    v_and_b32 v5, 15, v0
    v_lshrrev_b32 v6, 2, v5
    v_lshlrev_b32 v6, 6, v6
    v_add_u32 v4, v4, v6
    v_and_b32 v5, 3, v5
    v_lshlrev_b32 v5, 3, v5
    v_add_u32 v4, v4, v5
    s_lshr_b32 s7, s{S_RB}, 3
    s_lshl_b32 s7, s7, 11
    s_add_u32 s7, s7, {16384 + 2*STAGE}
    v_add_u32 v4, s7, v4
    v_lshlrev_b32 v5, 5, v3
    v_add_u32 v{WA0}, v4, v5               ; b=0
    v_xor_b32 v5, 32, v5
    v_add_u32 v{WA0+1}, v4, v5             ; b=1
    """)
    for m in range(6):
        P, b = m >> 1, m & 1
        for s_ in range(2):
            f = FR + (m*2+s_)*4
            a(f"ds_read_b64_tr_b16 {v(f,2)}, v{WA0+b} offset:{P*4096 + s_*1024}")
            a(f"ds_read_b64_tr_b16 {v(f+2,2)}, v{WA0+b} offset:{P*4096 + s_*1024 + 256}")
    a(f"""
    v_and_b32 v5, 15, v0
    v_cmp_eq_u32 vcc, v5, v3
    v_mov_b32 v6, 0x3f803f80
    v_mov_b32 v7, 0
    v_cndmask_b32 v{SEL}, v7, v6, vcc
    v_mov_b32 v{SEL+1}, v{SEL}
    v_mov_b32 v{SEL+2}, v{SEL}
    v_mov_b32 v{SEL+3}, v{SEL}
    """)
    for i in range(24): a(f"v_mov_b32 v{AC+i}, 0")
    srd(a, SRD_T0, SP['ws'], 16*16*1024, WS_CSP)
    a("s_waitcnt lgkmcnt(0)")
    for s_ in range(2):
        for m in range(6):
            f = FR + (m*2+s_)*4
            a(f"v_mfma_f32_16x16x32_bf16 {v(AC+4*m,4)}, {v(f,4)}, {v(SEL,4)}, {v(AC+4*m,4)}")
    a(f"""
    v_and_b32 v5, 15, v0
    v_lshlrev_b32 v1, 6, v5                ; col*64
    v_lshrrev_b32 v2, 4, v0
    v_lshlrev_b32 v2, 4, v2                ; q*16
    v_add_u32 v1, v1, v2
    s_lshl_b32 s7, s{S_CT}, 4
    s_add_u32 s7, s7, s{S_RB}
    s_lshl_b32 s33, s7, 10
    v_cmp_gt_u32 vcc, 2, v5
    s_nop 3
    """)
    for g in range(8): a(f"v_mov_b32 v{G+4*g+3}, s70")
    for e in range(24): a(f"v_mov_b32 v{G+4*(e//3)+(e%3)}, v{AC+e}")
    a("s_and_saveexec_b64 s[34:35], vcc")
    for g in range(8):
        a(f"buffer_store_dwordx4 {v(G+4*g,4)}, v1, s[{SRD_T0}:{SRD_T0+3}], s33 offen offset:{g*128} sc1")
    a("s_mov_b64 exec, s[34:35]")
    stamp(a, opts, 6)

def xnt_setup(a, opts):
    S_W = 68
    srd(a, SRD_T0, SP['ws'], WS_XT_SZ, WS_XT)
    a(f"""
    v_lshrrev_b32 v3, 4, v0              ; G
    v_and_b32 v1, 15, v0
    s_and_b32 s7, s{S_W}, 1
    s_lshl_b32 s7, s7, 4
    v_add_u32 v1, s7, v1
    v_lshlrev_b32 v1, 12, v1
    v_lshlrev_b32 v5, 4, v3
    v_add_u32 v8, v1, v5
    s_lshl_b32 s32, s{S_CT}, 17
    s_lshl_b32 s33, s{S_RB}, 8
    s_add_u32 s32, s32, s33
    s_lshr_b32 s7, s{S_W}, 1
    s_lshl_b32 s33, s7, 7
    s_add_u32 s32, s32, s33
    v_lshlrev_b32 v9, 5, v3              ; 8 G * 4B
    s_lshl_b32 s33, s7, 8                ; 64 th * 4B
    s_add_u32 s33, s33, {A_M}
    v_add_u32 v9, s33, v9
    """)

def xnt_A(a, opts):
    xnt_body(a, opts, "")
    stamp(a, opts, 8)
    stamp(a, opts, 7, real=True)
    if opts.get('ts'): a("s_waitcnt vmcnt(0)")
    stamp_flush(a, opts, 0)
    a("s_endpgm")

def xnt_body(a, opts, sc):
    S_W = 68
    for r in range(2):
        M, R_ = 16 + 16*r, 24 + 16*r
        a(f"ds_read_b128 {v(M,4)}, v9 offset:{r*128}")
        a(f"ds_read_b128 {v(M+4,4)}, v9 offset:{r*128+16}")
        a(f"ds_read_b128 {v(R_,4)}, v9 offset:{512 + r*128}")
        a(f"ds_read_b128 {v(R_+4,4)}, v9 offset:{512 + r*128+16}")
    for r in range(2):
        M, R_ = 16 + 16*r, 24 + 16*r
        U = 48 + 16*r
        X = V_SL + 4*r
        for j in range(4):
            a(f"v_lshlrev_b32 v{U+2*j}, 16, v{X+j}")
            a(f"v_and_b32 v{U+2*j+1}, 0xffff0000, v{X+j}")
        a(f"s_waitcnt lgkmcnt({4*(1-r)})")
        for j in range(4): a(f"v_pk_add_f32 {v(U+2*j,2)}, {v(U+2*j,2)}, {v(M+2*j,2)} neg_lo:[0,1] neg_hi:[0,1]")
        for j in range(4): a(f"v_cvt_pk_bf16_f32 v{U+8+j}, v{U+2*j}, v{U+2*j+1}")
        for j in range(4):
            a(f"v_lshlrev_b32 v{U+2*j}, 16, v{U+8+j}")
            a(f"v_and_b32 v{U+2*j+1}, 0xffff0000, v{U+8+j}")
        for j in range(4): a(f"v_pk_mul_f32 {v(U+2*j,2)}, {v(U+2*j,2)}, {v(R_+2*j,2)}")
        for j in range(4): a(f"v_cvt_pk_bf16_f32 v{U+8+j}, v{U+2*j}, v{U+2*j+1}")
        a(f"buffer_store_dwordx4 {v(U+8,4)}, v8, s[{SRD_T0}:{SRD_T0+3}], s32 offen offset:{r*64}{sc}")

def cs_issue(a):
    for p in range(16):
        if p*1024 < 4096:
            a(f"buffer_load_dwordx4 {v(16+4*p,4)}, v8, s[{SRD_T1}:{SRD_T1+3}], s73 offen offset:{p*1024} sc1")
        else:
            a(f"s_add_u32 s74, s73, {p*1024}")
            a(f"buffer_load_dwordx4 {v(16+4*p,4)}, v8, s[{SRD_T1}:{SRD_T1+3}], s74 offen sc1")

def cs_gather_early(a, opts, SJ):
    from kerF import lds_inc, F_DMAD, F_NON
    oth = a.label('cge'); done = a.label('cgd')
    a(f"s_cmp_lg_u32 s{SJ}, {opts.get('lgather', 3)}")
    a(f"s_cbranch_scc1 {oth}")
    srd(a, SRD_T1, SP['ws'], 16*16*1024, WS_CSP)
    a(f"""
    v_mov_b32 v1, {F_NON}
    ds_read_b64 v[152:153], v1
    v_lshlrev_b32 v8, 4, v0
    s_lshl_b32 s73, s{S_CT}, 14            ; 16 parts * 1024
    """)
    cs_issue(a)
    lds_inc(a, F_DMAD)
    a("s_waitcnt vmcnt(26)")
    a(f"s_branch {done}")
    a(f"{oth}:")
    lds_inc(a, F_DMAD)
    a("s_waitcnt vmcnt(10)")
    a(f"{done}:")
    if opts.get('tsb'): stamp(a, opts, 38)
    a("s_barrier")

def loader_tail_A(a, opts, SJ, nrem):
    l0 = a.label('l0')
    if opts.get('fused'):
        pass
    a(f"s_cmp_eq_u32 s{SJ}, {opts.get('lgather', 3)}")
    a(f"s_cbranch_scc1 {l0}")
    a("s_waitcnt vmcnt(0)")
    bar(a, opts, 7)
    if opts.get('fused'):
        a(f"s_branch {opts['lg2']}")
    else:
        stamp(a, opts, 7, real=True)
        stamp_flush(a, opts, 0)
        a("s_endpgm")
    from kerF import F_NON
    a(f"{l0}:")
    early = opts.get('lastfull', 0) and opts.get('fused')
    def issue(): cs_issue(a)
    if not early:
        srd(a, SRD_T1, SP['ws'], 16*16*1024, WS_CSP)
        a(f"""
        v_mov_b32 v1, {F_NON}
        ds_read_b64 v[152:153], v1
        v_lshlrev_b32 v8, 4, v0
        s_lshl_b32 s73, s{S_CT}, 14            ; 16 parts * 1024
        """)
        if opts.get('lgprio'): a("s_setprio 3")
        issue()
        if opts.get('xlate'):
            from kerF import lds_inc, lds_spin_eq, F_DMAD, F_XST
            lds_inc(a, F_DMAD)
            if opts.get('xlate') == 1: lds_spin_eq(a, F_XST, 4)
    npf = 0
    if opts.get('xlate') in (3, 4):
        a("s_waitcnt vmcnt(16)")
        bar(a, opts, 7)
    if not opts.get('nopf') and opts.get('pfmode',0) == 0:
        if opts.get('map2', 1) == 0:
            a(f"""
            s_lshr_b32 s74, s2, 3
            s_mul_i32 s74, s74, {43*1024}
            v_lshlrev_b32 v9, 7, v0
            v_add_u32 v9, s74, v9
            """)
            npf = opts.get('npf', 6); step = 8192
        else:
            a(f"""
            s_lshr_b32 s74, s2, 3
            s_mul_i32 s74, s74, {43*1024}
            s_and_b32 s75, s2, 1
            s_lshl_b32 s75, s75, 9
            s_add_u32 s74, s74, s75
            v_lshrrev_b32 v9, 2, v0
            v_lshlrev_b32 v9, 10, v9
            v_and_b32 v10, 3, v0
            v_lshlrev_b32 v10, 7, v10
            v_add_u32 v9, v9, v10
            v_add_u32 v9, s74, v9
            """)
            npf = 3; step = 16384
        srd(a, SRD_X, SP['wd'], 1409024)
        for i in range(npf):
            a(f"s_mov_b32 s74, {i*step}")
            a(f"buffer_load_dword v{144+i}, v9, s[{SRD_X}:{SRD_X+3}], s74 offen")
        if opts.get('bcode') and not opts.get('fused'):
            pc = a.label('pc')
            a(f"""
            s_getpc_b64 s[74:75]
            {pc}:
            s_add_u32 s74, s74, {opts['bcode']}-{pc}
            s_addc_u32 s75, s75, 0
            s_lshr_b32 s76, s2, 3
            s_and_b32 s76, s76, 1
            s_lshl_b32 s76, s76, 12
            v_lshlrev_b32 v9, 6, v0
            v_add_u32 v9, s76, v9
            global_load_dword v95, v9, s[74:75]
            """)
            npf += 1
    if opts.get('xlate') not in (3, 4):
        a(f"s_waitcnt vmcnt({16+npf})")
        bar(a, opts, 7)
    lp = a.label('gchk'); ok = a.label('gok')
    a(f"""
    s_setprio 3
    s_mov_b32 s75, 0
    s_waitcnt vmcnt({npf})
    s_waitcnt lgkmcnt(0)
    {lp}:
    s_mov_b64 vcc, 0
    """)
    for p in range(16):
        a(f"v_cmp_ne_u32 s[32:33], v152, v{16+4*p+3}")
        a(f"s_or_b64 vcc, vcc, s[32:33]")
    a(f"""
    s_add_u32 s75, s75, 1
    s_cmp_eq_u64 vcc, 0
    s_cbranch_scc1 {ok}
    s_cmp_gt_u32 s75, {0 if (opts.get('hk',0) or opts.get('dk',0) & 2) else 100000}
    s_cbranch_scc1 {ok}
    """)
    issue()
    a("s_waitcnt vmcnt(0)")
    a(f"s_branch {lp}")
    a(f"{ok}:")
    stamp(a, opts, 5)
    for st in (8, 4, 2, 1):
        for p in range(st):
            for i in range(3):
                a(f"v_add_f32 v{16+4*p+i}, v{16+4*p+i}, v{16+4*(p+st)+i}")
    a(f"""
    v_lshrrev_b32 v1, 3, v0              ; g
    v_mul_u32_u24 v1, 3, v1              ; 3g
    v_bfe_u32 v2, v0, 2, 1               ; col
    v_lshlrev_b32 v2, 4, v2
    v_and_b32 v3, 3, v0                  ; q
    v_lshlrev_b32 v3, 2, v3
    v_add_u32 v2, v2, v3                 ; col*16 + 4q
    """)
    for k in range(3):
        a(f"""
        v_add_u32 v4, {k}, v1
        v_lshrrev_b32 v5, 2, v4
        v_lshlrev_b32 v5, 5, v5
        v_and_b32 v4, 3, v4
        v_add_u32 v4, v4, v5
        v_add_u32 v4, v4, v2
        v_lshlrev_b32 v4, 2, v4
        v_add_u32 v4, {A_CS}, v4
        ds_write_b32 v4, v{16+k}
        """)
    a("s_waitcnt lgkmcnt(0)")
    stamp(a, opts, 6)
    if opts.get('fused'):
        from kerF import F_CSR, lds_set
        lds_set(a, F_CSR)
        a("s_setprio 0")
        return
    bar(a, opts, 8)
    stamp(a, opts, 7, real=True)
    stamp_flush(a, opts, 0)
    a("s_endpgm")
```

```python
from core import *
import struct
def f2u(x): return struct.unpack('<I', struct.pack('<f', x))[0]
def hx(x): return hex(f2u(x))
STAGE = 40960
A_KT = 3*STAGE
DEPTH = 4
CT_U, CT_V0, CT_V1, CT_SZ = 0, 4608, 4608+4160, 4608+4160+4160
F_CT = 0
F_EX = F_CT + 2*CT_SZ
F_WR = F_EX + 4*4096
F_YT = F_WR + 4*DEPTH*2048
F_P  = F_YT + 10240
PROW = 272
F_SY = 158528
F_NON, F_CNTH, F_CNTX, F_HRDY, F_KRDY, F_URDY, F_XFL, F_ORD = F_SY, F_SY+8, F_SY+12, F_SY+16, F_SY+20, F_SY+28, F_SY+36, F_SY+52
F_CSR, F_GDN, F_PRDY, F_DMAD, F_XST, F_CNTY, F_XRDY = F_SY+56, F_SY+60, F_SY+64, F_SY+72, F_SY+76, F_SY+80, F_SY+84
F_EHF = F_SY + 88
F_EHB = 85248
F_LDS = F_SY + 128
S_WAVE, S_RB, S_CT = 3, 4, 5
S_RT, S_C2, S_WP = 78, 79, 80
SRD_WS, SRD_WD, SRD_O = 8, 12, 16
V_XT, V_NON, V_OFF = 160, 164, 166
SPIN = 200000

MAP2 = [1]
def map_tile(a, srt, sc2):
    if MAP2[0] == 0:
        a(f"""
        s_and_b32 s7, s2, 7
        s_lshr_b32 s33, s2, 3
        s_lshl_b32 s7, s7, 2
        s_and_b32 s{sc2}, s33, 3
        s_add_u32 s{srt}, s7, s{sc2}
        s_lshr_b32 s{sc2}, s33, 2
        """)
    else:
        a(f"""
        s_and_b32 s7, s2, 7
        s_lshr_b32 s33, s2, 3
        s_lshr_b32 s{srt}, s7, 1
        s_lshl_b32 s{srt}, s{srt}, 3
        s_and_b32 s{sc2}, s33, 7
        s_add_u32 s{srt}, s{srt}, s{sc2}
        s_and_b32 s7, s7, 1
        s_lshl_b32 s7, s7, 2
        s_lshr_b32 s{sc2}, s33, 3
        s_add_u32 s{sc2}, s{sc2}, s7
        """)
def map_B(a):
    map_tile(a, S_RT, S_C2)
    a(f"""
    s_and_b32 s32, s{S_WP}, 3
    s_lshl_b32 s32, s32, 4
    s_lshl_b32 s33, s{S_RT}, 6
    s_add_u32 s32, s32, s33               ; 64 rt + 16 (w&3)
    v_and_b32 v2, 15, v0
    v_add_u32 v2, s32, v2
    v_lshlrev_b32 v2, 10, v2              ; row*1024
    s_lshr_b32 s32, s{S_WP}, 2
    s_lshl_b32 s32, s32, 6
    s_lshl_b32 s33, s{S_C2}, 7
    s_add_u32 s32, s32, s33
    v_lshrrev_b32 v3, 4, v0
    v_lshlrev_b32 v3, 4, v3
    v_add_u32 v2, v2, v3
    v_add_u32 v{V_OFF}, s32, v2
    """)

def lds_count_last(a, addr, n, lab_skip):
    a(f"""
    v_mov_b32 v1, {addr}
    v_mov_b32 v2, 1
    s_mov_b64 exec, 1
    ds_add_rtn_u32 v3, v1, v2
    s_mov_b64 exec, -1
    s_waitcnt lgkmcnt(0)
    v_readfirstlane_b32 s7, v3
    s_cmp_lg_u32 s7, {n-1}
    s_cbranch_scc1 {lab_skip}
    """)
def lds_set(a, addr_expr_sgpr_or_int):
    if isinstance(addr_expr_sgpr_or_int, int): a(f"v_mov_b32 v1, {addr_expr_sgpr_or_int}")
    else: a(f"v_mov_b32 v1, {addr_expr_sgpr_or_int}")
    a("v_mov_b32 v2, 1")
    a("ds_write_b32 v1, v2")
def lds_spin(a, addrs):
    lp = a.label('spin')
    for i, ad in enumerate(addrs): a(f"v_mov_b32 v{1+i}, {ad}")
    a("s_mov_b32 s99, 0")
    a(f"{lp}:")
    for i in range(len(addrs)): a(f"ds_read_b32 v{3+i}, v{1+i}")
    a("s_add_u32 s99, s99, 1")
    a("s_waitcnt lgkmcnt(0)")
    if len(addrs) == 2: a("v_min_u32 v3, v3, v4"); a("s_nop 0")
    a(f"""
    v_readfirstlane_b32 s24, v3
    s_cmp_gt_u32 s99, {5*SPIN}
    s_cselect_b32 s24, 1, s24
    s_cmp_eq_u32 s24, 0
    s_cbranch_scc1 {lp}
    """)
def lds_inc(a, addr):
    a(f"""
    v_mov_b32 v1, {addr}
    v_mov_b32 v2, 1
    s_mov_b64 exec, 1
    ds_add_u32 v1, v2
    s_mov_b64 exec, -1
    """)
def lds_spin_eq(a, addr, val):
    lp = a.label('spinq')
    a(f"""
    v_mov_b32 v1, {addr}
    s_mov_b32 s99, 0
    {lp}:
    ds_read_b32 v3, v1
    s_add_u32 s99, s99, 1
    s_waitcnt lgkmcnt(0)
    v_readfirstlane_b32 s7, v3
    s_cmp_gt_u32 s99, {5*SPIN}
    s_cselect_b32 s7, {val}, s7
    s_cmp_lg_u32 s7, {val}
    s_cbranch_scc1 {lp}
    """)
def flag_store(a, base, idx_sgpr):
    a(f"""
    s_lshl_b32 s7, {idx_sgpr}, 7
    s_add_u32 s7, s7, {base}
    v_mov_b32 v1, s7
    s_mov_b64 exec, 1
    global_store_dwordx2 v1, v[{V_NON}:{V_NON+1}], s[{SP['ws']}:{SP['ws']+1}] sc1
    s_mov_b64 exec, -1
    """)
def flag_poll(a, vaddr, vdst, nosleep=False, sleep=1):
    lp = a.label('poll'); ok = a.label('pok')
    a(f"""
    s_mov_b32 s99, 0
    {lp}:
    global_load_dwordx2 v[{vdst}:{vdst+1}], v{vaddr}, s[{SP['ws']}:{SP['ws']+1}] sc1
    s_add_u32 s99, s99, 1
    s_waitcnt vmcnt(0)
    v_cmp_ne_u32 vcc, v{V_NON}, v{vdst}
    v_cmp_ne_u32 s[30:31], v{V_NON+1}, v{vdst+1}
    s_or_b64 vcc, vcc, s[30:31]
    s_cmp_eq_u64 vcc, 0
    s_cbranch_scc1 {ok}
    s_cmp_gt_u32 s99, {SPIN}
    s_cbranch_scc1 {ok}
    {"s_nop 0" if nosleep else f"s_sleep {sleep}"}
    s_branch {lp}
    {ok}:
    """)


def touch_group(a, sg, srt, sc2, vdst):
    a(f"""
    s_cmp_eq_u32 s{sg}, 3
    s_cselect_b32 s30, 14, 24
    s_lshl_b32 s31, s30, 1
    s_mul_i32 s33, s{sc2}, s31
    v_add_u32 v1, s33, v0
    s_lshl_b32 s33, s30, 3
    v_cmp_le_u32 vcc, s33, v1
    v_mov_b32 v2, s33
    v_mov_b32 v3, 0
    v_cndmask_b32 v2, v3, v2, vcc
    v_sub_u32 v1, v1, v2
    v_mov_b32 v2, {86*1024}
    v_cndmask_b32 v2, v3, v2, vcc
    v_lshlrev_b32 v1, 7, v1
    v_add_u32 v1, v1, v2
    s_mul_i32 s33, s{srt}, {2*86*1024}
    s_mul_i32 s7, s{sg}, {24*1024}
    s_add_u32 s33, s33, s7
    s_add_u32 s33, s33, {WS_H}
    v_add_u32 v1, s33, v1
    v_cmp_gt_u32 vcc, s31, v0
    s_and_saveexec_b64 s[30:31], vcc
    global_load_dword v{vdst}, v1, s[{SP['ws']}:{SP['ws']+1}] sc1
    s_mov_b64 exec, s[30:31]
    """)

def gpub_F(a, opts):
    nf = a.label('nfh'); end = a.label('gpe')
    a(f"""
    v_mov_b32 v1, {F_NON}
    ds_read_b64 v[{V_NON}:{V_NON+1}], v1
    s_waitcnt vmcnt(0) lgkmcnt(0)
    """)
    stamp(a, opts, 14)
    stamp(a, opts, 40, real=True)
    lds_count_last(a, F_CNTH, 8 if opts.get('esplit', 0) else 4, nf)
    a(f"s_lshl_b32 s30, s{S_RB}, 4")
    a(f"s_add_u32 s30, s30, s{S_CT}")
    flag_store(a, WS_FLAGH, "s30")
    a(f"{nf}:")
    a(f"s_cmp_lg_u32 s{S_WAVE}, 0")
    a(f"s_cbranch_scc1 {end}")
    map_tile(a, 34, 35)
    a(f"""
    s_lshr_b32 s7, s34, 1
    s_lshl_b32 s7, s7, 4
    v_min_u32 v2, 14, v0
    v_add_u32 v2, s7, v2
    v_lshlrev_b32 v2, 7, v2
    v_add_u32 v2, {WS_FLAGH}, v2
    """)
    flag_poll(a, 2, 4, sleep=opts.get('gsleep', 8))
    if opts.get('touch'):
        a(f"""
        s_and_b32 s7, s2, 7
        s_lshl_b32 s7, s7, 2
        s_lshr_b32 s33, s2, 3
        s_and_b32 s34, s33, 3
        s_add_u32 s34, s7, s34
        s_lshr_b32 s35, s33, 2
        """)
        for g in range(4):
            a(f"s_mov_b32 s86, {g}")
            touch_group(a, 86, 34, 35, 8+g)
    lds_set(a, F_HRDY)
    a("s_waitcnt lgkmcnt(0)")
    a(f"{end}:")
    stamp(a, opts, 15)
    stamp(a, opts, 7, real=True)
    if opts.get('ts'): a("s_waitcnt vmcnt(0)")
    stamp_flush(a, opts, 0)
    a("s_endpgm")


def epi_L(a, opts):
    from kerA_help import A_STATS, A_CS
    SRD_H = 20
    SC, AC, CS, T = 88, 16, 48, 64
    OUTS = (80, 84)
    done = a.label('epld')
    K1 = -2*0.7978845608028654*1.4426950408889634
    a(f"""
    s_and_b32 s70, s68, 1                    ; tw
    s_lshr_b32 s71, s68, 1                   ; fw
    s_lshl_b32 s7, s{S_CT}, 1
    s_add_u32 s7, s7, s71
    s_cmp_ge_u32 s7, 29
    s_cbranch_scc1 {done}
    v_and_b32 v1, 31, v0
    s_lshl_b32 s7, s70, 6
    v_add_u32 v1, s7, v1
    v_lshlrev_b32 v2, 3, v1
    v_add_u32 v2, {A_STATS}, v2
    ds_read_b64 v[8:9], v2
    ds_read_b64 v[10:11], v2 offset:256
    v_lshrrev_b32 v5, 5, v0
    v_lshlrev_b32 v5, 4, v5
    s_mul_i32 s7, s71, 384
    s_add_u32 s7, s7, {A_CS + 256}
    v_add_u32 v5, s7, v5
    v_lshlrev_b32 v6, 4, v0
    s_lshl_b32 s7, s68, 13
    s_add_u32 s7, s7, {F_EHB}
    v_add_u32 v7, s7, v6
    s_lshl_b32 s72, s{S_RB}, 2
    s_lshl_b32 s7, s70, 1
    s_add_u32 s72, s72, s7
    s_mul_i32 s72, s72, 86
    s_mul_i32 s73, s{S_CT}, 6
    s_mul_i32 s7, s71, 3
    s_add_u32 s73, s73, s7
    s_add_u32 s73, s73, 2
    """)
    srd(a, SRD_H, SP['ws'], WS_H_SZ, WS_H)
    a("s_waitcnt lgkmcnt(0)")
    for n in range(2):
        b = SC + 8*n
        m_, s_ = 8+2*n, 9+2*n
        a(f"""
        v_mov_b32 v{b}, v{m_}
        v_rcp_f32 v1, v{s_}
        v_mul_f32 v{b+6}, v{s_}, v{s_}
        v_mul_f32 v{b+2}, {hx(K1)}, v1
        v_mul_f32 v2, v1, v1
        v_mul_f32 v2, {hx(0.044715)}, v2
        v_mul_f32 v{b+4}, v{b+2}, v2
        """)
    a("s_lshl_b32 s26, s68, 2")
    a(f"s_add_u32 s26, s26, {F_EHF}")
    lds_spin(a, ["s26", F_CSR])
    for n in range(2):
        for g in range(4):
            a(f"ds_read_b128 {v(AC+16*n+4*g,4)}, v7 offset:{(n*4+g)*1024}")
    for g in range(4):
        a(f"ds_read_b128 {v(CS+4*g,4)}, v5 offset:{g*32}")
    a(f"s_setprio {opts.get('eprio', 2)}")
    a("s_waitcnt lgkmcnt(0)")
    for n in range(2):
        b = SC + 8*n; A = AC + 16*n
        for p in range(8):
            a(f"v_pk_fma_f32 {v(A+2*p,2)}, {v(CS+2*p,2)}, {v(b,2)}, {v(A+2*p,2)} op_sel_hi:[1,0,1] neg_lo:[0,1,0] neg_hi:[0,1,0]")
    for p in range(4):
        regs = [(AC+16*n+2*p, AC+16*n+8+2*p, SC+8*n, T+8*n) for n in range(2)]
        for (g_, u_, b, t) in regs: a(f"v_pk_mul_f32 {v(t,2)}, {v(g_,2)}, {v(g_,2)}")
        for (g_, u_, b, t) in regs: a(f"v_pk_fma_f32 {v(t,2)}, {v(t,2)}, {v(b+4,2)}, {v(b+2,2)} op_sel_hi:[1,0,0]")
        for (g_, u_, b, t) in regs: a(f"v_pk_mul_f32 {v(t,2)}, {v(t,2)}, {v(g_,2)}")
        for (g_, u_, b, t) in regs: a(f"v_pk_mul_f32 {v(t+2,2)}, {v(g_,2)}, {v(u_,2)}")
        for (g_, u_, b, t) in regs:
            a(f"v_exp_f32 v{t}, v{t}")
            a(f"v_exp_f32 v{t+1}, v{t+1}")
        for (g_, u_, b, t) in regs: a(f"v_pk_fma_f32 {v(t,2)}, {v(t,2)}, {v(b+6,2)}, {v(b+6,2)} op_sel_hi:[1,0,0]")
        for (g_, u_, b, t) in regs:
            a(f"v_rcp_f32 v{t}, v{t}")
            a(f"v_rcp_f32 v{t+1}, v{t+1}")
        for (g_, u_, b, t) in regs: a(f"v_pk_mul_f32 {v(t+2,2)}, {v(t+2,2)}, {v(t,2)}")
        for n, (g_, u_, b, t) in enumerate(regs): a(f"v_cvt_pk_bf16_f32 v{OUTS[n]+p}, v{t+2}, v{t+3}")
    a(f"""
    s_cmp_ge_u32 s73, 86
    s_cbranch_scc1 {done}
    s_add_u32 s7, s73, s72
    s_lshl_b32 s7, s7, 10
    buffer_store_dwordx4 {v(OUTS[0],4)}, v6, s[{SRD_H}:{SRD_H+3}], s7 offen sc1
    s_add_u32 s7, s7, {86*1024}
    buffer_store_dwordx4 {v(OUTS[1],4)}, v6, s[{SRD_H}:{SRD_H+3}], s7 offen sc1
    {done}:
    s_setprio 0
    """)

def gemm2_F(a, opts):
    D = DEPTH
    ACC, HF, WF, YG = 16, 80, 112, 128
    VH0, VH1, VWD, VA0, VA1, VY = 8, 9, 10, 11, 13, 12
    S_N, S_OFF, S_RING, S_WC = 81, 27, 28, 29
    S_GB, S_GL, S_STEP, S_CNT, S_ROT, S_GD = 70, 74, 82, 83, 84, 85
    def acc(m, n): return ACC + (m*2+n)*16
    def hf(st, n): return HF + st*8 + n*4
    def wf(st, m): return WF + st*8 + m*4
    vm = VmTrack(a)
    if opts.get('esplit', 0): epi_L(a, opts)
    a(f"s_mov_b32 s{S_WP}, s68")
    srd(a, SRD_WD, SP['wd'], 1409024)
    if opts.get('pfmode',0) == 1:
        npf = a.label('nopf')
        a(f"s_cmp_lg_u32 s{S_WP}, 1")
        a(f"s_cbranch_scc1 {npf}")
        if opts.get('pfwait'): lds_spin(a, [F_URDY, F_URDY+4])
        a(f"""
        s_lshr_b32 s30, s2, 3
        s_mul_i32 s30, s30, {43*1024}
        v_lshlrev_b32 v1, 7, v0
        v_add_u32 v1, s30, v1
        """)
        for i in range(6):
            a(f"s_mov_b32 s30, {i*8192}")
            a(f"buffer_load_dword v{144+i}, v1, s[{SRD_WD}:{SRD_WD+3}], s30 offen")
        a(f"{npf}:")
    map_B(a)
    a(f"""
    s_mov_b32 s{S_N}, 22
    s_cmp_ge_u32 s{S_WP}, 2
    s_cselect_b32 s{S_N}, 21, s{S_N}
    v_lshlrev_b32 v1, 4, v0
    s_mul_i32 s7, s{S_RT}, {2*86*1024}
    s_add_u32 s7, s7, {WS_H}
    v_add_u32 v{VH0}, s7, v1
    v_add_u32 v{VH1}, {86*1024}, v{VH0}
    v_lshrrev_b32 v2, 3, v0
    v_lshlrev_b32 v2, 10, v2
    v_and_b32 v3, 7, v0
    v_bfe_u32 v4, v0, 4, 1
    v_lshlrev_b32 v4, 2, v4
    v_xor_b32 v3, v3, v4
    v_lshlrev_b32 v3, 4, v3
    v_add_u32 v{VWD}, v2, v3
    s_lshl_b32 s{S_WC}, s{S_C2}, 7
    s_mul_i32 s{S_RING}, s{S_WP}, {D*2048}
    s_add_u32 s{S_RING}, s{S_RING}, {F_WR}
    v_lshrrev_b32 v2, 5, v0
    v_lshlrev_b32 v2, 2, v2                 ; 4h
    v_bfe_u32 v3, v0, 2, 2                  ; r'
    v_add_u32 v2, v2, v3
    v_lshlrev_b32 v2, 7, v2
    v_lshrrev_b32 v3, 1, v3
    v_lshlrev_b32 v3, 6, v3
    v_add_u32 v2, v2, v3
    v_bfe_u32 v3, v0, 4, 1
    v_lshlrev_b32 v3, 5, v3
    v_add_u32 v2, v2, v3
    v_and_b32 v3, 3, v0
    v_lshlrev_b32 v3, 3, v3
    v_add_u32 v2, v2, v3
    v_add_u32 v{VA0}, s{S_RING}, v2
    v_xor_b32 v2, 64, v2
    v_add_u32 v{VA1}, s{S_RING}, v2
    """)
    if opts.get('ycomp', 1):
        a(f"""
        v_lshrrev_b32 v2, 3, v0
        s_lshl_b32 s7, s{S_WP}, 4
        s_lshl_b32 s30, s{S_C2}, 6
        s_add_u32 s7, s7, s30                  ; 64 ct + 16 w
        v_add_u32 v2, s7, v2
        v_lshlrev_b32 v2, 12, v2               ; ch*4096
        v_and_b32 v3, 7, v0
        v_lshlrev_b32 v3, 4, v3
        v_add_u32 v2, v2, v3
        s_lshl_b32 s30, s{S_RT}, 7             ; 64 t * 2 B
        s_add_u32 s30, s30, {WS_Y}
        v_add_u32 v{VY}, s30, v2               ; y address
        s_lshr_b32 s7, s7, 1
        v_min_u32 v2, 7, v0
        v_add_u32 v2, s7, v2
        v_lshlrev_b32 v2, 7, v2
        v_add_u32 v14, {WS_FLAGY}, v2
        """)
    else:
        a(f"""
        v_lshrrev_b32 v2, 4, v0
        s_lshl_b32 s7, s{S_WP}, 4
        s_lshl_b32 s30, s{S_C2}, 6
        s_add_u32 s7, s7, s30                  ; 64 ct + 16 w
        v_add_u32 v2, s7, v2
        v_lshlrev_b32 v2, 13, v2               ; ch*8192
        v_and_b32 v3, 15, v0
        v_lshlrev_b32 v3, 4, v3
        v_add_u32 v2, v2, v3
        s_lshl_b32 s7, s{S_RT}, 8
        s_add_u32 s7, s7, {WS_Y}
        v_add_u32 v{VY}, s7, v2                ; y address
        """)
    a(f"""
    v_mov_b32 v1, {F_NON}
    ds_read_b64 v[{V_NON}:{V_NON+1}], v1
    """)
    srd(a, SRD_WS, SP['ws'], 19*MB)
    srd(a, SRD_WD, SP['wd'], 1409024)
    for i in range(64): a(f"v_mov_b32 v{ACC+i}, 0")
    a("s_waitcnt lgkmcnt(0)")
    stamp(a, opts, 14)
    a(f"""
    s_mov_b32 s24, {0 | (1 << 2) | (3 << 4) | (2 << 6)}
    s_mov_b32 s25, {1 | (0 << 2) | (2 << 4) | (3 << 6)}
    s_bitcmp1_b32 s{S_C2}, 0
    s_cselect_b32 s24, s25, s24
    """)
    a(f"""
    s_mul_i32 s30, s{S_WP}, 6
    s_lshl_b32 s31, s{S_WP}, 2
    s_cmp_eq_u32 s{S_WP}, 3
    s_cselect_b32 s31, 11, s31
    s_cmp_ge_u32 s{S_WP}, 2
    s_cselect_b32 s32, 3, 4
    """)
    for k in range(4):
        a(f"""
        s_lshr_b32 s7, s24, {2*k}
        s_and_b32 s7, s7, 3
        s_mul_i32 s33, s7, 24
        s_cmp_eq_u32 s7, 3
        s_cselect_b32 s25, s31, s30
        s_add_u32 s{S_GB+k}, s33, s25
        s_cselect_b32 s{S_GL+k}, s32, 6
        """.replace("        s_add_u32 s%d, s33, s25\n        s_cselect_b32" % (S_GB+k), "        s_add_u32 s%d, s33, s25\n        s_cmp_eq_u32 s7, 3\n        s_cselect_b32" % (S_GB+k)))
    S_OW, S_OH, S_REM = 82, 83, 84
    S_OE, S_RO = 88, 94
    def load_group():
        a(f"""
        s_lshr_b32 s7, s{S_GL}, 1
        s_bitcmp1_b32 s{S_C2}, 1
        s_cselect_b32 s{S_RO}, s7, 0
        s_add_u32 s7, s{S_GB}, s{S_RO}
        s_lshl_b32 s{S_OW}, s7, 14
        s_add_u32 s{S_OW}, s{S_OW}, s{S_WC}
        s_lshl_b32 s{S_OH}, s7, 10
        s_add_u32 s7, s{S_GB}, s{S_GL}
        s_lshl_b32 s{S_OE}, s7, 10
        s_mov_b32 s{S_REM}, s{S_GL}
        """)
    a(f"s_mov_b32 s{S_GD}, 0")
    load_group()
    if opts.get('esplit', 0):
        nfl = a.label('nfl')
        a("s_waitcnt vmcnt(0)")
        lds_count_last(a, F_CNTH, 8, nfl)
        a(f"s_lshl_b32 s30, s{S_RB}, 4")
        a(f"s_add_u32 s30, s30, s{S_CT}")
        flag_store(a, WS_FLAGH, "s30")
        a(f"{nfl}:")
    lds_spin_eq(a, F_GDN, 4)
    a(f"s_setprio {opts.get('gprio', 1)}")
    def advance(pos):
        adv = a.label('noadv'); nw = a.label('nowrap')
        a(f"""
        s_add_u32 s{S_OW}, s{S_OW}, 16384
        s_add_u32 s{S_OH}, s{S_OH}, 1024
        s_cmp_lg_u32 s{S_OH}, s{S_OE}
        s_cbranch_scc1 {nw}
        s_lshl_b32 s7, s{S_GL}, 14
        s_sub_u32 s{S_OW}, s{S_OW}, s7
        s_lshl_b32 s7, s{S_GL}, 10
        s_sub_u32 s{S_OH}, s{S_OH}, s7
        {nw}:
        s_sub_u32 s{S_REM}, s{S_REM}, 1
        s_cmp_lg_u32 s{S_REM}, 0
        s_cbranch_scc1 {adv}
        s_mov_b32 s{S_GB}, s{S_GB+1}
        s_mov_b32 s{S_GB+1}, s{S_GB+2}
        s_mov_b32 s{S_GB+2}, s{S_GB+3}
        s_mov_b32 s{S_GL}, s{S_GL+1}
        s_mov_b32 s{S_GL+1}, s{S_GL+2}
        s_mov_b32 s{S_GL+2}, s{S_GL+3}
        s_add_u32 s{S_GD}, s{S_GD}, 1
        """)
        load_group()
        if pos + 1 in (9, 10, 12):
            a(f"s_cmp_lg_u32 s{S_GD}, 2")
            a(f"s_cbranch_scc1 {adv}")
            lds_spin(a, [F_HRDY])
        a(f"{adv}:")
    def ops(st, step):
        g = []
        g.append((f"s_add_u32 m0, s{S_RING}, {st*2048}\ns_add_u32 s31, s{S_OW}, 8192\nbuffer_load_dwordx4 v{VWD}, s[{SRD_WD}:{SRD_WD+3}], s{S_OW} offen lds"))
        g.append((f"buffer_load_dwordx4 {v(hf(st,0),4)}, v{VH0}, s[{SRD_WS}:{SRD_WS+3}], s{S_OH} offen sc1"))
        g.append((f"s_add_u32 m0, s{S_RING}, {st*2048+1024}\ns_nop 0\nbuffer_load_dwordx4 v{VWD}, s[{SRD_WD}:{SRD_WD+3}], s31 offen lds"))
        g.append((f"buffer_load_dwordx4 {v(hf(st,1),4)}, v{VH1}, s[{SRD_WS}:{SRD_WS+3}], s{S_OH} offen sc1"))
        return g
    S_PH = 95
    for st in range(D):
        g = ops(st, st)
        a(g[0]); vm.op(('w', st)); a(g[2]); vm.op(('w', st))
        a(f"s_mov_b32 s{S_PH+st}, s{S_OH}")
        advance(st)
    oth = a.label('hoth'); go = a.label('hgo'); lp = a.label('opoll'); ok = a.label('ook')
    a(f"s_cmp_lg_u32 s{S_WP}, 0")
    a(f"s_cbranch_scc1 {oth}")
    if opts.get('pollwait', 1): lds_spin_eq(a, F_CNTH, 8 if opts.get('esplit', 0) else 4)
    a(f"""
    v_min_u32 v2, {7 if opts.get('gfirst', 3) == 3 else 14}, v0
    s_lshr_b32 s7, s{S_RT}, 1
    s_lshl_b32 s7, s7, 4
    v_add_u32 v2, s7, v2
    v_lshlrev_b32 v2, 7, v2
    v_add_u32 v2, {WS_FLAGH}, v2
    """)
    flag_poll(a, 2, 4, sleep=opts.get('hsleep', 2))
    lds_set(a, F_ORD)
    a(f"s_branch {go}")
    a(f"{oth}:")
    lds_spin(a, [F_ORD])
    a(f"{go}:")
    stamp(a, opts, 15)
    stamp(a, opts, 41, real=True)
    a("s_waitcnt vmcnt(0)")
    vm.ops = []
    for st in range(D):
        a(f"buffer_load_dwordx4 {v(hf(st,0),4)}, v{VH0}, s[{SRD_WS}:{SRD_WS+3}], s{S_PH+st} offen sc1"); vm.op(('s', st))
        a(f"buffer_load_dwordx4 {v(hf(st,1),4)}, v{VH1}, s[{SRD_WS}:{SRD_WS+3}], s{S_PH+st} offen sc1"); vm.op(('s', st))
    def wreads(i):
        st, ws_ = i % D, i & 1
        for m, va in ((0, VA0), (1, VA1)):
            a(f"ds_read_b64_tr_b16 {v(wf(ws_,m),2)}, v{va} offset:{st*2048}")
            a(f"ds_read_b64_tr_b16 {v(wf(ws_,m)+2,2)}, v{va} offset:{st*2048+1024}")
    YC = opts.get('ycomp', 1)
    def yissue(first=False):
        if first:
            if YC:
                okf = a.label('yfok')
                vm.wait('yf')
                a(f"""
                v_cmp_ne_u32 vcc, v{V_NON}, v142
                v_cmp_ne_u32 s[30:31], v{V_NON+1}, v143
                s_or_b64 vcc, vcc, s[30:31]
                s_cmp_eq_u64 vcc, 0
                s_cbranch_scc1 {okf}
                """)
                if not opts.get('noconv'): flag_poll(a, 14, 142)
                a(f"{okf}:")
            a(f"global_load_dwordx4 {v(V_XT,4)}, v{V_OFF}, s[{SP['x']}:{SP['x']+1}]"); vm.op('x')
        if YC:
            a(f"buffer_load_dwordx4 {v(YG,4)}, v{VY}, s[{SRD_WS}:{SRD_WS+3}], 0 offen sc1"); vm.op('y')
            a(f"s_mov_b32 s{S_OFF}, {8*4096}")
            a(f"buffer_load_dwordx4 {v(YG+4,4)}, v{VY}, s[{SRD_WS}:{SRD_WS+3}], s{S_OFF} offen sc1"); vm.op('y')
            return
        for i in range(4):
            if i == 0: a(f"buffer_load_dwordx4 {v(YG,4)}, v{VY}, s[{SRD_WS}:{SRD_WS+3}], 0 offen sc1")
            else:
                a(f"s_mov_b32 s{S_OFF}, {i*4*8192}")
                a(f"buffer_load_dwordx4 {v(YG+4*i,4)}, v{VY}, s[{SRD_WS}:{SRD_WS+3}], s{S_OFF} offen sc1")
            vm.op('y')
    NS = 22
    vm.wait(('s', 0))
    wreads(0)
    lskip = a.label('gskip')
    for i in range(NS):
        st = i % D
        if i == NS - 1:
            a(f"s_cmp_eq_u32 s{S_N}, 21")
            a(f"s_cbranch_scc1 {lskip}")
        if i + 1 < NS:
            vm.wait(('s', i+1), ' lgkmcnt(0)')
            wreads(i+1)
        else:
            a("s_waitcnt lgkmcnt(0)")
        if opts.get('tsg2') and i % 4 == 0: stamp(a, opts, 48 + i//4)
        nx = ops(st, i+D) if i + D < NS else [None]*4
        for k, (m, n_) in enumerate(((0,0),(1,0),(0,1),(1,1))):
            if opts.get('fake16'):
                A_ = acc(m,n_)
                a(f"v_mfma_f32_16x16x32_bf16 {v(A_,4)}, {v(wf(i&1,m),4)}, {v(hf(st,n_),4)}, {v(A_,4)}")
                a(f"v_mfma_f32_16x16x32_bf16 {v(A_+8,4)}, {v(hf(st,n_),4)}, {v(wf(i&1,m),4)}, {v(A_+8,4)}")
            else:
                a(f"v_mfma_f32_32x32x16_bf16 {v(acc(m,n_),16)}, {v(wf(i&1,m),4)}, {v(hf(st,n_),4)}, {v(acc(m,n_),16)}")
            kk = (0, 1, 2, 3)[k]
            if nx[kk] is not None:
                a(nx[kk]); vm.op(('s', i+D))
        if i + D < NS: advance(i+D)
        if YC and i == opts.get('yfi', 14):
            a(f"global_load_dwordx2 v[142:143], v14, s[{SP['ws']}:{SP['ws']+1}] sc1"); vm.op('yf')
        if i + D == NS: yissue(True)
    a(f"{lskip}:")
    stamp(a, opts, 16+8)
    stamp(a, opts, 42, real=True)
    a(f"""
    v_and_b32 v1, 31, v0
    v_mul_u32_u24 v1, {PROW}, v1
    v_lshrrev_b32 v2, 5, v0
    v_lshlrev_b32 v2, 4, v2
    v_add_u32 v1, v1, v2
    s_mul_i32 s7, s{S_WP}, {64*PROW}
    s_add_u32 s7, s7, {F_P}
    v_add_u32 v1, s7, v1
    """)
    if YC:
        a(f"""
        v_lshrrev_b32 v2, 3, v0
        s_lshl_b32 s7, s{S_WP}, 4
        v_add_u32 v2, s7, v2
        v_mul_u32_u24 v2, 160, v2
        v_and_b32 v3, 7, v0
        v_lshlrev_b32 v3, 4, v3
        v_add_u32 v2, v2, v3
        v_add_u32 v2, {F_YT}, v2
        """)
    else:
        a(f"""
        v_lshrrev_b32 v2, 4, v0
        s_lshl_b32 s7, s{S_WP}, 4
        v_add_u32 v2, s7, v2
        v_mul_u32_u24 v2, 160, v2
        v_and_b32 v3, 15, v0
        v_lshlrev_b32 v3, 3, v3
        v_add_u32 v2, v2, v3
        v_add_u32 v2, {F_YT}, v2
        """)
    for m in range(2):
        for n_ in range(2):
            for g in range(4):
                a(f"ds_write_b128 v1, {v(acc(m,n_)+4*g,4)} offset:{n_*32*PROW + m*128 + g*32}")
    if YC:
        a("s_waitcnt vmcnt(0)")
        stamp(a, opts, 16+9)
        for j in range(2):
            a(f"ds_write_b128 v2, {v(YG+4*j,4)} offset:{j*8*160}")
        a(f"s_branch {opts['lfinal']}")
        return
    lp = a.label('ychk'); ok = a.label('yok')
    a(f"""
    s_mov_b32 s28, 0
    {lp}:
    s_waitcnt vmcnt(0)
    v_cmp_ne_u32 vcc, v{V_NON}, v{YG+2}
    """)
    for i in range(1, 4):
        a(f"v_cmp_ne_u32 s[30:31], v{V_NON}, v{YG+4*i+2}"); a("s_or_b64 vcc, vcc, s[30:31]")
    for i in range(4):
        a(f"v_cmp_ne_u32 s[30:31], v{V_NON+1}, v{YG+4*i+3}"); a("s_or_b64 vcc, vcc, s[30:31]")
    a(f"""
    s_add_u32 s28, s28, 1
    s_cmp_eq_u64 vcc, 0
    s_cbranch_scc1 {ok}
    s_cmp_gt_u32 s28, {0 if opts.get('noconv') else SPIN}
    s_cbranch_scc1 {ok}
    """)
    yissue()
    a(f"s_branch {lp}")
    a(f"{ok}:")
    stamp(a, opts, 16+9)
    for i in range(4):
        a(f"ds_write_b64 v2, {v(YG+4*i,2)} offset:{i*4*160}")
    a(f"s_branch {opts['lfinal']}")

S_SL = 87

def colsum_F(a, opts):
    S_W, SRD_T0 = 68, 20
    WA0, SEL, FR, AC, G = 8, 12, 16, 112, 16
    a(f"""
    s_setprio 3
    v_mov_b32 v1, {F_NON}
    ds_read_b32 v11, v1
    v_lshrrev_b32 v2, 5, v0                ; h
    v_lshrrev_b32 v3, 4, v0
    v_and_b32 v3, 1, v3                    ; gu
    v_mul_u32_u24 v4, 12288, v3
    v_lshlrev_b32 v5, 9, v2
    v_add_u32 v4, v4, v5
    v_and_b32 v5, 15, v0
    v_lshrrev_b32 v6, 2, v5
    v_lshlrev_b32 v6, 6, v6
    v_add_u32 v4, v4, v6
    v_and_b32 v5, 3, v5
    v_lshlrev_b32 v5, 3, v5
    v_add_u32 v4, v4, v5
    s_lshr_b32 s7, s{S_RB}, 3
    s_lshl_b32 s7, s7, 11
    s_add_u32 s7, s7, {16384 + 2*STAGE}
    v_add_u32 v4, s7, v4
    s_lshr_b32 s72, s{S_W}, 1              ; 0 / 1
    s_mul_i32 s73, s72, 3
    """)
    for mi in range(3):
        a(f"""
        s_add_u32 s32, s73, {mi}
        s_lshr_b32 s33, s32, 1
        s_lshl_b32 s33, s33, 12            ; P*4096
        s_and_b32 s32, s32, 1              ; b
        v_xor_b32 v5, s32, v3
        v_lshlrev_b32 v5, 5, v5
        v_add_u32 v5, s33, v5
        v_add_u32 v{WA0+mi}, v4, v5
        """)
    for mi in range(3):
        for s_ in range(2):
            fr = FR + (mi*2+s_)*4
            a(f"ds_read_b64_tr_b16 {v(fr,2)}, v{WA0+mi} offset:{s_*1024}")
            a(f"ds_read_b64_tr_b16 {v(fr+2,2)}, v{WA0+mi} offset:{s_*1024 + 256}")
    a(f"""
    v_and_b32 v5, 15, v0
    v_cmp_eq_u32 vcc, v5, v3
    v_mov_b32 v6, 0x3f803f80
    v_mov_b32 v7, 0
    v_cndmask_b32 v{SEL}, v7, v6, vcc
    v_mov_b32 v{SEL+1}, v{SEL}
    v_mov_b32 v{SEL+2}, v{SEL}
    v_mov_b32 v{SEL+3}, v{SEL}
    """)
    for i in range(12): a(f"v_mov_b32 v{AC+i}, 0")
    srd(a, SRD_T0, SP['ws'], 16*16*1024, WS_CSP)
    a("s_waitcnt lgkmcnt(0)")
    for s_ in range(2):
        for mi in range(3):
            fr = FR + (mi*2+s_)*4
            a(f"v_mfma_f32_16x16x32_bf16 {v(AC+4*mi,4)}, {v(fr,4)}, {v(SEL,4)}, {v(AC+4*mi,4)}")
    a(f"""
    v_and_b32 v5, 15, v0
    v_lshlrev_b32 v1, 6, v5                ; col*64
    v_lshrrev_b32 v2, 4, v0
    v_lshlrev_b32 v2, 4, v2                ; q*16
    v_add_u32 v1, v1, v2
    s_lshl_b32 s7, s{S_CT}, 4
    s_add_u32 s7, s7, s{S_RB}
    s_lshl_b32 s33, s7, 10
    s_lshl_b32 s7, s72, 9
    s_add_u32 s33, s33, s7
    v_cmp_gt_u32 vcc, 2, v5
    """)
    for g in range(4): a(f"v_mov_b32 v{G+4*g+3}, v11")
    for e in range(12): a(f"v_mov_b32 v{G+4*(e//3)+(e%3)}, v{AC+e}")
    a("s_and_saveexec_b64 s[34:35], vcc")
    for g in range(4):
        a(f"buffer_store_dwordx4 {v(G+4*g,4)}, v1, s[{SRD_T0}:{SRD_T0+3}], s33 offen offset:{g*128} sc1")
    a("s_mov_b64 exec, s[34:35]")
    stamp(a, opts, 6)

def xnt_flag(a, opts):
    nf = a.label('nfx')
    a("s_waitcnt vmcnt(0)")
    stamp(a, opts, 14)
    stamp(a, opts, 40, real=True)
    lds_count_last(a, F_CNTX, 4, nf)
    a(f"s_lshl_b32 s30, s{S_RB}, 4")
    a(f"s_add_u32 s30, s30, s{S_SL}")
    flag_store(a, WS_FLAGX, "s30")
    a(f"{nf}:")

def helper_F(a, opts):
    import kerA_help as H
    from kerA_help import kgen, grab, nonce_check, colsum_A, A_PUB, A_STATS, A_M, V_SL
    S_W, S_TB, S_ROT = 68, 69, 6
    SRD_T0, SRD_T1 = 20, 24
    ACC = 80
    a(f"""
    s_lshr_b32 s7, s{S_CT}, 3
    s_add_u32 s7, s7, s{S_ROT}
    s_and_b32 s7, s7, 7
    s_lshl_b32 s7, s7, 1
    s_bfe_u32 s33, s{S_CT}, 0x10002
    s_add_u32 s{S_SL}, s7, s33
    """)
    seg0, seg1, seg2 = kgen(a, opts)
    lab = {k: a.label('h'+k) for k in ('0','nf','rest','even','g1','g2')}
    a(f"""
    s_cmp_lg_u32 s{S_W}, 1
    s_cbranch_scc1 {lab['0']}
    global_load_dwordx2 v[152:153], v150, s[{SP['dbg']}:{SP['dbg']+1}] sc1
    {lab['0']}:
    s_setprio 0
    """)
    stamp(a, opts, 3)
    bar(a, opts, 0)
    stamp(a, opts, 4)
    grab(a, opts, 0)
    a("s_setprio 2")
    seg0()
    a("s_setprio 0")
    a(f"""
    s_cmp_lg_u32 s{S_W}, 1
    s_cbranch_scc1 {lab['nf']}
    v_lshlrev_b32 v1, 2, v0
    v_add_u32 v1, {A_PUB}, v1
    ds_read_b32 v4, v1
    s_waitcnt vmcnt(0)
    """)
    nonce_check(a, 152)
    srd(a, SRD_T1, SP['ws'], 2048*8, WS_STAT)
    a(f"""
    s_lshl_b32 s32, s{S_RB}, 4
    s_add_u32 s32, s32, s{S_CT}
    s_lshl_b32 s32, s32, 6
    v_lshlrev_b32 v1, 3, v0
    v_mov_b32 v5, s70
    s_waitcnt lgkmcnt(0)
    s_mov_b64 exec, 0xff
    s_setprio 3
    buffer_store_dwordx2 v[4:5], v1, s[{SRD_T1}:{SRD_T1+3}], s32 offen sc1
    s_setprio 0
    s_mov_b64 exec, 1
    v_mov_b32 v1, {F_NON}
    ds_write_b64 v1, v[152:153]
    s_mov_b64 exec, -1
    s_waitcnt lgkmcnt(0)
    {lab['nf']}:
    """)
    bar(a, opts, 1)
    grab(a, opts, 1)
    a("s_setprio 2")
    seg1()
    a("s_setprio 0")
    a("s_waitcnt lgkmcnt(0)")
    bar(a, opts, 2)
    a("s_setprio 2")
    seg2()
    if opts.get('cs2', 1):
        a(f"s_bitcmp0_b32 s{S_W}, 0")
        a(f"s_cbranch_scc1 {lab['rest']}")
        colsum_F(a, opts)
    else:
        a(f"s_cmp_lg_u32 s{S_W}, 1")
        a(f"s_cbranch_scc1 {lab['rest']}")
        colsum_A(a, opts)
    a(f"{lab['rest']}:")
    a("s_setprio 0")
    bar(a, opts, 3)
    srd(a, SRD_T1, SP['ws'], 2048*8, WS_STAT)
    a(f"""
    v_mov_b32 v1, {F_NON}
    ds_read_b64 v[{V_NON}:{V_NON+1}], v1
    v_lshlrev_b32 v8, 4, v0
    s_lshl_b32 s72, s{S_RB}, 10            ; 128 rows * 8 B
    s_cmp_lg_u32 s{S_W}, 0
    s_cbranch_scc1 {lab['g1']}
    s_setprio 3
    buffer_load_dwordx4 v[12:15], v8, s[{SRD_T1}:{SRD_T1+3}], s72 offen sc1
    s_setprio 0
    {lab['g1']}:
    s_waitcnt lgkmcnt(0)
    """)
    bar(a, opts, 4)
    lp = a.label('schk'); ok = a.label('sok')
    a(f"""
    s_cmp_lg_u32 s{S_W}, 0
    s_cbranch_scc1 {lab['g2']}
    s_mov_b32 s75, 0
    {lp}:
    s_waitcnt vmcnt(0)
    v_cmp_ne_u32 vcc, v{V_NON}, v13
    v_cmp_ne_u32 s[32:33], v{V_NON}, v15
    s_or_b64 vcc, vcc, s[32:33]
    s_add_u32 s75, s75, 1
    s_cmp_eq_u64 vcc, 0
    s_cbranch_scc1 {ok}
    s_cmp_gt_u32 s75, {SPIN}
    s_cbranch_scc1 {ok}
    buffer_load_dwordx4 v[12:15], v8, s[{SRD_T1}:{SRD_T1+3}], s72 offen sc1
    s_branch {lp}
    {ok}:
    v_lshlrev_b32 v4, 16, v12
    v_and_b32 v5, 0xffff0000, v12
    v_lshlrev_b32 v6, 16, v14
    v_and_b32 v7, 0xffff0000, v14
    v_lshlrev_b32 v1, 4, v0
    v_add_u32 v1, {A_STATS}, v1
    ds_write_b128 v1, v[4:7]
    v_rcp_f32 v10, v5
    v_rcp_f32 v11, v7
    v_mov_b32 v5, v6
    v_lshlrev_b32 v1, 3, v0
    v_add_u32 v1, {A_M}, v1
    ds_write_b64 v1, v[4:5]
    ds_write_b64 v1, v[10:11] offset:512
    s_waitcnt lgkmcnt(0)
    {lab['g2']}:
    """)
    stamp(a, opts, 5)
    bar(a, opts, 5)
    srd(a, SRD_T0, SP['ws'], WS_XT_SZ, WS_XT)
    a(f"""
    v_lshrrev_b32 v3, 4, v0              ; G
    v_and_b32 v1, 15, v0
    s_and_b32 s7, s{S_W}, 1
    s_lshl_b32 s7, s7, 4
    v_add_u32 v1, s7, v1
    v_lshlrev_b32 v1, 12, v1
    v_lshlrev_b32 v5, 4, v3
    v_add_u32 v8, v1, v5
    s_lshl_b32 s32, s{S_SL}, 17
    s_lshl_b32 s33, s{S_RB}, 8
    s_add_u32 s32, s32, s33
    s_lshr_b32 s7, s{S_W}, 1
    s_lshl_b32 s33, s7, 7
    s_add_u32 s32, s32, s33
    v_lshlrev_b32 v9, 5, v3
    s_lshl_b32 s33, s7, 8
    s_add_u32 s33, s33, {A_M}
    v_add_u32 v9, s33, v9
    """)
    for r in range(2):
        M, R_ = 16 + 16*r, 24 + 16*r
        a(f"ds_read_b128 {v(M,4)}, v9 offset:{r*128}")
        a(f"ds_read_b128 {v(M+4,4)}, v9 offset:{r*128+16}")
        a(f"ds_read_b128 {v(R_,4)}, v9 offset:{512 + r*128}")
        a(f"ds_read_b128 {v(R_+4,4)}, v9 offset:{512 + r*128+16}")
    for r in range(2):
        M, R_ = 16 + 16*r, 24 + 16*r
        U = 48 + 12*r
        X = V_SL + 4*r
        for j in range(4):
            a(f"v_lshlrev_b32 v{U+2*j}, 16, v{X+j}")
            a(f"v_and_b32 v{U+2*j+1}, 0xffff0000, v{X+j}")
        a(f"s_waitcnt lgkmcnt({4*(1-r)})")
        for j in range(8): a(f"v_sub_f32 v{U+j}, v{U+j}, v{M+j}")
        for j in range(4): a(f"v_cvt_pk_bf16_f32 v{U+8+j}, v{U+2*j}, v{U+2*j+1}")
        for j in range(4):
            a(f"v_lshlrev_b32 v{U+2*j}, 16, v{U+8+j}")
            a(f"v_and_b32 v{U+2*j+1}, 0xffff0000, v{U+8+j}")
        for j in range(8): a(f"v_mul_f32 v{U+j}, v{U+j}, v{R_+j}")
        for j in range(4): a(f"v_cvt_pk_bf16_f32 v{U+8+j}, v{U+2*j}, v{U+2*j+1}")
        if not opts.get('lastfull', 0) and not opts.get('xlate'):
            a("s_setprio 3")
            a(f"buffer_store_dwordx4 {v(U+8,4)}, v8, s[{SRD_T0}:{SRD_T0+3}], s32 offen offset:{r*64} sc1")
            a("s_setprio 0")
    if opts.get('lastfull', 0):
        lds_spin_eq(a, F_DMAD, 4)
        a("s_setprio 3")
        for r in range(2):
            a(f"buffer_store_dwordx4 {v(48+12*r+8,4)}, v8, s[{SRD_T0}:{SRD_T0+3}], s32 offen offset:{r*64} sc1")
        a("s_setprio 0")
    bar(a, opts, 6)
    if opts.get('xlate') == 1:
        lds_spin_eq(a, F_DMAD, 1)
        a("s_setprio 3")
        for r in range(2):
            a(f"buffer_store_dwordx4 {v(48+12*r+8,4)}, v8, s[{SRD_T0}:{SRD_T0+3}], s32 offen offset:{r*64} sc1")
        a("s_setprio 0")
        lds_inc(a, F_XST)
    if opts.get('xlate') == 3:
        lds_spin_eq(a, F_DMAD, 1)
        for r in range(2):
            a(f"buffer_store_dwordx4 {v(48+12*r+8,4)}, v8, s[{SRD_T0}:{SRD_T0+3}], s32 offen offset:{r*64} sc1")
    bar(a, opts, 7)
    if not opts.get('xlate'): xnt_flag(a, opts)
    a(f"""
    s_and_b32 s7, s{S_W}, 1
    s_cmp_eq_u32 s7, 0
    s_cbranch_scc1 {lab['even']}
    v_lshlrev_b32 v1, 4, v0
    v_add_u32 v1, s{S_TB}, v1
    """)
    for T in range(8):
        a(f"ds_write_b128 v1, {v(ACC+4*T,4)} offset:{T*1024}")
    a("s_waitcnt lgkmcnt(0)")
    a(f"s_lshr_b32 s7, s{S_W}, 1")
    a(f"s_lshl_b32 s7, s7, 2")
    a(f"s_add_u32 s7, s7, {F_PRDY}")
    lds_set(a, "s7")
    a(f"{lab['even']}:")
    conv_F(a, opts)

def conv_F(a, opts):
    S_W, S_TBK = 68, 69
    S_TB, S_CH, S_RH, S_C = 70, 71, 72, 73
    ACC, AF, BF = 16, 48, 112
    VA, VB = 8, 12
    KACC = 80
    a(f"s_setprio {opts.get('kprio',0)}")
    a(f"""
    v_mov_b32 v1, {F_NON}
    ds_read_b64 v[{V_NON}:{V_NON+1}], v1
    s_sub_u32 s{S_WP}, s{S_WAVE}, 4
    s_lshr_b32 s{S_C}, s{S_W}, 1
    s_and_b32 s{S_RH}, s{S_W}, 1
    s_lshl_b32 s{S_CH}, s2, 1
    s_add_u32 s{S_CH}, s{S_CH}, s{S_C}      ; channel
    s_mul_i32 s{S_TB}, s{S_C}, {CT_SZ}
    s_add_u32 s{S_TB}, s{S_TB}, {F_CT}
    """)
    map_B(a)
    srd(a, SRD_WS, SP['ws'], 19*MB)
    odd = a.label('codd'); join = a.label('cjoin')
    a(f"s_cmp_eq_u32 s{S_RH}, 1")
    a(f"s_cbranch_scc1 {odd}")
    a(f"s_lshl_b32 s26, s{S_C}, 2")
    a(f"s_add_u32 s26, s26, {F_PRDY}")
    lds_spin(a, ["s26"])
    a(f"""
    v_lshlrev_b32 v1, 4, v0
    v_add_u32 v2, s{S_TBK}, v1
    """)
    for T in range(8):
        a(f"ds_read_b128 {v(16+4*T,4)}, v2 offset:{8192 + T*1024}")
    a(f"""
    v_and_b32 v2, 15, v0
    v_lshlrev_b32 v2, 5, v2               ; 32*j
    v_lshrrev_b32 v3, 4, v0
    v_lshlrev_b32 v3, 3, v3               ; 8*q
    v_add_u32 v2, v2, v3
    v_sub_u32 v2, {504}, v2               ; 4088 - 512*7 - (32 j + 8 q)
    s_add_u32 s7, s{S_TB}, {CT_V0}
    v_add_u32 v2, s7, v2
    """)
    for T in range(8):
        a(f"s_waitcnt lgkmcnt({7-T})")
        for i in range(4):
            a(f"v_add_f32 v{KACC+4*T+i}, v{KACC+4*T+i}, v{16+4*T+i}")
        a(f"v_cvt_pk_bf16_f32 v{48+2*T}, v{KACC+4*T+3}, v{KACC+4*T+2}")
        a(f"v_cvt_pk_bf16_f32 v{49+2*T}, v{KACC+4*T+1}, v{KACC+4*T}")
    for T in range(8):
        a(f"ds_write_b64 v2, {v(48+2*T,2)} offset:{(7-T)*512}")
    a(f"""
    v_mov_b32 v6, 0
    v_mov_b32 v7, 0
    v_lshlrev_b32 v3, 3, v0
    s_add_u32 s7, s{S_TB}, {CT_V0+4096}
    v_add_u32 v2, s7, v3
    s_mov_b64 exec, 0xff
    ds_write_b64 v2, v[6:7]
    ds_write_b64 v2, v[6:7] offset:{CT_V1-CT_V0}
    s_mov_b64 exec, -1
    s_add_u32 s7, s{S_TB}, {CT_V0}
    v_add_u32 v2, s7, v1
    """)
    for i in range(4):
        a(f"ds_read_b128 {v(16+8*i,4)}, v2 offset:{i*1024}")
        a(f"ds_read_b32 v{20+8*i}, v2 offset:{i*1024+16}")
    for i in range(4):
        a(f"s_waitcnt lgkmcnt({6-2*i})")
        for j in range(4):
            a(f"v_alignbit_b32 v{48+4*i+j}, v{16+8*i+j+1}, v{16+8*i+j}, 16")
    for i in range(4):
        a(f"ds_write_b128 v2, {v(48+4*i,4)} offset:{CT_V1-CT_V0 + i*1024}")
    a("s_waitcnt lgkmcnt(0)")
    a(f"s_lshl_b32 s7, s{S_C}, 2")
    a(f"s_add_u32 s7, s7, {F_KRDY}")
    lds_set(a, "s7")
    a(f"s_branch {join}")
    a(f"{odd}:")
    a(f"""
    v_lshlrev_b32 v1, 4, v0
    v_mov_b32 v16, 0
    v_mov_b32 v17, 0
    v_mov_b32 v18, 0
    v_mov_b32 v19, 0
    v_add_u32 v3, s{S_TB}, v1
    s_mov_b64 exec, 0x3fffffff
    ds_write_b128 v3, v[16:19] offset:{CT_U}
    s_mov_b64 exec, -1
    """)
    a(f"{join}:")
    a("s_waitcnt lgkmcnt(0)")
    if opts.get('xlate'): xnt_flag(a, opts)
    if opts.get('noconv'):
        a("s_waitcnt vmcnt(0)")
        a(f"s_branch {opts['lfinal']}")
    ev = a.label('cev')
    a(f"s_cmp_eq_u32 s{S_RH}, 0")
    a(f"s_cbranch_scc1 {ev}")
    k3 = a.label('k3w'); k1 = a.label('k1d')
    if opts.get('onepoll', 1):
        a(f"s_cmp_lg_u32 s{S_W}, 1")
        a(f"s_cbranch_scc1 {k3}")
    a(f"""
    v_and_b32 v2, 15, v0
    v_lshlrev_b32 v2, 4, v2
    s_lshr_b32 s7, s2, 4
    v_add_u32 v2, s7, v2
    v_lshlrev_b32 v2, 7, v2
    v_add_u32 v2, {WS_FLAGX}, v2
    """)
    flag_poll(a, 2, 6, sleep=opts.get('xsleep', 4))
    if opts.get('onepoll', 1):
        lds_set(a, F_XRDY)
        a(f"s_branch {k1}")
        a(f"{k3}:")
        lds_spin(a, [F_XRDY])
        a(f"{k1}:")
    stamp(a, opts, 15)
    stamp(a, opts, 41, real=True)
    a(f"""
    s_lshl_b32 s26, s{S_CH}, 12
    s_add_u32 s26, s26, {WS_XT}
    v_lshlrev_b32 v1, 4, v0
    """)
    for i in range(4):
        a(f"buffer_load_dwordx4 {v(16+4*i,4)}, v1, s[{SRD_WS}:{SRD_WS+3}], s26 offen offset:{i*1024} sc1")
    a(f"v_add_u32 v3, s{S_TB}, v1")
    for i in range(4):
        a(f"s_waitcnt vmcnt({3-i})")
        a(f"ds_write_b128 v3, {v(16+4*i,4)} offset:{CT_U + 480 + i*1024}")
    a("s_waitcnt lgkmcnt(0)")
    a(f"s_lshl_b32 s7, s{S_C}, 2")
    a(f"s_add_u32 s7, s7, {F_URDY}")
    lds_set(a, "s7")
    a(f"{ev}:")
    a(f"""
    v_and_b32 v1, 15, v0                   ; b / a
    v_lshrrev_b32 v2, 4, v0                ; q
    v_lshrrev_b32 v3, 1, v1                ; beta
    v_lshlrev_b32 v6, 2, v2
    v_sub_u32 v6, v6, v3                   ; 4q - beta
    s_lshl_b32 s7, s{S_RH}, 6
    s_sub_u32 s7, {1015-128-48}, s7
    v_add_u32 v6, s7, v6
    v_lshlrev_b32 v6, 2, v6
    v_and_b32 v3, 1, v1
    v_xor_b32 v3, 1, v3
    v_mul_u32_u24 v3, {CT_V1-CT_V0}, v3
    v_add_u32 v6, v6, v3
    s_add_u32 s7, s{S_TB}, {CT_V0}
    v_add_u32 v{VA}, s7, v6
    v_subrev_u32 v{VA+1}, 1024, v{VA}
    v_subrev_u32 v{VA+2}, 2048, v{VA}
    v_subrev_u32 v{VA+3}, 3072, v{VA}
    v_lshlrev_b32 v3, 5, v1
    v_lshlrev_b32 v6, 4, v2
    v_add_u32 v3, v3, v6
    s_lshl_b32 s7, s{S_RH}, 8
    s_sub_u32 s7, {448-192}, s7
    s_add_u32 s7, s7, s{S_TB}
    v_add_u32 v{VB}, s7, v3
    """)
    for i in range(32): a(f"v_mov_b32 v{ACC+i}, 0")
    a(f"s_lshl_b32 s7, s{S_C}, 2")
    a(f"s_add_u32 s26, s7, {F_KRDY}")
    a(f"s_add_u32 s27, s7, {F_URDY}")
    lds_spin(a, ["s26", "s27"])
    a("s_waitcnt vmcnt(0)")
    stamp(a, opts, 16)
    a("v_lshlrev_b32 v5, 16, v151           ; Dskip")
    a(f"s_setprio {opts.get('cprio', 0)}")
    lg = LgTrack(a)
    def rdA(st, dl, rp):
        Dd, e = dl >> 1, dl & 1
        o = (1-e)*128 + (3-rp)*16
        r = AF + st*32 + dl*4
        return [(f"ds_read2_b32 {v(r,2)}, v{VA+Dd} offset0:{o} offset1:{o+1}", ('A', rp, dl)),
                (f"ds_read2_b32 {v(r+2,2)}, v{VA+Dd} offset0:{o+2} offset1:{o+3}", ('A', rp, dl))]
    def rdB(p, rp):
        return (f"ds_read_b128 {v(BF+p*4,4)}, v{VB} offset:{CT_U + 512*p + (3-rp)*64}", ('B', rp, p))
    def emit(x): a(x[0]); lg.op(x[1])
    emit(rdB(0, 0))
    for dl in range(8):
        for x in rdA(0, dl, 0): emit(x)
    for p in range(1, 8): emit(rdB(p, 0))
    for rp in range(4):
        st = rp & 1
        nxtA = []
        if rp < 3:
            for dl in range(8): nxtA += rdA(1-st, dl, rp+1)
        ni = 0
        for p in range(8):
            for dl in range(8-p):
                lg.wait([('A', rp, dl), ('B', rp, p)])
                a(f"v_mfma_f32_16x16x32_bf16 {v(ACC+4*(dl+p),4)}, {v(AF+st*32+dl*4,4)}, {v(BF+p*4,4)}, {v(ACC+4*(dl+p),4)}")
                if ni < len(nxtA): emit(nxtA[ni]); ni += 1
            if rp < 3: emit(rdB(p, rp+1))
    a(f"s_setprio {opts.get('pprio', 2)}")
    stamp(a, opts, 17)
    ex0 = a.label('ex0'); exd = a.label('exd')
    a(f"""
    v_lshlrev_b32 v13, 4, v0
    s_lshl_b32 s7, s{S_W}, 12
    s_add_u32 s7, s7, {F_EX}
    v_add_u32 v3, s7, v13
    s_cmp_eq_u32 s{S_RH}, 0
    s_nop 4
    s_cbranch_scc1 {ex0}
    """)
    for T in range(4): a(f"ds_write_b128 v3, {v(ACC+4*T,4)} offset:{T*1024}")
    for i in range(16): a(f"v_mov_b32 v{ACC+i}, v{ACC+16+i}")
    a(f"s_branch {exd}")
    a(f"{ex0}:")
    for T in range(4): a(f"ds_write_b128 v3, {v(ACC+16+4*T,4)} offset:{T*1024}")
    a(f"{exd}:")
    a("s_waitcnt lgkmcnt(0)")
    a(f"s_lshl_b32 s7, s{S_W}, 2")
    a(f"s_add_u32 s7, s7, {F_XFL}")
    lds_set(a, "s7")
    a(f"""
    s_xor_b32 s7, s{S_W}, 1
    s_lshl_b32 s26, s7, 2
    s_add_u32 s26, s26, {F_XFL}
    s_lshl_b32 s27, s7, 12
    s_add_u32 s27, s27, {F_EX}
    v_add_u32 v14, s27, v13
    """)
    lds_spin(a, ["s26"])
    for T in range(4): a(f"ds_read_b128 {v(32+4*T,4)}, v14 offset:{T*1024}")
    a(f"""
    v_and_b32 v1, 15, v0
    v_lshlrev_b32 v1, 5, v1
    v_lshrrev_b32 v2, 4, v0
    v_lshlrev_b32 v2, 3, v2
    v_add_u32 v1, v1, v2                   ; 2*(16a + 4q)
    s_lshl_b32 s7, s{S_RH}, 11
    s_add_u32 s24, s7, s{S_TB}
    v_add_u32 v2, s24, v1
    """)
    for k in range(4): a(f"ds_read_b64 {v(48+2*k,2)}, v2 offset:{CT_U + 480 + k*512}")
    if opts.get('ycomp', 1):
        a(f"""
        s_lshl_b32 s24, s{S_CH}, 12
        s_add_u32 s24, s24, {WS_Y}
        s_lshl_b32 s7, s{S_RH}, 11             ; 4 rh * 512
        s_add_u32 s24, s24, s7
        s_waitcnt lgkmcnt(0)
        """)
    else:
        a(f"""
        v_and_b32 v1, 15, v0
        v_lshlrev_b32 v1, 6, v1
        v_lshrrev_b32 v2, 4, v0
        v_lshlrev_b32 v2, 4, v2
        v_add_u32 v1, v1, v2
        s_lshl_b32 s24, s{S_CH}, 13
        s_add_u32 s24, s24, {WS_Y}
        s_lshl_b32 s7, s{S_RH}, 12
        s_add_u32 s24, s24, s7
        s_waitcnt lgkmcnt(0)
        """)
    for k in range(4):
        A = ACC + 4*k
        for i in range(4): a(f"v_add_f32 v{A+i}, v{A+i}, v{32+4*k+i}")
        U = 64
        a(f"v_cvt_pk_bf16_f32 v{U}, v{A}, v{A+1}")
        a(f"v_cvt_pk_bf16_f32 v{U+1}, v{A+2}, v{A+3}")
        for j in range(2):
            a(f"v_lshlrev_b32 v{U+2+2*j}, 16, v{48+2*k+j}")
            a(f"v_and_b32 v{U+3+2*j}, 0xffff0000, v{48+2*k+j}")
        for i in range(4): a(f"v_mul_f32 v{U+2+i}, v{U+2+i}, v5")
        a(f"v_cvt_pk_bf16_f32 v{U+6}, v{U+2}, v{U+3}")
        a(f"v_cvt_pk_bf16_f32 v{U+7}, v{U+4}, v{U+5}")
        for j in range(2):
            a(f"v_lshlrev_b32 v{U+2+2*j}, 16, v{U+6+j}")
            a(f"v_and_b32 v{U+3+2*j}, 0xffff0000, v{U+6+j}")
            a(f"v_lshlrev_b32 v{U+8+2*j}, 16, v{U+j}")
            a(f"v_and_b32 v{U+9+2*j}, 0xffff0000, v{U+j}")
        for i in range(4): a(f"v_add_f32 v{U+2+i}, v{U+2+i}, v{U+8+i}")
        O = 80 + 4*k
        a(f"v_cvt_pk_bf16_f32 v{O}, v{U+2}, v{U+3}")
        a(f"v_cvt_pk_bf16_f32 v{O+1}, v{U+4}, v{U+5}")
        if opts.get('ycomp', 1):
            a(f"buffer_store_dwordx2 {v(O,2)}, v1, s[{SRD_WS}:{SRD_WS+3}], s24 offen offset:{k*512} sc1")
        else:
            a(f"v_mov_b32 v{O+2}, v{V_NON}")
            a(f"v_mov_b32 v{O+3}, v{V_NON+1}")
            a(f"buffer_store_dwordx4 {v(O,4)}, v1, s[{SRD_WS}:{SRD_WS+3}], s24 offen offset:{k*1024} sc1")
    if opts.get('ycomp', 1):
        nfy = a.label('nfy')
        a("s_waitcnt vmcnt(0)")
        lds_count_last(a, F_CNTY, 4, nfy)
        flag_store(a, WS_FLAGY, "s2")
        a(f"{nfy}:")
    a(f"global_load_dwordx4 {v(V_XT,4)}, v{V_OFF}, s[{SP['x']}:{SP['x']+1}]")
    stamp(a, opts, 18)
    a("s_waitcnt vmcnt(0)")
    a(f"s_branch {opts['lfinal']}")

def final_F(a, opts):
    srd(a, SRD_O, SP['out'], 2097152)
    a(f"""
    s_and_b32 s7, s{S_WP}, 3
    s_lshl_b32 s7, s7, 4
    v_and_b32 v1, 15, v0
    v_add_u32 v2, s7, v1                  ; t
    v_mul_u32_u24 v2, {PROW}, v2
    s_lshr_b32 s24, s{S_WP}, 2
    s_lshl_b32 s24, s24, 2
    v_lshrrev_b32 v3, 4, v0
    v_add_u32 v3, s24, v3                 ; octet
    v_lshlrev_b32 v4, 5, v3
    v_add_u32 v2, v2, v4
    v_add_u32 v2, {F_P}, v2
    v_lshlrev_b32 v4, 3, v3
    v_lshrrev_b32 v5, 2, v1
    v_add_u32 v4, v4, v5
    v_mul_u32_u24 v4, 160, v4
    v_and_b32 v5, 3, v1
    v_lshlrev_b32 v5, 3, v5
    v_add_u32 v4, v4, v5
    s_lshl_b32 s7, s7, 1
    s_add_u32 s7, s7, {F_YT}
    v_add_u32 v4, s7, v4
    """)
    U = 56
    a("s_waitcnt vmcnt(4)") if False else None
    a("s_waitcnt lgkmcnt(0)")
    stamp(a, opts, 26)
    a("s_barrier")
    stamp(a, opts, 27)
    P = 16
    for pw in range(4):
        a(f"ds_read_b128 {v(P+8*pw,4)}, v2 offset:{pw*64*PROW}")
        a(f"ds_read_b128 {v(P+8*pw+4,4)}, v2 offset:{pw*64*PROW+16}")
    a(f"ds_read_b64_tr_b16 v[8:9], v4")
    a(f"ds_read_b64_tr_b16 v[10:11], v4 offset:{4*160}")
    for j in range(4):
        a(f"v_lshlrev_b32 v{U+2*j}, 16, v{V_XT+j}")
        a(f"v_and_b32 v{U+2*j+1}, 0xffff0000, v{V_XT+j}")
    a("s_waitcnt lgkmcnt(6)")
    for i in range(8): a(f"v_add_f32 v{P+i}, v{P+i}, v{P+8+i}")
    a("s_waitcnt lgkmcnt(2)")
    for i in range(8): a(f"v_add_f32 v{P+16+i}, v{P+16+i}, v{P+24+i}")
    for i in range(8): a(f"v_add_f32 v{P+i}, v{P+i}, v{P+16+i}")
    for j in range(4): a(f"v_cvt_pk_bf16_f32 v{48+j}, v{P+2*j}, v{P+2*j+1}")
    a("s_waitcnt lgkmcnt(0)")
    for j in range(4):
        a(f"v_lshlrev_b32 v{U+8+2*j}, 16, v{8+j}")
        a(f"v_and_b32 v{U+8+2*j+1}, 0xffff0000, v{8+j}")
    for i in range(8): a(f"v_add_f32 v{U+i}, v{U+i}, v{U+8+i}")
    for j in range(4): a(f"v_cvt_pk_bf16_f32 v{72+j}, v{U+2*j}, v{U+2*j+1}")
    for j in range(4):
        a(f"v_lshlrev_b32 v{U+2*j}, 16, v{72+j}")
        a(f"v_and_b32 v{U+2*j+1}, 0xffff0000, v{72+j}")
        a(f"v_lshlrev_b32 v{U+8+2*j}, 16, v{48+j}")
        a(f"v_and_b32 v{U+8+2*j+1}, 0xffff0000, v{48+j}")
    for i in range(8): a(f"v_add_f32 v{U+i}, v{U+i}, v{U+8+i}")
    for j in range(4): a(f"v_cvt_pk_bf16_f32 v{76+j}, v{U+2*j}, v{U+2*j+1}")
    a(f"buffer_store_dwordx4 v[76:79], v{V_OFF}, s[{SRD_O}:{SRD_O+3}], 0 offen {('', 'sc1', 'nt', 'sc0 sc1')[opts.get('osc', 0)]}")
    if opts.get('padto'):
        lp = a.label('pad')
        a(f"""
        s_waitcnt vmcnt(0)
        v_readfirstlane_b32 s28, v{V_NON}
        {lp}:
        s_memrealtime s[30:31]
        s_waitcnt lgkmcnt(0)
        s_sub_u32 s30, s30, s28
        s_cmp_lt_u32 s30, {opts['padto']}
        s_cbranch_scc1 {lp}
        """)
    stamp(a, opts, 28)
    if opts.get('ts'): a("s_waitcnt vmcnt(0)")
    stamp(a, opts, 8)
    stamp(a, opts, 7, real=True)
    stamp_flush(a, opts, 0)
    a("s_endpgm")

def gen_F(a, name, opts):
    import kerA
    MAP2[0] = opts.get('map2', 1)
    opts = dict(opts); opts['fused'] = 1
    opts['lfinal'] = a.label('final')
    if opts.get('cpf', 1):
        opts['abeg'] = name; opts['aend'] = 1
    a(kernel_head(name))
    lend = a.label('endF')
    kerA.prologue_A(a, lend, opts)
    lab = {k: a.label(k) for k in ('g','ld','h')}
    opts['lg2'] = a.label('gemm2')
    a(f"""
    s_cmp_lt_u32 s{S_WAVE}, 4
    s_cbranch_scc1 {lab['g']}
    s_cmp_lt_u32 s{S_WAVE}, 8
    s_cbranch_scc1 {lab['ld']}
    """)
    helper_F(a, opts)
    a(f"{lab['ld']}:"); kerA.loader_A(a, opts)
    a(f"s_branch {opts['lg2']}")
    a(f"{lab['g']}:"); kerA.gemm_A(a, opts)
    a(f"{opts['lg2']}:"); gemm2_F(a, opts)
    a(f"{opts['lfinal']}:"); final_F(a, opts)
    a(f"{lend}:")
    a("s_endpgm")
    a(".fill 3072, 4, 0xbf800000")
    a(kernel_desc(name, 168))
```

```python
class Asm:
    def __init__(self):
        self.lines = []
        self.uid = 0
    def __call__(self, s=''):
        for l in s.split('\n'):
            l = l.strip()
            if not l: continue
            if l.endswith(':') or l.startswith('.') or l.startswith(';'):
                self.lines.append(l)
            else:
                self.lines.append('    ' + l)
    def label(self, base):
        self.uid += 1
        return f"L_{base}_{self.uid}"
    def text(self):
        return '\n'.join(self.lines) + '\n'
def v(a, n=1):
    return f"v{a}" if n == 1 else f"v[{a}:{a+n-1}]"
def s(a, n=1):
    return f"s{a}" if n == 1 else f"s[{a}:{a+n-1}]"

KA = dict(x=0, are=8, aim=16, bre=24, bim=32, cre=40, cim=48, logdt=56, dskip=64, bx=72, wg=80, wu=88, wd=96, out=104, dbg=112, ws=120)
SP = {k: 36 + o//4 for k, o in KA.items()}

MB = 1024*1024
WS_H    = 0
WS_H_SZ = 64*86*1024
WS_WD   = 6*MB
WS_WD_SZ= 16*86*1024
WS_XT   = 8*MB
WS_XT_SZ= 512*4096
WS_K    = 10*MB
K_STRIDE= 4160
WS_K_SZ = 512*K_STRIDE
WS_Y    = 13*MB
WS_Y_SZ = 512*8192
WS_STAT = 18*MB
WS_CSP  = 18*MB + 65536
WS_NONCE= 18*MB + 524288
WS_FLAGX= 18*MB + 655360
WS_FLAGH= WS_FLAGX + 32768
WS_FLAGY= WS_FLAGH + 32768
WS_TS   = 20*MB

def srd(a, dst, ptr, size, off=0):
    if off:
        a(f"s_add_u32 s{dst}, s{ptr}, {off}")
        a(f"s_addc_u32 s{dst+1}, s{ptr+1}, 0")
    else:
        a(f"s_mov_b32 s{dst}, s{ptr}")
        a(f"s_mov_b32 s{dst+1}, s{ptr+1}")
    a(f"s_mov_b32 s{dst+2}, {size}")
    a(f"s_mov_b32 s{dst+3}, 0x20000")

def kernel_desc(name, vgpr, sgpr=102):
    acc = (vgpr + 3)//4*4
    return f""".section .rodata,"a"
.p2align 6
.amdhsa_kernel {name}
  .amdhsa_next_free_vgpr {vgpr}
  .amdhsa_next_free_sgpr {sgpr}
  .amdhsa_accum_offset {acc}
  .amdhsa_group_segment_fixed_size 0
  .amdhsa_kernarg_size 128
  .amdhsa_user_sgpr_count 2
  .amdhsa_user_sgpr_kernarg_segment_ptr 1
  .amdhsa_system_sgpr_workgroup_id_x 1
.end_amdhsa_kernel
.text
"""
def kernel_head(name):
    return f""".text
.globl {name}
.p2align 8
.type {name},@function
{name}:
"""

V_TS = 167
def stamp_init(a, opts):
    if not opts.get('ts'): return
    a(f"v_mov_b32 v{V_TS}, 0")
def set_vts(n):
    global V_TS
    V_TS = n
def stamp(a, opts, idx, real=False, vts=None):
    if not opts.get('ts'): return
    if opts.get('lite') and not real and idx not in (0, 8, 3, 4): return
    vts = V_TS if vts is None else vts
    a("s_memrealtime s[92:93]" if real else "s_memtime s[92:93]")
    a("s_waitcnt lgkmcnt(0)")
    if isinstance(idx, int):
        a(f"v_writelane_b32 v{vts}, s92, {idx}")
    else:
        a(f"s_mov_b32 s89, m0")
        a(f"s_mov_b32 m0, {idx}")
        a(f"v_writelane_b32 v{vts}, s92, m0")
        a(f"s_mov_b32 m0, s89")
def stamp_flush(a, opts, kslot, wave_sgpr=3, vts=None):
    if not opts.get('ts'): return
    vts = V_TS if vts is None else vts
    srd(a, 96, SP['ws'], 1<<20, WS_TS + kslot*(1<<20))
    a(f"s_lshl_b32 s91, s2, 4")
    a(f"s_add_u32 s91, s91, s{wave_sgpr}")
    a(f"s_lshl_b32 s91, s91, 8")
    a("v_mbcnt_lo_u32_b32 v1, -1, 0")
    a("v_mbcnt_hi_u32_b32 v1, -1, v1")
    a("v_lshlrev_b32 v1, 2, v1")
    a(f"buffer_store_dword v{vts}, v1, s[96:99], s91 offen")
    a("s_waitcnt vmcnt(0)")

def bar(a, opts, n):
    if opts.get('tsb'): stamp(a, opts, 32+n)
    a("s_barrier")

class VmTrack:
    def __init__(self, a): self.a = a; self.ops = []
    def op(self, tag): self.ops.append(tag)
    def count_after(self, tag):
        idx = max(i for i, t in enumerate(self.ops) if t == tag)
        return len(self.ops) - 1 - idx
    def wait(self, tag, extra=''):
        n = self.count_after(tag)
        assert n <= 63
        self.a(f"s_waitcnt vmcnt({n}){extra}")
class LgTrack:
    def __init__(self, a): self.a = a; self.n = 0; self.last = {}; self.done = -1
    def op(self, tag): self.last[tag] = self.n; self.n += 1
    def wait(self, tags):
        need = max(self.last[t] for t in tags)
        if need <= self.done: return
        cnt = min(self.n - 1 - need, 15)
        self.a(f"s_waitcnt lgkmcnt({cnt})")
        self.done = self.n - 1 - cnt

def dbgstamp(a, opts, slot, wave_sgpr=3, wave=None):
    if 'dbgwg' not in opts: return
    sk = a.label('dbs')
    a(f"s_cmp_lg_u32 s2, {opts['dbgwg']}")
    a(f"s_cbranch_scc1 {sk}")
    if wave is not None:
        a(f"s_cmp_lg_u32 s{wave_sgpr}, {wave}")
        a(f"s_cbranch_scc1 {sk}")
    a(f"""
    s_memrealtime s[92:93]
    s_waitcnt lgkmcnt(0)
    v_mov_b32 v6, s92
    v_mov_b32 v7, {slot*4}
    s_mov_b64 s[90:91], exec
    s_mov_b64 exec, 1
    global_store_dword v7, v6, s[{SP['dbg']}:{SP['dbg']+1}]
    s_mov_b64 exec, s[90:91]
    {sk}:
    """)
```

```python
from core import *
import struct
def f2u(x): return struct.unpack('<I', struct.pack('<f', x))[0]
def hx(x): return hex(f2u(x))
STAGE = 40960
A_KT = 3*STAGE
DEPTH = 4
CT_U, CT_V0, CT_V1, CT_SZ = 0, 4608, 4608+4160, 4608+4160+4160
F_CT = 0
F_EX = F_CT + 2*CT_SZ
F_WR = F_EX + 4*4096
F_YT = F_WR + 4*DEPTH*2048
F_P  = F_YT + 10240
PROW = 272
F_SY = 158528
F_NON, F_CNTH, F_CNTX, F_HRDY, F_KRDY, F_URDY, F_XFL, F_ORD = F_SY, F_SY+8, F_SY+12, F_SY+16, F_SY+20, F_SY+28, F_SY+36, F_SY+52
F_CSR, F_GDN, F_PRDY, F_DMAD, F_XST, F_CNTY, F_XRDY = F_SY+56, F_SY+60, F_SY+64, F_SY+72, F_SY+76, F_SY+80, F_SY+84
F_EHF = F_SY + 88
F_EHB = 85248
F_LDS = F_SY + 128
S_WAVE, S_RB, S_CT = 3, 4, 5
S_RT, S_C2, S_WP = 78, 79, 80
SRD_WS, SRD_WD, SRD_O = 8, 12, 16
V_XT, V_NON, V_OFF = 160, 164, 166
SPIN = 200000

MAP2 = [1]
def map_tile(a, srt, sc2):
    if MAP2[0] == 0:
        a(f"""
        s_and_b32 s7, s2, 7
        s_lshr_b32 s33, s2, 3
        s_lshl_b32 s7, s7, 2
        s_and_b32 s{sc2}, s33, 3
        s_add_u32 s{srt}, s7, s{sc2}
        s_lshr_b32 s{sc2}, s33, 2
        """)
    else:
        a(f"""
        s_and_b32 s7, s2, 7
        s_lshr_b32 s33, s2, 3
        s_lshr_b32 s{srt}, s7, 1
        s_lshl_b32 s{srt}, s{srt}, 3
        s_and_b32 s{sc2}, s33, 7
        s_add_u32 s{srt}, s{srt}, s{sc2}
        s_and_b32 s7, s7, 1
        s_lshl_b32 s7, s7, 2
        s_lshr_b32 s{sc2}, s33, 3
        s_add_u32 s{sc2}, s{sc2}, s7
        """)
def map_B(a):
    map_tile(a, S_RT, S_C2)
    a(f"""
    s_and_b32 s32, s{S_WP}, 3
    s_lshl_b32 s32, s32, 4
    s_lshl_b32 s33, s{S_RT}, 6
    s_add_u32 s32, s32, s33               ; 64 rt + 16 (w&3)
    v_and_b32 v2, 15, v0
    v_add_u32 v2, s32, v2
    v_lshlrev_b32 v2, 10, v2              ; row*1024
    s_lshr_b32 s32, s{S_WP}, 2
    s_lshl_b32 s32, s32, 6
    s_lshl_b32 s33, s{S_C2}, 7
    s_add_u32 s32, s32, s33
    v_lshrrev_b32 v3, 4, v0
    v_lshlrev_b32 v3, 4, v3
    v_add_u32 v2, v2, v3
    v_add_u32 v{V_OFF}, s32, v2
    """)

def lds_count_last(a, addr, n, lab_skip):
    a(f"""
    v_mov_b32 v1, {addr}
    v_mov_b32 v2, 1
    s_mov_b64 exec, 1
    ds_add_rtn_u32 v3, v1, v2
    s_mov_b64 exec, -1
    s_waitcnt lgkmcnt(0)
    v_readfirstlane_b32 s7, v3
    s_cmp_lg_u32 s7, {n-1}
    s_cbranch_scc1 {lab_skip}
    """)
def lds_set(a, addr_expr_sgpr_or_int):
    if isinstance(addr_expr_sgpr_or_int, int): a(f"v_mov_b32 v1, {addr_expr_sgpr_or_int}")
    else: a(f"v_mov_b32 v1, {addr_expr_sgpr_or_int}")
    a("v_mov_b32 v2, 1")
    a("ds_write_b32 v1, v2")
def lds_spin(a, addrs):
    lp = a.label('spin')
    for i, ad in enumerate(addrs): a(f"v_mov_b32 v{1+i}, {ad}")
    a("s_mov_b32 s99, 0")
    a(f"{lp}:")
    for i in range(len(addrs)): a(f"ds_read_b32 v{3+i}, v{1+i}")
    a("s_add_u32 s99, s99, 1")
    a("s_waitcnt lgkmcnt(0)")
    if len(addrs) == 2: a("v_min_u32 v3, v3, v4"); a("s_nop 0")
    a(f"""
    v_readfirstlane_b32 s24, v3
    s_cmp_gt_u32 s99, {5*SPIN}
    s_cselect_b32 s24, 1, s24
    s_cmp_eq_u32 s24, 0
    s_cbranch_scc1 {lp}
    """)
def lds_inc(a, addr):
    a(f"""
    v_mov_b32 v1, {addr}
    v_mov_b32 v2, 1
    s_mov_b64 exec, 1
    ds_add_u32 v1, v2
    s_mov_b64 exec, -1
    """)
def lds_spin_eq(a, addr, val):
    lp = a.label('spinq')
    a(f"""
    v_mov_b32 v1, {addr}
    s_mov_b32 s99, 0
    {lp}:
    ds_read_b32 v3, v1
    s_add_u32 s99, s99, 1
    s_waitcnt lgkmcnt(0)
    v_readfirstlane_b32 s7, v3
    s_cmp_gt_u32 s99, {5*SPIN}
    s_cselect_b32 s7, {val}, s7
    s_cmp_lg_u32 s7, {val}
    s_cbranch_scc1 {lp}
    """)
def flag_store(a, base, idx_sgpr):
    a(f"""
    s_lshl_b32 s7, {idx_sgpr}, 7
    s_add_u32 s7, s7, {base}
    v_mov_b32 v1, s7
    s_mov_b64 exec, 1
    global_store_dwordx2 v1, v[{V_NON}:{V_NON+1}], s[{SP['ws']}:{SP['ws']+1}] sc1
    s_mov_b64 exec, -1
    """)
def flag_poll(a, vaddr, vdst, nosleep=False, sleep=1):
    lp = a.label('poll'); ok = a.label('pok')
    a(f"""
    s_mov_b32 s99, 0
    {lp}:
    global_load_dwordx2 v[{vdst}:{vdst+1}], v{vaddr}, s[{SP['ws']}:{SP['ws']+1}] sc1
    s_add_u32 s99, s99, 1
    s_waitcnt vmcnt(0)
    v_cmp_ne_u32 vcc, v{V_NON}, v{vdst}
    v_cmp_ne_u32 s[30:31], v{V_NON+1}, v{vdst+1}
    s_or_b64 vcc, vcc, s[30:31]
    s_cmp_eq_u64 vcc, 0
    s_cbranch_scc1 {ok}
    s_cmp_gt_u32 s99, {SPIN}
    s_cbranch_scc1 {ok}
    {"s_nop 0" if nosleep else f"s_sleep {sleep}"}
    s_branch {lp}
    {ok}:
    """)


def touch_group(a, sg, srt, sc2, vdst):
    a(f"""
    s_cmp_eq_u32 s{sg}, 3
    s_cselect_b32 s30, 14, 24
    s_lshl_b32 s31, s30, 1
    s_mul_i32 s33, s{sc2}, s31
    v_add_u32 v1, s33, v0
    s_lshl_b32 s33, s30, 3
    v_cmp_le_u32 vcc, s33, v1
    v_mov_b32 v2, s33
    v_mov_b32 v3, 0
    v_cndmask_b32 v2, v3, v2, vcc
    v_sub_u32 v1, v1, v2
    v_mov_b32 v2, {86*1024}
    v_cndmask_b32 v2, v3, v2, vcc
    v_lshlrev_b32 v1, 7, v1
    v_add_u32 v1, v1, v2
    s_mul_i32 s33, s{srt}, {2*86*1024}
    s_mul_i32 s7, s{sg}, {24*1024}
    s_add_u32 s33, s33, s7
    s_add_u32 s33, s33, {WS_H}
    v_add_u32 v1, s33, v1
    v_cmp_gt_u32 vcc, s31, v0
    s_and_saveexec_b64 s[30:31], vcc
    global_load_dword v{vdst}, v1, s[{SP['ws']}:{SP['ws']+1}] sc1
    s_mov_b64 exec, s[30:31]
    """)

def gpub_F(a, opts):
    nf = a.label('nfh'); end = a.label('gpe')
    a(f"""
    v_mov_b32 v1, {F_NON}
    ds_read_b64 v[{V_NON}:{V_NON+1}], v1
    s_waitcnt vmcnt(0) lgkmcnt(0)
    """)
    stamp(a, opts, 14)
    stamp(a, opts, 40, real=True)
    dbgstamp(a, opts, 5, wave=0)
    lds_count_last(a, F_CNTH, 8 if opts.get('esplit', 0) else 4, nf)
    a(f"s_lshl_b32 s30, s{S_RB}, 4")
    a(f"s_add_u32 s30, s30, s{S_CT}")
    flag_store(a, WS_FLAGH, "s30")
    a(f"{nf}:")
    a(f"s_cmp_lg_u32 s{S_WAVE}, 0")
    a(f"s_cbranch_scc1 {end}")
    map_tile(a, 34, 35)
    a(f"""
    s_lshr_b32 s7, s34, 1
    s_lshl_b32 s7, s7, 4
    v_min_u32 v2, 14, v0
    v_add_u32 v2, s7, v2
    v_lshlrev_b32 v2, 7, v2
    v_add_u32 v2, {WS_FLAGH}, v2
    """)
    flag_poll(a, 2, 4, sleep=opts.get('gsleep', 8))
    if opts.get('touch'):
        a(f"""
        s_and_b32 s7, s2, 7
        s_lshl_b32 s7, s7, 2
        s_lshr_b32 s33, s2, 3
        s_and_b32 s34, s33, 3
        s_add_u32 s34, s7, s34
        s_lshr_b32 s35, s33, 2
        """)
        for g in range(4):
            a(f"s_mov_b32 s86, {g}")
            touch_group(a, 86, 34, 35, 8+g)
    lds_set(a, F_HRDY)
    a("s_waitcnt lgkmcnt(0)")
    a(f"{end}:")
    stamp(a, opts, 15)
    stamp(a, opts, 7, real=True)
    if opts.get('ts'): a("s_waitcnt vmcnt(0)")
    stamp_flush(a, opts, 0)
    a("s_endpgm")


def epi_L(a, opts):
    from kerA_help import A_STATS, A_CS
    SRD_H = 20
    SC, AC, CS, T = 88, 16, 48, 64
    OUTS = (80, 84)
    done = a.label('epld')
    K1 = -2*0.7978845608028654*1.4426950408889634
    a(f"""
    s_and_b32 s70, s68, 1                    ; tw
    s_lshr_b32 s71, s68, 1                   ; fw
    s_lshl_b32 s7, s{S_CT}, 1
    s_add_u32 s7, s7, s71
    s_cmp_ge_u32 s7, 29
    s_cbranch_scc1 {done}
    v_and_b32 v1, 31, v0
    s_lshl_b32 s7, s70, 6
    v_add_u32 v1, s7, v1
    v_lshlrev_b32 v2, 3, v1
    v_add_u32 v2, {A_STATS}, v2
    ds_read_b64 v[8:9], v2
    ds_read_b64 v[10:11], v2 offset:256
    v_lshrrev_b32 v5, 5, v0
    v_lshlrev_b32 v5, 4, v5
    s_mul_i32 s7, s71, 384
    s_add_u32 s7, s7, {A_CS + 256}
    v_add_u32 v5, s7, v5
    v_lshlrev_b32 v6, 4, v0
    s_lshl_b32 s7, s68, 13
    s_add_u32 s7, s7, {F_EHB}
    v_add_u32 v7, s7, v6
    s_lshl_b32 s72, s{S_RB}, 2
    s_lshl_b32 s7, s70, 1
    s_add_u32 s72, s72, s7
    s_mul_i32 s72, s72, 86
    s_mul_i32 s73, s{S_CT}, 6
    s_mul_i32 s7, s71, 3
    s_add_u32 s73, s73, s7
    s_add_u32 s73, s73, 2
    """)
    srd(a, SRD_H, SP['ws'], WS_H_SZ, WS_H)
    a("s_waitcnt lgkmcnt(0)")
    for n in range(2):
        b = SC + 8*n
        m_, s_ = 8+2*n, 9+2*n
        a(f"""
        v_mov_b32 v{b}, v{m_}
        v_rcp_f32 v1, v{s_}
        v_mul_f32 v{b+6}, v{s_}, v{s_}
        v_mul_f32 v{b+2}, {hx(K1)}, v1
        v_mul_f32 v2, v1, v1
        v_mul_f32 v2, {hx(0.044715)}, v2
        v_mul_f32 v{b+4}, v{b+2}, v2
        """)
    a("s_lshl_b32 s26, s68, 2")
    a(f"s_add_u32 s26, s26, {F_EHF}")
    lds_spin(a, ["s26", F_CSR])
    for n in range(2):
        for g in range(4):
            a(f"ds_read_b128 {v(AC+16*n+4*g,4)}, v7 offset:{(n*4+g)*1024}")
    for g in range(4):
        a(f"ds_read_b128 {v(CS+4*g,4)}, v5 offset:{g*32}")
    a(f"s_setprio {opts.get('eprio', 2)}")
    a("s_waitcnt lgkmcnt(0)")
    for n in range(2):
        b = SC + 8*n; A = AC + 16*n
        for p in range(8):
            a(f"v_pk_fma_f32 {v(A+2*p,2)}, {v(CS+2*p,2)}, {v(b,2)}, {v(A+2*p,2)} op_sel_hi:[1,0,1] neg_lo:[0,1,0] neg_hi:[0,1,0]")
    for p in range(4):
        regs = [(AC+16*n+2*p, AC+16*n+8+2*p, SC+8*n, T+8*n) for n in range(2)]
        for (g_, u_, b, t) in regs: a(f"v_pk_mul_f32 {v(t,2)}, {v(g_,2)}, {v(g_,2)}")
        for (g_, u_, b, t) in regs: a(f"v_pk_fma_f32 {v(t,2)}, {v(t,2)}, {v(b+4,2)}, {v(b+2,2)} op_sel_hi:[1,0,0]")
        for (g_, u_, b, t) in regs: a(f"v_pk_mul_f32 {v(t,2)}, {v(t,2)}, {v(g_,2)}")
        for (g_, u_, b, t) in regs: a(f"v_pk_mul_f32 {v(t+2,2)}, {v(g_,2)}, {v(u_,2)}")
        for (g_, u_, b, t) in regs:
            a(f"v_exp_f32 v{t}, v{t}")
            a(f"v_exp_f32 v{t+1}, v{t+1}")
        for (g_, u_, b, t) in regs: a(f"v_pk_fma_f32 {v(t,2)}, {v(t,2)}, {v(b+6,2)}, {v(b+6,2)} op_sel_hi:[1,0,0]")
        for (g_, u_, b, t) in regs:
            a(f"v_rcp_f32 v{t}, v{t}")
            a(f"v_rcp_f32 v{t+1}, v{t+1}")
        for (g_, u_, b, t) in regs: a(f"v_pk_mul_f32 {v(t+2,2)}, {v(t+2,2)}, {v(t,2)}")
        for n, (g_, u_, b, t) in enumerate(regs): a(f"v_cvt_pk_bf16_f32 v{OUTS[n]+p}, v{t+2}, v{t+3}")
    a(f"""
    s_cmp_ge_u32 s73, 86
    s_cbranch_scc1 {done}
    s_add_u32 s7, s73, s72
    s_lshl_b32 s7, s7, 10
    buffer_store_dwordx4 {v(OUTS[0],4)}, v6, s[{SRD_H}:{SRD_H+3}], s7 offen sc1
    s_add_u32 s7, s7, {86*1024}
    buffer_store_dwordx4 {v(OUTS[1],4)}, v6, s[{SRD_H}:{SRD_H+3}], s7 offen sc1
    {done}:
    s_setprio 0
    """)

def gemm2_F(a, opts):
    D = DEPTH
    ACC, HF, WF, YG = 16, 80, 112, 128
    VH0, VH1, VWD, VA0, VA1, VY = 8, 9, 10, 11, 13, 12
    S_N, S_OFF, S_RING, S_WC = 81, 27, 28, 29
    S_GB, S_GL, S_STEP, S_CNT, S_ROT, S_GD = 70, 74, 82, 83, 84, 85
    def acc(m, n): return ACC + (m*2+n)*16
    def hf(st, n): return HF + st*8 + n*4
    def wf(st, m): return WF + st*8 + m*4
    vm = VmTrack(a)
    if opts.get('esplit', 0): epi_L(a, opts)
    a(f"s_mov_b32 s{S_WP}, s68")
    srd(a, SRD_WD, SP['wd'], 1409024)
    if opts.get('pfmode',0) == 1:
        npf = a.label('nopf')
        a(f"s_cmp_lg_u32 s{S_WP}, 1")
        a(f"s_cbranch_scc1 {npf}")
        if opts.get('pfwait'): lds_spin(a, [F_URDY, F_URDY+4])
        a(f"""
        s_lshr_b32 s30, s2, 3
        s_mul_i32 s30, s30, {43*1024}
        v_lshlrev_b32 v1, 7, v0
        v_add_u32 v1, s30, v1
        """)
        for i in range(6):
            a(f"s_mov_b32 s30, {i*8192}")
            a(f"buffer_load_dword v{144+i}, v1, s[{SRD_WD}:{SRD_WD+3}], s30 offen")
        a(f"{npf}:")
    map_B(a)
    a(f"""
    s_mov_b32 s{S_N}, 22
    s_cmp_ge_u32 s{S_WP}, 2
    s_cselect_b32 s{S_N}, 21, s{S_N}
    v_lshlrev_b32 v1, 4, v0
    s_mul_i32 s7, s{S_RT}, {2*86*1024}
    s_add_u32 s7, s7, {WS_H}
    v_add_u32 v{VH0}, s7, v1
    v_add_u32 v{VH1}, {86*1024}, v{VH0}
    v_lshrrev_b32 v2, 3, v0
    v_lshlrev_b32 v2, 10, v2
    v_and_b32 v3, 7, v0
    v_bfe_u32 v4, v0, 4, 1
    v_lshlrev_b32 v4, 2, v4
    v_xor_b32 v3, v3, v4
    v_lshlrev_b32 v3, 4, v3
    v_add_u32 v{VWD}, v2, v3
    s_lshl_b32 s{S_WC}, s{S_C2}, 7
    s_mul_i32 s{S_RING}, s{S_WP}, {D*2048}
    s_add_u32 s{S_RING}, s{S_RING}, {F_WR}
    v_lshrrev_b32 v2, 5, v0
    v_lshlrev_b32 v2, 2, v2                 ; 4h
    v_bfe_u32 v3, v0, 2, 2                  ; r'
    v_add_u32 v2, v2, v3
    v_lshlrev_b32 v2, 7, v2
    v_lshrrev_b32 v3, 1, v3
    v_lshlrev_b32 v3, 6, v3
    v_add_u32 v2, v2, v3
    v_bfe_u32 v3, v0, 4, 1
    v_lshlrev_b32 v3, 5, v3
    v_add_u32 v2, v2, v3
    v_and_b32 v3, 3, v0
    v_lshlrev_b32 v3, 3, v3
    v_add_u32 v2, v2, v3
    v_add_u32 v{VA0}, s{S_RING}, v2
    v_xor_b32 v2, 64, v2
    v_add_u32 v{VA1}, s{S_RING}, v2
    """)
    if opts.get('ycomp', 1):
        a(f"""
        v_lshrrev_b32 v2, 3, v0
        s_lshl_b32 s7, s{S_WP}, 4
        s_lshl_b32 s30, s{S_C2}, 6
        s_add_u32 s7, s7, s30                  ; 64 ct + 16 w
        v_add_u32 v2, s7, v2
        v_lshlrev_b32 v2, 12, v2               ; ch*4096
        v_and_b32 v3, 7, v0
        v_lshlrev_b32 v3, 4, v3
        v_add_u32 v2, v2, v3
        s_lshl_b32 s30, s{S_RT}, 7             ; 64 t * 2 B
        s_add_u32 s30, s30, {WS_Y}
        v_add_u32 v{VY}, s30, v2               ; y address
        s_lshr_b32 s7, s7, 1
        v_min_u32 v2, 7, v0
        v_add_u32 v2, s7, v2
        v_lshlrev_b32 v2, 7, v2
        v_add_u32 v14, {WS_FLAGY}, v2
        """)
    else:
        a(f"""
        v_lshrrev_b32 v2, 4, v0
        s_lshl_b32 s7, s{S_WP}, 4
        s_lshl_b32 s30, s{S_C2}, 6
        s_add_u32 s7, s7, s30                  ; 64 ct + 16 w
        v_add_u32 v2, s7, v2
        v_lshlrev_b32 v2, 13, v2               ; ch*8192
        v_and_b32 v3, 15, v0
        v_lshlrev_b32 v3, 4, v3
        v_add_u32 v2, v2, v3
        s_lshl_b32 s7, s{S_RT}, 8
        s_add_u32 s7, s7, {WS_Y}
        v_add_u32 v{VY}, s7, v2                ; y address
        """)
    a(f"""
    v_mov_b32 v1, {F_NON}
    ds_read_b64 v[{V_NON}:{V_NON+1}], v1
    """)
    srd(a, SRD_WS, SP['ws'], 19*MB)
    srd(a, SRD_WD, SP['wd'], 1409024)
    for i in range(64): a(f"v_mov_b32 v{ACC+i}, 0")
    a("s_waitcnt lgkmcnt(0)")
    stamp(a, opts, 14)
    a(f"""
    s_mov_b32 s24, {0 | (1 << 2) | (3 << 4) | (2 << 6)}
    s_mov_b32 s25, {1 | (0 << 2) | (2 << 4) | (3 << 6)}
    s_bitcmp1_b32 s{S_C2}, 0
    s_cselect_b32 s24, s25, s24
    """)
    a(f"""
    s_mul_i32 s30, s{S_WP}, 6
    s_lshl_b32 s31, s{S_WP}, 2
    s_cmp_eq_u32 s{S_WP}, 3
    s_cselect_b32 s31, 11, s31
    s_cmp_ge_u32 s{S_WP}, 2
    s_cselect_b32 s32, 3, 4
    """)
    for k in range(4):
        a(f"""
        s_lshr_b32 s7, s24, {2*k}
        s_and_b32 s7, s7, 3
        s_mul_i32 s33, s7, 24
        s_cmp_eq_u32 s7, 3
        s_cselect_b32 s25, s31, s30
        s_add_u32 s{S_GB+k}, s33, s25
        s_cselect_b32 s{S_GL+k}, s32, 6
        """.replace("        s_add_u32 s%d, s33, s25\n        s_cselect_b32" % (S_GB+k), "        s_add_u32 s%d, s33, s25\n        s_cmp_eq_u32 s7, 3\n        s_cselect_b32" % (S_GB+k)))
    S_OW, S_OH, S_REM = 82, 83, 84
    S_OE, S_RO = 88, 94
    def load_group():
        a(f"""
        s_lshr_b32 s7, s{S_GL}, 1
        s_bitcmp1_b32 s{S_C2}, 1
        s_cselect_b32 s{S_RO}, s7, 0
        s_add_u32 s7, s{S_GB}, s{S_RO}
        s_lshl_b32 s{S_OW}, s7, 14
        s_add_u32 s{S_OW}, s{S_OW}, s{S_WC}
        s_lshl_b32 s{S_OH}, s7, 10
        s_add_u32 s7, s{S_GB}, s{S_GL}
        s_lshl_b32 s{S_OE}, s7, 10
        s_mov_b32 s{S_REM}, s{S_GL}
        """)
    a(f"s_mov_b32 s{S_GD}, 0")
    load_group()
    if opts.get('esplit', 0):
        nfl = a.label('nfl')
        a("s_waitcnt vmcnt(0)")
        lds_count_last(a, F_CNTH, 8, nfl)
        a(f"s_lshl_b32 s30, s{S_RB}, 4")
        a(f"s_add_u32 s30, s30, s{S_CT}")
        flag_store(a, WS_FLAGH, "s30")
        a(f"{nfl}:")
    lds_spin_eq(a, F_GDN, 4)
    a(f"s_setprio {opts.get('gprio', 1)}")
    def advance(pos):
        adv = a.label('noadv'); nw = a.label('nowrap')
        a(f"""
        s_add_u32 s{S_OW}, s{S_OW}, 16384
        s_add_u32 s{S_OH}, s{S_OH}, 1024
        s_cmp_lg_u32 s{S_OH}, s{S_OE}
        s_cbranch_scc1 {nw}
        s_lshl_b32 s7, s{S_GL}, 14
        s_sub_u32 s{S_OW}, s{S_OW}, s7
        s_lshl_b32 s7, s{S_GL}, 10
        s_sub_u32 s{S_OH}, s{S_OH}, s7
        {nw}:
        s_sub_u32 s{S_REM}, s{S_REM}, 1
        s_cmp_lg_u32 s{S_REM}, 0
        s_cbranch_scc1 {adv}
        s_mov_b32 s{S_GB}, s{S_GB+1}
        s_mov_b32 s{S_GB+1}, s{S_GB+2}
        s_mov_b32 s{S_GB+2}, s{S_GB+3}
        s_mov_b32 s{S_GL}, s{S_GL+1}
        s_mov_b32 s{S_GL+1}, s{S_GL+2}
        s_mov_b32 s{S_GL+2}, s{S_GL+3}
        s_add_u32 s{S_GD}, s{S_GD}, 1
        """)
        load_group()
        if pos + 1 in (9, 10, 12):
            a(f"s_cmp_lg_u32 s{S_GD}, 2")
            a(f"s_cbranch_scc1 {adv}")
            lds_spin(a, [F_HRDY])
        a(f"{adv}:")
    def ops(st, step):
        g = []
        g.append((f"s_add_u32 m0, s{S_RING}, {st*2048}\ns_add_u32 s31, s{S_OW}, 8192\nbuffer_load_dwordx4 v{VWD}, s[{SRD_WD}:{SRD_WD+3}], s{S_OW} offen lds"))
        g.append((f"buffer_load_dwordx4 {v(hf(st,0),4)}, v{VH0}, s[{SRD_WS}:{SRD_WS+3}], s{S_OH} offen sc1"))
        g.append((f"s_add_u32 m0, s{S_RING}, {st*2048+1024}\ns_nop 0\nbuffer_load_dwordx4 v{VWD}, s[{SRD_WD}:{SRD_WD+3}], s31 offen lds"))
        g.append((f"buffer_load_dwordx4 {v(hf(st,1),4)}, v{VH1}, s[{SRD_WS}:{SRD_WS+3}], s{S_OH} offen sc1"))
        return g
    S_PH = 95
    for st in range(D):
        g = ops(st, st)
        a(g[0]); vm.op(('w', st)); a(g[2]); vm.op(('w', st))
        a(f"s_mov_b32 s{S_PH+st}, s{S_OH}")
        advance(st)
    oth = a.label('hoth'); go = a.label('hgo'); lp = a.label('opoll'); ok = a.label('ook')
    a(f"s_cmp_lg_u32 s{S_WP}, 0")
    a(f"s_cbranch_scc1 {oth}")
    if opts.get('pollwait', 1): lds_spin_eq(a, F_CNTH, 8 if opts.get('esplit', 0) else 4)
    a(f"""
    v_min_u32 v2, {7 if opts.get('gfirst', 3) == 3 else 14}, v0
    s_lshr_b32 s7, s{S_RT}, 1
    s_lshl_b32 s7, s7, 4
    v_add_u32 v2, s7, v2
    v_lshlrev_b32 v2, 7, v2
    v_add_u32 v2, {WS_FLAGH}, v2
    """)
    flag_poll(a, 2, 4, sleep=opts.get('hsleep', 2))
    lds_set(a, F_ORD)
    a(f"s_branch {go}")
    a(f"{oth}:")
    lds_spin(a, [F_ORD])
    a(f"{go}:")
    stamp(a, opts, 15)
    stamp(a, opts, 41, real=True)
    dbgstamp(a, opts, 6, wave=4)
    a("s_waitcnt vmcnt(0)")
    vm.ops = []
    for st in range(D):
        a(f"buffer_load_dwordx4 {v(hf(st,0),4)}, v{VH0}, s[{SRD_WS}:{SRD_WS+3}], s{S_PH+st} offen sc1"); vm.op(('s', st))
        a(f"buffer_load_dwordx4 {v(hf(st,1),4)}, v{VH1}, s[{SRD_WS}:{SRD_WS+3}], s{S_PH+st} offen sc1"); vm.op(('s', st))
    def wreads(i):
        st, ws_ = i % D, i & 1
        for m, va in ((0, VA0), (1, VA1)):
            a(f"ds_read_b64_tr_b16 {v(wf(ws_,m),2)}, v{va} offset:{st*2048}")
            a(f"ds_read_b64_tr_b16 {v(wf(ws_,m)+2,2)}, v{va} offset:{st*2048+1024}")
    YC = opts.get('ycomp', 1)
    def yissue(first=False):
        if first:
            if YC:
                okf = a.label('yfok')
                vm.wait('yf')
                a(f"""
                v_cmp_ne_u32 vcc, v{V_NON}, v142
                v_cmp_ne_u32 s[30:31], v{V_NON+1}, v143
                s_or_b64 vcc, vcc, s[30:31]
                s_cmp_eq_u64 vcc, 0
                s_cbranch_scc1 {okf}
                """)
                if not opts.get('noconv'): flag_poll(a, 14, 142)
                a(f"{okf}:")
            a(f"global_load_dwordx4 {v(V_XT,4)}, v{V_OFF}, s[{SP['x']}:{SP['x']+1}]"); vm.op('x')
        if YC:
            a(f"buffer_load_dwordx4 {v(YG,4)}, v{VY}, s[{SRD_WS}:{SRD_WS+3}], 0 offen sc1"); vm.op('y')
            a(f"s_mov_b32 s{S_OFF}, {8*4096}")
            a(f"buffer_load_dwordx4 {v(YG+4,4)}, v{VY}, s[{SRD_WS}:{SRD_WS+3}], s{S_OFF} offen sc1"); vm.op('y')
            return
        for i in range(4):
            if i == 0: a(f"buffer_load_dwordx4 {v(YG,4)}, v{VY}, s[{SRD_WS}:{SRD_WS+3}], 0 offen sc1")
            else:
                a(f"s_mov_b32 s{S_OFF}, {i*4*8192}")
                a(f"buffer_load_dwordx4 {v(YG+4*i,4)}, v{VY}, s[{SRD_WS}:{SRD_WS+3}], s{S_OFF} offen sc1")
            vm.op('y')
    NS = 22
    vm.wait(('s', 0))
    wreads(0)
    lskip = a.label('gskip')
    for i in range(NS):
        st = i % D
        if i == NS - 1:
            a(f"s_cmp_eq_u32 s{S_N}, 21")
            a(f"s_cbranch_scc1 {lskip}")
        if i + 1 < NS:
            vm.wait(('s', i+1), ' lgkmcnt(0)')
            wreads(i+1)
        else:
            a("s_waitcnt lgkmcnt(0)")
        if opts.get('tsg2') and i % 4 == 0: stamp(a, opts, 48 + i//4)
        nx = ops(st, i+D) if i + D < NS else [None]*4
        for k, (m, n_) in enumerate(((0,0),(1,0),(0,1),(1,1))):
            if opts.get('fake16'):
                A_ = acc(m,n_)
                a(f"v_mfma_f32_16x16x32_bf16 {v(A_,4)}, {v(wf(i&1,m),4)}, {v(hf(st,n_),4)}, {v(A_,4)}")
                a(f"v_mfma_f32_16x16x32_bf16 {v(A_+8,4)}, {v(hf(st,n_),4)}, {v(wf(i&1,m),4)}, {v(A_+8,4)}")
            else:
                a(f"v_mfma_f32_32x32x16_bf16 {v(acc(m,n_),16)}, {v(wf(i&1,m),4)}, {v(hf(st,n_),4)}, {v(acc(m,n_),16)}")
            kk = (0, 1, 2, 3)[k]
            if nx[kk] is not None:
                a(nx[kk]); vm.op(('s', i+D))
        if i + D < NS: advance(i+D)
        if YC and i == opts.get('yfi', 14):
            a(f"global_load_dwordx2 v[142:143], v14, s[{SP['ws']}:{SP['ws']+1}] sc1"); vm.op('yf')
        if i + D == NS: yissue(True)
    a(f"{lskip}:")
    stamp(a, opts, 16+8)
    stamp(a, opts, 42, real=True)
    dbgstamp(a, opts, 7, wave=4)
    a(f"""
    v_and_b32 v1, 31, v0
    v_mul_u32_u24 v1, {PROW}, v1
    v_lshrrev_b32 v2, 5, v0
    v_lshlrev_b32 v2, 4, v2
    v_add_u32 v1, v1, v2
    s_mul_i32 s7, s{S_WP}, {64*PROW}
    s_add_u32 s7, s7, {F_P}
    v_add_u32 v1, s7, v1
    """)
    if YC:
        a(f"""
        v_lshrrev_b32 v2, 3, v0
        s_lshl_b32 s7, s{S_WP}, 4
        v_add_u32 v2, s7, v2
        v_mul_u32_u24 v2, 160, v2
        v_and_b32 v3, 7, v0
        v_lshlrev_b32 v3, 4, v3
        v_add_u32 v2, v2, v3
        v_add_u32 v2, {F_YT}, v2
        """)
    else:
        a(f"""
        v_lshrrev_b32 v2, 4, v0
        s_lshl_b32 s7, s{S_WP}, 4
        v_add_u32 v2, s7, v2
        v_mul_u32_u24 v2, 160, v2
        v_and_b32 v3, 15, v0
        v_lshlrev_b32 v3, 3, v3
        v_add_u32 v2, v2, v3
        v_add_u32 v2, {F_YT}, v2
        """)
    for m in range(2):
        for n_ in range(2):
            for g in range(4):
                a(f"ds_write_b128 v1, {v(acc(m,n_)+4*g,4)} offset:{n_*32*PROW + m*128 + g*32}")
    if YC:
        a("s_waitcnt vmcnt(0)")
        stamp(a, opts, 16+9)
        for j in range(2):
            a(f"ds_write_b128 v2, {v(YG+4*j,4)} offset:{j*8*160}")
        a(f"s_branch {opts['lfinal']}")
        return
    lp = a.label('ychk'); ok = a.label('yok')
    a(f"""
    s_mov_b32 s28, 0
    {lp}:
    s_waitcnt vmcnt(0)
    v_cmp_ne_u32 vcc, v{V_NON}, v{YG+2}
    """)
    for i in range(1, 4):
        a(f"v_cmp_ne_u32 s[30:31], v{V_NON}, v{YG+4*i+2}"); a("s_or_b64 vcc, vcc, s[30:31]")
    for i in range(4):
        a(f"v_cmp_ne_u32 s[30:31], v{V_NON+1}, v{YG+4*i+3}"); a("s_or_b64 vcc, vcc, s[30:31]")
    a(f"""
    s_add_u32 s28, s28, 1
    s_cmp_eq_u64 vcc, 0
    s_cbranch_scc1 {ok}
    s_cmp_gt_u32 s28, {0 if opts.get('noconv') else SPIN}
    s_cbranch_scc1 {ok}
    """)
    yissue()
    a(f"s_branch {lp}")
    a(f"{ok}:")
    stamp(a, opts, 16+9)
    for i in range(4):
        a(f"ds_write_b64 v2, {v(YG+4*i,2)} offset:{i*4*160}")
    a(f"s_branch {opts['lfinal']}")

S_SL = 87

def colsum_F(a, opts):
    S_W, SRD_T0 = 68, 20
    WA0, SEL, FR, AC, G = 8, 12, 16, 112, 16
    a(f"""
    s_setprio 3
    v_mov_b32 v1, {F_NON}
    ds_read_b32 v11, v1
    v_lshrrev_b32 v2, 5, v0                ; h
    v_lshrrev_b32 v3, 4, v0
    v_and_b32 v3, 1, v3                    ; gu
    v_mul_u32_u24 v4, 12288, v3
    v_lshlrev_b32 v5, 9, v2
    v_add_u32 v4, v4, v5
    v_and_b32 v5, 15, v0
    v_lshrrev_b32 v6, 2, v5
    v_lshlrev_b32 v6, 6, v6
    v_add_u32 v4, v4, v6
    v_and_b32 v5, 3, v5
    v_lshlrev_b32 v5, 3, v5
    v_add_u32 v4, v4, v5
    s_lshr_b32 s7, s{S_RB}, 3
    s_lshl_b32 s7, s7, 11
    s_add_u32 s7, s7, {16384 + 2*STAGE}
    v_add_u32 v4, s7, v4
    s_lshr_b32 s72, s{S_W}, 1              ; 0 / 1
    s_mul_i32 s73, s72, 3
    """)
    for mi in range(3):
        a(f"""
        s_add_u32 s32, s73, {mi}
        s_lshr_b32 s33, s32, 1
        s_lshl_b32 s33, s33, 12            ; P*4096
        s_and_b32 s32, s32, 1              ; b
        v_xor_b32 v5, s32, v3
        v_lshlrev_b32 v5, 5, v5
        v_add_u32 v5, s33, v5
        v_add_u32 v{WA0+mi}, v4, v5
        """)
    for mi in range(3):
        for s_ in range(2):
            fr = FR + (mi*2+s_)*4
            a(f"ds_read_b64_tr_b16 {v(fr,2)}, v{WA0+mi} offset:{s_*1024}")
            a(f"ds_read_b64_tr_b16 {v(fr+2,2)}, v{WA0+mi} offset:{s_*1024 + 256}")
    a(f"""
    v_and_b32 v5, 15, v0
    v_cmp_eq_u32 vcc, v5, v3
    v_mov_b32 v6, 0x3f803f80
    v_mov_b32 v7, 0
    v_cndmask_b32 v{SEL}, v7, v6, vcc
    v_mov_b32 v{SEL+1}, v{SEL}
    v_mov_b32 v{SEL+2}, v{SEL}
    v_mov_b32 v{SEL+3}, v{SEL}
    """)
    for i in range(12): a(f"v_mov_b32 v{AC+i}, 0")
    srd(a, SRD_T0, SP['ws'], 16*16*1024, WS_CSP)
    a("s_waitcnt lgkmcnt(0)")
    for s_ in range(2):
        for mi in range(3):
            fr = FR + (mi*2+s_)*4
            a(f"v_mfma_f32_16x16x32_bf16 {v(AC+4*mi,4)}, {v(fr,4)}, {v(SEL,4)}, {v(AC+4*mi,4)}")
    a(f"""
    v_and_b32 v5, 15, v0
    v_lshlrev_b32 v1, 6, v5                ; col*64
    v_lshrrev_b32 v2, 4, v0
    v_lshlrev_b32 v2, 4, v2                ; q*16
    v_add_u32 v1, v1, v2
    s_lshl_b32 s7, s{S_CT}, 4
    s_add_u32 s7, s7, s{S_RB}
    s_lshl_b32 s33, s7, 10
    s_lshl_b32 s7, s72, 9
    s_add_u32 s33, s33, s7
    v_cmp_gt_u32 vcc, 2, v5
    """)
    for g in range(4): a(f"v_mov_b32 v{G+4*g+3}, v11")
    for e in range(12): a(f"v_mov_b32 v{G+4*(e//3)+(e%3)}, v{AC+e}")
    a("s_and_saveexec_b64 s[34:35], vcc")
    for g in range(4):
        a(f"buffer_store_dwordx4 {v(G+4*g,4)}, v1, s[{SRD_T0}:{SRD_T0+3}], s33 offen offset:{g*128} sc1")
    a("s_mov_b64 exec, s[34:35]")
    stamp(a, opts, 6)

def xnt_flag(a, opts):
    nf = a.label('nfx')
    a("s_waitcnt vmcnt(0)")
    stamp(a, opts, 14)
    stamp(a, opts, 40, real=True)
    lds_count_last(a, F_CNTX, 4, nf)
    a(f"s_lshl_b32 s30, s{S_RB}, 4")
    a(f"s_add_u32 s30, s30, s{S_SL}")
    flag_store(a, WS_FLAGX, "s30")
    a(f"{nf}:")

def helper_F(a, opts):
    import kerA_help as H
    from kerA_help import kgen, grab, nonce_check, colsum_A, A_PUB, A_STATS, A_M, V_SL
    S_W, S_TB, S_ROT = 68, 69, 6
    SRD_T0, SRD_T1 = 20, 24
    ACC = 80
    a(f"""
    s_lshr_b32 s7, s{S_CT}, 3
    s_add_u32 s7, s7, s{S_ROT}
    s_and_b32 s7, s7, 7
    s_lshl_b32 s7, s7, 1
    s_bfe_u32 s33, s{S_CT}, 0x10002
    s_add_u32 s{S_SL}, s7, s33
    """)
    seg0, seg1, seg2 = kgen(a, opts)
    lab = {k: a.label('h'+k) for k in ('0','nf','rest','even','g1','g2')}
    a(f"""
    s_cmp_lg_u32 s{S_W}, 1
    s_cbranch_scc1 {lab['0']}
    global_load_dwordx2 v[152:153], v150, s[{SP['dbg']}:{SP['dbg']+1}] sc1
    {lab['0']}:
    s_setprio 0
    """)
    stamp(a, opts, 3)
    bar(a, opts, 0)
    stamp(a, opts, 4)
    grab(a, opts, 0)
    a("s_setprio 2")
    seg0()
    a("s_setprio 0")
    a(f"""
    s_cmp_lg_u32 s{S_W}, 1
    s_cbranch_scc1 {lab['nf']}
    v_lshlrev_b32 v1, 2, v0
    v_add_u32 v1, {A_PUB}, v1
    ds_read_b32 v4, v1
    s_waitcnt vmcnt(0)
    """)
    nonce_check(a, 152)
    srd(a, SRD_T1, SP['ws'], 2048*8, WS_STAT)
    a(f"""
    s_lshl_b32 s32, s{S_RB}, 4
    s_add_u32 s32, s32, s{S_CT}
    s_lshl_b32 s32, s32, 6
    v_lshlrev_b32 v1, 3, v0
    v_mov_b32 v5, s70
    s_waitcnt lgkmcnt(0)
    s_mov_b64 exec, 0xff
    s_setprio 3
    buffer_store_dwordx2 v[4:5], v1, s[{SRD_T1}:{SRD_T1+3}], s32 offen sc1
    s_setprio 0
    s_mov_b64 exec, 1
    v_mov_b32 v1, {F_NON}
    ds_write_b64 v1, v[152:153]
    s_mov_b64 exec, -1
    s_waitcnt lgkmcnt(0)
    {lab['nf']}:
    """)
    bar(a, opts, 1)
    grab(a, opts, 1)
    a("s_setprio 2")
    seg1()
    a("s_setprio 0")
    a("s_waitcnt lgkmcnt(0)")
    bar(a, opts, 2)
    a("s_setprio 2")
    seg2()
    if opts.get('cs2', 1):
        a(f"s_bitcmp0_b32 s{S_W}, 0")
        a(f"s_cbranch_scc1 {lab['rest']}")
        colsum_F(a, opts)
    else:
        a(f"s_cmp_lg_u32 s{S_W}, 1")
        a(f"s_cbranch_scc1 {lab['rest']}")
        colsum_A(a, opts)
    a(f"{lab['rest']}:")
    a("s_setprio 0")
    bar(a, opts, 3)
    srd(a, SRD_T1, SP['ws'], 2048*8, WS_STAT)
    a(f"""
    v_mov_b32 v1, {F_NON}
    ds_read_b64 v[{V_NON}:{V_NON+1}], v1
    v_lshlrev_b32 v8, 4, v0
    s_lshl_b32 s72, s{S_RB}, 10            ; 128 rows * 8 B
    s_cmp_lg_u32 s{S_W}, 0
    s_cbranch_scc1 {lab['g1']}
    s_setprio 3
    buffer_load_dwordx4 v[12:15], v8, s[{SRD_T1}:{SRD_T1+3}], s72 offen sc1
    s_setprio 0
    {lab['g1']}:
    s_waitcnt lgkmcnt(0)
    """)
    bar(a, opts, 4)
    lp = a.label('schk'); ok = a.label('sok')
    a(f"""
    s_cmp_lg_u32 s{S_W}, 0
    s_cbranch_scc1 {lab['g2']}
    s_mov_b32 s75, 0
    {lp}:
    s_waitcnt vmcnt(0)
    v_cmp_ne_u32 vcc, v{V_NON}, v13
    v_cmp_ne_u32 s[32:33], v{V_NON}, v15
    s_or_b64 vcc, vcc, s[32:33]
    s_add_u32 s75, s75, 1
    s_cmp_eq_u64 vcc, 0
    s_cbranch_scc1 {ok}
    s_cmp_gt_u32 s75, {SPIN}
    s_cbranch_scc1 {ok}
    buffer_load_dwordx4 v[12:15], v8, s[{SRD_T1}:{SRD_T1+3}], s72 offen sc1
    s_branch {lp}
    {ok}:
    v_lshlrev_b32 v4, 16, v12
    v_and_b32 v5, 0xffff0000, v12
    v_lshlrev_b32 v6, 16, v14
    v_and_b32 v7, 0xffff0000, v14
    v_lshlrev_b32 v1, 4, v0
    v_add_u32 v1, {A_STATS}, v1
    ds_write_b128 v1, v[4:7]
    v_rcp_f32 v10, v5
    v_rcp_f32 v11, v7
    v_mov_b32 v5, v6
    v_lshlrev_b32 v1, 3, v0
    v_add_u32 v1, {A_M}, v1
    ds_write_b64 v1, v[4:5]
    ds_write_b64 v1, v[10:11] offset:512
    s_waitcnt lgkmcnt(0)
    {lab['g2']}:
    """)
    stamp(a, opts, 5)
    bar(a, opts, 5)
    srd(a, SRD_T0, SP['ws'], WS_XT_SZ, WS_XT)
    a(f"""
    v_lshrrev_b32 v3, 4, v0              ; G
    v_and_b32 v1, 15, v0
    s_and_b32 s7, s{S_W}, 1
    s_lshl_b32 s7, s7, 4
    v_add_u32 v1, s7, v1
    v_lshlrev_b32 v1, 12, v1
    v_lshlrev_b32 v5, 4, v3
    v_add_u32 v8, v1, v5
    s_lshl_b32 s32, s{S_SL}, 17
    s_lshl_b32 s33, s{S_RB}, 8
    s_add_u32 s32, s32, s33
    s_lshr_b32 s7, s{S_W}, 1
    s_lshl_b32 s33, s7, 7
    s_add_u32 s32, s32, s33
    v_lshlrev_b32 v9, 5, v3
    s_lshl_b32 s33, s7, 8
    s_add_u32 s33, s33, {A_M}
    v_add_u32 v9, s33, v9
    """)
    for r in range(2):
        M, R_ = 16 + 16*r, 24 + 16*r
        a(f"ds_read_b128 {v(M,4)}, v9 offset:{r*128}")
        a(f"ds_read_b128 {v(M+4,4)}, v9 offset:{r*128+16}")
        a(f"ds_read_b128 {v(R_,4)}, v9 offset:{512 + r*128}")
        a(f"ds_read_b128 {v(R_+4,4)}, v9 offset:{512 + r*128+16}")
    for r in range(2):
        M, R_ = 16 + 16*r, 24 + 16*r
        U = 48 + 12*r
        X = V_SL + 4*r
        for j in range(4):
            a(f"v_lshlrev_b32 v{U+2*j}, 16, v{X+j}")
            a(f"v_and_b32 v{U+2*j+1}, 0xffff0000, v{X+j}")
        a(f"s_waitcnt lgkmcnt({4*(1-r)})")
        for j in range(8): a(f"v_sub_f32 v{U+j}, v{U+j}, v{M+j}")
        for j in range(4): a(f"v_cvt_pk_bf16_f32 v{U+8+j}, v{U+2*j}, v{U+2*j+1}")
        for j in range(4):
            a(f"v_lshlrev_b32 v{U+2*j}, 16, v{U+8+j}")
            a(f"v_and_b32 v{U+2*j+1}, 0xffff0000, v{U+8+j}")
        for j in range(8): a(f"v_mul_f32 v{U+j}, v{U+j}, v{R_+j}")
        for j in range(4): a(f"v_cvt_pk_bf16_f32 v{U+8+j}, v{U+2*j}, v{U+2*j+1}")
        if not opts.get('lastfull', 0) and not opts.get('xlate'):
            a("s_setprio 3")
            a(f"buffer_store_dwordx4 {v(U+8,4)}, v8, s[{SRD_T0}:{SRD_T0+3}], s32 offen offset:{r*64} sc1")
            a("s_setprio 0")
    if opts.get('lastfull', 0):
        lds_spin_eq(a, F_DMAD, 4)
        a("s_setprio 3")
        for r in range(2):
            a(f"buffer_store_dwordx4 {v(48+12*r+8,4)}, v8, s[{SRD_T0}:{SRD_T0+3}], s32 offen offset:{r*64} sc1")
        a("s_setprio 0")
    bar(a, opts, 6)
    if opts.get('xlate') == 1:
        lds_spin_eq(a, F_DMAD, 1)
        a("s_setprio 3")
        for r in range(2):
            a(f"buffer_store_dwordx4 {v(48+12*r+8,4)}, v8, s[{SRD_T0}:{SRD_T0+3}], s32 offen offset:{r*64} sc1")
        a("s_setprio 0")
        lds_inc(a, F_XST)
    if opts.get('xlate') == 3:
        lds_spin_eq(a, F_DMAD, 1)
        for r in range(2):
            a(f"buffer_store_dwordx4 {v(48+12*r+8,4)}, v8, s[{SRD_T0}:{SRD_T0+3}], s32 offen offset:{r*64} sc1")
    bar(a, opts, 7)
    if not opts.get('xlate'): xnt_flag(a, opts)
    a(f"""
    s_and_b32 s7, s{S_W}, 1
    s_cmp_eq_u32 s7, 0
    s_cbranch_scc1 {lab['even']}
    v_lshlrev_b32 v1, 4, v0
    v_add_u32 v1, s{S_TB}, v1
    """)
    for T in range(8):
        a(f"ds_write_b128 v1, {v(ACC+4*T,4)} offset:{T*1024}")
    a("s_waitcnt lgkmcnt(0)")
    a(f"s_lshr_b32 s7, s{S_W}, 1")
    a(f"s_lshl_b32 s7, s7, 2")
    a(f"s_add_u32 s7, s7, {F_PRDY}")
    lds_set(a, "s7")
    a(f"{lab['even']}:")
    conv_F(a, opts)

def conv_F(a, opts):
    S_W, S_TBK = 68, 69
    S_TB, S_CH, S_RH, S_C = 70, 71, 72, 73
    ACC, AF, BF = 16, 48, 112
    VA, VB = 8, 12
    KACC = 80
    a(f"s_setprio {opts.get('kprio',0)}")
    a(f"""
    v_mov_b32 v1, {F_NON}
    ds_read_b64 v[{V_NON}:{V_NON+1}], v1
    s_sub_u32 s{S_WP}, s{S_WAVE}, 4
    s_lshr_b32 s{S_C}, s{S_W}, 1
    s_and_b32 s{S_RH}, s{S_W}, 1
    s_lshl_b32 s{S_CH}, s2, 1
    s_add_u32 s{S_CH}, s{S_CH}, s{S_C}      ; channel
    s_mul_i32 s{S_TB}, s{S_C}, {CT_SZ}
    s_add_u32 s{S_TB}, s{S_TB}, {F_CT}
    """)
    map_B(a)
    srd(a, SRD_WS, SP['ws'], 19*MB)
    odd = a.label('codd'); join = a.label('cjoin')
    a(f"s_cmp_eq_u32 s{S_RH}, 1")
    a(f"s_cbranch_scc1 {odd}")
    a(f"s_lshl_b32 s26, s{S_C}, 2")
    a(f"s_add_u32 s26, s26, {F_PRDY}")
    lds_spin(a, ["s26"])
    a(f"""
    v_lshlrev_b32 v1, 4, v0
    v_add_u32 v2, s{S_TBK}, v1
    """)
    for T in range(8):
        a(f"ds_read_b128 {v(16+4*T,4)}, v2 offset:{8192 + T*1024}")
    a(f"""
    v_and_b32 v2, 15, v0
    v_lshlrev_b32 v2, 5, v2               ; 32*j
    v_lshrrev_b32 v3, 4, v0
    v_lshlrev_b32 v3, 3, v3               ; 8*q
    v_add_u32 v2, v2, v3
    v_sub_u32 v2, {504}, v2               ; 4088 - 512*7 - (32 j + 8 q)
    s_add_u32 s7, s{S_TB}, {CT_V0}
    v_add_u32 v2, s7, v2
    """)
    for T in range(8):
        a(f"s_waitcnt lgkmcnt({7-T})")
        for i in range(4):
            a(f"v_add_f32 v{KACC+4*T+i}, v{KACC+4*T+i}, v{16+4*T+i}")
        a(f"v_cvt_pk_bf16_f32 v{48+2*T}, v{KACC+4*T+3}, v{KACC+4*T+2}")
        a(f"v_cvt_pk_bf16_f32 v{49+2*T}, v{KACC+4*T+1}, v{KACC+4*T}")
    for T in range(8):
        a(f"ds_write_b64 v2, {v(48+2*T,2)} offset:{(7-T)*512}")
    a(f"""
    v_mov_b32 v6, 0
    v_mov_b32 v7, 0
    v_lshlrev_b32 v3, 3, v0
    s_add_u32 s7, s{S_TB}, {CT_V0+4096}
    v_add_u32 v2, s7, v3
    s_mov_b64 exec, 0xff
    ds_write_b64 v2, v[6:7]
    ds_write_b64 v2, v[6:7] offset:{CT_V1-CT_V0}
    s_mov_b64 exec, -1
    s_add_u32 s7, s{S_TB}, {CT_V0}
    v_add_u32 v2, s7, v1
    """)
    for i in range(4):
        a(f"ds_read_b128 {v(16+8*i,4)}, v2 offset:{i*1024}")
        a(f"ds_read_b32 v{20+8*i}, v2 offset:{i*1024+16}")
    for i in range(4):
        a(f"s_waitcnt lgkmcnt({6-2*i})")
        for j in range(4):
            a(f"v_alignbit_b32 v{48+4*i+j}, v{16+8*i+j+1}, v{16+8*i+j}, 16")
    for i in range(4):
        a(f"ds_write_b128 v2, {v(48+4*i,4)} offset:{CT_V1-CT_V0 + i*1024}")
    a("s_waitcnt lgkmcnt(0)")
    a(f"s_lshl_b32 s7, s{S_C}, 2")
    a(f"s_add_u32 s7, s7, {F_KRDY}")
    lds_set(a, "s7")
    a(f"s_branch {join}")
    a(f"{odd}:")
    a(f"""
    v_lshlrev_b32 v1, 4, v0
    v_mov_b32 v16, 0
    v_mov_b32 v17, 0
    v_mov_b32 v18, 0
    v_mov_b32 v19, 0
    v_add_u32 v3, s{S_TB}, v1
    s_mov_b64 exec, 0x3fffffff
    ds_write_b128 v3, v[16:19] offset:{CT_U}
    s_mov_b64 exec, -1
    """)
    a(f"{join}:")
    a("s_waitcnt lgkmcnt(0)")
    if opts.get('xlate'): xnt_flag(a, opts)
    if opts.get('noconv'):
        a("s_waitcnt vmcnt(0)")
        a(f"s_branch {opts['lfinal']}")
    ev = a.label('cev')
    a(f"s_cmp_eq_u32 s{S_RH}, 0")
    a(f"s_cbranch_scc1 {ev}")
    k3 = a.label('k3w'); k1 = a.label('k1d')
    if opts.get('onepoll', 1):
        a(f"s_cmp_lg_u32 s{S_W}, 1")
        a(f"s_cbranch_scc1 {k3}")
    a(f"""
    v_and_b32 v2, 15, v0
    v_lshlrev_b32 v2, 4, v2
    s_lshr_b32 s7, s2, 4
    v_add_u32 v2, s7, v2
    v_lshlrev_b32 v2, 7, v2
    v_add_u32 v2, {WS_FLAGX}, v2
    """)
    flag_poll(a, 2, 6, sleep=opts.get('xsleep', 4))
    if opts.get('onepoll', 1):
        lds_set(a, F_XRDY)
        a(f"s_branch {k1}")
        a(f"{k3}:")
        lds_spin(a, [F_XRDY])
        a(f"{k1}:")
    stamp(a, opts, 15)
    stamp(a, opts, 41, real=True)
    a(f"""
    s_lshl_b32 s26, s{S_CH}, 12
    s_add_u32 s26, s26, {WS_XT}
    v_lshlrev_b32 v1, 4, v0
    """)
    for i in range(4):
        a(f"buffer_load_dwordx4 {v(16+4*i,4)}, v1, s[{SRD_WS}:{SRD_WS+3}], s26 offen offset:{i*1024} sc1")
    a(f"v_add_u32 v3, s{S_TB}, v1")
    for i in range(4):
        a(f"s_waitcnt vmcnt({3-i})")
        a(f"ds_write_b128 v3, {v(16+4*i,4)} offset:{CT_U + 480 + i*1024}")
    a("s_waitcnt lgkmcnt(0)")
    a(f"s_lshl_b32 s7, s{S_C}, 2")
    a(f"s_add_u32 s7, s7, {F_URDY}")
    lds_set(a, "s7")
    a(f"{ev}:")
    a(f"""
    v_and_b32 v1, 15, v0                   ; b / a
    v_lshrrev_b32 v2, 4, v0                ; q
    v_lshrrev_b32 v3, 1, v1                ; beta
    v_lshlrev_b32 v6, 2, v2
    v_sub_u32 v6, v6, v3                   ; 4q - beta
    s_lshl_b32 s7, s{S_RH}, 6
    s_sub_u32 s7, {1015-128-48}, s7
    v_add_u32 v6, s7, v6
    v_lshlrev_b32 v6, 2, v6
    v_and_b32 v3, 1, v1
    v_xor_b32 v3, 1, v3
    v_mul_u32_u24 v3, {CT_V1-CT_V0}, v3
    v_add_u32 v6, v6, v3
    s_add_u32 s7, s{S_TB}, {CT_V0}
    v_add_u32 v{VA}, s7, v6
    v_subrev_u32 v{VA+1}, 1024, v{VA}
    v_subrev_u32 v{VA+2}, 2048, v{VA}
    v_subrev_u32 v{VA+3}, 3072, v{VA}
    v_lshlrev_b32 v3, 5, v1
    v_lshlrev_b32 v6, 4, v2
    v_add_u32 v3, v3, v6
    s_lshl_b32 s7, s{S_RH}, 8
    s_sub_u32 s7, {448-192}, s7
    s_add_u32 s7, s7, s{S_TB}
    v_add_u32 v{VB}, s7, v3
    """)
    for i in range(32): a(f"v_mov_b32 v{ACC+i}, 0")
    a(f"s_lshl_b32 s7, s{S_C}, 2")
    a(f"s_add_u32 s26, s7, {F_KRDY}")
    a(f"s_add_u32 s27, s7, {F_URDY}")
    lds_spin(a, ["s26", "s27"])
    a("s_waitcnt vmcnt(0)")
    stamp(a, opts, 16)
    dbgstamp(a, opts, 9, wave=9)
    a("v_lshlrev_b32 v5, 16, v151           ; Dskip")
    a(f"s_setprio {opts.get('cprio', 0)}")
    lg = LgTrack(a)
    def rdA(st, dl, rp):
        Dd, e = dl >> 1, dl & 1
        o = (1-e)*128 + (3-rp)*16
        r = AF + st*32 + dl*4
        return [(f"ds_read2_b32 {v(r,2)}, v{VA+Dd} offset0:{o} offset1:{o+1}", ('A', rp, dl)),
                (f"ds_read2_b32 {v(r+2,2)}, v{VA+Dd} offset0:{o+2} offset1:{o+3}", ('A', rp, dl))]
    def rdB(p, rp):
        return (f"ds_read_b128 {v(BF+p*4,4)}, v{VB} offset:{CT_U + 512*p + (3-rp)*64}", ('B', rp, p))
    def emit(x): a(x[0]); lg.op(x[1])
    emit(rdB(0, 0))
    for dl in range(8):
        for x in rdA(0, dl, 0): emit(x)
    for p in range(1, 8): emit(rdB(p, 0))
    for rp in range(4):
        st = rp & 1
        nxtA = []
        if rp < 3:
            for dl in range(8): nxtA += rdA(1-st, dl, rp+1)
        ni = 0
        for p in range(8):
            for dl in range(8-p):
                lg.wait([('A', rp, dl), ('B', rp, p)])
                a(f"v_mfma_f32_16x16x32_bf16 {v(ACC+4*(dl+p),4)}, {v(AF+st*32+dl*4,4)}, {v(BF+p*4,4)}, {v(ACC+4*(dl+p),4)}")
                if ni < len(nxtA): emit(nxtA[ni]); ni += 1
            if rp < 3: emit(rdB(p, rp+1))
    a(f"s_setprio {opts.get('pprio', 2)}")
    stamp(a, opts, 17)
    dbgstamp(a, opts, 10, wave=9)
    ex0 = a.label('ex0'); exd = a.label('exd')
    a(f"""
    v_lshlrev_b32 v13, 4, v0
    s_lshl_b32 s7, s{S_W}, 12
    s_add_u32 s7, s7, {F_EX}
    v_add_u32 v3, s7, v13
    s_cmp_eq_u32 s{S_RH}, 0
    s_nop 4
    s_cbranch_scc1 {ex0}
    """)
    for T in range(4): a(f"ds_write_b128 v3, {v(ACC+4*T,4)} offset:{T*1024}")
    for i in range(16): a(f"v_mov_b32 v{ACC+i}, v{ACC+16+i}")
    a(f"s_branch {exd}")
    a(f"{ex0}:")
    for T in range(4): a(f"ds_write_b128 v3, {v(ACC+16+4*T,4)} offset:{T*1024}")
    a(f"{exd}:")
    a("s_waitcnt lgkmcnt(0)")
    a(f"s_lshl_b32 s7, s{S_W}, 2")
    a(f"s_add_u32 s7, s7, {F_XFL}")
    lds_set(a, "s7")
    a(f"""
    s_xor_b32 s7, s{S_W}, 1
    s_lshl_b32 s26, s7, 2
    s_add_u32 s26, s26, {F_XFL}
    s_lshl_b32 s27, s7, 12
    s_add_u32 s27, s27, {F_EX}
    v_add_u32 v14, s27, v13
    """)
    lds_spin(a, ["s26"])
    for T in range(4): a(f"ds_read_b128 {v(32+4*T,4)}, v14 offset:{T*1024}")
    a(f"""
    v_and_b32 v1, 15, v0
    v_lshlrev_b32 v1, 5, v1
    v_lshrrev_b32 v2, 4, v0
    v_lshlrev_b32 v2, 3, v2
    v_add_u32 v1, v1, v2                   ; 2*(16a + 4q)
    s_lshl_b32 s7, s{S_RH}, 11
    s_add_u32 s24, s7, s{S_TB}
    v_add_u32 v2, s24, v1
    """)
    for k in range(4): a(f"ds_read_b64 {v(48+2*k,2)}, v2 offset:{CT_U + 480 + k*512}")
    if opts.get('ycomp', 1):
        a(f"""
        s_lshl_b32 s24, s{S_CH}, 12
        s_add_u32 s24, s24, {WS_Y}
        s_lshl_b32 s7, s{S_RH}, 11             ; 4 rh * 512
        s_add_u32 s24, s24, s7
        s_waitcnt lgkmcnt(0)
        """)
    else:
        a(f"""
        v_and_b32 v1, 15, v0
        v_lshlrev_b32 v1, 6, v1
        v_lshrrev_b32 v2, 4, v0
        v_lshlrev_b32 v2, 4, v2
        v_add_u32 v1, v1, v2
        s_lshl_b32 s24, s{S_CH}, 13
        s_add_u32 s24, s24, {WS_Y}
        s_lshl_b32 s7, s{S_RH}, 12
        s_add_u32 s24, s24, s7
        s_waitcnt lgkmcnt(0)
        """)
    for k in range(4):
        A = ACC + 4*k
        for i in range(4): a(f"v_add_f32 v{A+i}, v{A+i}, v{32+4*k+i}")
        U = 64
        a(f"v_cvt_pk_bf16_f32 v{U}, v{A}, v{A+1}")
        a(f"v_cvt_pk_bf16_f32 v{U+1}, v{A+2}, v{A+3}")
        for j in range(2):
            a(f"v_lshlrev_b32 v{U+2+2*j}, 16, v{48+2*k+j}")
            a(f"v_and_b32 v{U+3+2*j}, 0xffff0000, v{48+2*k+j}")
        for i in range(4): a(f"v_mul_f32 v{U+2+i}, v{U+2+i}, v5")
        a(f"v_cvt_pk_bf16_f32 v{U+6}, v{U+2}, v{U+3}")
        a(f"v_cvt_pk_bf16_f32 v{U+7}, v{U+4}, v{U+5}")
        for j in range(2):
            a(f"v_lshlrev_b32 v{U+2+2*j}, 16, v{U+6+j}")
            a(f"v_and_b32 v{U+3+2*j}, 0xffff0000, v{U+6+j}")
            a(f"v_lshlrev_b32 v{U+8+2*j}, 16, v{U+j}")
            a(f"v_and_b32 v{U+9+2*j}, 0xffff0000, v{U+j}")
        for i in range(4): a(f"v_add_f32 v{U+2+i}, v{U+2+i}, v{U+8+i}")
        O = 80 + 4*k
        a(f"v_cvt_pk_bf16_f32 v{O}, v{U+2}, v{U+3}")
        a(f"v_cvt_pk_bf16_f32 v{O+1}, v{U+4}, v{U+5}")
        if opts.get('ycomp', 1):
            a(f"buffer_store_dwordx2 {v(O,2)}, v1, s[{SRD_WS}:{SRD_WS+3}], s24 offen offset:{k*512} sc1")
        else:
            a(f"v_mov_b32 v{O+2}, v{V_NON}")
            a(f"v_mov_b32 v{O+3}, v{V_NON+1}")
            a(f"buffer_store_dwordx4 {v(O,4)}, v1, s[{SRD_WS}:{SRD_WS+3}], s24 offen offset:{k*1024} sc1")
    if opts.get('ycomp', 1):
        nfy = a.label('nfy')
        a("s_waitcnt vmcnt(0)")
        lds_count_last(a, F_CNTY, 4, nfy)
        flag_store(a, WS_FLAGY, "s2")
        a(f"{nfy}:")
    a(f"global_load_dwordx4 {v(V_XT,4)}, v{V_OFF}, s[{SP['x']}:{SP['x']+1}]")
    dbgstamp(a, opts, 11, wave=9)
    stamp(a, opts, 18)
    a("s_waitcnt vmcnt(0)")
    a(f"s_branch {opts['lfinal']}")

def final_F(a, opts):
    srd(a, SRD_O, SP['out'], 2097152)
    a(f"""
    s_and_b32 s7, s{S_WP}, 3
    s_lshl_b32 s7, s7, 4
    v_and_b32 v1, 15, v0
    v_add_u32 v2, s7, v1                  ; t
    v_mul_u32_u24 v2, {PROW}, v2
    s_lshr_b32 s24, s{S_WP}, 2
    s_lshl_b32 s24, s24, 2
    v_lshrrev_b32 v3, 4, v0
    v_add_u32 v3, s24, v3                 ; octet
    v_lshlrev_b32 v4, 5, v3
    v_add_u32 v2, v2, v4
    v_add_u32 v2, {F_P}, v2
    v_lshlrev_b32 v4, 3, v3
    v_lshrrev_b32 v5, 2, v1
    v_add_u32 v4, v4, v5
    v_mul_u32_u24 v4, 160, v4
    v_and_b32 v5, 3, v1
    v_lshlrev_b32 v5, 3, v5
    v_add_u32 v4, v4, v5
    s_lshl_b32 s7, s7, 1
    s_add_u32 s7, s7, {F_YT}
    v_add_u32 v4, s7, v4
    """)
    U = 56
    a("s_waitcnt vmcnt(4)") if False else None
    a("s_waitcnt lgkmcnt(0)")
    stamp(a, opts, 26)
    a("s_barrier")
    stamp(a, opts, 27)
    P = 16
    for pw in range(4):
        a(f"ds_read_b128 {v(P+8*pw,4)}, v2 offset:{pw*64*PROW}")
        a(f"ds_read_b128 {v(P+8*pw+4,4)}, v2 offset:{pw*64*PROW+16}")
    a(f"ds_read_b64_tr_b16 v[8:9], v4")
    a(f"ds_read_b64_tr_b16 v[10:11], v4 offset:{4*160}")
    for j in range(4):
        a(f"v_lshlrev_b32 v{U+2*j}, 16, v{V_XT+j}")
        a(f"v_and_b32 v{U+2*j+1}, 0xffff0000, v{V_XT+j}")
    a("s_waitcnt lgkmcnt(6)")
    for i in range(8): a(f"v_add_f32 v{P+i}, v{P+i}, v{P+8+i}")
    a("s_waitcnt lgkmcnt(2)")
    for i in range(8): a(f"v_add_f32 v{P+16+i}, v{P+16+i}, v{P+24+i}")
    for i in range(8): a(f"v_add_f32 v{P+i}, v{P+i}, v{P+16+i}")
    for j in range(4): a(f"v_cvt_pk_bf16_f32 v{48+j}, v{P+2*j}, v{P+2*j+1}")
    a("s_waitcnt lgkmcnt(0)")
    for j in range(4):
        a(f"v_lshlrev_b32 v{U+8+2*j}, 16, v{8+j}")
        a(f"v_and_b32 v{U+8+2*j+1}, 0xffff0000, v{8+j}")
    for i in range(8): a(f"v_add_f32 v{U+i}, v{U+i}, v{U+8+i}")
    for j in range(4): a(f"v_cvt_pk_bf16_f32 v{72+j}, v{U+2*j}, v{U+2*j+1}")
    for j in range(4):
        a(f"v_lshlrev_b32 v{U+2*j}, 16, v{72+j}")
        a(f"v_and_b32 v{U+2*j+1}, 0xffff0000, v{72+j}")
        a(f"v_lshlrev_b32 v{U+8+2*j}, 16, v{48+j}")
        a(f"v_and_b32 v{U+8+2*j+1}, 0xffff0000, v{48+j}")
    for i in range(8): a(f"v_add_f32 v{U+i}, v{U+i}, v{U+8+i}")
    for j in range(4): a(f"v_cvt_pk_bf16_f32 v{76+j}, v{U+2*j}, v{U+2*j+1}")
    a(f"buffer_store_dwordx4 v[76:79], v{V_OFF}, s[{SRD_O}:{SRD_O+3}], 0 offen {('', 'sc1', 'nt', 'sc0 sc1')[opts.get('osc', 0)]}")
    if opts.get('padto'):
        lp = a.label('pad')
        a(f"""
        s_waitcnt vmcnt(0)
        v_readfirstlane_b32 s28, v{V_NON}
        {lp}:
        s_memrealtime s[30:31]
        s_waitcnt lgkmcnt(0)
        s_sub_u32 s30, s30, s28
        s_cmp_lt_u32 s30, {opts['padto']}
        s_cbranch_scc1 {lp}
        """)
    dbgstamp(a, opts, 8, wave=4)
    stamp(a, opts, 28)
    if opts.get('ts'): a("s_waitcnt vmcnt(0)")
    stamp(a, opts, 8)
    stamp(a, opts, 7, real=True)
    stamp_flush(a, opts, 0)
    a("s_endpgm")

def gen_F(a, name, opts):
    import kerA
    MAP2[0] = opts.get('map2', 1)
    opts = dict(opts); opts['fused'] = 1
    opts['lfinal'] = a.label('final')
    if opts.get('cpf', 1):
        opts['abeg'] = name; opts['aend'] = 1
    a(kernel_head(name))
    lend = a.label('endF')
    kerA.prologue_A(a, lend, opts)
    lab = {k: a.label(k) for k in ('g','ld','h')}
    opts['lg2'] = a.label('gemm2')
    a(f"""
    s_cmp_lt_u32 s{S_WAVE}, 4
    s_cbranch_scc1 {lab['g']}
    s_cmp_lt_u32 s{S_WAVE}, 8
    s_cbranch_scc1 {lab['ld']}
    """)
    helper_F(a, opts)
    a(f"{lab['ld']}:"); kerA.loader_A(a, opts)
    a(f"s_branch {opts['lg2']}")
    a(f"{lab['g']}:"); kerA.gemm_A(a, opts)
    a(f"{opts['lg2']}:"); gemm2_F(a, opts)
    a(f"{opts['lfinal']}:"); final_F(a, opts)
    a(f"{lend}:")
    a("s_endpgm")
    a(".fill 3072, 4, 0xbf800000")
    a(kernel_desc(name, 168))
```

```python
from core import *
import struct
def f2u(x): return struct.unpack('<I', struct.pack('<f', x))[0]
def hx(x): return hex(f2u(x))
STAGE = 40960
A_KT = 3*STAGE
DEPTH = 4
CT_U, CT_V0, CT_V1, CT_SZ = 0, 4608, 4608+4160, 4608+4160+4160
F_CT = 0
F_EX = F_CT + 2*CT_SZ
F_WR = F_EX + 4*4096
F_YT = F_WR + 4*DEPTH*2048
F_P  = F_YT + 10240
PROW = 272
F_SY = 158528
F_NON, F_CNTH, F_CNTX, F_HRDY, F_KRDY, F_URDY, F_XFL, F_ORD = F_SY, F_SY+8, F_SY+12, F_SY+16, F_SY+20, F_SY+28, F_SY+36, F_SY+52
F_CSR, F_GDN, F_PRDY, F_DMAD, F_XST, F_CNTY, F_XRDY = F_SY+56, F_SY+60, F_SY+64, F_SY+72, F_SY+76, F_SY+80, F_SY+84
F_EHF = F_SY + 88
F_EHB = 85248
F_LDS = F_SY + 128
S_WAVE, S_RB, S_CT = 3, 4, 5
S_RT, S_C2, S_WP = 78, 79, 80
SRD_WS, SRD_WD, SRD_O = 8, 12, 16
V_XT, V_NON, V_OFF = 160, 164, 166
SPIN = 200000

MAP2 = [1]
def map_tile(a, srt, sc2):
    if MAP2[0] == 0:
        a(f"""
        s_and_b32 s7, s2, 7
        s_lshr_b32 s33, s2, 3
        s_lshl_b32 s7, s7, 2
        s_and_b32 s{sc2}, s33, 3
        s_add_u32 s{srt}, s7, s{sc2}
        s_lshr_b32 s{sc2}, s33, 2
        """)
    else:
        a(f"""
        s_and_b32 s7, s2, 7
        s_lshr_b32 s33, s2, 3
        s_lshr_b32 s{srt}, s7, 1
        s_lshl_b32 s{srt}, s{srt}, 3
        s_and_b32 s{sc2}, s33, 7
        s_add_u32 s{srt}, s{srt}, s{sc2}
        s_and_b32 s7, s7, 1
        s_lshl_b32 s7, s7, 2
        s_lshr_b32 s{sc2}, s33, 3
        s_add_u32 s{sc2}, s{sc2}, s7
        """)
def map_B(a):
    map_tile(a, S_RT, S_C2)
    a(f"""
    s_and_b32 s32, s{S_WP}, 3
    s_lshl_b32 s32, s32, 4
    s_lshl_b32 s33, s{S_RT}, 6
    s_add_u32 s32, s32, s33               ; 64 rt + 16 (w&3)
    v_and_b32 v2, 15, v0
    v_add_u32 v2, s32, v2
    v_lshlrev_b32 v2, 10, v2              ; row*1024
    s_lshr_b32 s32, s{S_WP}, 2
    s_lshl_b32 s32, s32, 6
    s_lshl_b32 s33, s{S_C2}, 7
    s_add_u32 s32, s32, s33
    v_lshrrev_b32 v3, 4, v0
    v_lshlrev_b32 v3, 4, v3
    v_add_u32 v2, v2, v3
    v_add_u32 v{V_OFF}, s32, v2
    """)

def lds_count_last(a, addr, n, lab_skip):
    a(f"""
    v_mov_b32 v1, {addr}
    v_mov_b32 v2, 1
    s_mov_b64 exec, 1
    ds_add_rtn_u32 v3, v1, v2
    s_mov_b64 exec, -1
    s_waitcnt lgkmcnt(0)
    v_readfirstlane_b32 s7, v3
    s_cmp_lg_u32 s7, {n-1}
    s_cbranch_scc1 {lab_skip}
    """)
def lds_set(a, addr_expr_sgpr_or_int):
    if isinstance(addr_expr_sgpr_or_int, int): a(f"v_mov_b32 v1, {addr_expr_sgpr_or_int}")
    else: a(f"v_mov_b32 v1, {addr_expr_sgpr_or_int}")
    a("v_mov_b32 v2, 1")
    a("ds_write_b32 v1, v2")
def lds_spin(a, addrs):
    lp = a.label('spin')
    for i, ad in enumerate(addrs): a(f"v_mov_b32 v{1+i}, {ad}")
    a("s_mov_b32 s99, 0")
    a(f"{lp}:")
    for i in range(len(addrs)): a(f"ds_read_b32 v{3+i}, v{1+i}")
    a("s_add_u32 s99, s99, 1")
    a("s_waitcnt lgkmcnt(0)")
    if len(addrs) == 2: a("v_min_u32 v3, v3, v4"); a("s_nop 0")
    a(f"""
    v_readfirstlane_b32 s24, v3
    s_cmp_gt_u32 s99, {5*SPIN}
    s_cselect_b32 s24, 1, s24
    s_cmp_eq_u32 s24, 0
    s_cbranch_scc1 {lp}
    """)
def lds_inc(a, addr):
    a(f"""
    v_mov_b32 v1, {addr}
    v_mov_b32 v2, 1
    s_mov_b64 exec, 1
    ds_add_u32 v1, v2
    s_mov_b64 exec, -1
    """)
def lds_spin_eq(a, addr, val):
    lp = a.label('spinq')
    a(f"""
    v_mov_b32 v1, {addr}
    s_mov_b32 s99, 0
    {lp}:
    ds_read_b32 v3, v1
    s_add_u32 s99, s99, 1
    s_waitcnt lgkmcnt(0)
    v_readfirstlane_b32 s7, v3
    s_cmp_gt_u32 s99, {5*SPIN}
    s_cselect_b32 s7, {val}, s7
    s_cmp_lg_u32 s7, {val}
    s_cbranch_scc1 {lp}
    """)
def flag_store(a, base, idx_sgpr):
    a(f"""
    s_lshl_b32 s7, {idx_sgpr}, 7
    s_add_u32 s7, s7, {base}
    v_mov_b32 v1, s7
    s_mov_b64 exec, 1
    global_store_dwordx2 v1, v[{V_NON}:{V_NON+1}], s[{SP['ws']}:{SP['ws']+1}] sc1
    s_mov_b64 exec, -1
    """)
def flag_poll(a, vaddr, vdst, nosleep=False, sleep=1):
    lp = a.label('poll'); ok = a.label('pok')
    a(f"""
    s_mov_b32 s99, 0
    {lp}:
    global_load_dwordx2 v[{vdst}:{vdst+1}], v{vaddr}, s[{SP['ws']}:{SP['ws']+1}] sc1
    s_add_u32 s99, s99, 1
    s_waitcnt vmcnt(0)
    v_cmp_ne_u32 vcc, v{V_NON}, v{vdst}
    v_cmp_ne_u32 s[30:31], v{V_NON+1}, v{vdst+1}
    s_or_b64 vcc, vcc, s[30:31]
    s_cmp_eq_u64 vcc, 0
    s_cbranch_scc1 {ok}
    s_cmp_gt_u32 s99, {SPIN}
    s_cbranch_scc1 {ok}
    {"s_nop 0" if nosleep else f"s_sleep {sleep}"}
    s_branch {lp}
    {ok}:
    """)


def touch_group(a, sg, srt, sc2, vdst):
    a(f"""
    s_cmp_eq_u32 s{sg}, 3
    s_cselect_b32 s30, 14, 24
    s_lshl_b32 s31, s30, 1
    s_mul_i32 s33, s{sc2}, s31
    v_add_u32 v1, s33, v0
    s_lshl_b32 s33, s30, 3
    v_cmp_le_u32 vcc, s33, v1
    v_mov_b32 v2, s33
    v_mov_b32 v3, 0
    v_cndmask_b32 v2, v3, v2, vcc
    v_sub_u32 v1, v1, v2
    v_mov_b32 v2, {86*1024}
    v_cndmask_b32 v2, v3, v2, vcc
    v_lshlrev_b32 v1, 7, v1
    v_add_u32 v1, v1, v2
    s_mul_i32 s33, s{srt}, {2*86*1024}
    s_mul_i32 s7, s{sg}, {24*1024}
    s_add_u32 s33, s33, s7
    s_add_u32 s33, s33, {WS_H}
    v_add_u32 v1, s33, v1
    v_cmp_gt_u32 vcc, s31, v0
    s_and_saveexec_b64 s[30:31], vcc
    global_load_dword v{vdst}, v1, s[{SP['ws']}:{SP['ws']+1}] sc1
    s_mov_b64 exec, s[30:31]
    """)

def gpub_F(a, opts):
    nf = a.label('nfh'); end = a.label('gpe')
    a(f"""
    v_mov_b32 v1, {F_NON}
    ds_read_b64 v[{V_NON}:{V_NON+1}], v1
    s_waitcnt vmcnt(0) lgkmcnt(0)
    """)
    stamp(a, opts, 14)
    stamp(a, opts, 40, real=True)
    dbgstamp(a, opts, 5, wave=0)
    lds_count_last(a, F_CNTH, 8 if opts.get('esplit', 0) else 4, nf)
    a(f"s_lshl_b32 s30, s{S_RB}, 4")
    a(f"s_add_u32 s30, s30, s{S_CT}")
    flag_store(a, WS_FLAGH, "s30")
    a(f"{nf}:")
    a(f"s_cmp_lg_u32 s{S_WAVE}, 0")
    a(f"s_cbranch_scc1 {end}")
    map_tile(a, 34, 35)
    a(f"""
    s_lshr_b32 s7, s34, 1
    s_lshl_b32 s7, s7, 4
    v_min_u32 v2, 14, v0
    v_add_u32 v2, s7, v2
    v_lshlrev_b32 v2, 7, v2
    v_add_u32 v2, {WS_FLAGH}, v2
    """)
    flag_poll(a, 2, 4, sleep=opts.get('gsleep', 8))
    if opts.get('touch'):
        a(f"""
        s_and_b32 s7, s2, 7
        s_lshl_b32 s7, s7, 2
        s_lshr_b32 s33, s2, 3
        s_and_b32 s34, s33, 3
        s_add_u32 s34, s7, s34
        s_lshr_b32 s35, s33, 2
        """)
        for g in range(4):
            a(f"s_mov_b32 s86, {g}")
            touch_group(a, 86, 34, 35, 8+g)
    lds_set(a, F_HRDY)
    a("s_waitcnt lgkmcnt(0)")
    a(f"{end}:")
    stamp(a, opts, 15)
    stamp(a, opts, 7, real=True)
    if opts.get('ts'): a("s_waitcnt vmcnt(0)")
    stamp_flush(a, opts, 0)
    a("s_endpgm")


def epi_L(a, opts):
    from kerA_help import A_STATS, A_CS
    SRD_H = 20
    SC, AC, CS, T = 88, 16, 48, 64
    OUTS = (80, 84)
    done = a.label('epld')
    K1 = -2*0.7978845608028654*1.4426950408889634
    a(f"""
    s_and_b32 s70, s68, 1                    ; tw
    s_lshr_b32 s71, s68, 1                   ; fw
    s_lshl_b32 s7, s{S_CT}, 1
    s_add_u32 s7, s7, s71
    s_cmp_ge_u32 s7, 29
    s_cbranch_scc1 {done}
    v_and_b32 v1, 31, v0
    s_lshl_b32 s7, s70, 6
    v_add_u32 v1, s7, v1
    v_lshlrev_b32 v2, 3, v1
    v_add_u32 v2, {A_STATS}, v2
    ds_read_b64 v[8:9], v2
    ds_read_b64 v[10:11], v2 offset:256
    v_lshrrev_b32 v5, 5, v0
    v_lshlrev_b32 v5, 4, v5
    s_mul_i32 s7, s71, 384
    s_add_u32 s7, s7, {A_CS + 256}
    v_add_u32 v5, s7, v5
    v_lshlrev_b32 v6, 4, v0
    s_lshl_b32 s7, s68, 13
    s_add_u32 s7, s7, {F_EHB}
    v_add_u32 v7, s7, v6
    s_lshl_b32 s72, s{S_RB}, 2
    s_lshl_b32 s7, s70, 1
    s_add_u32 s72, s72, s7
    s_mul_i32 s72, s72, 86
    s_mul_i32 s73, s{S_CT}, 6
    s_mul_i32 s7, s71, 3
    s_add_u32 s73, s73, s7
    s_add_u32 s73, s73, 2
    """)
    srd(a, SRD_H, SP['ws'], WS_H_SZ, WS_H)
    a("s_waitcnt lgkmcnt(0)")
    for n in range(2):
        b = SC + 8*n
        m_, s_ = 8+2*n, 9+2*n
        a(f"""
        v_mov_b32 v{b}, v{m_}
        v_rcp_f32 v1, v{s_}
        v_mul_f32 v{b+6}, v{s_}, v{s_}
        v_mul_f32 v{b+2}, {hx(K1)}, v1
        v_mul_f32 v2, v1, v1
        v_mul_f32 v2, {hx(0.044715)}, v2
        v_mul_f32 v{b+4}, v{b+2}, v2
        """)
    a("s_lshl_b32 s26, s68, 2")
    a(f"s_add_u32 s26, s26, {F_EHF}")
    lds_spin(a, ["s26", F_CSR])
    for n in range(2):
        for g in range(4):
            a(f"ds_read_b128 {v(AC+16*n+4*g,4)}, v7 offset:{(n*4+g)*1024}")
    for g in range(4):
        a(f"ds_read_b128 {v(CS+4*g,4)}, v5 offset:{g*32}")
    a(f"s_setprio {opts.get('eprio', 2)}")
    a("s_waitcnt lgkmcnt(0)")
    for n in range(2):
        b = SC + 8*n; A = AC + 16*n
        for p in range(8):
            a(f"v_pk_fma_f32 {v(A+2*p,2)}, {v(CS+2*p,2)}, {v(b,2)}, {v(A+2*p,2)} op_sel_hi:[1,0,1] neg_lo:[0,1,0] neg_hi:[0,1,0]")
    for p in range(4):
        regs = [(AC+16*n+2*p, AC+16*n+8+2*p, SC+8*n, T+8*n) for n in range(2)]
        for (g_, u_, b, t) in regs: a(f"v_pk_mul_f32 {v(t,2)}, {v(g_,2)}, {v(g_,2)}")
        for (g_, u_, b, t) in regs: a(f"v_pk_fma_f32 {v(t,2)}, {v(t,2)}, {v(b+4,2)}, {v(b+2,2)} op_sel_hi:[1,0,0]")
        for (g_, u_, b, t) in regs: a(f"v_pk_mul_f32 {v(t,2)}, {v(t,2)}, {v(g_,2)}")
        for (g_, u_, b, t) in regs: a(f"v_pk_mul_f32 {v(t+2,2)}, {v(g_,2)}, {v(u_,2)}")
        for (g_, u_, b, t) in regs:
            a(f"v_exp_f32 v{t}, v{t}")
            a(f"v_exp_f32 v{t+1}, v{t+1}")
        for (g_, u_, b, t) in regs: a(f"v_pk_fma_f32 {v(t,2)}, {v(t,2)}, {v(b+6,2)}, {v(b+6,2)} op_sel_hi:[1,0,0]")
        for (g_, u_, b, t) in regs:
            a(f"v_rcp_f32 v{t}, v{t}")
            a(f"v_rcp_f32 v{t+1}, v{t+1}")
        for (g_, u_, b, t) in regs: a(f"v_pk_mul_f32 {v(t+2,2)}, {v(t+2,2)}, {v(t,2)}")
        for n, (g_, u_, b, t) in enumerate(regs): a(f"v_cvt_pk_bf16_f32 v{OUTS[n]+p}, v{t+2}, v{t+3}")
    a(f"""
    s_cmp_ge_u32 s73, 86
    s_cbranch_scc1 {done}
    s_add_u32 s7, s73, s72
    s_lshl_b32 s7, s7, 10
    buffer_store_dwordx4 {v(OUTS[0],4)}, v6, s[{SRD_H}:{SRD_H+3}], s7 offen sc1
    s_add_u32 s7, s7, {86*1024}
    buffer_store_dwordx4 {v(OUTS[1],4)}, v6, s[{SRD_H}:{SRD_H+3}], s7 offen sc1
    {done}:
    s_setprio 0
    """)

def gemm2_F(a, opts):
    D = DEPTH
    ACC, HF, WF, YG = 16, 80, 112, 128
    VH0, VH1, VWD, VA0, VA1, VY = 8, 9, 10, 11, 13, 12
    S_N, S_OFF, S_RING, S_WC = 81, 27, 28, 29
    S_GB, S_GL, S_STEP, S_CNT, S_ROT, S_GD = 70, 74, 82, 83, 84, 85
    def acc(m, n): return ACC + (m*2+n)*16
    def hf(st, n): return HF + st*8 + n*4
    def wf(st, m): return WF + st*8 + m*4
    vm = VmTrack(a)
    if opts.get('esplit', 0): epi_L(a, opts)
    a(f"s_mov_b32 s{S_WP}, s68")
    srd(a, SRD_WD, SP['wd'], 1409024)
    if opts.get('pfmode',0) == 1:
        npf = a.label('nopf')
        a(f"s_cmp_lg_u32 s{S_WP}, 1")
        a(f"s_cbranch_scc1 {npf}")
        if opts.get('pfwait'): lds_spin(a, [F_URDY, F_URDY+4])
        a(f"""
        s_lshr_b32 s30, s2, 3
        s_mul_i32 s30, s30, {43*1024}
        v_lshlrev_b32 v1, 7, v0
        v_add_u32 v1, s30, v1
        """)
        for i in range(6):
            a(f"s_mov_b32 s30, {i*8192}")
            a(f"buffer_load_dword v{144+i}, v1, s[{SRD_WD}:{SRD_WD+3}], s30 offen")
        a(f"{npf}:")
    map_B(a)
    a(f"""
    s_mov_b32 s{S_N}, 22
    s_cmp_ge_u32 s{S_WP}, 2
    s_cselect_b32 s{S_N}, 21, s{S_N}
    v_lshlrev_b32 v1, 4, v0
    s_mul_i32 s7, s{S_RT}, {2*86*1024}
    s_add_u32 s7, s7, {WS_H}
    v_add_u32 v{VH0}, s7, v1
    v_add_u32 v{VH1}, {86*1024}, v{VH0}
    v_lshrrev_b32 v2, 3, v0
    v_lshlrev_b32 v2, 10, v2
    v_and_b32 v3, 7, v0
    v_bfe_u32 v4, v0, 4, 1
    v_lshlrev_b32 v4, 2, v4
    v_xor_b32 v3, v3, v4
    v_lshlrev_b32 v3, 4, v3
    v_add_u32 v{VWD}, v2, v3
    s_lshl_b32 s{S_WC}, s{S_C2}, 7
    s_mul_i32 s{S_RING}, s{S_WP}, {D*2048}
    s_add_u32 s{S_RING}, s{S_RING}, {F_WR}
    v_lshrrev_b32 v2, 5, v0
    v_lshlrev_b32 v2, 2, v2                 ; 4h
    v_bfe_u32 v3, v0, 2, 2                  ; r'
    v_add_u32 v2, v2, v3
    v_lshlrev_b32 v2, 7, v2
    v_lshrrev_b32 v3, 1, v3
    v_lshlrev_b32 v3, 6, v3
    v_add_u32 v2, v2, v3
    v_bfe_u32 v3, v0, 4, 1
    v_lshlrev_b32 v3, 5, v3
    v_add_u32 v2, v2, v3
    v_and_b32 v3, 3, v0
    v_lshlrev_b32 v3, 3, v3
    v_add_u32 v2, v2, v3
    v_add_u32 v{VA0}, s{S_RING}, v2
    v_xor_b32 v2, 64, v2
    v_add_u32 v{VA1}, s{S_RING}, v2
    """)
    if opts.get('ycomp', 1):
        a(f"""
        v_lshrrev_b32 v2, 3, v0
        s_lshl_b32 s7, s{S_WP}, 4
        s_lshl_b32 s30, s{S_C2}, 6
        s_add_u32 s7, s7, s30                  ; 64 ct + 16 w
        v_add_u32 v2, s7, v2
        v_lshlrev_b32 v2, 12, v2               ; ch*4096
        v_and_b32 v3, 7, v0
        v_lshlrev_b32 v3, 4, v3
        v_add_u32 v2, v2, v3
        s_lshl_b32 s30, s{S_RT}, 7             ; 64 t * 2 B
        s_add_u32 s30, s30, {WS_Y}
        v_add_u32 v{VY}, s30, v2               ; y address
        s_lshr_b32 s7, s7, 1
        v_min_u32 v2, 7, v0
        v_add_u32 v2, s7, v2
        v_lshlrev_b32 v2, 7, v2
        v_add_u32 v14, {WS_FLAGY}, v2
        """)
    else:
        a(f"""
        v_lshrrev_b32 v2, 4, v0
        s_lshl_b32 s7, s{S_WP}, 4
        s_lshl_b32 s30, s{S_C2}, 6
        s_add_u32 s7, s7, s30                  ; 64 ct + 16 w
        v_add_u32 v2, s7, v2
        v_lshlrev_b32 v2, 13, v2               ; ch*8192
        v_and_b32 v3, 15, v0
        v_lshlrev_b32 v3, 4, v3
        v_add_u32 v2, v2, v3
        s_lshl_b32 s7, s{S_RT}, 8
        s_add_u32 s7, s7, {WS_Y}
        v_add_u32 v{VY}, s7, v2                ; y address
        """)
    a(f"""
    v_mov_b32 v1, {F_NON}
    ds_read_b64 v[{V_NON}:{V_NON+1}], v1
    """)
    srd(a, SRD_WS, SP['ws'], 19*MB)
    srd(a, SRD_WD, SP['wd'], 1409024)
    for i in range(64): a(f"v_mov_b32 v{ACC+i}, 0")
    a("s_waitcnt lgkmcnt(0)")
    stamp(a, opts, 14)
    a(f"""
    s_mov_b32 s24, {0 | (1 << 2) | (3 << 4) | (2 << 6)}
    s_mov_b32 s25, {1 | (0 << 2) | (2 << 4) | (3 << 6)}
    s_bitcmp1_b32 s{S_C2}, 0
    s_cselect_b32 s24, s25, s24
    """)
    a(f"""
    s_mul_i32 s30, s{S_WP}, 6
    s_lshl_b32 s31, s{S_WP}, 2
    s_cmp_eq_u32 s{S_WP}, 3
    s_cselect_b32 s31, 11, s31
    s_cmp_ge_u32 s{S_WP}, 2
    s_cselect_b32 s32, 3, 4
    """)
    for k in range(4):
        a(f"""
        s_lshr_b32 s7, s24, {2*k}
        s_and_b32 s7, s7, 3
        s_mul_i32 s33, s7, 24
        s_cmp_eq_u32 s7, 3
        s_cselect_b32 s25, s31, s30
        s_add_u32 s{S_GB+k}, s33, s25
        s_cselect_b32 s{S_GL+k}, s32, 6
        """.replace("        s_add_u32 s%d, s33, s25\n        s_cselect_b32" % (S_GB+k), "        s_add_u32 s%d, s33, s25\n        s_cmp_eq_u32 s7, 3\n        s_cselect_b32" % (S_GB+k)))
    S_OW, S_OH, S_REM = 82, 83, 84
    S_OE, S_RO = 88, 94
    def load_group():
        a(f"""
        s_lshr_b32 s7, s{S_GL}, 1
        s_bitcmp1_b32 s{S_C2}, 1
        s_cselect_b32 s{S_RO}, s7, 0
        s_add_u32 s7, s{S_GB}, s{S_RO}
        s_lshl_b32 s{S_OW}, s7, 14
        s_add_u32 s{S_OW}, s{S_OW}, s{S_WC}
        s_lshl_b32 s{S_OH}, s7, 10
        s_add_u32 s7, s{S_GB}, s{S_GL}
        s_lshl_b32 s{S_OE}, s7, 10
        s_mov_b32 s{S_REM}, s{S_GL}
        """)
    a(f"s_mov_b32 s{S_GD}, 0")
    load_group()
    if opts.get('esplit', 0):
        nfl = a.label('nfl')
        a("s_waitcnt vmcnt(0)")
        lds_count_last(a, F_CNTH, 8, nfl)
        a(f"s_lshl_b32 s30, s{S_RB}, 4")
        a(f"s_add_u32 s30, s30, s{S_CT}")
        flag_store(a, WS_FLAGH, "s30")
        a(f"{nfl}:")
    lds_spin_eq(a, F_GDN, 4)
    a(f"s_setprio {opts.get('gprio', 1)}")
    def advance(pos):
        adv = a.label('noadv'); nw = a.label('nowrap')
        a(f"""
        s_add_u32 s{S_OW}, s{S_OW}, 16384
        s_add_u32 s{S_OH}, s{S_OH}, 1024
        s_cmp_lg_u32 s{S_OH}, s{S_OE}
        s_cbranch_scc1 {nw}
        s_lshl_b32 s7, s{S_GL}, 14
        s_sub_u32 s{S_OW}, s{S_OW}, s7
        s_lshl_b32 s7, s{S_GL}, 10
        s_sub_u32 s{S_OH}, s{S_OH}, s7
        {nw}:
        s_sub_u32 s{S_REM}, s{S_REM}, 1
        s_cmp_lg_u32 s{S_REM}, 0
        s_cbranch_scc1 {adv}
        s_mov_b32 s{S_GB}, s{S_GB+1}
        s_mov_b32 s{S_GB+1}, s{S_GB+2}
        s_mov_b32 s{S_GB+2}, s{S_GB+3}
        s_mov_b32 s{S_GL}, s{S_GL+1}
        s_mov_b32 s{S_GL+1}, s{S_GL+2}
        s_mov_b32 s{S_GL+2}, s{S_GL+3}
        s_add_u32 s{S_GD}, s{S_GD}, 1
        """)
        load_group()
        if pos + 1 in (9, 10, 12):
            a(f"s_cmp_lg_u32 s{S_GD}, 2")
            a(f"s_cbranch_scc1 {adv}")
            lds_spin(a, [F_HRDY])
        a(f"{adv}:")
    def ops(st, step):
        g = []
        g.append((f"s_add_u32 m0, s{S_RING}, {st*2048}\ns_add_u32 s31, s{S_OW}, 8192\nbuffer_load_dwordx4 v{VWD}, s[{SRD_WD}:{SRD_WD+3}], s{S_OW} offen lds"))
        g.append((f"buffer_load_dwordx4 {v(hf(st,0),4)}, v{VH0}, s[{SRD_WS}:{SRD_WS+3}], s{S_OH} offen sc1"))
        g.append((f"s_add_u32 m0, s{S_RING}, {st*2048+1024}\ns_nop 0\nbuffer_load_dwordx4 v{VWD}, s[{SRD_WD}:{SRD_WD+3}], s31 offen lds"))
        g.append((f"buffer_load_dwordx4 {v(hf(st,1),4)}, v{VH1}, s[{SRD_WS}:{SRD_WS+3}], s{S_OH} offen sc1"))
        return g
    S_PH = 95
    for st in range(D):
        g = ops(st, st)
        a(g[0]); vm.op(('w', st)); a(g[2]); vm.op(('w', st))
        a(f"s_mov_b32 s{S_PH+st}, s{S_OH}")
        advance(st)
    oth = a.label('hoth'); go = a.label('hgo'); lp = a.label('opoll'); ok = a.label('ook')
    a(f"s_cmp_lg_u32 s{S_WP}, 0")
    a(f"s_cbranch_scc1 {oth}")
    if opts.get('pollwait', 1): lds_spin_eq(a, F_CNTH, 8 if opts.get('esplit', 0) else 4)
    a(f"""
    v_min_u32 v2, {7 if opts.get('gfirst', 3) == 3 else 14}, v0
    s_lshr_b32 s7, s{S_RT}, 1
    s_lshl_b32 s7, s7, 4
    v_add_u32 v2, s7, v2
    v_lshlrev_b32 v2, 7, v2
    v_add_u32 v2, {WS_FLAGH}, v2
    """)
    flag_poll(a, 2, 4, sleep=opts.get('hsleep', 2))
    lds_set(a, F_ORD)
    a(f"s_branch {go}")
    a(f"{oth}:")
    lds_spin(a, [F_ORD])
    a(f"{go}:")
    stamp(a, opts, 15)
    stamp(a, opts, 41, real=True)
    dbgstamp(a, opts, 6, wave=4)
    a("s_waitcnt vmcnt(0)")
    vm.ops = []
    for st in range(D):
        a(f"buffer_load_dwordx4 {v(hf(st,0),4)}, v{VH0}, s[{SRD_WS}:{SRD_WS+3}], s{S_PH+st} offen sc1"); vm.op(('s', st))
        a(f"buffer_load_dwordx4 {v(hf(st,1),4)}, v{VH1}, s[{SRD_WS}:{SRD_WS+3}], s{S_PH+st} offen sc1"); vm.op(('s', st))
    def wreads(i):
        st, ws_ = i % D, i & 1
        for m, va in ((0, VA0), (1, VA1)):
            a(f"ds_read_b64_tr_b16 {v(wf(ws_,m),2)}, v{va} offset:{st*2048}")
            a(f"ds_read_b64_tr_b16 {v(wf(ws_,m)+2,2)}, v{va} offset:{st*2048+1024}")
    YC = opts.get('ycomp', 1)
    def yissue(first=False):
        if first:
            if YC:
                okf = a.label('yfok')
                vm.wait('yf')
                a(f"""
                v_cmp_ne_u32 vcc, v{V_NON}, v142
                v_cmp_ne_u32 s[30:31], v{V_NON+1}, v143
                s_or_b64 vcc, vcc, s[30:31]
                s_cmp_eq_u64 vcc, 0
                s_cbranch_scc1 {okf}
                """)
                if not opts.get('noconv'): flag_poll(a, 14, 142)
                a(f"{okf}:")
            a(f"global_load_dwordx4 {v(V_XT,4)}, v{V_OFF}, s[{SP['x']}:{SP['x']+1}]"); vm.op('x')
        if YC:
            a(f"buffer_load_dwordx4 {v(YG,4)}, v{VY}, s[{SRD_WS}:{SRD_WS+3}], 0 offen sc1"); vm.op('y')
            a(f"s_mov_b32 s{S_OFF}, {8*4096}")
            a(f"buffer_load_dwordx4 {v(YG+4,4)}, v{VY}, s[{SRD_WS}:{SRD_WS+3}], s{S_OFF} offen sc1"); vm.op('y')
            return
        for i in range(4):
            if i == 0: a(f"buffer_load_dwordx4 {v(YG,4)}, v{VY}, s[{SRD_WS}:{SRD_WS+3}], 0 offen sc1")
            else:
                a(f"s_mov_b32 s{S_OFF}, {i*4*8192}")
                a(f"buffer_load_dwordx4 {v(YG+4*i,4)}, v{VY}, s[{SRD_WS}:{SRD_WS+3}], s{S_OFF} offen sc1")
            vm.op('y')
    NS = 22
    vm.wait(('s', 0))
    wreads(0)
    lskip = a.label('gskip')
    for i in range(NS):
        st = i % D
        if i == NS - 1:
            a(f"s_cmp_eq_u32 s{S_N}, 21")
            a(f"s_cbranch_scc1 {lskip}")
        if i + 1 < NS:
            vm.wait(('s', i+1), ' lgkmcnt(0)')
            wreads(i+1)
        else:
            a("s_waitcnt lgkmcnt(0)")
        if opts.get('tsg2') and i % 4 == 0: stamp(a, opts, 48 + i//4)
        nx = ops(st, i+D) if i + D < NS else [None]*4
        for k, (m, n_) in enumerate(((0,0),(1,0),(0,1),(1,1))):
            if opts.get('fake16'):
                A_ = acc(m,n_)
                a(f"v_mfma_f32_16x16x32_bf16 {v(A_,4)}, {v(wf(i&1,m),4)}, {v(hf(st,n_),4)}, {v(A_,4)}")
                a(f"v_mfma_f32_16x16x32_bf16 {v(A_+8,4)}, {v(hf(st,n_),4)}, {v(wf(i&1,m),4)}, {v(A_+8,4)}")
            else:
                a(f"v_mfma_f32_32x32x16_bf16 {v(acc(m,n_),16)}, {v(wf(i&1,m),4)}, {v(hf(st,n_),4)}, {v(acc(m,n_),16)}")
            kk = (0, 1, 2, 3)[k]
            if nx[kk] is not None:
                a(nx[kk]); vm.op(('s', i+D))
        if i + D < NS: advance(i+D)
        if YC and i == opts.get('yfi', 14):
            a(f"global_load_dwordx2 v[142:143], v14, s[{SP['ws']}:{SP['ws']+1}] sc1"); vm.op('yf')
        if i == opts.get('yi', NS - D): yissue(True)
    a(f"{lskip}:")
    stamp(a, opts, 16+8)
    stamp(a, opts, 42, real=True)
    dbgstamp(a, opts, 7, wave=4)
    a(f"""
    v_and_b32 v1, 31, v0
    v_mul_u32_u24 v1, {PROW}, v1
    v_lshrrev_b32 v2, 5, v0
    v_lshlrev_b32 v2, 4, v2
    v_add_u32 v1, v1, v2
    s_mul_i32 s7, s{S_WP}, {64*PROW}
    s_add_u32 s7, s7, {F_P}
    v_add_u32 v1, s7, v1
    """)
    if YC:
        a(f"""
        v_lshrrev_b32 v2, 3, v0
        s_lshl_b32 s7, s{S_WP}, 4
        v_add_u32 v2, s7, v2
        v_mul_u32_u24 v2, 160, v2
        v_and_b32 v3, 7, v0
        v_lshlrev_b32 v3, 4, v3
        v_add_u32 v2, v2, v3
        v_add_u32 v2, {F_YT}, v2
        """)
    else:
        a(f"""
        v_lshrrev_b32 v2, 4, v0
        s_lshl_b32 s7, s{S_WP}, 4
        v_add_u32 v2, s7, v2
        v_mul_u32_u24 v2, 160, v2
        v_and_b32 v3, 15, v0
        v_lshlrev_b32 v3, 3, v3
        v_add_u32 v2, v2, v3
        v_add_u32 v2, {F_YT}, v2
        """)
    for m in range(2):
        for n_ in range(2):
            for g in range(4):
                a(f"ds_write_b128 v1, {v(acc(m,n_)+4*g,4)} offset:{n_*32*PROW + m*128 + g*32}")
    if YC:
        a("s_waitcnt vmcnt(0)")
        stamp(a, opts, 16+9)
        for j in range(2):
            a(f"ds_write_b128 v2, {v(YG+4*j,4)} offset:{j*8*160}")
        a(f"s_branch {opts['lfinal']}")
        return
    lp = a.label('ychk'); ok = a.label('yok')
    a(f"""
    s_mov_b32 s28, 0
    {lp}:
    s_waitcnt vmcnt(0)
    v_cmp_ne_u32 vcc, v{V_NON}, v{YG+2}
    """)
    for i in range(1, 4):
        a(f"v_cmp_ne_u32 s[30:31], v{V_NON}, v{YG+4*i+2}"); a("s_or_b64 vcc, vcc, s[30:31]")
    for i in range(4):
        a(f"v_cmp_ne_u32 s[30:31], v{V_NON+1}, v{YG+4*i+3}"); a("s_or_b64 vcc, vcc, s[30:31]")
    a(f"""
    s_add_u32 s28, s28, 1
    s_cmp_eq_u64 vcc, 0
    s_cbranch_scc1 {ok}
    s_cmp_gt_u32 s28, {0 if opts.get('noconv') else SPIN}
    s_cbranch_scc1 {ok}
    """)
    yissue()
    a(f"s_branch {lp}")
    a(f"{ok}:")
    stamp(a, opts, 16+9)
    for i in range(4):
        a(f"ds_write_b64 v2, {v(YG+4*i,2)} offset:{i*4*160}")
    a(f"s_branch {opts['lfinal']}")

S_SL = 87

def colsum_F(a, opts):
    S_W, SRD_T0 = 68, 20
    WA0, SEL, FR, AC, G = 8, 12, 16, 112, 16
    a(f"""
    s_setprio 3
    v_mov_b32 v1, {F_NON}
    ds_read_b32 v11, v1
    v_lshrrev_b32 v2, 5, v0                ; h
    v_lshrrev_b32 v3, 4, v0
    v_and_b32 v3, 1, v3                    ; gu
    v_mul_u32_u24 v4, 12288, v3
    v_lshlrev_b32 v5, 9, v2
    v_add_u32 v4, v4, v5
    v_and_b32 v5, 15, v0
    v_lshrrev_b32 v6, 2, v5
    v_lshlrev_b32 v6, 6, v6
    v_add_u32 v4, v4, v6
    v_and_b32 v5, 3, v5
    v_lshlrev_b32 v5, 3, v5
    v_add_u32 v4, v4, v5
    s_lshr_b32 s7, s{S_RB}, 3
    s_lshl_b32 s7, s7, 11
    s_add_u32 s7, s7, {16384 + 2*STAGE}
    v_add_u32 v4, s7, v4
    s_lshr_b32 s72, s{S_W}, 1              ; 0 / 1
    s_mul_i32 s73, s72, 3
    """)
    for mi in range(3):
        a(f"""
        s_add_u32 s32, s73, {mi}
        s_lshr_b32 s33, s32, 1
        s_lshl_b32 s33, s33, 12            ; P*4096
        s_and_b32 s32, s32, 1              ; b
        v_xor_b32 v5, s32, v3
        v_lshlrev_b32 v5, 5, v5
        v_add_u32 v5, s33, v5
        v_add_u32 v{WA0+mi}, v4, v5
        """)
    for mi in range(3):
        for s_ in range(2):
            fr = FR + (mi*2+s_)*4
            a(f"ds_read_b64_tr_b16 {v(fr,2)}, v{WA0+mi} offset:{s_*1024}")
            a(f"ds_read_b64_tr_b16 {v(fr+2,2)}, v{WA0+mi} offset:{s_*1024 + 256}")
    a(f"""
    v_and_b32 v5, 15, v0
    v_cmp_eq_u32 vcc, v5, v3
    v_mov_b32 v6, 0x3f803f80
    v_mov_b32 v7, 0
    v_cndmask_b32 v{SEL}, v7, v6, vcc
    v_mov_b32 v{SEL+1}, v{SEL}
    v_mov_b32 v{SEL+2}, v{SEL}
    v_mov_b32 v{SEL+3}, v{SEL}
    """)
    for i in range(12): a(f"v_mov_b32 v{AC+i}, 0")
    srd(a, SRD_T0, SP['ws'], 16*16*1024, WS_CSP)
    a("s_waitcnt lgkmcnt(0)")
    for s_ in range(2):
        for mi in range(3):
            fr = FR + (mi*2+s_)*4
            a(f"v_mfma_f32_16x16x32_bf16 {v(AC+4*mi,4)}, {v(fr,4)}, {v(SEL,4)}, {v(AC+4*mi,4)}")
    a(f"""
    v_and_b32 v5, 15, v0
    v_lshlrev_b32 v1, 6, v5                ; col*64
    v_lshrrev_b32 v2, 4, v0
    v_lshlrev_b32 v2, 4, v2                ; q*16
    v_add_u32 v1, v1, v2
    s_lshl_b32 s7, s{S_CT}, 4
    s_add_u32 s7, s7, s{S_RB}
    s_lshl_b32 s33, s7, 10
    s_lshl_b32 s7, s72, 9
    s_add_u32 s33, s33, s7
    v_cmp_gt_u32 vcc, 2, v5
    """)
    for g in range(4): a(f"v_mov_b32 v{G+4*g+3}, v11")
    for e in range(12): a(f"v_mov_b32 v{G+4*(e//3)+(e%3)}, v{AC+e}")
    a("s_and_saveexec_b64 s[34:35], vcc")
    for g in range(4):
        a(f"buffer_store_dwordx4 {v(G+4*g,4)}, v1, s[{SRD_T0}:{SRD_T0+3}], s33 offen offset:{g*128} sc1")
    a("s_mov_b64 exec, s[34:35]")
    stamp(a, opts, 6)

def xnt_flag(a, opts):
    nf = a.label('nfx')
    a("s_waitcnt vmcnt(0)")
    stamp(a, opts, 14)
    stamp(a, opts, 40, real=True)
    lds_count_last(a, F_CNTX, 4, nf)
    a(f"s_lshl_b32 s30, s{S_RB}, 4")
    a(f"s_add_u32 s30, s30, s{S_SL}")
    flag_store(a, WS_FLAGX, "s30")
    a(f"{nf}:")

def helper_F(a, opts):
    import kerA_help as H
    from kerA_help import kgen, grab, nonce_check, colsum_A, A_PUB, A_STATS, A_M, V_SL
    S_W, S_TB, S_ROT = 68, 69, 6
    SRD_T0, SRD_T1 = 20, 24
    ACC = 80
    a(f"""
    s_lshr_b32 s7, s{S_CT}, 3
    s_add_u32 s7, s7, s{S_ROT}
    s_and_b32 s7, s7, 7
    s_lshl_b32 s7, s7, 1
    s_bfe_u32 s33, s{S_CT}, 0x10002
    s_add_u32 s{S_SL}, s7, s33
    """)
    seg0, seg1, seg2 = kgen(a, opts)
    lab = {k: a.label('h'+k) for k in ('0','nf','rest','even','g1','g2')}
    a(f"""
    s_cmp_lg_u32 s{S_W}, 1
    s_cbranch_scc1 {lab['0']}
    global_load_dwordx2 v[152:153], v150, s[{SP['dbg']}:{SP['dbg']+1}] sc1
    {lab['0']}:
    s_setprio 0
    """)
    stamp(a, opts, 3)
    bar(a, opts, 0)
    stamp(a, opts, 4)
    grab(a, opts, 0)
    a("s_setprio 2")
    if not opts.get('dk', 0) & 1: seg0()
    a("s_setprio 0")
    a(f"""
    s_cmp_lg_u32 s{S_W}, 1
    s_cbranch_scc1 {lab['nf']}
    v_lshlrev_b32 v1, 2, v0
    v_add_u32 v1, {A_PUB}, v1
    ds_read_b32 v4, v1
    s_waitcnt vmcnt(0)
    """)
    nonce_check(a, 152)
    srd(a, SRD_T1, SP['ws'], 2048*8, WS_STAT)
    a(f"""
    s_lshl_b32 s32, s{S_RB}, 4
    s_add_u32 s32, s32, s{S_CT}
    s_lshl_b32 s32, s32, 6
    v_lshlrev_b32 v1, 3, v0
    v_mov_b32 v5, s70
    s_waitcnt lgkmcnt(0)
    s_mov_b64 exec, 0xff
    s_setprio 3
    buffer_store_dwordx2 v[4:5], v1, s[{SRD_T1}:{SRD_T1+3}], s32 offen sc1
    s_setprio 0
    s_mov_b64 exec, 1
    v_mov_b32 v1, {F_NON}
    ds_write_b64 v1, v[152:153]
    s_mov_b64 exec, -1
    s_waitcnt lgkmcnt(0)
    {lab['nf']}:
    """)
    bar(a, opts, 1)
    grab(a, opts, 1)
    a("s_setprio 2")
    if not opts.get('dk', 0) & 1: seg1()
    a("s_setprio 0")
    a("s_waitcnt lgkmcnt(0)")
    bar(a, opts, 2)
    a("s_setprio 2")
    if not opts.get('dk', 0) & 1: seg2()
    if opts.get('cs2', 1):
        a(f"s_bitcmp0_b32 s{S_W}, 0")
        a(f"s_cbranch_scc1 {lab['rest']}")
        if not opts.get('dk', 0) & 2: colsum_F(a, opts)
    else:
        a(f"s_cmp_lg_u32 s{S_W}, 1")
        a(f"s_cbranch_scc1 {lab['rest']}")
        colsum_A(a, opts)
    a(f"{lab['rest']}:")
    a("s_setprio 0")
    bar(a, opts, 3)
    srd(a, SRD_T1, SP['ws'], 2048*8, WS_STAT)
    a(f"""
    v_mov_b32 v1, {F_NON}
    ds_read_b64 v[{V_NON}:{V_NON+1}], v1
    v_lshlrev_b32 v8, 4, v0
    s_lshl_b32 s72, s{S_RB}, 10            ; 128 rows * 8 B
    s_cmp_lg_u32 s{S_W}, 0
    s_cbranch_scc1 {lab['g1']}
    s_setprio 3
    buffer_load_dwordx4 v[12:15], v8, s[{SRD_T1}:{SRD_T1+3}], s72 offen sc1
    s_setprio 0
    {lab['g1']}:
    s_waitcnt lgkmcnt(0)
    """)
    bar(a, opts, 4)
    lp = a.label('schk'); ok = a.label('sok')
    a(f"""
    s_cmp_lg_u32 s{S_W}, 0
    s_cbranch_scc1 {lab['g2']}
    s_mov_b32 s75, 0
    {lp}:
    s_waitcnt vmcnt(0)
    v_cmp_ne_u32 vcc, v{V_NON}, v13
    v_cmp_ne_u32 s[32:33], v{V_NON}, v15
    s_or_b64 vcc, vcc, s[32:33]
    s_add_u32 s75, s75, 1
    s_cmp_eq_u64 vcc, 0
    s_cbranch_scc1 {ok}
    s_cmp_gt_u32 s75, {SPIN}
    s_cbranch_scc1 {ok}
    buffer_load_dwordx4 v[12:15], v8, s[{SRD_T1}:{SRD_T1+3}], s72 offen sc1
    s_branch {lp}
    {ok}:
    v_lshlrev_b32 v4, 16, v12
    v_and_b32 v5, 0xffff0000, v12
    v_lshlrev_b32 v6, 16, v14
    v_and_b32 v7, 0xffff0000, v14
    v_lshlrev_b32 v1, 4, v0
    v_add_u32 v1, {A_STATS}, v1
    ds_write_b128 v1, v[4:7]
    v_rcp_f32 v10, v5
    v_rcp_f32 v11, v7
    v_mov_b32 v5, v6
    v_lshlrev_b32 v1, 3, v0
    v_add_u32 v1, {A_M}, v1
    ds_write_b64 v1, v[4:5]
    ds_write_b64 v1, v[10:11] offset:512
    s_waitcnt lgkmcnt(0)
    {lab['g2']}:
    """)
    stamp(a, opts, 5)
    bar(a, opts, 5)
    srd(a, SRD_T0, SP['ws'], WS_XT_SZ, WS_XT)
    a(f"""
    v_lshrrev_b32 v3, 4, v0              ; G
    v_and_b32 v1, 15, v0
    s_and_b32 s7, s{S_W}, 1
    s_lshl_b32 s7, s7, 4
    v_add_u32 v1, s7, v1
    v_lshlrev_b32 v1, 12, v1
    v_lshlrev_b32 v5, 4, v3
    v_add_u32 v8, v1, v5
    s_lshl_b32 s32, s{S_SL}, 17
    s_lshl_b32 s33, s{S_RB}, 8
    s_add_u32 s32, s32, s33
    s_lshr_b32 s7, s{S_W}, 1
    s_lshl_b32 s33, s7, 7
    s_add_u32 s32, s32, s33
    v_lshlrev_b32 v9, 5, v3
    s_lshl_b32 s33, s7, 8
    s_add_u32 s33, s33, {A_M}
    v_add_u32 v9, s33, v9
    """)
    for r in range(2):
        M, R_ = 16 + 16*r, 24 + 16*r
        a(f"ds_read_b128 {v(M,4)}, v9 offset:{r*128}")
        a(f"ds_read_b128 {v(M+4,4)}, v9 offset:{r*128+16}")
        a(f"ds_read_b128 {v(R_,4)}, v9 offset:{512 + r*128}")
        a(f"ds_read_b128 {v(R_+4,4)}, v9 offset:{512 + r*128+16}")
    for r in range(2):
        M, R_ = 16 + 16*r, 24 + 16*r
        U = 48 + 12*r
        X = V_SL + 4*r
        for j in range(4):
            a(f"v_lshlrev_b32 v{U+2*j}, 16, v{X+j}")
            a(f"v_and_b32 v{U+2*j+1}, 0xffff0000, v{X+j}")
        a(f"s_waitcnt lgkmcnt({4*(1-r)})")
        for j in range(8): a(f"v_sub_f32 v{U+j}, v{U+j}, v{M+j}")
        for j in range(4): a(f"v_cvt_pk_bf16_f32 v{U+8+j}, v{U+2*j}, v{U+2*j+1}")
        for j in range(4):
            a(f"v_lshlrev_b32 v{U+2*j}, 16, v{U+8+j}")
            a(f"v_and_b32 v{U+2*j+1}, 0xffff0000, v{U+8+j}")
        for j in range(8): a(f"v_mul_f32 v{U+j}, v{U+j}, v{R_+j}")
        for j in range(4): a(f"v_cvt_pk_bf16_f32 v{U+8+j}, v{U+2*j}, v{U+2*j+1}")
        if not opts.get('lastfull', 0) and not opts.get('xlate'):
            a("s_setprio 3")
            if not opts.get('dk', 0) & 4: a(f"buffer_store_dwordx4 {v(U+8,4)}, v8, s[{SRD_T0}:{SRD_T0+3}], s32 offen offset:{r*64} sc1")
            a("s_setprio 0")
    if opts.get('lastfull', 0):
        lds_spin_eq(a, F_DMAD, 4)
        a("s_setprio 3")
        for r in range(2):
            a(f"buffer_store_dwordx4 {v(48+12*r+8,4)}, v8, s[{SRD_T0}:{SRD_T0+3}], s32 offen offset:{r*64} sc1")
        a("s_setprio 0")
    bar(a, opts, 6)
    if opts.get('xlate') == 1:
        lds_spin_eq(a, F_DMAD, 1)
        a("s_setprio 3")
        for r in range(2):
            a(f"buffer_store_dwordx4 {v(48+12*r+8,4)}, v8, s[{SRD_T0}:{SRD_T0+3}], s32 offen offset:{r*64} sc1")
        a("s_setprio 0")
        lds_inc(a, F_XST)
    if opts.get('xlate') in (3, 4):
        lds_spin_eq(a, F_DMAD, 1)
        for r in range(2):
            a(f"buffer_store_dwordx4 {v(48+12*r+8,4)}, v8, s[{SRD_T0}:{SRD_T0+3}], s32 offen offset:{r*64} sc1")
    bar(a, opts, 7)
    if not opts.get('xlate') or opts.get('xlate') == 4: xnt_flag(a, opts)
    a(f"""
    s_and_b32 s7, s{S_W}, 1
    s_cmp_eq_u32 s7, 0
    s_cbranch_scc1 {lab['even']}
    v_lshlrev_b32 v1, 4, v0
    v_add_u32 v1, s{S_TB}, v1
    """)
    for T in range(8):
        a(f"ds_write_b128 v1, {v(ACC+4*T,4)} offset:{T*1024}")
    a("s_waitcnt lgkmcnt(0)")
    a(f"s_lshr_b32 s7, s{S_W}, 1")
    a(f"s_lshl_b32 s7, s7, 2")
    a(f"s_add_u32 s7, s7, {F_PRDY}")
    lds_set(a, "s7")
    a(f"{lab['even']}:")
    conv_F(a, opts)

def conv_F(a, opts):
    S_W, S_TBK = 68, 69
    S_TB, S_CH, S_RH, S_C = 70, 71, 72, 73
    ACC, AF, BF = 16, 48, 112
    VA, VB = 8, 12
    KACC = 80
    a(f"s_setprio {opts.get('kprio',0)}")
    a(f"""
    v_mov_b32 v1, {F_NON}
    ds_read_b64 v[{V_NON}:{V_NON+1}], v1
    s_sub_u32 s{S_WP}, s{S_WAVE}, 4
    s_lshr_b32 s{S_C}, s{S_W}, 1
    s_and_b32 s{S_RH}, s{S_W}, 1
    s_lshl_b32 s{S_CH}, s2, 1
    s_add_u32 s{S_CH}, s{S_CH}, s{S_C}      ; channel
    s_mul_i32 s{S_TB}, s{S_C}, {CT_SZ}
    s_add_u32 s{S_TB}, s{S_TB}, {F_CT}
    """)
    map_B(a)
    srd(a, SRD_WS, SP['ws'], 19*MB)
    odd = a.label('codd'); join = a.label('cjoin')
    a(f"s_cmp_eq_u32 s{S_RH}, 1")
    a(f"s_cbranch_scc1 {odd}")
    a(f"s_lshl_b32 s26, s{S_C}, 2")
    a(f"s_add_u32 s26, s26, {F_PRDY}")
    lds_spin(a, ["s26"])
    a(f"""
    v_lshlrev_b32 v1, 4, v0
    v_add_u32 v2, s{S_TBK}, v1
    """)
    for T in range(8):
        a(f"ds_read_b128 {v(16+4*T,4)}, v2 offset:{8192 + T*1024}")
    a(f"""
    v_and_b32 v2, 15, v0
    v_lshlrev_b32 v2, 5, v2               ; 32*j
    v_lshrrev_b32 v3, 4, v0
    v_lshlrev_b32 v3, 3, v3               ; 8*q
    v_add_u32 v2, v2, v3
    v_sub_u32 v2, {504}, v2               ; 4088 - 512*7 - (32 j + 8 q)
    s_add_u32 s7, s{S_TB}, {CT_V0}
    v_add_u32 v2, s7, v2
    """)
    for T in range(8):
        a(f"s_waitcnt lgkmcnt({7-T})")
        for i in range(4):
            a(f"v_add_f32 v{KACC+4*T+i}, v{KACC+4*T+i}, v{16+4*T+i}")
        a(f"v_cvt_pk_bf16_f32 v{48+2*T}, v{KACC+4*T+3}, v{KACC+4*T+2}")
        a(f"v_cvt_pk_bf16_f32 v{49+2*T}, v{KACC+4*T+1}, v{KACC+4*T}")
    for T in range(8):
        a(f"ds_write_b64 v2, {v(48+2*T,2)} offset:{(7-T)*512}")
    a(f"""
    v_mov_b32 v6, 0
    v_mov_b32 v7, 0
    v_lshlrev_b32 v3, 3, v0
    s_add_u32 s7, s{S_TB}, {CT_V0+4096}
    v_add_u32 v2, s7, v3
    s_mov_b64 exec, 0xff
    ds_write_b64 v2, v[6:7]
    ds_write_b64 v2, v[6:7] offset:{CT_V1-CT_V0}
    s_mov_b64 exec, -1
    s_add_u32 s7, s{S_TB}, {CT_V0}
    v_add_u32 v2, s7, v1
    """)
    for i in range(4):
        a(f"ds_read_b128 {v(16+8*i,4)}, v2 offset:{i*1024}")
        a(f"ds_read_b32 v{20+8*i}, v2 offset:{i*1024+16}")
    for i in range(4):
        a(f"s_waitcnt lgkmcnt({6-2*i})")
        for j in range(4):
            a(f"v_alignbit_b32 v{48+4*i+j}, v{16+8*i+j+1}, v{16+8*i+j}, 16")
    for i in range(4):
        a(f"ds_write_b128 v2, {v(48+4*i,4)} offset:{CT_V1-CT_V0 + i*1024}")
    a("s_waitcnt lgkmcnt(0)")
    a(f"s_lshl_b32 s7, s{S_C}, 2")
    a(f"s_add_u32 s7, s7, {F_KRDY}")
    lds_set(a, "s7")
    a(f"s_branch {join}")
    a(f"{odd}:")
    a(f"""
    v_lshlrev_b32 v1, 4, v0
    v_mov_b32 v16, 0
    v_mov_b32 v17, 0
    v_mov_b32 v18, 0
    v_mov_b32 v19, 0
    v_add_u32 v3, s{S_TB}, v1
    s_mov_b64 exec, 0x3fffffff
    ds_write_b128 v3, v[16:19] offset:{CT_U}
    s_mov_b64 exec, -1
    """)
    a(f"{join}:")
    a("s_waitcnt lgkmcnt(0)")
    if opts.get('xlate') in (1, 3): xnt_flag(a, opts)
    if opts.get('noconv'):
        a("s_waitcnt vmcnt(0)")
        a(f"s_branch {opts['lfinal']}")
    ev = a.label('cev')
    a(f"s_cmp_eq_u32 s{S_RH}, 0")
    a(f"s_cbranch_scc1 {ev}")
    k3 = a.label('k3w'); k1 = a.label('k1d')
    if opts.get('onepoll', 1):
        a(f"s_cmp_lg_u32 s{S_W}, 1")
        a(f"s_cbranch_scc1 {k3}")
    a(f"""
    v_and_b32 v2, 15, v0
    v_lshlrev_b32 v2, 4, v2
    s_lshr_b32 s7, s2, 4
    v_add_u32 v2, s7, v2
    v_lshlrev_b32 v2, 7, v2
    v_add_u32 v2, {WS_FLAGX}, v2
    """)
    flag_poll(a, 2, 6, sleep=opts.get('xsleep', 4))
    if opts.get('onepoll', 1):
        lds_set(a, F_XRDY)
        a(f"s_branch {k1}")
        a(f"{k3}:")
        lds_spin(a, [F_XRDY])
        a(f"{k1}:")
    stamp(a, opts, 15)
    stamp(a, opts, 41, real=True)
    a(f"""
    s_lshl_b32 s26, s{S_CH}, 12
    s_add_u32 s26, s26, {WS_XT}
    v_lshlrev_b32 v1, 4, v0
    """)
    for i in range(4):
        a(f"buffer_load_dwordx4 {v(16+4*i,4)}, v1, s[{SRD_WS}:{SRD_WS+3}], s26 offen offset:{i*1024} sc1")
    a(f"v_add_u32 v3, s{S_TB}, v1")
    for i in range(4):
        a(f"s_waitcnt vmcnt({3-i})")
        a(f"ds_write_b128 v3, {v(16+4*i,4)} offset:{CT_U + 480 + i*1024}")
    a("s_waitcnt lgkmcnt(0)")
    a(f"s_lshl_b32 s7, s{S_C}, 2")
    a(f"s_add_u32 s7, s7, {F_URDY}")
    lds_set(a, "s7")
    a(f"{ev}:")
    a(f"""
    v_and_b32 v1, 15, v0                   ; b / a
    v_lshrrev_b32 v2, 4, v0                ; q
    v_lshrrev_b32 v3, 1, v1                ; beta
    v_lshlrev_b32 v6, 2, v2
    v_sub_u32 v6, v6, v3                   ; 4q - beta
    s_lshl_b32 s7, s{S_RH}, 6
    s_sub_u32 s7, {1015-128-48}, s7
    v_add_u32 v6, s7, v6
    v_lshlrev_b32 v6, 2, v6
    v_and_b32 v3, 1, v1
    v_xor_b32 v3, 1, v3
    v_mul_u32_u24 v3, {CT_V1-CT_V0}, v3
    v_add_u32 v6, v6, v3
    s_add_u32 s7, s{S_TB}, {CT_V0}
    v_add_u32 v{VA}, s7, v6
    v_subrev_u32 v{VA+1}, 1024, v{VA}
    v_subrev_u32 v{VA+2}, 2048, v{VA}
    v_subrev_u32 v{VA+3}, 3072, v{VA}
    v_lshlrev_b32 v3, 5, v1
    v_lshlrev_b32 v6, 4, v2
    v_add_u32 v3, v3, v6
    s_lshl_b32 s7, s{S_RH}, 8
    s_sub_u32 s7, {448-192}, s7
    s_add_u32 s7, s7, s{S_TB}
    v_add_u32 v{VB}, s7, v3
    """)
    for i in range(32): a(f"v_mov_b32 v{ACC+i}, 0")
    a(f"s_lshl_b32 s7, s{S_C}, 2")
    a(f"s_add_u32 s26, s7, {F_KRDY}")
    a(f"s_add_u32 s27, s7, {F_URDY}")
    lds_spin(a, ["s26", "s27"])
    a("s_waitcnt vmcnt(0)")
    stamp(a, opts, 16)
    dbgstamp(a, opts, 9, wave=9)
    a("v_lshlrev_b32 v5, 16, v151           ; Dskip")
    a(f"s_setprio {opts.get('cprio', 0)}")
    lg = LgTrack(a)
    def rdA(st, dl, rp):
        Dd, e = dl >> 1, dl & 1
        o = (1-e)*128 + (3-rp)*16
        r = AF + st*32 + dl*4
        return [(f"ds_read2_b32 {v(r,2)}, v{VA+Dd} offset0:{o} offset1:{o+1}", ('A', rp, dl)),
                (f"ds_read2_b32 {v(r+2,2)}, v{VA+Dd} offset0:{o+2} offset1:{o+3}", ('A', rp, dl))]
    def rdB(p, rp):
        return (f"ds_read_b128 {v(BF+p*4,4)}, v{VB} offset:{CT_U + 512*p + (3-rp)*64}", ('B', rp, p))
    def emit(x): a(x[0]); lg.op(x[1])
    emit(rdB(0, 0))
    for dl in range(8):
        for x in rdA(0, dl, 0): emit(x)
    for p in range(1, 8): emit(rdB(p, 0))
    for rp in range(4):
        st = rp & 1
        nxtA = []
        if rp < 3:
            for dl in range(8): nxtA += rdA(1-st, dl, rp+1)
        ni = 0
        for p in range(8):
            for dl in range(8-p):
                lg.wait([('A', rp, dl), ('B', rp, p)])
                a(f"v_mfma_f32_16x16x32_bf16 {v(ACC+4*(dl+p),4)}, {v(AF+st*32+dl*4,4)}, {v(BF+p*4,4)}, {v(ACC+4*(dl+p),4)}")
                if ni < len(nxtA): emit(nxtA[ni]); ni += 1
            if rp < 3: emit(rdB(p, rp+1))
    a(f"s_setprio {opts.get('pprio', 2)}")
    stamp(a, opts, 17)
    dbgstamp(a, opts, 10, wave=9)
    ex0 = a.label('ex0'); exd = a.label('exd')
    a(f"""
    v_lshlrev_b32 v13, 4, v0
    s_lshl_b32 s7, s{S_W}, 12
    s_add_u32 s7, s7, {F_EX}
    v_add_u32 v3, s7, v13
    s_cmp_eq_u32 s{S_RH}, 0
    s_nop 4
    s_cbranch_scc1 {ex0}
    """)
    for T in range(4): a(f"ds_write_b128 v3, {v(ACC+4*T,4)} offset:{T*1024}")
    for i in range(16): a(f"v_mov_b32 v{ACC+i}, v{ACC+16+i}")
    a(f"s_branch {exd}")
    a(f"{ex0}:")
    for T in range(4): a(f"ds_write_b128 v3, {v(ACC+16+4*T,4)} offset:{T*1024}")
    a(f"{exd}:")
    a("s_waitcnt lgkmcnt(0)")
    a(f"s_lshl_b32 s7, s{S_W}, 2")
    a(f"s_add_u32 s7, s7, {F_XFL}")
    lds_set(a, "s7")
    a(f"""
    s_xor_b32 s7, s{S_W}, 1
    s_lshl_b32 s26, s7, 2
    s_add_u32 s26, s26, {F_XFL}
    s_lshl_b32 s27, s7, 12
    s_add_u32 s27, s27, {F_EX}
    v_add_u32 v14, s27, v13
    """)
    lds_spin(a, ["s26"])
    for T in range(4): a(f"ds_read_b128 {v(32+4*T,4)}, v14 offset:{T*1024}")
    a(f"""
    v_and_b32 v1, 15, v0
    v_lshlrev_b32 v1, 5, v1
    v_lshrrev_b32 v2, 4, v0
    v_lshlrev_b32 v2, 3, v2
    v_add_u32 v1, v1, v2                   ; 2*(16a + 4q)
    s_lshl_b32 s7, s{S_RH}, 11
    s_add_u32 s24, s7, s{S_TB}
    v_add_u32 v2, s24, v1
    """)
    for k in range(4): a(f"ds_read_b64 {v(48+2*k,2)}, v2 offset:{CT_U + 480 + k*512}")
    if opts.get('ycomp', 1):
        a(f"""
        s_lshl_b32 s24, s{S_CH}, 12
        s_add_u32 s24, s24, {WS_Y}
        s_lshl_b32 s7, s{S_RH}, 11             ; 4 rh * 512
        s_add_u32 s24, s24, s7
        s_waitcnt lgkmcnt(0)
        """)
    else:
        a(f"""
        v_and_b32 v1, 15, v0
        v_lshlrev_b32 v1, 6, v1
        v_lshrrev_b32 v2, 4, v0
        v_lshlrev_b32 v2, 4, v2
        v_add_u32 v1, v1, v2
        s_lshl_b32 s24, s{S_CH}, 13
        s_add_u32 s24, s24, {WS_Y}
        s_lshl_b32 s7, s{S_RH}, 12
        s_add_u32 s24, s24, s7
        s_waitcnt lgkmcnt(0)
        """)
    for k in range(4):
        A = ACC + 4*k
        for i in range(4): a(f"v_add_f32 v{A+i}, v{A+i}, v{32+4*k+i}")
        U = 64
        a(f"v_cvt_pk_bf16_f32 v{U}, v{A}, v{A+1}")
        a(f"v_cvt_pk_bf16_f32 v{U+1}, v{A+2}, v{A+3}")
        for j in range(2):
            a(f"v_lshlrev_b32 v{U+2+2*j}, 16, v{48+2*k+j}")
            a(f"v_and_b32 v{U+3+2*j}, 0xffff0000, v{48+2*k+j}")
        for i in range(4): a(f"v_mul_f32 v{U+2+i}, v{U+2+i}, v5")
        a(f"v_cvt_pk_bf16_f32 v{U+6}, v{U+2}, v{U+3}")
        a(f"v_cvt_pk_bf16_f32 v{U+7}, v{U+4}, v{U+5}")
        for j in range(2):
            a(f"v_lshlrev_b32 v{U+2+2*j}, 16, v{U+6+j}")
            a(f"v_and_b32 v{U+3+2*j}, 0xffff0000, v{U+6+j}")
            a(f"v_lshlrev_b32 v{U+8+2*j}, 16, v{U+j}")
            a(f"v_and_b32 v{U+9+2*j}, 0xffff0000, v{U+j}")
        for i in range(4): a(f"v_add_f32 v{U+2+i}, v{U+2+i}, v{U+8+i}")
        O = 80 + 4*k
        a(f"v_cvt_pk_bf16_f32 v{O}, v{U+2}, v{U+3}")
        a(f"v_cvt_pk_bf16_f32 v{O+1}, v{U+4}, v{U+5}")
        if opts.get('ycomp', 1):
            a(f"buffer_store_dwordx2 {v(O,2)}, v1, s[{SRD_WS}:{SRD_WS+3}], s24 offen offset:{k*512} sc1")
        else:
            a(f"v_mov_b32 v{O+2}, v{V_NON}")
            a(f"v_mov_b32 v{O+3}, v{V_NON+1}")
            a(f"buffer_store_dwordx4 {v(O,4)}, v1, s[{SRD_WS}:{SRD_WS+3}], s24 offen offset:{k*1024} sc1")
    if opts.get('ycomp', 1):
        nfy = a.label('nfy')
        a("s_waitcnt vmcnt(0)")
        lds_count_last(a, F_CNTY, 4, nfy)
        flag_store(a, WS_FLAGY, "s2")
        a(f"{nfy}:")
    a(f"global_load_dwordx4 {v(V_XT,4)}, v{V_OFF}, s[{SP['x']}:{SP['x']+1}]")
    dbgstamp(a, opts, 11, wave=9)
    stamp(a, opts, 18)
    a("s_waitcnt vmcnt(0)")
    a(f"s_branch {opts['lfinal']}")

def final_F(a, opts):
    srd(a, SRD_O, SP['out'], 2097152)
    a(f"""
    s_and_b32 s7, s{S_WP}, 3
    s_lshl_b32 s7, s7, 4
    v_and_b32 v1, 15, v0
    v_add_u32 v2, s7, v1                  ; t
    v_mul_u32_u24 v2, {PROW}, v2
    s_lshr_b32 s24, s{S_WP}, 2
    s_lshl_b32 s24, s24, 2
    v_lshrrev_b32 v3, 4, v0
    v_add_u32 v3, s24, v3                 ; octet
    v_lshlrev_b32 v4, 5, v3
    v_add_u32 v2, v2, v4
    v_add_u32 v2, {F_P}, v2
    v_lshlrev_b32 v4, 3, v3
    v_lshrrev_b32 v5, 2, v1
    v_add_u32 v4, v4, v5
    v_mul_u32_u24 v4, 160, v4
    v_and_b32 v5, 3, v1
    v_lshlrev_b32 v5, 3, v5
    v_add_u32 v4, v4, v5
    s_lshl_b32 s7, s7, 1
    s_add_u32 s7, s7, {F_YT}
    v_add_u32 v4, s7, v4
    """)
    U = 56
    a("s_waitcnt vmcnt(4)") if False else None
    a("s_waitcnt lgkmcnt(0)")
    stamp(a, opts, 26)
    a("s_barrier")
    stamp(a, opts, 27)
    P = 16
    for pw in range(4):
        a(f"ds_read_b128 {v(P+8*pw,4)}, v2 offset:{pw*64*PROW}")
        a(f"ds_read_b128 {v(P+8*pw+4,4)}, v2 offset:{pw*64*PROW+16}")
    a(f"ds_read_b64_tr_b16 v[8:9], v4")
    a(f"ds_read_b64_tr_b16 v[10:11], v4 offset:{4*160}")
    for j in range(4):
        a(f"v_lshlrev_b32 v{U+2*j}, 16, v{V_XT+j}")
        a(f"v_and_b32 v{U+2*j+1}, 0xffff0000, v{V_XT+j}")
    a("s_waitcnt lgkmcnt(6)")
    for i in range(8): a(f"v_add_f32 v{P+i}, v{P+i}, v{P+8+i}")
    a("s_waitcnt lgkmcnt(2)")
    for i in range(8): a(f"v_add_f32 v{P+16+i}, v{P+16+i}, v{P+24+i}")
    for i in range(8): a(f"v_add_f32 v{P+i}, v{P+i}, v{P+16+i}")
    for j in range(4): a(f"v_cvt_pk_bf16_f32 v{48+j}, v{P+2*j}, v{P+2*j+1}")
    a("s_waitcnt lgkmcnt(0)")
    for j in range(4):
        a(f"v_lshlrev_b32 v{U+8+2*j}, 16, v{8+j}")
        a(f"v_and_b32 v{U+8+2*j+1}, 0xffff0000, v{8+j}")
    for i in range(8): a(f"v_add_f32 v{U+i}, v{U+i}, v{U+8+i}")
    for j in range(4): a(f"v_cvt_pk_bf16_f32 v{72+j}, v{U+2*j}, v{U+2*j+1}")
    for j in range(4):
        a(f"v_lshlrev_b32 v{U+2*j}, 16, v{72+j}")
        a(f"v_and_b32 v{U+2*j+1}, 0xffff0000, v{72+j}")
        a(f"v_lshlrev_b32 v{U+8+2*j}, 16, v{48+j}")
        a(f"v_and_b32 v{U+8+2*j+1}, 0xffff0000, v{48+j}")
    for i in range(8): a(f"v_add_f32 v{U+i}, v{U+i}, v{U+8+i}")
    for j in range(4): a(f"v_cvt_pk_bf16_f32 v{76+j}, v{U+2*j}, v{U+2*j+1}")
    a(f"buffer_store_dwordx4 v[76:79], v{V_OFF}, s[{SRD_O}:{SRD_O+3}], 0 offen {('', 'sc1', 'nt', 'sc0 sc1')[opts.get('osc', 0)]}")
    if opts.get('padto'):
        lp = a.label('pad')
        a(f"""
        s_waitcnt vmcnt(0)
        v_readfirstlane_b32 s28, v{V_NON}
        {lp}:
        s_memrealtime s[30:31]
        s_waitcnt lgkmcnt(0)
        s_sub_u32 s30, s30, s28
        s_cmp_lt_u32 s30, {opts['padto']}
        s_cbranch_scc1 {lp}
        """)
    dbgstamp(a, opts, 8, wave=4)
    stamp(a, opts, 28)
    if opts.get('ts'): a("s_waitcnt vmcnt(0)")
    stamp(a, opts, 8)
    stamp(a, opts, 7, real=True)
    stamp_flush(a, opts, 0)
    a("s_endpgm")

def gen_F(a, name, opts):
    import kerA
    MAP2[0] = opts.get('map2', 1)
    opts = dict(opts); opts['fused'] = 1
    opts['lfinal'] = a.label('final')
    if opts.get('cpf', 1):
        opts['abeg'] = name; opts['aend'] = 1
    a(kernel_head(name))
    lend = a.label('endF')
    kerA.prologue_A(a, lend, opts)
    lab = {k: a.label(k) for k in ('g','ld','h')}
    opts['lg2'] = a.label('gemm2')
    a(f"""
    s_cmp_lt_u32 s{S_WAVE}, 4
    s_cbranch_scc1 {lab['g']}
    s_cmp_lt_u32 s{S_WAVE}, 8
    s_cbranch_scc1 {lab['ld']}
    """)
    helper_F(a, opts)
    a(f"{lab['ld']}:"); kerA.loader_A(a, opts)
    a(f"s_branch {opts['lg2']}")
    a(f"{lab['g']}:"); kerA.gemm_A(a, opts)
    a(f"{opts['lg2']}:"); gemm2_F(a, opts)
    a(f"{opts['lfinal']}:"); final_F(a, opts)
    a(f"{lend}:")
    a("s_endpgm")
    a(".fill 3072, 4, 0xbf800000")
    a(kernel_desc(name, 168))
```
